```python
import torch

def _softmax(x, axis=-1):
    return torch.softmax(x, dim=axis)
def _gelu(x):
    return torch.nn.functional.gelu(x, approximate="tanh")
def _silu(x):
    return torch.nn.functional.silu(x)
def _sigmoid(x):
    return torch.sigmoid(x)
def _layernorm(x, axis=-1, eps=1e-5):
    m = x.mean(dim=axis, keepdim=True)
    v = x.var(dim=axis, keepdim=True, unbiased=False)
    return (x - m) / torch.sqrt(v + eps)
def _scatter_add(tgt, idx, src, axis=0):
    return tgt.clone().index_add_(axis, idx, src)
def _segment_sum(src, seg, n):
    out = torch.zeros((n,) + src.shape[1:], dtype=src.dtype)
    return out.index_add_(0, seg, src)
def _pad(x, pw):
    flat = tuple(v for pair in reversed(pw) for v in pair)
    return torch.nn.functional.pad(x, flat)

kernel_name = 'recurrent_scan__mha_block_cached__dense_activation_squared_relu__decode'

def setup_inputs():

    _w = (lambda a: (lambda t: t.to(torch.bfloat16) if t.is_floating_point() else t)(torch.as_tensor(a)))
    def _A_setup():
        B, Sq, D = 2, 1, 576
        H, Sk, Dh = 32, 4096, 128
        return {
            "x": _w((lambda *s: torch.randn(*s, dtype=torch.bfloat16) * 0.05)(B, Sq, D)),
            "k_cache": _w((lambda *s: torch.randn(*s, dtype=torch.bfloat16) * 0.8)(B, H, Sk, Dh)),
            "v_cache": _w((lambda *s: torch.randn(*s, dtype=torch.bfloat16) * 0.2)(B, H, Sk, Dh)),
            "wq": _w((lambda *s: torch.randn(*s, dtype=torch.bfloat16) * 0.8)(D, H * Dh) * (D ** -0.5)),
            "wo": _w((lambda *s: torch.randn(*s, dtype=torch.bfloat16) * 0.2)(H * Dh, D) * ((H * Dh) ** -0.5)),
        }
    _A_in = _A_setup()

    def _B_setup():
        B, S, D, F = 2, 1, 576, 4608
        return {
            "x": _w((lambda *s: torch.randn(*s, dtype=torch.bfloat16) * 0.05)(B, S, D)),
            "w1": _w((lambda *s: torch.randn(*s, dtype=torch.bfloat16) * 0.1)(D, F)),
            "b1": _w((lambda *s: torch.randn(*s, dtype=torch.bfloat16) * 0.8)(F)),
            "w2": _w((lambda *s: torch.randn(*s, dtype=torch.bfloat16) * 0.1)(F, D)),
            "b2": _w((lambda *s: torch.randn(*s, dtype=torch.bfloat16) * 12.8)(D)),
        }
    _B_in = _B_setup()

    return {
        "A_x": _A_in["x"],
        "A_k_cache": _A_in["k_cache"],
        "A_v_cache": _A_in["v_cache"],
        "A_wq": _A_in["wq"],
        "A_wo": _A_in["wo"],
        "B_x": _B_in["x"],
        "B_w1": _B_in["w1"],
        "B_b1": _B_in["b1"],
        "B_w2": _B_in["w2"],
        "B_b2": _B_in["b2"],
    }

def reference(A_x, A_k_cache, A_v_cache, A_wq, A_wo, B_x, B_w1, B_b1, B_w2, B_b2):
    def _A_ref(x, k_cache, v_cache, wq, wo):
        B, Sq, D = x.shape
        H, Dh = 32, 128
        q = (lambda x, *d: x.permute(*d))((x @ wq).reshape(B, Sq, H, Dh), 0, 2, 1, 3)
        scores = torch.einsum("bhqd,bhkd->bhqk", q, k_cache) * (Dh ** -0.5)
        p = _softmax(scores, axis=-1)
        o = torch.einsum("bhqk,bhkd->bhqd", p, v_cache)
        return (lambda x, *d: x.permute(*d))(o, 0, 2, 1, 3).reshape(B, Sq, H * Dh) @ wo

    def _B_ref(x, w1, b1, w2, b2):
        h = torch.einsum("bsd,df->bsf", x, w1) + b1
        zero = torch.zeros_like(h)
        r = torch.where(h > zero, h, zero)
        h = r * r
        out = torch.einsum("bsf,fd->bsd", h, w2) + b2
        return out

    x = A_x
    xn = _layernorm(x, axis=-1)
    s = _A_ref(xn, A_k_cache, A_v_cache, A_wq, A_wo)
    g = _silu(_B_ref(xn, B_w1, B_b1, B_w2, B_b2))
    return x + s * g
```

```python
import re

TRANS = ("v_exp_f32", "v_log_f32", "v_rcp_f32", "v_rsq_f32", "v_sqrt_f32", "v_sin_f32", "v_cos_f32")

def _expand(tok):
    tok = tok.strip()
    if tok.startswith("-"): tok = tok[1:]
    m = re.fullmatch(r"abs\((.*)\)", tok)
    if m: tok = m.group(1)
    m = re.fullmatch(r"([vas])(\d+)", tok)
    if m: return [(m.group(1), int(m.group(2)))]
    m = re.fullmatch(r"([vas])\[(\d+):(\d+)\]", tok)
    if m: return [(m.group(1), i) for i in range(int(m.group(2)), int(m.group(3)) + 1)]
    if tok == "vcc": return [("s", 106), ("s", 107)]
    if tok == "vcc_lo": return [("s", 106)]
    if tok == "vcc_hi": return [("s", 107)]
    if tok == "exec": return [("s", 126), ("s", 127)]
    if tok == "exec_lo": return [("s", 126)]
    if tok == "exec_hi": return [("s", 127)]
    if tok == "m0": return [("s", 124)]
    return []

class Ins:
    def __init__(self, text):
        self.text = text
        t = text.strip()
        parts = t.split(None, 1)
        self.mn = parts[0]
        rest = parts[1] if len(parts) > 1 else ""
        ops, cur, depth = [], "", 0
        for ch in rest:
            if ch == "[": depth += 1
            if ch == "]": depth -= 1
            if ch == "," and depth == 0:
                ops.append(cur.strip()); cur = ""
            else:
                cur += ch
        if cur.strip(): ops.append(cur.strip())
        self.mods = ""
        if ops:
            last = ops[-1].split(None, 1)
            ops[-1] = last[0]
            self.mods = last[1] if len(last) > 1 else ""
        self.ops = ops
        mn = self.mn
        self.valu = mn.startswith("v_") and not mn.startswith("v_mfma")
        self.mfma = mn.startswith("v_mfma")
        self.vmem = mn.startswith("buffer_") or mn.startswith("global_")
        self.ds = mn.startswith("ds_")
        self.salu = mn.startswith("s_")
        self.trans = any(mn.startswith(x) for x in TRANS)
        self.dpp = self.valu and ("row_" in self.mods or "quad_perm" in self.mods or "wave_" in self.mods or mn.endswith("_dpp"))
        self.permlane = mn.startswith("v_permlane")
        self.lane_read = mn.startswith("v_readlane") or mn.startswith("v_readfirstlane")
        self.w, self.r = set(), set()
        self.srcC = set()
        self.store_data = set()
        R = lambda k: set(_expand(ops[k])) if k < len(ops) else set()
        if self.mfma:
            self.w = R(0); self.r = R(1) | R(2) | R(3); self.srcC = R(3); self.srcAB = R(1) | R(2)
        elif self.valu:
            if mn.startswith("v_cmp"):
                self.w = R(0)
                for k in range(1, len(ops)): self.r |= R(k)
            elif self.permlane and "swap" in mn:
                self.w = R(0) | R(1); self.r = R(0) | R(1)
            elif mn.startswith(("v_add_co", "v_sub_co", "v_addc_co", "v_subb_co", "v_subrev_co")):
                self.w = R(0) | R(1)
                for k in range(2, len(ops)): self.r |= R(k)
            else:
                self.w = R(0)
                for k in range(1, len(ops)): self.r |= R(k)
                if mn.startswith(("v_fmac", "v_dot2c", "v_writelane")) or self.dpp:
                    self.r |= R(0)
                if mn.startswith("v_cndmask_b32") and len(ops) == 3:
                    self.r |= {("s", 106), ("s", 107)}
        elif self.vmem:
            if "load" in mn and " lds" not in (" " + self.mods):
                self.w = R(0)
                for k in range(1, len(ops)): self.r |= R(k)
            elif "store" in mn:
                for k in range(len(ops)): self.r |= R(k)
                d = R(0) if mn.startswith("buffer_") else R(1)
                if mn.endswith(("x3", "x4")): self.store_data = d
            elif "atomic" in mn:
                for k in range(len(ops)): self.r |= R(k)
                if "sc0" in self.mods: self.w = R(0)
            else:
                for k in range(len(ops)): self.r |= R(k)
        elif self.ds:
            if mn.startswith("ds_read") or mn.startswith("ds_bpermute") or mn.startswith("ds_swizzle"):
                self.w = R(0)
                for k in range(1, len(ops)): self.r |= R(k)
            else:
                for k in range(len(ops)): self.r |= R(k)
        elif self.salu:
            if mn.startswith(("s_cmp", "s_cbranch", "s_branch", "s_waitcnt", "s_nop", "s_barrier", "s_sleep", "s_endpgm", "s_setprio", "s_bitcmp")):
                for k in range(len(ops)): self.r |= R(k)
            else:
                self.w = R(0)
                for k in range(1, len(ops)): self.r |= R(k)
    def states(self):
        if self.mn == "s_nop":
            return int(self.ops[0], 0) + 1
        return 1

def need(prod, cons):
    n = 0
    vw = {x for x in prod.w if x[0] in "va"}
    sw = {x for x in prod.w if x[0] == "s"}
    if prod.valu:
        if vw & cons.r:
            if cons.dpp: n = max(n, 2)
            if cons.permlane: n = max(n, 2)
            if cons.lane_read: n = max(n, 1)
            if cons.mfma: n = max(n, 2)
            if prod.trans and cons.valu: n = max(n, 1)
        if sw & cons.r:
            if cons.valu: n = max(n, 2)
            if cons.lane_read: n = max(n, 4)
            if cons.vmem: n = max(n, 5)
        if ("s", 126) in sw:
            if cons.dpp: n = max(n, 5)
            if cons.mfma: n = max(n, 4)
            if cons.valu: n = max(n, 4)
    if prod.mfma:
        big = "32x32" in prod.mn
        raw = 12 if big else 8
        if cons.mfma:
            if prod.w & cons.srcAB: n = max(n, raw)
            if prod.w & cons.srcC:
                if prod.w != cons.srcC or prod.mn != cons.mn: n = max(n, 10 if big else 6)
        else:
            if (prod.w & cons.r) or (prod.w & cons.w): n = max(n, raw)
        if cons.valu and (prod.srcC & cons.w): n = max(n, 7 if big else 3)
    if prod.store_data and cons.valu and (prod.store_data & cons.w): n = max(n, 2)
    if prod.store_data and (not cons.valu) and (prod.store_data & {x for x in cons.w if x[0] in "va"}): n = max(n, 1)
    return n

class Asm:
    def __init__(self):
        self.items = []
    def __call__(self, text):
        for line in text.split("\n"):
            line = line.split(";")[0].strip() if not line.strip().startswith(".") else line.strip()
            if not line: continue
            if line.endswith(":"):
                self.items.append(("l", line[:-1]))
            elif line.startswith("."):
                self.items.append(("t", line))
            else:
                self.items.append(("i", Ins(line)))
    def label(self, n): self.items.append(("l", n))
    def raw(self, t): self.items.append(("t", t))
    def comment(self, t): self.items.append(("t", "; " + t))

    def fix_hazards(self, window=14):
        out = []
        hist = []
        inserted = 0
        for kind, it in self.items:
            if kind != "i":
                out.append((kind, it)); continue
            dist = 0; req = 0
            for p in reversed(hist[-window:]):
                nd = need(p, it)
                if nd > dist: req = max(req, nd - dist)
                dist += p.states()
                if dist >= 13: break
            while req > 0:
                k = min(req, 16)
                nop = Ins("s_nop %d" % (k - 1))
                out.append(("i", nop)); hist.append(nop); req -= k; inserted += 1
            out.append(("i", it)); hist.append(it)
            if it.mn in ("s_branch", "s_endpgm"):
                hist = []
        self.items = out
        idx = {}
        ins = [(k, x) for k, x in out]
        for n, (k, x) in enumerate(ins):
            if k == "l": idx[x] = n
        for n, (k, x) in enumerate(ins):
            if k == "i" and (x.mn.startswith("s_cbranch") or x.mn == "s_branch"):
                tgt = x.ops[0]
                if tgt not in idx: raise SystemExit("unknown label " + tgt)
                before = [y for kk, y in ins[max(0, n - 40):n + 1] if kk == "i"][-window:]
                after = [y for kk, y in ins[idx[tgt]:idx[tgt] + 40] if kk == "i"][:window]
                for ai, c in enumerate(after):
                    dist = sum(y.states() for y in after[:ai])
                    for p in reversed(before):
                        nd = need(p, c)
                        if nd > dist:
                            raise SystemExit("HAZARD across branch %s -> %s: '%s' then '%s' needs %d has %d" % (x.text, tgt, p.text, c.text, nd, dist))
                        dist += p.states()
                        if dist >= 13: break
        return inserted

    def text(self):
        L = []
        for k, x in self.items:
            if k == "i": L.append("  " + x.text)
            elif k == "l": L.append(x + ":")
            else: L.append(x)
        return "\n".join(L) + "\n"
```

```python
import sys, json
from asmfw import Asm

NAME = "recurrent_scan__mha_block_cached__dense_activation_squared_relu__decode_kernel"

EP = 0
QP = 0x10000
HP = 0x60000
OP = 0xA0000
ML = 0xC0000
SP = 0x100000
GP = 0x200000
TS = 0x300000
WS_BYTES = 0x400000
L_Q = 0x000
L_FC = 0x100
L_FB = 0x104
L_OW = 0x200
L_MLW = 0xA00
L_HT = 0xC00
L_PRIV = 0x1000
L_RED = 0x2000
LDS_BYTES = 0x2400

TAGB = 10
TAGM = (1 << TAGB) - 1
VALM = (~TAGM) & 0xffffffff
OOB = 0x40000000
LOG2E = 0x3fb8aa3b
SCALE = 0x3db504f3
SPIN = 1 << 17

def gen(D=6, NCH=16, stamps=False, nt=True, sleep=1):
    A = Asm()
    e = A
    NT = " nt" if nt else ""
    nstamp = [0]
    def stamp(k):
        if stamps:
            e(f"s_memrealtime s[{64+2*k}:{65+2*k}]")
    def dump_stamps(nk):
        if not stamps: return
        e("s_waitcnt lgkmcnt(0)")
        e("s_lshl_b32 s6, s2, 3")
        e("s_add_u32 s6, s6, s5")
        e("s_lshl_b32 s6, s6, 7")
        e(f"s_add_u32 s6, s6, {TS}")
        e("s_mov_b64 exec, 1")
        e("v_mov_b32 v1, 0")
        e(f"s_mov_b32 s60, s32\ns_mov_b32 s61, s33\ns_mov_b32 s62, {WS_BYTES}\ns_mov_b32 s63, 0x20000")
        for k in range(nk):
            e(f"v_mov_b32 v2, s{64+2*k}")
            e(f"buffer_store_dword v2, v1, s[60:63], s6 offen offset:{4*k}")
        e("s_mov_b64 exec, -1")

    A.raw("; @launch grid=(256,1,1) block=(512,1,1) lds=%d" % LDS_BYTES)
    A.raw('.amdgcn_target "amdgcn-amd-amdhsa--gfx950"')
    A.raw(".text")
    A.raw(f".globl {NAME}")
    A.raw(".p2align 8")
    A.raw(f".type {NAME},@function")
    A.label(NAME)
    e("s_cmp_ge_u32 s2, 256")
    e("s_cbranch_scc1 L_end")
    e("s_load_dwordx16 s[8:23], s[0:1], 0")
    e("s_load_dwordx8 s[24:31], s[0:1], 64")
    e("s_load_dwordx2 s[32:33], s[0:1], 96")
    stamp(0)
    e("v_lshrrev_b32 v1, 6, v0")
    e("v_and_b32 v0, 63, v0")
    e("v_readfirstlane_b32 s3, v1")
    e("s_lshr_b32 s34, s2, 3")
    e("s_and_b32 s35, s2, 7")
    e("v_and_b32 v1, 1, v0")
    e("v_lshlrev_b32 v1, 4, v1")
    e("v_mov_b32 v2, 0xffff")
    e("v_lshlrev_b32 v1, v1, v2")
    e("v_bfe_u32 v2, v0, 1, 2")
    for j in range(4):
        e(f"v_cmp_eq_u32 vcc, {j}, v2")
        e(f"v_cndmask_b32 v{6+j}, 0, v1, vcc")
    e("s_mov_b32 s5, s3")
    e("s_cmp_ge_u32 s3, 4")
    e("s_waitcnt lgkmcnt(0)")
    e("s_cbranch_scc1 L_stream")
    e("s_branch L_aux")

    A.label("L_stream")
    e("s_sub_u32 s3, s3, 4")
    e("s_lshr_b32 s36, s35, 2")
    e("s_lshl_b32 s36, s36, 5")
    e("s_add_u32 s36, s36, s34")
    e("s_lshl_b32 s36, s36, 20")
    e("s_and_b32 s37, s35, 3")
    e("s_lshl_b32 s37, s37, 18")
    e("s_add_u32 s36, s36, s37")
    e("s_add_u32 s48, s10, s36\ns_addc_u32 s49, s11, 0\ns_and_b32 s49, s49, 0xffff\ns_mov_b32 s50, 0x40000\ns_mov_b32 s51, 0x20000")
    e("s_add_u32 s52, s12, s36\ns_addc_u32 s53, s13, 0\ns_and_b32 s53, s53, 0xffff\ns_mov_b32 s54, 0x40000\ns_mov_b32 s55, 0x20000")
    e("s_lshl_b32 s37, s3, 12")
    e("v_lshlrev_b32 v1, 4, v0")
    e("v_add_u32 v1, s37, v1")
    KR = lambda s, t: 40 + 16 * s + 4 * t
    VR = lambda s, t: 16 * s + 4 * t
    def loadK(s):
        for t in range(4):
            r = KR(s, t)
            e(f"buffer_load_dwordx4 v[{r}:{r+3}], v1, s[48:51], s38 offen offset:{1024*t}{NT}")
    def loadV(s):
        for t in range(4):
            r = VR(s, t)
            e(f"buffer_load_dwordx4 a[{r}:{r+3}], v1, s[52:55], s38 offen offset:{1024*t}{NT}")
    for c in range(D):
        e(f"s_mov_b32 s38, {c*16384}")
        loadK(c); loadV(c)
    stamp(1)
    for r in range(4): e(f"v_mov_b32 v{10+r}, 0")
    e("v_mov_b32 v14, 0xff800000")
    e("v_mov_b32 v15, 0")
    e("v_and_b32 v16, 15, v0")
    e("v_lshlrev_b32 v16, 4, v16")
    e("s_mov_b32 s39, 0")
    e(f"s_mov_b32 s38, {D*16384}")
    e(f"s_mov_b32 s40, 0x{SCALE:x}")
    e(f"s_mov_b32 s41, 0x{LOG2E:x}")
    e("s_barrier")
    e(f"ds_read_b128 v[2:5], v16 offset:{L_Q}")
    e("s_waitcnt lgkmcnt(0)")
    stamp(2)
    NW = 4 + 8 * (D - 1)
    A.label("L_sloop")
    for s in range(D):
        e(f"s_cmp_lt_u32 s39, {NCH - D}")
        e("s_cselect_b32 s50, 0x40000, 0")
        e("s_mov_b32 s54, s50")
        e(f"s_waitcnt vmcnt({NW})")
        for jj in range(4):
            for t in range(4):
                k = KR(s, t) + jj
                if jj == 0: e(f"v_dot2_f32_bf16 v{16+t}, v{k}, v2, 0")
                else: e(f"v_dot2c_f32_bf16 v{16+t}, v{k}, v{2+jj}")
        loadK(s)
        e("v_add_f32_dpp v20, v16, v16 row_ror:8 row_mask:0xf bank_mask:0x3")
        e("v_add_f32_dpp v21, v18, v18 row_ror:8 row_mask:0xf bank_mask:0x3")
        e("v_add_f32_dpp v20, v17, v17 row_ror:8 row_mask:0xf bank_mask:0xc")
        e("v_add_f32_dpp v21, v19, v19 row_ror:8 row_mask:0xf bank_mask:0xc")
        e("v_add_f32_dpp v22, v20, v20 row_shl:4 row_mask:0xf bank_mask:0x5")
        e("v_add_f32_dpp v22, v21, v21 row_shr:4 row_mask:0xf bank_mask:0xa")
        e("v_add_f32_dpp v22, v22, v22 quad_perm:[1,0,3,2] row_mask:0xf bank_mask:0xf")
        e("v_add_f32_dpp v22, v22, v22 quad_perm:[2,3,0,1] row_mask:0xf bank_mask:0xf")
        e("v_cvt_pk_bf16_f32 v23, v22, v22")
        e("v_and_b32 v23, 0xffff0000, v23")
        e("v_mul_f32 v23, s40, v23")
        e("v_cvt_pk_bf16_f32 v23, v23, v23")
        e("v_and_b32 v23, 0xffff0000, v23")
        e("v_max_f32_dpp v24, v23, v23 row_ror:4 row_mask:0xf bank_mask:0xf")
        e("v_max_f32_dpp v24, v24, v24 row_ror:8 row_mask:0xf bank_mask:0xf")
        e("v_mov_b32 v25, v24")
        e("v_permlane16_swap_b32 v24, v25")
        e("v_max_f32 v24, v24, v25")
        e("v_mov_b32 v25, v24")
        e("v_permlane32_swap_b32 v24, v25")
        e("v_max3_f32 v24, v24, v25, v14")
        e("v_sub_f32 v25, v14, v24")
        e("v_sub_f32 v26, v23, v24")
        e("v_mul_f32 v25, s41, v25")
        e("v_mul_f32 v26, s41, v26")
        e("v_exp_f32 v25, v25")
        e("v_exp_f32 v26, v26")
        e("v_mov_b32 v14, v24")
        e("v_fma_f32 v15, v15, v25, v26")
        e("v_cvt_pk_bf16_f32 v27, v26, v26")
        for r in range(4): e(f"v_mul_f32 v{10+r}, v{10+r}, v25")
        e(f"s_waitcnt vmcnt({NW})")
        bank_lane = [0, 8, 4, 12]
        for t in range(4):
            B = 28 + 4 * (t & 1)
            for jj in range(4):
                e(f"v_and_b32_dpp v{B+jj}, v27, v{6+jj} row_newbcast:{bank_lane[t]} row_mask:0xf bank_mask:0xf")
            r = VR(s, t)
            e(f"v_mfma_f32_16x16x32_bf16 v[10:13], a[{r}:{r+3}], v[{B}:{B+3}], v[10:13]")
        loadV(s)
        if s == (NCH - D - 1) % D:
            e(f"s_cmp_eq_u32 s39, {NCH - D - 1}")
            e(f"s_cbranch_scc0 L_nosig")
            e("s_mov_b64 exec, 1")
            e(f"v_mov_b32 v28, {L_FC}")
            e("v_mov_b32 v29, 1")
            e("ds_add_u32 v28, v29")
            e("s_mov_b64 exec, -1")
            stamp(3)
            A.label("L_nosig")
        e("s_add_u32 s38, s38, 16384")
        e("s_add_u32 s39, s39, 1")
        e(f"s_cmp_eq_u32 s39, {NCH}")
        if s < D - 1:
            e("s_cbranch_scc1 L_sdone")
        else:
            e("s_cbranch_scc0 L_sloop")
    A.label("L_sdone")
    stamp(4)
    e("v_add_f32_dpp v15, v15, v15 row_ror:4 row_mask:0xf bank_mask:0xf")
    e("v_add_f32_dpp v15, v15, v15 row_ror:8 row_mask:0xf bank_mask:0xf")
    e("v_mov_b32 v25, v15")
    e("v_permlane16_swap_b32 v15, v25")
    e("v_add_f32 v15, v15, v25")
    e("v_mov_b32 v25, v15")
    e("v_permlane32_swap_b32 v15, v25")
    e("v_add_f32 v15, v15, v25")
    e("v_lshrrev_b32 v16, 4, v0")
    e("v_lshlrev_b32 v16, 7, v16")
    e("v_and_b32 v17, 7, v0")
    e("v_lshl_add_u32 v16, v17, 2, v16")
    e("s_lshl_b32 s37, s3, 9")
    e("v_add_u32 v16, s37, v16")
    for r in range(4):
        e(f"ds_write_b32 v16, v{10+r} offset:{L_OW + 32*r}")
    e("s_lshl_b32 s37, s3, 3")
    e("v_mov_b32 v17, s37")
    e(f"ds_write_b64 v17, v[14:15] offset:{L_MLW}")
    e("s_waitcnt lgkmcnt(0)")
    e("s_mov_b64 exec, 1")
    e(f"v_mov_b32 v28, {L_FB}")
    e("v_mov_b32 v29, 1")
    e("ds_add_u32 v28, v29")
    e("s_mov_b64 exec, -1")
    stamp(5)
    dump_stamps(6)
    e("s_endpgm")

    A.label("L_aux")
    e("s_setprio 3")
    e("s_load_dwordx2 s[46:47], s[32:33], 0")
    e(f"s_mov_b32 s48, s32\ns_and_b32 s49, s33, 0xffff\ns_mov_b32 s50, {WS_BYTES}\ns_mov_b32 s51, 0x20000")
    e("v_lshrrev_b32 v10, 4, v0")
    e("v_bfe_u32 v11, v0, 3, 1")
    e("v_and_b32 v12, 15, v0")
    e("s_cmp_ge_u32 s3, 2")
    e("s_cbranch_scc1 L_aux23")
    e("s_mov_b32 s60, s8\ns_and_b32 s61, s9, 0xffff\ns_mov_b32 s62, 2304\ns_mov_b32 s63, 0x20000")
    e("s_cmp_eq_u32 s3, 1")
    e("s_cbranch_scc1 L_p1")
    e("s_mul_i32 s36, s35, 72")
    e("s_mov_b32 s37, 18")
    e("s_mov_b32 s38, 8192")
    e("s_lshl_b32 s39, s34, 8")
    e("s_mul_i32 s40, s36, 8192")
    e("s_add_u32 s39, s39, s40")
    e("s_add_u32 s52, s14, s39\ns_addc_u32 s53, s15, 0")
    e("s_sub_u32 s54, 4718592, s39")
    e("s_mov_b32 s41, 99")
    e("s_mov_b32 s42, 1")
    e("s_branch L_p2")
    A.label("L_p1")
    e("s_mul_hi_u32 s43, s2, 0x71c71c8")
    e("s_mul_i32 s44, s43, 36")
    e("s_sub_u32 s44, s2, s44")
    e("s_mul_i32 s36, s43, 82")
    e("s_cmp_eq_u32 s43, 0")
    e("s_cselect_b32 s40, 0, 2")
    e("s_add_u32 s36, s36, s40")
    e("s_mov_b32 s37, 22")
    e("s_mov_b32 s38, 9216")
    e("s_lshl_b32 s39, s44, 8")
    e("s_mul_i32 s40, s36, 9216")
    e("s_add_u32 s39, s39, s40")
    e("s_add_u32 s52, s20, s39\ns_addc_u32 s53, s21, 0")
    e("s_sub_u32 s54, 5308416, s39")
    e("s_cmp_eq_u32 s43, 0")
    e("s_cselect_b32 s41, 99, 3")
    e("s_mov_b32 s42, 0")
    e("s_cmp_ge_u32 s2, 252")
    e("s_cselect_b32 s54, 0, s54")
    A.label("L_p2")
    e("s_and_b32 s53, s53, 0xffff\ns_mov_b32 s55, 0x20000")
    e("v_lshrrev_b32 v13, 5, v0")
    e("v_mul_u32_u24 v13, 1152, v13")
    e("v_and_b32 v14, 31, v0")
    e("v_mad_u32_u24 v13, v14, 36, v13")
    e("buffer_load_dwordx4 v[20:23], v13, s[60:63], 0 offen")
    e("buffer_load_dwordx4 v[24:27], v13, s[60:63], 0 offen offset:16")
    e("buffer_load_dword v28, v13, s[60:63], 0 offen offset:32")
    e("v_mul_lo_u32 v14, v10, s37")
    e("v_add_u32 v15, s36, v14")
    e("v_lshlrev_b32 v15, 1, v15")
    e("v_mul_u32_u24 v16, 1152, v11")
    e("v_add_u32 v15, v15, v16")
    e("buffer_load_dwordx4 v[30:33], v15, s[60:63], 0 offen")
    e("buffer_load_dwordx4 v[34:37], v15, s[60:63], 0 offen offset:16")
    e("buffer_load_dwordx3 v[38:40], v15, s[60:63], 0 offen offset:32")
    e("v_mul_lo_u32 v16, v14, s38")
    e("v_lshl_add_u32 v16, v12, 4, v16")
    e(f"v_mov_b32 v19, {OOB}")
    e("v_cmp_eq_u32 vcc, s41, v10")
    e("v_cndmask_b32 v17, v16, v19, vcc")
    e("v_cmp_eq_u32 vcc, 3, v10")
    e("v_cndmask_b32 v18, v16, v19, vcc")
    e("s_cmp_eq_u32 s42, 1")
    e("s_cbranch_scc0 L_p3")
    e("v_mov_b32 v18, v19")
    A.label("L_p3")
    e("s_mov_b32 s44, 0") if False else None
    e("s_mov_b32 s45, 0")
    for t in range(22):
        vo = 16 if t < 16 else (17 if t < 18 else 18)
        e(f"buffer_load_dwordx4 a[{4*t}:{4*t+3}], v{vo}, s[52:55], s45 offen{NT}")
        if t < 21: e("s_add_u32 s45, s45, s38")
    stamp(1)
    e("s_waitcnt vmcnt(25)")
    F = 44
    for k in range(9):
        e(f"v_lshlrev_b32 v{F+2*k}, 16, v{20+k}")
        e(f"v_and_b32 v{F+2*k+1}, 0xffff0000, v{20+k}")
    e(f"v_pk_add_f32 v[62:63], v[{F}:{F+1}], v[{F+2}:{F+3}]")
    for k in range(2, 9):
        e(f"v_pk_add_f32 v[62:63], v[62:63], v[{F+2*k}:{F+2*k+1}]")
    e("v_add_f32 v62, v62, v63")
    def red32(r, tmp):
        for sh in (8, 4, 2, 1):
            e(f"v_add_f32_dpp v{r}, v{r}, v{r} row_ror:{sh} row_mask:0xf bank_mask:0xf")
        e(f"v_mov_b32 v{tmp}, v{r}")
        e(f"v_permlane16_swap_b32 v{r}, v{tmp}")
        e(f"v_add_f32 v{r}, v{r}, v{tmp}")
    red32(62, 63)
    e("v_mul_f32 v62, 0x3ae38e39, v62")
    e("v_mov_b32 v63, v62")
    for k in range(9):
        e(f"v_pk_add_f32 v[{F+2*k}:{F+2*k+1}], v[{F+2*k}:{F+2*k+1}], v[62:63] neg_lo:[0,1] neg_hi:[0,1]")
    e(f"v_pk_mul_f32 v[64:65], v[{F}:{F+1}], v[{F}:{F+1}]")
    for k in range(1, 9):
        e(f"v_pk_fma_f32 v[64:65], v[{F+2*k}:{F+2*k+1}], v[{F+2*k}:{F+2*k+1}], v[64:65]")
    e("v_add_f32 v64, v64, v65")
    red32(64, 65)
    e("v_mul_f32 v64, 0x3ae38e39, v64")
    e("v_cvt_pk_bf16_f32 v62, v62, v62")
    e("v_and_b32 v62, 0xffff0000, v62")
    e("v_cvt_pk_bf16_f32 v64, v64, v64")
    e("v_and_b32 v64, 0xffff0000, v64")
    e("v_add_f32 v64, 0x3727c5ac, v64")
    e("v_cvt_pk_bf16_f32 v64, v64, v64")
    e("v_and_b32 v64, 0xffff0000, v64")
    e("v_sqrt_f32 v64, v64")
    e("v_cvt_pk_bf16_f32 v64, v64, v64")
    e("v_and_b32 v64, 0xffff0000, v64")
    e("v_rcp_f32 v64, v64")
    e("v_readlane_b32 s56, v62, 0")
    e("v_readlane_b32 s57, v62, 32")
    e("v_readlane_b32 s58, v64, 0")
    e("v_readlane_b32 s59, v64, 32")
    e("v_cmp_eq_u32 vcc, 1, v11")
    e("v_mov_b32 v62, s56")
    e("v_mov_b32 v63, s57")
    e("v_cndmask_b32 v62, v62, v63, vcc")
    e("v_mov_b32 v64, s58")
    e("v_mov_b32 v65, s59")
    e("v_cndmask_b32 v64, v64, v65, vcc")
    e("v_mov_b32 v63, v62")
    e("v_mov_b32 v65, v64")
    e("s_waitcnt vmcnt(22)")
    for k in range(11):
        x = 30 + k
        e(f"v_lshlrev_b32 v66, 16, v{x}")
        e(f"v_and_b32 v67, 0xffff0000, v{x}")
        e("v_pk_add_f32 v[66:67], v[66:67], v[62:63] neg_lo:[0,1] neg_hi:[0,1]")
        e("v_cvt_pk_bf16_f32 v68, v66, v67")
        e("v_lshlrev_b32 v66, 16, v68")
        e("v_and_b32 v67, 0xffff0000, v68")
        e("v_pk_mul_f32 v[66:67], v[66:67], v[64:65]")
        e(f"v_cvt_pk_bf16_f32 v{x}, v66, v67")
    stamp(2)
    e("s_mov_b32 s56, 0x01000100")
    e("s_mov_b32 s57, 0x03020302")
    for r in range(4): e(f"v_mov_b32 v{70+r}, 0")
    for t in range(22):
        B = 76 + 4 * (t & 1)
        e(f"v_perm_b32 v74, v{30 + t//2}, v{30 + t//2}, s{56 + (t & 1)}")
        for jj in range(4):
            e(f"v_and_b32 v{B+jj}, v74, v{6+jj}")
        e(f"s_waitcnt vmcnt({21 - t})")
        e(f"v_mfma_f32_16x16x32_bf16 v[70:73], a[{4*t}:{4*t+3}], v[{B}:{B+3}], v[70:73]")
    stamp(3)
    def make_tags():
        e("s_waitcnt lgkmcnt(0)")
        e("s_add_u32 s46, s46, 0x7f4a7c15\ns_addc_u32 s47, s47, 0x9e3779b9")
        e(f"s_and_b32 s44, s46, {TAGM}")
        e("v_mov_b32 v2, s44")
        e(f"s_bfe_u32 s44, s46, 0x{(TAGB<<16)|TAGB:x}")
        e("v_mov_b32 v3, s44")
        e(f"s_bfe_u32 s44, s46, 0x{(TAGB<<16)|(2*TAGB):x}")
        e("v_mov_b32 v4, s44")
        e("s_lshr_b64 s[56:57], s[46:47], 30")
        e(f"s_and_b32 s44, s56, {TAGM}")
        e("v_mov_b32 v5, s44")
        e(f"s_mov_b32 s44, {TAGM}")
        e(f"s_mov_b32 s45, 0x{VALM:x}")
    def tagpack(dst, src):
        for r in range(4):
            e(f"v_bfi_b32 v{dst+r}, s44, v{2+r}, v{src+r}")
    def tagcheck(regs, tmp):
        first = True
        for base in regs:
            for r in range(4):
                if first:
                    e(f"v_xor_b32 v{tmp}, v{base+r}, v{2+r}"); first = False
                else:
                    e(f"v_bitop3_b32 v{tmp}, v{base+r}, v{2+r}, v{tmp} bitop3:0xbe")
        e(f"v_and_b32 v{tmp}, s44, v{tmp}")
        e(f"v_cmp_eq_u32 vcc, 0, v{tmp}")
    pollid = [0]
    def poll(issue, regs, tmp, cnt="s4"):
        n = pollid[0]; pollid[0] += 1
        e(f"s_mov_b32 {cnt}, {SPIN}")
        A.label(f"L_poll{n}")
        issue()
        e("s_waitcnt vmcnt(0)")
        tagcheck(regs, tmp)
        e("s_cmp_eq_u64 vcc, exec")
        e(f"s_cbranch_scc1 L_pdone{n}")
        if sleep: e(f"s_sleep {sleep}")
        e(f"s_sub_u32 {cnt}, {cnt}, 1")
        e(f"s_cmp_lg_u32 {cnt}, 0")
        e(f"s_cbranch_scc1 L_poll{n}")
        A.label(f"L_pdone{n}")
    def ldsspin(addr, target):
        n = pollid[0]; pollid[0] += 1
        e(f"s_mov_b32 s4, {SPIN}")
        e(f"v_mov_b32 v20, {addr}")
        A.label(f"L_poll{n}")
        e("ds_read_b32 v21, v20")
        e("s_waitcnt lgkmcnt(0)")
        e("v_readfirstlane_b32 s6, v21")
        e(f"s_cmp_ge_u32 s6, {target}")
        e(f"s_cbranch_scc1 L_pdone{n}")
        if sleep: e(f"s_sleep {sleep}")
        e("s_sub_u32 s4, s4, 1")
        e("s_cmp_lg_u32 s4, 0")
        e(f"s_cbranch_scc1 L_poll{n}")
        A.label(f"L_pdone{n}")

    make_tags()
    e("s_cmp_eq_u32 s3, 1")
    e("s_cbranch_scc1 L_hpub")
    tagpack(74, 70)
    e("v_lshlrev_b32 v13, 4, v0")
    e("s_lshl_b32 s36, s2, 10")
    e(f"s_add_u32 s36, s36, {QP}")
    e("buffer_store_dwordx4 v[74:77], v13, s[48:51], s36 offen sc1")
    stamp(4)
    e("v_lshrrev_b32 v13, 5, v0")
    e("v_lshlrev_b32 v13, 10, v13")
    e("v_bfe_u32 v14, v0, 3, 2")
    e("v_lshl_add_u32 v13, v14, 8, v13")
    e("v_and_b32 v14, 7, v0")
    e("v_lshl_add_u32 v13, v14, 4, v13")
    e("s_lshr_b32 s37, s35, 2")
    e("s_lshl_b32 s37, s37, 7")
    e("s_lshl_b32 s36, s34, 13")
    e("s_add_u32 s36, s36, s37")
    e(f"s_add_u32 s36, s36, {QP}")
    e("s_add_u32 s37, s36, 4096")
    def issue_q():
        e("buffer_load_dwordx4 v[20:23], v13, s[48:51], s36 offen sc1")
        e("buffer_load_dwordx4 v[24:27], v13, s[48:51], s36 offen offset:2048 sc1")
        e("buffer_load_dwordx4 v[28:31], v13, s[48:51], s37 offen sc1")
        e("buffer_load_dwordx4 v[32:35], v13, s[48:51], s37 offen offset:2048 sc1")
    poll(issue_q, [20, 24, 28, 32], 36)
    for r in range(4):
        for k in range(4): e(f"v_and_b32 v{20+4*k+r}, s45, v{20+4*k+r}")
        e(f"v_add_f32 v{20+r}, v{20+r}, v{24+r}")
        e(f"v_add_f32 v{28+r}, v{28+r}, v{32+r}")
        e(f"v_add_f32 v{20+r}, v{20+r}, v{28+r}")
        e(f"v_mov_b32 v{24+r}, v{20+r}")
    for r in range(4):
        e(f"v_permlane32_swap_b32 v{20+r}, v{24+r}")
    for r in range(4):
        e(f"v_add_f32 v{20+r}, v{20+r}, v{24+r}")
    e("v_cvt_pk_bf16_f32 v24, v20, v21")
    e("v_cvt_pk_bf16_f32 v25, v22, v23")
    e("v_bfe_u32 v13, v0, 3, 2")
    e("v_lshlrev_b32 v13, 6, v13")
    e("v_and_b32 v14, 7, v0")
    e("v_lshl_add_u32 v13, v14, 1, v13")
    e(f"ds_write_b16 v13, v24 offset:{L_Q}")
    e(f"ds_write_b16_d16_hi v13, v24 offset:{L_Q+16}")
    e(f"ds_write_b16 v13, v25 offset:{L_Q+32}")
    e(f"ds_write_b16_d16_hi v13, v25 offset:{L_Q+48}")
    e("s_waitcnt lgkmcnt(0)")
    stamp(5)
    e("s_branch L_barA")
    A.label("L_hpub")
    e("s_cmp_ge_u32 s2, 252")
    e("s_cbranch_scc1 L_barA")
    e("v_lshlrev_b32 v13, 9, v11")
    e("v_lshl_add_u32 v13, v10, 7, v13")
    e("v_and_b32 v14, 7, v0")
    e("v_lshl_add_u32 v13, v14, 2, v13")
    for r in range(4):
        e(f"ds_write_b32 v13, v{70+r} offset:{L_HT + 32*r}")
    e("v_lshlrev_b32 v14, 4, v0")
    e("s_waitcnt lgkmcnt(0)")
    e(f"ds_read_b128 v[70:73], v14 offset:{L_HT}")
    e("v_lshrrev_b32 v13, 5, v0")
    e("v_mul_u32_u24 v13, 18432, v13")
    e("v_and_b32 v14, 31, v0")
    e("v_lshl_add_u32 v13, v14, 4, v13")
    e("s_mul_hi_u32 s43, s2, 0x71c71c8")
    e("s_mul_i32 s36, s43, 36")
    e("s_sub_u32 s36, s2, s36")
    e("s_lshl_b32 s36, s36, 9")
    e("s_mul_i32 s37, s43, 36864")
    e("s_add_u32 s36, s36, s37")
    e(f"s_add_u32 s36, s36, {HP}")
    e("s_waitcnt lgkmcnt(0)")
    tagpack(74, 70)
    e("buffer_store_dwordx4 v[74:77], v13, s[48:51], s36 offen sc1")
    stamp(4)
    e("s_branch L_barA")
    A.label("L_aux23")
    make_tags()
    e("s_mov_b64 exec, 1")
    e(f"v_mov_b32 v13, {L_FC}")
    e("v_mov_b32 v14, 0")
    e("v_mov_b32 v15, 0")
    e("ds_write_b64 v13, v[14:15]")
    e("s_mov_b64 exec, -1")
    e("s_waitcnt lgkmcnt(0)")
    A.label("L_barA")
    e("s_barrier")
    stamp(6)
    e("s_and_b32 s36, s35, 1")
    e("s_lshr_b32 s37, s2, 1")
    e("s_mov_b32 s40, 2\ns_mov_b32 s41, 0")
    e("s_cmp_ge_u32 s3, 2")
    e("s_cbranch_scc1 L_t23")
    e("s_mov_b32 s38, 0")
    e("s_lshl_b32 s39, s36, 1")
    e("s_add_u32 s39, s39, s3")
    e("s_branch L_tdone")
    A.label("L_t23")
    e("s_mov_b32 s38, 1")
    e("s_lshl_b32 s39, s36, 1")
    e("s_sub_u32 s39, s3, s39")
    e("s_cmp_eq_u32 s3, 2")
    e("s_cbranch_scc0 L_th2")
    e("s_mov_b32 s41, 4")
    e("s_xor_b32 s40, s36, 1")
    A.label("L_th2")
    e("s_mov_b64 exec, 0x3ffff")
    e("v_cmp_le_u32 vcc, 9, v0")
    e("v_cndmask_b32 v13, 0, 1, vcc")
    e("v_mul_u32_u24 v14, 9, v13")
    e("v_sub_u32 v14, v0, v14")
    e("v_mul_u32_u24 v15, 18432, v13")
    e("v_lshl_add_u32 v15, v14, 4, v15")
    e("s_mul_i32 s42, s37, 144")
    e(f"s_add_u32 s42, s42, {HP}")
    e("s_mov_b32 s60, s22\ns_and_b32 s61, s23, 0xffff\ns_mov_b32 s62, 9216\ns_mov_b32 s63, 0x20000")
    e("s_mul_i32 s43, s37, 72")
    e("v_lshlrev_b32 v16, 3, v14")
    e("buffer_load_dwordx2 v[18:19], v16, s[60:63], s43 offen")
    def issue_h():
        e("s_mov_b32 s43, s42")
        for k in range(7):
            e(f"buffer_load_dwordx4 v[{20+4*k}:{23+4*k}], v15, s[48:51], s43 offen sc1")
            if k < 6: e("s_add_u32 s43, s43, 36864")
    poll(issue_h, [20 + 4 * k for k in range(7)], 48)
    for r in range(4):
        for k in range(7): e(f"v_and_b32 v{20+4*k+r}, s45, v{20+4*k+r}")
        for k in range(1, 7): e(f"v_add_f32 v{20+r}, v{20+r}, v{20+4*k+r}")
    e("v_lshlrev_b32 v24, 16, v18\nv_and_b32 v25, 0xffff0000, v18\nv_lshlrev_b32 v26, 16, v19\nv_and_b32 v27, 0xffff0000, v19")
    for r in range(4):
        e(f"v_cvt_pk_bf16_f32 v{20+r}, v{20+r}, v{20+r}")
        e(f"v_and_b32 v{20+r}, 0xffff0000, v{20+r}")
        e(f"v_add_f32 v{20+r}, v{20+r}, v{24+r}")
        e(f"v_cvt_pk_bf16_f32 v{20+r}, v{20+r}, v{20+r}")
        e(f"v_and_b32 v{20+r}, 0xffff0000, v{20+r}")
        e(f"v_max_f32 v{20+r}, 0, v{20+r}")
        e(f"v_mul_f32 v{20+r}, v{20+r}, v{20+r}")
        e(f"v_cvt_pk_bf16_f32 v{20+r}, v{20+r}, v{20+r}")
    e("v_mul_u32_u24 v16, 144, v13")
    e("v_lshl_add_u32 v16, v14, 4, v16")
    e("s_lshl_b32 s43, s3, 10")
    e("v_add_u32 v16, s43, v16")
    e(f"ds_write_b128 v16, v[20:23] offset:{L_PRIV}")
    e("s_mov_b64 exec, -1")
    e("s_waitcnt lgkmcnt(0)")
    A.label("L_tdone")
    stamp(7)
    def task_srd(srd, typ, beta, voff):
        n = pollid[0]; pollid[0] += 1
        e(f"s_cmp_eq_u32 {typ}, 1")
        e(f"s_cbranch_scc1 L_sw2_{n}")
        e("s_mul_i32 s42, s37, 36864")
        e(f"s_lshl_b32 s43, {beta}, 8")
        e("s_add_u32 s42, s42, s43")
        e(f"s_add_u32 s{srd}, s16, s42\ns_addc_u32 s{srd+1}, s17, 0")
        e(f"s_sub_u32 s{srd+2}, 4718592, s42")
        e("s_mov_b32 s43, 9216")
        e(f"s_branch L_sd_{n}")
        A.label(f"L_sw2_{n}")
        e("s_mul_i32 s42, s37, 41472")
        e(f"s_lshl_b32 s43, {beta}, 8")
        e("s_add_u32 s42, s42, s43")
        e(f"s_add_u32 s{srd}, s24, s42\ns_addc_u32 s{srd+1}, s25, 0")
        e(f"s_sub_u32 s{srd+2}, 5308416, s42")
        e("s_mov_b32 s43, 10368")
        A.label(f"L_sd_{n}")
        e(f"s_and_b32 s{srd+1}, s{srd+1}, 0xffff\ns_mov_b32 s{srd+3}, 0x20000")
        e(f"s_cmp_eq_u32 {typ}, 2")
        e(f"s_cselect_b32 s{srd+2}, 0, s{srd+2}")
        e(f"v_mul_lo_u32 v{voff}, v10, s43")
        e(f"v_lshl_add_u32 v{voff}, v12, 4, v{voff}")
        e(f"v_mov_b32 v19, {OOB}")
        e("v_cmp_le_u32 vcc, 8, v12")
        e(f"v_cndmask_b32 v18, v{voff}, v19, vcc")
        e(f"s_cmp_eq_u32 {beta}, 4")
        e(f"s_cbranch_scc0 L_se_{n}")
        e(f"v_mov_b32 v{voff}, v18")
        A.label(f"L_se_{n}")
    task_srd(52, "s38", "s39", 13)
    task_srd(56, "s40", "s41", 14)
    e(f"v_mov_b32 v19, {OOB}")
    e("s_cmp_eq_u32 s38, 0\ns_cselect_b64 vcc, -1, 0")
    e("v_cndmask_b32 v15, v13, v19, vcc")
    e("s_cmp_eq_u32 s40, 0\ns_cselect_b64 vcc, -1, 0")
    e("v_cndmask_b32 v16, v14, v19, vcc")
    ldsspin(L_FC, 4)
    stamp(8)
    e("s_mov_b32 s42, 0")
    for t in range(9):
        vo = 13 if t < 8 else 15
        e(f"buffer_load_dwordx4 a[{4*t}:{4*t+3}], v{vo}, s[52:55], s42 offen{NT}")
        e("s_add_u32 s42, s42, 1152") if t < 8 else None
    e("s_mov_b32 s42, 0")
    for t in range(9):
        vo = 14 if t < 8 else 16
        e(f"buffer_load_dwordx4 a[{36+4*t}:{36+4*t+3}], v{vo}, s[56:59], s42 offen{NT}")
        e("s_add_u32 s42, s42, 1152") if t < 8 else None
    e("s_cmp_eq_u32 s3, 3")
    e("s_cbranch_scc0 L_nocomb")
    ldsspin(L_FB, 4)
    stamp(9)
    e("v_and_b32 v20, 31, v0")
    e("v_lshlrev_b32 v20, 4, v20")
    for w in range(4):
        e(f"ds_read_b128 v[{24+4*w}:{27+4*w}], v20 offset:{L_OW + 512*w}")
    e("v_mov_b32 v21, 0")
    e(f"ds_read_b128 v[40:43], v21 offset:{L_MLW}")
    e(f"ds_read_b128 v[44:47], v21 offset:{L_MLW+16}")
    e("s_waitcnt lgkmcnt(0)")
    e("v_max3_f32 v48, v40, v42, v44")
    e("v_max_f32 v48, v48, v46")
    e(f"s_mov_b32 s42, 0x{LOG2E:x}")
    for w in range(4):
        e(f"v_sub_f32 v{40+2*w}, v{40+2*w}, v48")
    for w in range(4):
        e(f"v_mul_f32 v{40+2*w}, s42, v{40+2*w}")
    for w in range(4):
        e(f"v_exp_f32 v{40+2*w}, v{40+2*w}")
    e("v_mul_f32 v49, v40, v41")
    for w in range(1, 4):
        e(f"v_fmac_f32 v49, v{40+2*w}, v{41+2*w}")
    for r in range(4):
        e(f"v_mul_f32 v{50+r}, v40, v{24+r}")
        for w in range(1, 4):
            e(f"v_fmac_f32 v{50+r}, v{40+2*w}, v{24+4*w+r}")
    e("v_cmp_eq_u32 vcc, 32, v0")
    e("v_mov_b32 v21, 0")
    e("v_cndmask_b32 v50, v50, v48, vcc")
    e("v_cndmask_b32 v51, v51, v49, vcc")
    e("v_cndmask_b32 v52, v52, v21, vcc")
    e("v_cndmask_b32 v53, v53, v21, vcc")
    tagpack(54, 50)
    e("s_lshl_b32 s42, s2, 9")
    e(f"s_add_u32 s42, s42, {OP}")
    e("v_add_u32 v20, s42, v20")
    e("s_lshl_b32 s42, s2, 4")
    e(f"s_add_u32 s42, s42, {ML}")
    e("v_mov_b32 v21, s42")
    e("v_cndmask_b32 v20, v20, v21, vcc")
    e("s_mov_b32 exec_lo, -1\ns_mov_b32 exec_hi, 1")
    e("buffer_store_dwordx4 v[54:57], v20, s[48:51], 0 offen sc1")
    e("s_mov_b64 exec, -1")
    stamp(10)
    A.label("L_nocomb")

    def blocktask(which, typ, beta, abase):
        n = pollid[0]; pollid[0] += 1
        e(f"s_cmp_eq_u32 {typ}, 2")
        e(f"s_cbranch_scc1 L_bt_end{n}")
        e(f"s_cmp_eq_u32 {typ}, 1")
        e(f"s_cbranch_scc1 L_bt_w2{n}")
        e("v_lshrrev_b32 v20, 3, v0")
        e("v_lshlrev_b32 v21, 9, v20")
        e("v_and_b32 v22, 7, v0")
        e("v_lshl_add_u32 v21, v22, 4, v21")
        e("v_lshlrev_b32 v20, 4, v20")
        e("s_lshr_b32 s42, s35, 1")
        e("s_lshl_b32 s42, s42, 7")
        e("s_lshl_b32 s43, s34, 12")
        e("s_add_u32 s42, s42, s43")
        e(f"s_add_u32 s42, s42, {OP}")
        e("s_lshl_b32 s43, s34, 7")
        e(f"s_add_u32 s43, s43, {ML}")
        def issue_o():
            e("buffer_load_dwordx4 v[24:27], v21, s[48:51], s42 offen sc1")
            e("buffer_load_dwordx4 v[28:31], v20, s[48:51], s43 offen sc1")
        poll(issue_o, [24, 28], 32)
        stamp(11)
        for r in range(4): e(f"v_and_b32 v{24+r}, s45, v{24+r}")
        e("v_and_b32 v28, s45, v28")
        e("v_and_b32 v29, s45, v29")
        e("v_max_f32_dpp v30, v28, v28 row_ror:8 row_mask:0xf bank_mask:0xf")
        e("v_mov_b32 v31, v30")
        e("v_permlane16_swap_b32 v30, v31")
        e("v_max_f32 v30, v30, v31")
        e("v_sub_f32 v28, v28, v30")
        e(f"v_mul_f32 v28, 0x{LOG2E:x}, v28")
        e("v_exp_f32 v28, v28")
        e("v_mul_f32 v29, v29, v28")
        for r in range(4): e(f"v_mul_f32 v{24+r}, v{24+r}, v28")
        for r in (29, 24, 25, 26, 27):
            e(f"v_add_f32_dpp v{r}, v{r}, v{r} row_ror:8 row_mask:0xf bank_mask:0xf")
        for k, r in enumerate((29, 24, 25, 26, 27)):
            e(f"v_mov_b32 v{32+k}, v{r}")
        for k, r in enumerate((29, 24, 25, 26, 27)):
            e(f"v_permlane16_swap_b32 v{r}, v{32+k}")
        for k, r in enumerate((29, 24, 25, 26, 27)):
            e(f"v_add_f32 v{r}, v{r}, v{32+k}")
        e("v_rcp_f32 v29, v29")
        for r in range(4): e(f"v_mul_f32 v{24+r}, v{24+r}, v29")
        for r in range(4): e(f"v_cvt_pk_bf16_f32 v{24+r}, v{24+r}, v{24+r}")
        e("v_lshrrev_b32 v20, 5, v0")
        e("v_lshlrev_b32 v20, 7, v20")
        e("v_lshl_add_u32 v20, v22, 4, v20")
        e("s_lshl_b32 s42, s3, 10")
        e("v_add_u32 v20, s42, v20")
        e(f"ds_write_b128 v20, v[24:27] offset:{L_PRIV + 0x200}")
        e("v_lshlrev_b32 v20, 7, v11")
        e("v_lshl_add_u32 v20, v10, 5, v20")
        e("v_add_u32 v20, s42, v20")
        e(f"v_add_u32 v20, {L_PRIV + 0x200}, v20")
        e(f"s_mov_b32 s43, {SP}")
        e(f"s_branch L_bt_go{n}")
        A.label(f"L_bt_w2{n}")
        e("v_mul_u32_u24 v20, 144, v11")
        e("v_mad_u32_u24 v20, v10, 36, v20")
        e("s_lshl_b32 s42, s3, 10")
        e("v_add_u32 v20, s42, v20")
        e(f"v_add_u32 v20, {L_PRIV}, v20")
        e(f"s_mov_b32 s43, {GP}")
        A.label(f"L_bt_go{n}")
        e("s_waitcnt lgkmcnt(0)")
        for t in range(9):
            e(f"ds_read_b32 v{24+t}, v20 offset:{4*t}")
        for r in range(4): e(f"v_mov_b32 v{70+r}, 0")
        e("s_waitcnt lgkmcnt(0)")
        e(f"s_cmp_eq_u32 {typ}, 0\ns_cselect_b64 vcc, -1, 0")
        e("v_cndmask_b32 v32, v32, 0, vcc") if False else None
        e("v_mov_b32 v33, 0")
        e("v_cndmask_b32 v32, v32, v33, vcc")
        e(f"s_waitcnt vmcnt({WAITX if which == 'X' else 0})")
        for t in range(9):
            B = 76 + 4 * (t & 1)
            for jj in range(4):
                e(f"v_and_b32 v{B+jj}, v{24+t}, v{6+jj}")
            e(f"v_mfma_f32_16x16x32_bf16 v[70:73], a[{abase+4*t}:{abase+4*t+3}], v[{B}:{B+3}], v[70:73]")
        tagpack(74, 70)
        e(f"s_lshl_b32 s42, {beta}, 17")
        e("s_add_u32 s43, s43, s42")
        e("s_lshl_b32 s42, s37, 7")
        e("s_add_u32 s43, s43, s42")
        e("v_lshrrev_b32 v20, 3, v0")
        e("v_lshlrev_b32 v20, 14, v20")
        e("v_and_b32 v21, 7, v0")
        e("v_lshl_add_u32 v20, v21, 4, v20")
        e(f"v_mov_b32 v21, {OOB}")
        e("v_cmp_le_u32 vcc, 32, v0")
        e("v_cndmask_b32 v21, v20, v21, vcc")
        e(f"s_cmp_eq_u32 {beta}, 4")
        e(f"s_cbranch_scc0 L_bt_st{n}")
        e("v_mov_b32 v20, v21")
        A.label(f"L_bt_st{n}")
        e("buffer_store_dwordx4 v[74:77], v20, s[48:51], s43 offen sc1")
        A.label(f"L_bt_end{n}")
    WAITX = 0
    blocktask("X", "s38", "s39", 0)
    stamp(12)
    blocktask("Y", "s40", "s41", 36)
    stamp(13)

    e("s_cmp_ge_u32 s2, 36")
    e("s_cbranch_scc1 L_auxend")
    e("s_lshr_b32 s36, s2, 3")
    e("s_and_b32 s37, s2, 7")
    e("s_lshl_b32 s38, s36, 7")
    e("s_lshr_b32 s39, s37, 1")
    e("s_lshl_b32 s39, s39, 5")
    e("s_add_u32 s38, s38, s39")
    e("s_and_b32 s39, s37, 1")
    e("s_mul_i32 s39, s39, 576")
    e("s_add_u32 s39, s39, s38")
    e("s_mov_b32 s60, s8\ns_and_b32 s61, s9, 0xffff\ns_mov_b32 s62, 2304\ns_mov_b32 s63, 0x20000")
    e("s_mov_b32 s56, s26\ns_and_b32 s57, s27, 0xffff\ns_mov_b32 s58, 1152\ns_mov_b32 s59, 0x20000")
    e("v_lshlrev_b32 v13, 1, v0")
    e("s_lshl_b32 s40, s39, 1")
    e("s_lshl_b32 s41, s38, 1")
    e("s_mov_b32 exec_lo, -1\ns_mov_b32 exec_hi, 0")
    e("buffer_load_ushort v14, v13, s[60:63], s40 offen")
    e("buffer_load_ushort v15, v13, s[56:59], s41 offen")
    e("s_mov_b64 exec, -1")
    e("v_lshlrev_b32 v16, 4, v0")
    e("s_lshl_b32 s42, s2, 14")
    e("s_lshl_b32 s43, s3, 12")
    e("s_add_u32 s42, s42, s43")
    for kind, base in ((0, GP), (1, SP)):
        e(f"s_add_u32 s43, s42, {base}")
        def issue_r():
            for k in range(4):
                e(f"buffer_load_dwordx4 v[{20+4*k}:{23+4*k}], v16, s[48:51], s43 offen offset:{1024*k} sc1")
        poll(issue_r, [20, 24, 28, 32], 36)
        stamp(14 + kind)
        for r in range(4):
            for k in range(4): e(f"v_and_b32 v{20+4*k+r}, s45, v{20+4*k+r}")
            e(f"v_add_f32 v{20+r}, v{20+r}, v{24+r}")
            e(f"v_add_f32 v{28+r}, v{28+r}, v{32+r}")
            e(f"v_add_f32 v{20+r}, v{20+r}, v{28+r}")
        for r in range(4):
            e(f"v_add_f32_dpp v{20+r}, v{20+r}, v{20+r} row_ror:8 row_mask:0xf bank_mask:0xf")
        for r in range(4): e(f"v_mov_b32 v{24+r}, v{20+r}")
        for r in range(4): e(f"v_permlane16_swap_b32 v{20+r}, v{24+r}")
        for r in range(4): e(f"v_add_f32 v{20+r}, v{20+r}, v{24+r}")
        for r in range(4): e(f"v_mov_b32 v{24+r}, v{20+r}")
        for r in range(4): e(f"v_permlane32_swap_b32 v{20+r}, v{24+r}")
        for r in range(4): e(f"v_add_f32 v{20+r}, v{20+r}, v{24+r}")
        e("v_and_b32 v17, 7, v0")
        e("v_lshlrev_b32 v17, 4, v17")
        e("s_lshl_b32 s43, s3, 7")
        e("v_add_u32 v17, s43, v17")
        e(f"ds_write_b128 v17, v[20:23] offset:{L_RED + 512*kind}")
    e("s_waitcnt lgkmcnt(0)")
    e("s_barrier")
    e("s_cmp_eq_u32 s3, 0")
    e("s_cbranch_scc0 L_auxend")
    e("v_and_b32 v17, 7, v0")
    e("v_lshlrev_b32 v17, 4, v17")
    e("v_bfe_u32 v18, v0, 3, 2")
    e("v_lshl_add_u32 v17, v18, 2, v17")
    for kind in range(2):
        for a in range(4):
            e(f"ds_read_b32 v{20+4*kind+a}, v17 offset:{L_RED + 512*kind + 128*a}")
    e("s_waitcnt lgkmcnt(0)")
    for kind in range(2):
        b = 20 + 4 * kind
        e(f"v_add_f32 v{b}, v{b}, v{b+1}")
        e(f"v_add_f32 v{b+2}, v{b+2}, v{b+3}")
        e(f"v_add_f32 v{b}, v{b}, v{b+2}")
    def rnd(r):
        e(f"v_cvt_pk_bf16_f32 v{r}, v{r}, v{r}")
        e(f"v_and_b32 v{r}, 0xffff0000, v{r}")
    e("s_waitcnt vmcnt(0)")
    e("v_lshlrev_b32 v14, 16, v14")
    e("v_lshlrev_b32 v15, 16, v15")
    rnd(20); rnd(24)
    e("v_add_f32 v20, v20, v15")
    rnd(20)
    e(f"v_mul_f32 v21, 0x{(LOG2E ^ 0x80000000):x}, v20")
    e("v_exp_f32 v21, v21")
    e("v_add_f32 v21, 1.0, v21")
    e("v_rcp_f32 v21, v21")
    e("v_mul_f32 v20, v20, v21")
    rnd(20)
    e("v_mul_f32 v20, v24, v20")
    rnd(20)
    e("v_add_f32 v20, v14, v20")
    e("v_cvt_pk_bf16_f32 v20, v20, v20")
    e("s_mov_b32 s60, s28\ns_and_b32 s61, s29, 0xffff\ns_mov_b32 s62, 2304\ns_mov_b32 s63, 0x20000")
    e("s_mov_b32 exec_lo, -1\ns_mov_b32 exec_hi, 0")
    e("buffer_store_short v20, v13, s[60:63], s40 offen")
    e("s_mov_b64 exec, -1")
    e("s_cmp_eq_u32 s2, 0")
    e("s_cbranch_scc0 L_auxend")
    e("s_mov_b64 exec, 1")
    e("v_mov_b32 v20, s46\nv_mov_b32 v21, s47\nv_mov_b32 v22, 0")
    e("buffer_store_dwordx2 v[20:21], v22, s[48:51], 0 offen sc1")
    e("s_mov_b64 exec, -1")
    A.label("L_auxend")
    stamp(15 + 1) if False else None
    dump_stamps(16)
    A.label("L_end")
    e("s_endpgm")
    A.raw('.section .rodata,"a"')
    A.raw(".p2align 6")
    A.raw(f".amdhsa_kernel {NAME}")
    acc = 40 + 16 * D
    acc = (acc + 3) // 4 * 4
    A.raw(f"  .amdhsa_next_free_vgpr {acc + max(16 * D, 88)}")
    A.raw("  .amdhsa_next_free_sgpr 100")
    A.raw(f"  .amdhsa_accum_offset {acc}")
    A.raw("  .amdhsa_group_segment_fixed_size 0")
    A.raw("  .amdhsa_kernarg_size 104")
    A.raw("  .amdhsa_user_sgpr_count 2")
    A.raw("  .amdhsa_user_sgpr_kernarg_segment_ptr 1")
    A.raw("  .amdhsa_system_sgpr_workgroup_id_x 1")
    A.raw("  .amdhsa_float_denorm_mode_32 3")
    A.raw(".end_amdhsa_kernel")
    n = A.fix_hazards()
    return A.text(), n

if __name__ == "__main__":
    cfg = json.loads(sys.argv[2]) if len(sys.argv) > 2 else {}
    t, n = gen(**cfg)
    hdr = open("cdna_kernels/" + NAME[:-7] + ".s.ref").read().split("; Override launch")[0]
    lines = t.split("\n")
    out = hdr + lines[0] + "\n" + "\n".join(lines[1:])
    open(sys.argv[1], "w").write(out)
    print("nops inserted:", n)
```

```python
import re

TRANS = ("v_exp_f32", "v_log_f32", "v_rcp_f32", "v_rsq_f32", "v_sqrt_f32", "v_sin_f32", "v_cos_f32")

def _expand(tok):
    tok = tok.strip()
    if tok.startswith("-"): tok = tok[1:]
    m = re.fullmatch(r"abs\((.*)\)", tok)
    if m: tok = m.group(1)
    m = re.fullmatch(r"([vas])(\d+)", tok)
    if m: return [(m.group(1), int(m.group(2)))]
    m = re.fullmatch(r"([vas])\[(\d+):(\d+)\]", tok)
    if m: return [(m.group(1), i) for i in range(int(m.group(2)), int(m.group(3)) + 1)]
    if tok == "vcc": return [("s", 106), ("s", 107)]
    if tok == "vcc_lo": return [("s", 106)]
    if tok == "vcc_hi": return [("s", 107)]
    if tok == "exec": return [("s", 126), ("s", 127)]
    if tok == "exec_lo": return [("s", 126)]
    if tok == "exec_hi": return [("s", 127)]
    if tok == "m0": return [("s", 124)]
    return []

class Ins:
    def __init__(self, text):
        self.text = text
        t = text.strip()
        parts = t.split(None, 1)
        self.mn = parts[0]
        rest = parts[1] if len(parts) > 1 else ""
        ops, cur, depth = [], "", 0
        for ch in rest:
            if ch == "[": depth += 1
            if ch == "]": depth -= 1
            if ch == "," and depth == 0:
                ops.append(cur.strip()); cur = ""
            else:
                cur += ch
        if cur.strip(): ops.append(cur.strip())
        self.mods = ""
        if ops:
            last = ops[-1].split(None, 1)
            ops[-1] = last[0]
            self.mods = last[1] if len(last) > 1 else ""
        self.ops = ops
        mn = self.mn
        self.valu = mn.startswith("v_") and not mn.startswith("v_mfma")
        self.mfma = mn.startswith("v_mfma")
        self.vmem = mn.startswith("buffer_") or mn.startswith("global_")
        self.ds = mn.startswith("ds_")
        self.salu = mn.startswith("s_")
        self.trans = any(mn.startswith(x) for x in TRANS)
        self.dpp = self.valu and ("row_" in self.mods or "quad_perm" in self.mods or "wave_" in self.mods or mn.endswith("_dpp"))
        self.permlane = mn.startswith("v_permlane")
        self.lane_read = mn.startswith("v_readlane") or mn.startswith("v_readfirstlane")
        self.w, self.r = set(), set()
        self.srcC = set()
        self.store_data = set()
        R = lambda k: set(_expand(ops[k])) if k < len(ops) else set()
        if self.mfma:
            self.w = R(0); self.r = R(1) | R(2) | R(3); self.srcC = R(3); self.srcAB = R(1) | R(2)
        elif self.valu:
            if mn.startswith("v_cmp"):
                self.w = R(0)
                for k in range(1, len(ops)): self.r |= R(k)
            elif self.permlane and "swap" in mn:
                self.w = R(0) | R(1); self.r = R(0) | R(1)
            elif mn.startswith(("v_add_co", "v_sub_co", "v_addc_co", "v_subb_co", "v_subrev_co")):
                self.w = R(0) | R(1)
                for k in range(2, len(ops)): self.r |= R(k)
            else:
                self.w = R(0)
                for k in range(1, len(ops)): self.r |= R(k)
                if mn.startswith(("v_fmac", "v_dot2c", "v_writelane")) or self.dpp:
                    self.r |= R(0)
                if mn.startswith("v_cndmask_b32") and len(ops) == 3:
                    self.r |= {("s", 106), ("s", 107)}
        elif self.vmem:
            if "load" in mn and " lds" not in (" " + self.mods):
                self.w = R(0)
                for k in range(1, len(ops)): self.r |= R(k)
            elif "store" in mn:
                for k in range(len(ops)): self.r |= R(k)
                d = R(0) if mn.startswith("buffer_") else R(1)
                if mn.endswith(("x3", "x4")): self.store_data = d
            elif "atomic" in mn:
                for k in range(len(ops)): self.r |= R(k)
                if "sc0" in self.mods: self.w = R(0)
            else:
                for k in range(len(ops)): self.r |= R(k)
        elif self.ds:
            if mn.startswith("ds_read") or mn.startswith("ds_bpermute") or mn.startswith("ds_swizzle"):
                self.w = R(0)
                for k in range(1, len(ops)): self.r |= R(k)
            else:
                for k in range(len(ops)): self.r |= R(k)
        elif self.salu:
            if mn.startswith(("s_cmp", "s_cbranch", "s_branch", "s_waitcnt", "s_nop", "s_barrier", "s_sleep", "s_endpgm", "s_setprio", "s_bitcmp")):
                for k in range(len(ops)): self.r |= R(k)
            else:
                self.w = R(0)
                for k in range(1, len(ops)): self.r |= R(k)
    def states(self):
        if self.mn == "s_nop":
            return int(self.ops[0], 0) + 1
        return 1

def need(prod, cons):
    n = 0
    vw = {x for x in prod.w if x[0] in "va"}
    sw = {x for x in prod.w if x[0] == "s"}
    if prod.valu:
        if vw & cons.r:
            if cons.dpp: n = max(n, 2)
            if cons.permlane: n = max(n, 2)
            if cons.lane_read: n = max(n, 1)
            if cons.mfma: n = max(n, 2)
            if prod.trans and cons.valu: n = max(n, 1)
        if sw & cons.r:
            if cons.valu: n = max(n, 2)
            if cons.lane_read: n = max(n, 4)
            if cons.vmem: n = max(n, 5)
        if ("s", 126) in sw:
            if cons.dpp: n = max(n, 5)
            if cons.mfma: n = max(n, 4)
            if cons.valu: n = max(n, 4)
    if prod.mn.startswith("v_dot"):
        if (vw & cons.r) or (vw & cons.w):
            same = cons.mn == prod.mn
            if same:
                ab = set()
                for k in (1, 2):
                    if k < len(cons.ops): ab |= set(_expand(cons.ops[k]))
                if vw & ab: n = max(n, 3)
            else:
                n = max(n, 3)
    if prod.mfma:
        big = "32x32" in prod.mn
        raw = 12 if big else 8
        if cons.mfma:
            if prod.w & cons.srcAB: n = max(n, raw)
            if prod.w & cons.srcC:
                if prod.w != cons.srcC or prod.mn != cons.mn: n = max(n, 10 if big else 6)
        else:
            if (prod.w & cons.r) or (prod.w & cons.w): n = max(n, raw)
        if cons.valu and (prod.srcC & cons.w): n = max(n, 7 if big else 3)
    if prod.store_data and cons.valu and (prod.store_data & cons.w): n = max(n, 2)
    if prod.store_data and (not cons.valu) and (prod.store_data & {x for x in cons.w if x[0] in "va"}): n = max(n, 1)
    return n

class Asm:
    def __init__(self):
        self.items = []
    def __call__(self, text):
        for line in text.split("\n"):
            line = line.split(";")[0].strip() if not line.strip().startswith(".") else line.strip()
            if not line: continue
            if line.endswith(":"):
                self.items.append(("l", line[:-1]))
            elif line.startswith("."):
                self.items.append(("t", line))
            else:
                self.items.append(("i", Ins(line)))
    def label(self, n): self.items.append(("l", n))
    def raw(self, t): self.items.append(("t", t))
    def comment(self, t): self.items.append(("t", "; " + t))

    def fix_hazards(self, window=14):
        out = []
        hist = []
        inserted = 0
        for kind, it in self.items:
            if kind != "i":
                out.append((kind, it)); continue
            dist = 0; req = 0
            for p in reversed(hist[-window:]):
                nd = need(p, it)
                if nd > dist: req = max(req, nd - dist)
                dist += p.states()
                if dist >= 13: break
            while req > 0:
                k = min(req, 16)
                nop = Ins("s_nop %d" % (k - 1))
                out.append(("i", nop)); hist.append(nop); req -= k; inserted += 1
            out.append(("i", it)); hist.append(it)
            if it.mn in ("s_branch", "s_endpgm"):
                hist = []
        self.items = out
        idx = {}
        ins = [(k, x) for k, x in out]
        for n, (k, x) in enumerate(ins):
            if k == "l": idx[x] = n
        for n, (k, x) in enumerate(ins):
            if k == "i" and (x.mn.startswith("s_cbranch") or x.mn == "s_branch"):
                tgt = x.ops[0]
                if tgt not in idx: raise SystemExit("unknown label " + tgt)
                before = [y for kk, y in ins[max(0, n - 40):n + 1] if kk == "i"][-window:]
                after = [y for kk, y in ins[idx[tgt]:idx[tgt] + 40] if kk == "i"][:window]
                for ai, c in enumerate(after):
                    dist = sum(y.states() for y in after[:ai])
                    for p in reversed(before):
                        nd = need(p, c)
                        if nd > dist:
                            raise SystemExit("HAZARD across branch %s -> %s: '%s' then '%s' needs %d has %d" % (x.text, tgt, p.text, c.text, nd, dist))
                        dist += p.states()
                        if dist >= 13: break
        return inserted

    def text(self):
        L = []
        for k, x in self.items:
            if k == "i": L.append("  " + x.text)
            elif k == "l": L.append(x + ":")
            else: L.append(x)
        return "\n".join(L) + "\n"
```

```python
import sys, json
from asmfw import Asm

NAME = "recurrent_scan__mha_block_cached__dense_activation_squared_relu__decode_kernel"

EP = 0
QP = 0x10000
HP = 0x60000
OP = 0xA0000
ML = 0xE0000
CNT = 0xF0000
SP = 0x100000
GP = 0x200000
TS = 0x300000
WS_BYTES = 0x500000
L_Q = 0x000
L_FC = 0x200
L_FB = 0x204
L_MLW = 0x240
L_OW = 0x400
L_HT = 0xC00
L_PRIV = 0x1000
L_RED = 0x2000
LDS_BYTES = 0x2400

TAGB = 10
TAGM = (1 << TAGB) - 1
VALM = (~TAGM) & 0xffffffff
OOB = 0x40000000
LOG2E = 0x3fb8aa3b
SCALE = 0x3db504f3
SPIN = 1 << 17

def gen(D=6, A_=2, stamps=False, nt=True, sleep=1, bar0=True, tlog=False, noatom=False, ntk=None, tstep=False):
    A = Asm()
    e = A
    NT = " nt" if nt else ""
    nstamp = [0]
    def stamp(k):
        if stamps:
            e(f"s_memrealtime s[{64+2*k}:{65+2*k}]")
    def dump_stamps(nk):
        if not stamps: return
        e("s_waitcnt lgkmcnt(0)")
        e("s_lshl_b32 s6, s2, 3")
        e("s_add_u32 s6, s6, s5")
        e("s_lshl_b32 s6, s6, 7")
        e(f"s_add_u32 s6, s6, {TS}")
        e("s_mov_b64 exec, 1")
        e("v_mov_b32 v1, 0")
        e(f"s_mov_b32 s60, s32\ns_mov_b32 s61, s33\ns_mov_b32 s62, {WS_BYTES}\ns_mov_b32 s63, 0x20000")
        for k in range(nk):
            e(f"v_mov_b32 v2, s{64+2*k}")
            e(f"buffer_store_dword v2, v1, s[60:63], s6 offen offset:{4*k}")
        e("s_mov_b64 exec, -1")

    A.raw("; @launch grid=(256,1,1) block=(512,1,1) lds=%d" % LDS_BYTES)
    A.raw('.amdgcn_target "amdgcn-amd-amdhsa--gfx950"')
    A.raw(".text")
    A.raw(f".globl {NAME}")
    A.raw(".p2align 8")
    A.raw(f".type {NAME},@function")
    A.label(NAME)
    e("s_cmp_ge_u32 s2, 256")
    e("s_cbranch_scc1 L_end")
    e("s_load_dwordx16 s[8:23], s[0:1], 0")
    e("s_load_dwordx8 s[24:31], s[0:1], 64")
    e("s_load_dwordx2 s[32:33], s[0:1], 96")
    stamp(0)
    e("v_lshrrev_b32 v1, 6, v0")
    e("v_and_b32 v0, 63, v0")
    e("v_readfirstlane_b32 s3, v1")
    e("s_lshr_b32 s34, s2, 3")
    e("s_and_b32 s35, s2, 7")
    e("v_and_b32 v1, 1, v0")
    e("v_lshlrev_b32 v1, 4, v1")
    e("v_mov_b32 v2, 0xffff")
    e("v_lshlrev_b32 v1, v1, v2")
    e("v_bfe_u32 v2, v0, 1, 2")
    for j in range(4):
        e(f"v_cmp_eq_u32 vcc, {j}, v2")
        e(f"v_cndmask_b32 v{6+j}, 0, v1, vcc")
    e("s_mov_b32 s5, s3")
    e("s_cmp_ge_u32 s3, 4")
    e("s_waitcnt lgkmcnt(0)")
    e("s_cbranch_scc1 L_stream")
    e("s_branch L_aux")

    A.label("L_stream")
    e("s_sub_u32 s3, s3, 4")
    e("s_and_b32 s37, s3, 1")
    e("s_lshl_b32 s36, s37, 5")
    e("s_add_u32 s36, s36, s34")
    e("s_lshl_b32 s36, s36, 20")
    e("s_add_u32 s48, s10, s36\ns_addc_u32 s49, s11, 0\ns_and_b32 s49, s49, 0xffff\ns_mov_b32 s50, 0x100000\ns_mov_b32 s51, 0x20000")
    e("s_add_u32 s52, s12, s36\ns_addc_u32 s53, s13, 0\ns_and_b32 s53, s53, 0xffff\ns_mov_b32 s54, 0x100000\ns_mov_b32 s55, 0x20000")
    e("s_lshl_b32 s38, s34, 1")
    e("s_add_u32 s38, s38, s37")
    e("s_lshl_b32 s38, s38, 7")
    e(f"s_add_u32 s38, s38, {CNT}")
    e("s_add_u32 s56, s32, s38\ns_addc_u32 s57, s33, 0\ns_and_b32 s57, s57, 0xffff\ns_mov_b32 s58, 4\ns_mov_b32 s59, 0x20000")
    e("s_lshr_b32 s39, s3, 1")
    e("s_lshl_b32 s40, s35, 1")
    e("s_add_u32 s39, s39, s40")
    e("v_lshlrev_b32 v1, 4, v0")
    e("v_lshlrev_b32 v36, 2, v0")
    KR = lambda s, t: 40 + 16 * s + 4 * t
    VR = lambda s, t: 16 * s + 4 * t
    TK = lambda s: 80 + s
    VT = lambda k: 37 + (k % 3)
    def loadK(s):
        for t in range(4):
            r = KR(s, t)
            e(f"buffer_load_dwordx4 v[{r}:{r+3}], v1, s[48:51], s38 offen offset:{1024*t}{NT}")
    def loadV(s):
        for t in range(4):
            r = VR(s, t)
            e(f"buffer_load_dwordx4 a[{r}:{r+3}], v1, s[52:55], s38 offen offset:{1024*t}{NT}")
    if bar0: e("s_barrier")
    for c in range(D):
        e(f"s_add_u32 s{TK(c)}, s39, {16*c}")
        e(f"s_lshl_b32 s38, s{TK(c)}, 12")
        loadK(c)
        loadV(c)
    stamp(1)
    for k in range(A_):
        e(f"s_add_u32 s40, s39, {16*(D+k)}")
        e(f"v_mov_b32 v{VT(k+1+ (3 - A_ - 1))}, s40")
    for r in range(4): e(f"v_mov_b32 v{10+r}, 0")
    e("v_mov_b32 v14, 0xff800000")
    e("v_mov_b32 v15, 0")
    e("v_and_b32 v16, 15, v0")
    e("v_lshlrev_b32 v16, 4, v16")
    e("s_lshl_b32 s40, s37, 8")
    e("v_add_u32 v16, s40, v16")
    e("s_mov_b32 s86, 0")
    e("s_mov_b32 s88, 0x1000000")
    if tlog or tstep:
        e("s_mov_b32 s87, 0")
        e("v_mov_b32 v33, -1")
        e("v_mov_b32 v34, -1")
    e(f"s_mov_b32 s40, 0x{SCALE:x}")
    e(f"s_mov_b32 s41, 0x{LOG2E:x}")
    e("s_barrier")
    e(f"ds_read_b128 v[2:5], v16 offset:{L_Q}")
    e("s_waitcnt lgkmcnt(0)")
    stamp(2)
    NKV = 8 * (D - 1)
    NTK = 4 + 8 * (A_ - 1)
    if ntk is not None: NTK = ntk
    A.label("L_sloop")
    for s in range(D):
        e("s_cmp_eq_u32 s86, 0")
        e(f"s_cbranch_scc1 L_nw{s}")
        e("s_cmp_eq_u32 s89, 0")
        e("s_cbranch_scc1 L_sdone")
        e("s_sub_u32 s89, s89, 1")
        e("s_cmp_ge_u32 s89, 2")
        e(f"s_cbranch_scc1 L_go{s}")
        e("s_cmp_eq_u32 s89, 1")
        e(f"s_cbranch_scc1 L_w8{s}")
        e("s_waitcnt vmcnt(0)")
        e(f"s_branch L_go{s}")
        A.label(f"L_w8{s}")
        e("s_waitcnt vmcnt(8)")
        e(f"s_branch L_go{s}")
        A.label(f"L_nw{s}")
        e(f"s_waitcnt vmcnt({NKV})")
        A.label(f"L_go{s}")
        if tstep:
            e("s_memrealtime s[90:91]")
            e("s_waitcnt lgkmcnt(0)")
            e("s_mov_b32 m0, s87")
            e("v_writelane_b32 v33, s90, m0")
            e("s_add_u32 s87, s87, 1")
        if tlog:
            e("s_mov_b32 m0, s87")
            e(f"v_writelane_b32 v33, s{TK(s)}, m0")
            e("s_add_u32 s87, s87, 1")
        for jj in range(4):
            for t in range(4):
                k = KR(s, t) + jj
                if jj == 0: e(f"v_dot2_f32_bf16 v{16+t}, v{k}, v2, 0")
                else: e(f"v_dot2c_f32_bf16 v{16+t}, v{k}, v{2+jj}")
        e("v_add_f32_dpp v20, v16, v16 row_ror:8 row_mask:0xf bank_mask:0x3")
        e("v_add_f32_dpp v21, v18, v18 row_ror:8 row_mask:0xf bank_mask:0x3")
        e("v_add_f32_dpp v20, v17, v17 row_ror:8 row_mask:0xf bank_mask:0xc")
        e("v_add_f32_dpp v21, v19, v19 row_ror:8 row_mask:0xf bank_mask:0xc")
        e("v_add_f32_dpp v22, v20, v20 row_shl:4 row_mask:0xf bank_mask:0x5")
        e("v_add_f32_dpp v22, v21, v21 row_shr:4 row_mask:0xf bank_mask:0xa")
        e("v_add_f32_dpp v22, v22, v22 quad_perm:[1,0,3,2] row_mask:0xf bank_mask:0xf")
        e("v_add_f32_dpp v22, v22, v22 quad_perm:[2,3,0,1] row_mask:0xf bank_mask:0xf")
        e("v_cvt_pk_bf16_f32 v23, v22, v22")
        e("v_and_b32 v23, 0xffff0000, v23")
        e("v_mul_f32 v23, s40, v23")
        e("v_cvt_pk_bf16_f32 v23, v23, v23")
        e("v_and_b32 v23, 0xffff0000, v23")
        e("v_max_f32_dpp v24, v23, v23 row_ror:4 row_mask:0xf bank_mask:0xf")
        e("v_max_f32_dpp v24, v24, v24 row_ror:8 row_mask:0xf bank_mask:0xf")
        e("v_mov_b32 v25, v24")
        e("v_permlane16_swap_b32 v24, v25")
        e("v_max_f32 v24, v24, v25")
        e("v_mov_b32 v25, v24")
        e("v_permlane32_swap_b32 v24, v25")
        e("v_max3_f32 v24, v24, v25, v14")
        e("v_sub_f32 v25, v14, v24")
        e("v_sub_f32 v26, v23, v24")
        e("v_mul_f32 v25, s41, v25")
        e("v_mul_f32 v26, s41, v26")
        e("v_exp_f32 v25, v25")
        e("v_exp_f32 v26, v26")
        e("v_mov_b32 v14, v24")
        e("v_fma_f32 v15, v15, v25, v26")
        e("v_cvt_pk_bf16_f32 v27, v26, v26")
        for r in range(4): e(f"v_mul_f32 v{10+r}, v{10+r}, v25")
        bank_lane = [0, 8, 4, 12]
        for t in range(4):
            B = 28 + 4 * (t & 1) if False else (28 if (t & 1) == 0 else 16)
            for jj in range(4):
                e(f"v_and_b32_dpp v{B+jj}, v27, v{6+jj} row_newbcast:{bank_lane[t]} row_mask:0xf bank_mask:0xf")
            r = VR(s, t)
            e(f"v_mfma_f32_16x16x32_bf16 v[10:13], a[{r}:{r+3}], v[{B}:{B+3}], v[10:13]")
        if tstep:
            e("s_memrealtime s[90:91]")
            e("s_waitcnt lgkmcnt(0)")
            e("v_writelane_b32 v34, s90, m0")
        e("s_cmp_lg_u32 s86, 0")
        e(f"s_cbranch_scc1 L_nx{s}")
        e(f"s_waitcnt vmcnt({NTK})")
        A.label(f"L_tk{s}")
        if noatom:
            e(f"s_add_u32 s{TK(s)}, s{TK(s)}, {16*D}")
        else:
            e(f"v_readfirstlane_b32 s{TK(s)}, v{VT(s + 3 - A_)}")
        e(f"s_cmp_eq_u32 s{TK(s)}, 1")
        e(f"s_cbranch_scc0 L_tko{s}")
        e("s_sub_u32 s88, s88, 1")
        e("s_cmp_lg_u32 s88, 0")
        e(f"s_cbranch_scc1 L_tk{s}")
        e(f"s_mov_b32 s{TK(s)}, 256")
        A.label(f"L_tko{s}")
        e(f"s_cmp_lt_u32 s{TK(s)}, 256")
        e(f"s_cbranch_scc1 L_iss{s}")
        e("s_mov_b32 s86, 1")
        e(f"s_mov_b32 s89, {D-1}")
        e("s_mov_b64 exec, 1")
        e(f"v_mov_b32 v20, {L_FC}")
        e("v_mov_b32 v21, 1")
        e("ds_add_u32 v20, v21")
        e("s_mov_b64 exec, -1")
        stamp(3)
        e(f"s_branch L_nx{s}")
        A.label(f"L_iss{s}")
        e(f"s_lshl_b32 s38, s{TK(s)}, 12")
        loadK(s)
        if not noatom:
            e(f"v_mov_b32 v{VT(s)}, 1")
            e(f"buffer_atomic_add v{VT(s)}, v36, s[56:59], 0 offen sc0 sc1")
        loadV(s)
        A.label(f"L_nx{s}")
        if s == D - 1:
            e("s_branch L_sloop")
    A.label("L_sdone")
    stamp(4)
    e("v_add_f32_dpp v15, v15, v15 row_ror:4 row_mask:0xf bank_mask:0xf")
    e("v_add_f32_dpp v15, v15, v15 row_ror:8 row_mask:0xf bank_mask:0xf")
    e("v_mov_b32 v25, v15")
    e("v_permlane16_swap_b32 v15, v25")
    e("v_add_f32 v15, v15, v25")
    e("v_mov_b32 v25, v15")
    e("v_permlane32_swap_b32 v15, v25")
    e("v_add_f32 v15, v15, v25")
    e("v_lshrrev_b32 v16, 4, v0")
    e("v_lshlrev_b32 v16, 7, v16")
    e("v_and_b32 v17, 7, v0")
    e("v_lshl_add_u32 v16, v17, 2, v16")
    e("s_lshl_b32 s37, s3, 9")
    e("v_add_u32 v16, s37, v16")
    for r in range(4):
        e(f"ds_write_b32 v16, v{10+r} offset:{L_OW + 32*r}")
    e("s_lshl_b32 s37, s3, 3")
    e("v_mov_b32 v17, s37")
    e(f"ds_write_b64 v17, v[14:15] offset:{L_MLW}")
    e("s_waitcnt lgkmcnt(0)")
    e("s_mov_b64 exec, 1")
    e(f"v_mov_b32 v28, {L_FB}")
    e("v_mov_b32 v29, 1")
    e("ds_add_u32 v28, v29")
    e("s_mov_b64 exec, -1")
    stamp(5)
    if tlog or tstep:
        e("s_lshl_b32 s6, s2, 3\ns_add_u32 s6, s6, s5\ns_lshl_b32 s6, s6, 8")
        e(f"s_add_u32 s6, s6, {TS + 0x80000}")
        e(f"s_mov_b32 s60, s32\ns_mov_b32 s61, s33\ns_mov_b32 s62, {WS_BYTES}\ns_mov_b32 s63, 0x20000")
        e("v_lshlrev_b32 v1, 2, v0")
        e("buffer_store_dword v33, v1, s[60:63], s6 offen")
        e(f"s_add_u32 s6, s6, 0x80000")
        e("buffer_store_dword v34, v1, s[60:63], s6 offen")
    dump_stamps(6)
    e("s_endpgm")

    A.label("L_aux")
    e("s_setprio 3")
    e("s_load_dwordx2 s[46:47], s[32:33], 0")
    e(f"s_mov_b32 s48, s32\ns_and_b32 s49, s33, 0xffff\ns_mov_b32 s50, {WS_BYTES}\ns_mov_b32 s51, 0x20000")
    e("v_lshrrev_b32 v10, 4, v0")
    e("v_bfe_u32 v11, v0, 3, 1")
    e("v_and_b32 v12, 15, v0")
    e("s_cmp_ge_u32 s3, 2")
    e("s_cbranch_scc1 L_aux23")
    e("s_mov_b32 s60, s8\ns_and_b32 s61, s9, 0xffff\ns_mov_b32 s62, 2304\ns_mov_b32 s63, 0x20000")
    e("s_cmp_eq_u32 s3, 1")
    e("s_cbranch_scc1 L_p1")
    e("s_mul_i32 s36, s35, 72")
    e("s_mov_b32 s37, 18")
    e("s_mov_b32 s38, 8192")
    e("s_lshl_b32 s39, s34, 8")
    e("s_mul_i32 s40, s36, 8192")
    e("s_add_u32 s39, s39, s40")
    e("s_add_u32 s52, s14, s39\ns_addc_u32 s53, s15, 0")
    e("s_sub_u32 s54, 4718592, s39")
    e("v_lshlrev_b32 v13, 7, v0")
    e(f"v_mov_b32 v14, {16*(D+A_)}")
    e("s_lshl_b32 s40, s34, 8")
    e(f"s_add_u32 s40, s40, {CNT}")
    e("s_add_u32 s56, s32, s40\ns_addc_u32 s57, s33, 0\ns_and_b32 s57, s57, 0xffff\ns_mov_b32 s59, 0x20000")
    e("s_cmp_eq_u32 s35, 0")
    e("s_cselect_b32 s58, 132, 0")
    e("buffer_store_dword v14, v13, s[56:59], 0 offen sc1")
    e("s_mov_b32 s41, 99")
    e("s_mov_b32 s42, 1")
    e("s_branch L_p2")
    A.label("L_p1")
    e("s_mul_hi_u32 s43, s2, 0x71c71c8")
    e("s_mul_i32 s44, s43, 36")
    e("s_sub_u32 s44, s2, s44")
    e("s_mul_i32 s36, s43, 82")
    e("s_cmp_eq_u32 s43, 0")
    e("s_cselect_b32 s40, 0, 2")
    e("s_add_u32 s36, s36, s40")
    e("s_mov_b32 s37, 22")
    e("s_mov_b32 s38, 9216")
    e("s_lshl_b32 s39, s44, 8")
    e("s_mul_i32 s40, s36, 9216")
    e("s_add_u32 s39, s39, s40")
    e("s_add_u32 s52, s20, s39\ns_addc_u32 s53, s21, 0")
    e("s_sub_u32 s54, 5308416, s39")
    e("s_cmp_eq_u32 s43, 0")
    e("s_cselect_b32 s41, 99, 3")
    e("s_mov_b32 s42, 0")
    e("s_cmp_ge_u32 s2, 252")
    e("s_cselect_b32 s54, 0, s54")
    A.label("L_p2")
    e("s_and_b32 s53, s53, 0xffff\ns_mov_b32 s55, 0x20000")
    e("v_lshrrev_b32 v13, 5, v0")
    e("v_mul_u32_u24 v13, 1152, v13")
    e("v_and_b32 v14, 31, v0")
    e("v_mad_u32_u24 v13, v14, 36, v13")
    e("buffer_load_dwordx4 v[20:23], v13, s[60:63], 0 offen")
    e("buffer_load_dwordx4 v[24:27], v13, s[60:63], 0 offen offset:16")
    e("buffer_load_dword v28, v13, s[60:63], 0 offen offset:32")
    e("v_mul_lo_u32 v14, v10, s37")
    e("v_add_u32 v15, s36, v14")
    e("v_lshlrev_b32 v15, 1, v15")
    e("v_mul_u32_u24 v16, 1152, v11")
    e("v_add_u32 v15, v15, v16")
    e("buffer_load_dwordx4 v[30:33], v15, s[60:63], 0 offen")
    e("buffer_load_dwordx4 v[34:37], v15, s[60:63], 0 offen offset:16")
    e("buffer_load_dwordx3 v[38:40], v15, s[60:63], 0 offen offset:32")
    e("v_mul_lo_u32 v16, v14, s38")
    e("v_lshl_add_u32 v16, v12, 4, v16")
    e(f"v_mov_b32 v19, {OOB}")
    e("v_cmp_eq_u32 vcc, s41, v10")
    e("v_cndmask_b32 v17, v16, v19, vcc")
    e("v_cmp_eq_u32 vcc, 3, v10")
    e("v_cndmask_b32 v18, v16, v19, vcc")
    e("s_cmp_eq_u32 s42, 1")
    e("s_cbranch_scc0 L_p3")
    e("v_mov_b32 v18, v19")
    A.label("L_p3")
    e("s_mov_b32 s44, 0") if False else None
    e("s_mov_b32 s45, 0")
    for t in range(22):
        vo = 16 if t < 16 else (17 if t < 18 else 18)
        e(f"buffer_load_dwordx4 a[{4*t}:{4*t+3}], v{vo}, s[52:55], s45 offen{NT}")
        if t < 21: e("s_add_u32 s45, s45, s38")
    if bar0: e("s_barrier")
    stamp(1)
    e("s_waitcnt vmcnt(25)")
    F = 44
    for k in range(9):
        e(f"v_lshlrev_b32 v{F+2*k}, 16, v{20+k}")
        e(f"v_and_b32 v{F+2*k+1}, 0xffff0000, v{20+k}")
    e(f"v_pk_add_f32 v[62:63], v[{F}:{F+1}], v[{F+2}:{F+3}]")
    for k in range(2, 9):
        e(f"v_pk_add_f32 v[62:63], v[62:63], v[{F+2*k}:{F+2*k+1}]")
    e("v_add_f32 v62, v62, v63")
    def red32(r, tmp):
        for sh in (8, 4, 2, 1):
            e(f"v_add_f32_dpp v{r}, v{r}, v{r} row_ror:{sh} row_mask:0xf bank_mask:0xf")
        e(f"v_mov_b32 v{tmp}, v{r}")
        e(f"v_permlane16_swap_b32 v{r}, v{tmp}")
        e(f"v_add_f32 v{r}, v{r}, v{tmp}")
    red32(62, 63)
    e("v_mul_f32 v62, 0x3ae38e39, v62")
    e("v_mov_b32 v63, v62")
    for k in range(9):
        e(f"v_pk_add_f32 v[{F+2*k}:{F+2*k+1}], v[{F+2*k}:{F+2*k+1}], v[62:63] neg_lo:[0,1] neg_hi:[0,1]")
    e(f"v_pk_mul_f32 v[64:65], v[{F}:{F+1}], v[{F}:{F+1}]")
    for k in range(1, 9):
        e(f"v_pk_fma_f32 v[64:65], v[{F+2*k}:{F+2*k+1}], v[{F+2*k}:{F+2*k+1}], v[64:65]")
    e("v_add_f32 v64, v64, v65")
    red32(64, 65)
    e("v_mul_f32 v64, 0x3ae38e39, v64")
    e("v_cvt_pk_bf16_f32 v62, v62, v62")
    e("v_and_b32 v62, 0xffff0000, v62")
    e("v_cvt_pk_bf16_f32 v64, v64, v64")
    e("v_and_b32 v64, 0xffff0000, v64")
    e("v_add_f32 v64, 0x3727c5ac, v64")
    e("v_cvt_pk_bf16_f32 v64, v64, v64")
    e("v_and_b32 v64, 0xffff0000, v64")
    e("v_sqrt_f32 v64, v64")
    e("v_cvt_pk_bf16_f32 v64, v64, v64")
    e("v_and_b32 v64, 0xffff0000, v64")
    e("v_rcp_f32 v64, v64")
    e("v_readlane_b32 s56, v62, 0")
    e("v_readlane_b32 s57, v62, 32")
    e("v_readlane_b32 s58, v64, 0")
    e("v_readlane_b32 s59, v64, 32")
    e("v_cmp_eq_u32 vcc, 1, v11")
    e("v_mov_b32 v62, s56")
    e("v_mov_b32 v63, s57")
    e("v_cndmask_b32 v62, v62, v63, vcc")
    e("v_mov_b32 v64, s58")
    e("v_mov_b32 v65, s59")
    e("v_cndmask_b32 v64, v64, v65, vcc")
    e("v_mov_b32 v63, v62")
    e("v_mov_b32 v65, v64")
    e("s_waitcnt vmcnt(22)")
    for k in range(11):
        x = 30 + k
        e(f"v_lshlrev_b32 v66, 16, v{x}")
        e(f"v_and_b32 v67, 0xffff0000, v{x}")
        e("v_pk_add_f32 v[66:67], v[66:67], v[62:63] neg_lo:[0,1] neg_hi:[0,1]")
        e("v_cvt_pk_bf16_f32 v68, v66, v67")
        e("v_lshlrev_b32 v66, 16, v68")
        e("v_and_b32 v67, 0xffff0000, v68")
        e("v_pk_mul_f32 v[66:67], v[66:67], v[64:65]")
        e(f"v_cvt_pk_bf16_f32 v{x}, v66, v67")
    stamp(2)
    e("s_mov_b32 s56, 0x01000100")
    e("s_mov_b32 s57, 0x03020302")
    for r in range(4): e(f"v_mov_b32 v{70+r}, 0")
    for t in range(22):
        B = 76 + 4 * (t & 1)
        e(f"v_perm_b32 v74, v{30 + t//2}, v{30 + t//2}, s{56 + (t & 1)}")
        for jj in range(4):
            e(f"v_and_b32 v{B+jj}, v74, v{6+jj}")
        e(f"s_waitcnt vmcnt({21 - t})")
        e(f"v_mfma_f32_16x16x32_bf16 v[70:73], a[{4*t}:{4*t+3}], v[{B}:{B+3}], v[70:73]")
    stamp(3)
    def make_tags():
        e("s_waitcnt lgkmcnt(0)")
        e("s_add_u32 s46, s46, 0x7f4a7c15\ns_addc_u32 s47, s47, 0x9e3779b9")
        e(f"s_and_b32 s44, s46, {TAGM}")
        e("v_mov_b32 v2, s44")
        e(f"s_bfe_u32 s44, s46, 0x{(TAGB<<16)|TAGB:x}")
        e("v_mov_b32 v3, s44")
        e(f"s_bfe_u32 s44, s46, 0x{(TAGB<<16)|(2*TAGB):x}")
        e("v_mov_b32 v4, s44")
        e("s_lshr_b64 s[56:57], s[46:47], 30")
        e(f"s_and_b32 s44, s56, {TAGM}")
        e("v_mov_b32 v5, s44")
        e(f"s_mov_b32 s44, {TAGM}")
        e(f"s_mov_b32 s45, 0x{VALM:x}")
    def tagpack(dst, src):
        for r in range(4):
            e(f"v_bfi_b32 v{dst+r}, s44, v{2+r}, v{src+r}")
    def tagcheck(regs, tmp):
        first = True
        for base in regs:
            for r in range(4):
                if first:
                    e(f"v_xor_b32 v{tmp}, v{base+r}, v{2+r}"); first = False
                else:
                    e(f"v_bitop3_b32 v{tmp}, v{base+r}, v{2+r}, v{tmp} bitop3:0xbe")
        e(f"v_and_b32 v{tmp}, s44, v{tmp}")
        e(f"v_cmp_eq_u32 vcc, 0, v{tmp}")
    pollid = [0]
    def poll(issue, regs, tmp, cnt="s4"):
        n = pollid[0]; pollid[0] += 1
        e(f"s_mov_b32 {cnt}, {SPIN}")
        A.label(f"L_poll{n}")
        issue()
        e("s_waitcnt vmcnt(0)")
        tagcheck(regs, tmp)
        e("s_cmp_eq_u64 vcc, exec")
        e(f"s_cbranch_scc1 L_pdone{n}")
        if sleep: e(f"s_sleep {sleep}")
        e(f"s_sub_u32 {cnt}, {cnt}, 1")
        e(f"s_cmp_lg_u32 {cnt}, 0")
        e(f"s_cbranch_scc1 L_poll{n}")
        A.label(f"L_pdone{n}")
    def ldsspin(addr, target):
        n = pollid[0]; pollid[0] += 1
        e(f"s_mov_b32 s4, {SPIN}")
        e(f"v_mov_b32 v20, {addr}")
        A.label(f"L_poll{n}")
        e("ds_read_b32 v21, v20")
        e("s_waitcnt lgkmcnt(0)")
        e("v_readfirstlane_b32 s6, v21")
        e(f"s_cmp_ge_u32 s6, {target}")
        e(f"s_cbranch_scc1 L_pdone{n}")
        if sleep: e(f"s_sleep {sleep}")
        e("s_sub_u32 s4, s4, 1")
        e("s_cmp_lg_u32 s4, 0")
        e(f"s_cbranch_scc1 L_poll{n}")
        A.label(f"L_pdone{n}")

    make_tags()
    e("s_cmp_eq_u32 s3, 1")
    e("s_cbranch_scc1 L_hpub")
    tagpack(74, 70)
    e("v_lshlrev_b32 v13, 4, v0")
    e("s_lshl_b32 s36, s2, 10")
    e(f"s_add_u32 s36, s36, {QP}")
    e("buffer_store_dwordx4 v[74:77], v13, s[48:51], s36 offen sc1")
    stamp(4)
    e("v_lshlrev_b32 v13, 4, v0")
    e("s_lshl_b32 s36, s34, 13")
    e(f"s_add_u32 s36, s36, {QP}")
    e("s_add_u32 s37, s36, 4096")
    def issue_q():
        for k in range(8):
            e(f"buffer_load_dwordx4 v[{20+4*k}:{23+4*k}], v13, s[48:51], s{36 + k//4} offen offset:{1024*(k%4)} sc1")
    poll(issue_q, [20 + 4 * k for k in range(8)], 52)
    for r in range(4):
        for k in range(8): e(f"v_and_b32 v{20+4*k+r}, s45, v{20+4*k+r}")
        for k in (0, 2, 4, 6): e(f"v_add_f32 v{20+4*k+r}, v{20+4*k+r}, v{24+4*k+r}")
        e(f"v_add_f32 v{20+r}, v{20+r}, v{28+r}")
        e(f"v_add_f32 v{36+r}, v{36+r}, v{44+r}")
        e(f"v_add_f32 v{20+r}, v{20+r}, v{36+r}")
    e("v_cvt_pk_bf16_f32 v24, v20, v21")
    e("v_cvt_pk_bf16_f32 v25, v22, v23")
    e("v_lshlrev_b32 v13, 8, v11")
    e("v_lshl_add_u32 v13, v10, 6, v13")
    e("v_and_b32 v14, 7, v0")
    e("v_lshl_add_u32 v13, v14, 1, v13")
    e(f"ds_write_b16 v13, v24 offset:{L_Q}")
    e(f"ds_write_b16_d16_hi v13, v24 offset:{L_Q+16}")
    e(f"ds_write_b16 v13, v25 offset:{L_Q+32}")
    e(f"ds_write_b16_d16_hi v13, v25 offset:{L_Q+48}")
    e("s_waitcnt lgkmcnt(0)")
    stamp(5)
    e("s_branch L_barA")
    A.label("L_hpub")
    e("s_cmp_ge_u32 s2, 252")
    e("s_cbranch_scc1 L_barA")
    e("v_lshlrev_b32 v13, 9, v11")
    e("v_lshl_add_u32 v13, v10, 7, v13")
    e("v_and_b32 v14, 7, v0")
    e("v_lshl_add_u32 v13, v14, 2, v13")
    for r in range(4):
        e(f"ds_write_b32 v13, v{70+r} offset:{L_HT + 32*r}")
    e("v_lshlrev_b32 v14, 4, v0")
    e("s_waitcnt lgkmcnt(0)")
    e(f"ds_read_b128 v[70:73], v14 offset:{L_HT}")
    e("v_lshrrev_b32 v13, 5, v0")
    e("v_mul_u32_u24 v13, 18432, v13")
    e("v_and_b32 v14, 31, v0")
    e("v_lshl_add_u32 v13, v14, 4, v13")
    e("s_mul_hi_u32 s43, s2, 0x71c71c8")
    e("s_mul_i32 s36, s43, 36")
    e("s_sub_u32 s36, s2, s36")
    e("s_lshl_b32 s36, s36, 9")
    e("s_mul_i32 s37, s43, 36864")
    e("s_add_u32 s36, s36, s37")
    e(f"s_add_u32 s36, s36, {HP}")
    e("s_waitcnt lgkmcnt(0)")
    tagpack(74, 70)
    e("buffer_store_dwordx4 v[74:77], v13, s[48:51], s36 offen sc1")
    stamp(4)
    e("s_branch L_barA")
    A.label("L_aux23")
    if bar0: e("s_barrier")
    make_tags()
    e("s_mov_b64 exec, 1")
    e(f"v_mov_b32 v13, {L_FC}")
    e("v_mov_b32 v14, 0")
    e("v_mov_b32 v15, 0")
    e("ds_write_b64 v13, v[14:15]")
    e("s_mov_b64 exec, -1")
    e("s_waitcnt lgkmcnt(0)")
    A.label("L_barA")
    e("s_barrier")
    stamp(6)
    e("s_and_b32 s36, s35, 1")
    e("s_lshr_b32 s37, s2, 1")
    e("s_mov_b32 s40, 2\ns_mov_b32 s41, 0")
    e("s_cmp_ge_u32 s3, 2")
    e("s_cbranch_scc1 L_t23")
    e("s_mov_b32 s38, 0")
    e("s_lshl_b32 s39, s36, 1")
    e("s_add_u32 s39, s39, s3")
    e("s_branch L_tdone")
    A.label("L_t23")
    e("s_mov_b32 s38, 1")
    e("s_lshl_b32 s39, s36, 1")
    e("s_sub_u32 s39, s3, s39")
    e("s_cmp_eq_u32 s3, 2")
    e("s_cbranch_scc0 L_th2")
    e("s_mov_b32 s41, 4")
    e("s_xor_b32 s40, s36, 1")
    A.label("L_th2")
    e("s_mov_b64 exec, 0x3ffff")
    e("v_cmp_le_u32 vcc, 9, v0")
    e("v_cndmask_b32 v13, 0, 1, vcc")
    e("v_mul_u32_u24 v14, 9, v13")
    e("v_sub_u32 v14, v0, v14")
    e("v_mul_u32_u24 v15, 18432, v13")
    e("v_lshl_add_u32 v15, v14, 4, v15")
    e("s_mul_i32 s42, s37, 144")
    e(f"s_add_u32 s42, s42, {HP}")
    e("s_mov_b32 s60, s22\ns_and_b32 s61, s23, 0xffff\ns_mov_b32 s62, 9216\ns_mov_b32 s63, 0x20000")
    e("s_mul_i32 s43, s37, 72")
    e("v_lshlrev_b32 v16, 3, v14")
    e("buffer_load_dwordx2 v[18:19], v16, s[60:63], s43 offen")
    def issue_h():
        e("s_mov_b32 s43, s42")
        for k in range(7):
            e(f"buffer_load_dwordx4 v[{20+4*k}:{23+4*k}], v15, s[48:51], s43 offen sc1")
            if k < 6: e("s_add_u32 s43, s43, 36864")
    poll(issue_h, [20 + 4 * k for k in range(7)], 48)
    for r in range(4):
        for k in range(7): e(f"v_and_b32 v{20+4*k+r}, s45, v{20+4*k+r}")
        for k in range(1, 7): e(f"v_add_f32 v{20+r}, v{20+r}, v{20+4*k+r}")
    e("v_lshlrev_b32 v24, 16, v18\nv_and_b32 v25, 0xffff0000, v18\nv_lshlrev_b32 v26, 16, v19\nv_and_b32 v27, 0xffff0000, v19")
    for r in range(4):
        e(f"v_cvt_pk_bf16_f32 v{20+r}, v{20+r}, v{20+r}")
        e(f"v_and_b32 v{20+r}, 0xffff0000, v{20+r}")
        e(f"v_add_f32 v{20+r}, v{20+r}, v{24+r}")
        e(f"v_cvt_pk_bf16_f32 v{20+r}, v{20+r}, v{20+r}")
        e(f"v_and_b32 v{20+r}, 0xffff0000, v{20+r}")
        e(f"v_max_f32 v{20+r}, 0, v{20+r}")
        e(f"v_mul_f32 v{20+r}, v{20+r}, v{20+r}")
        e(f"v_cvt_pk_bf16_f32 v{20+r}, v{20+r}, v{20+r}")
    e("v_mul_u32_u24 v16, 144, v13")
    e("v_lshl_add_u32 v16, v14, 4, v16")
    e("s_lshl_b32 s43, s3, 10")
    e("v_add_u32 v16, s43, v16")
    e(f"ds_write_b128 v16, v[20:23] offset:{L_PRIV}")
    e("s_mov_b64 exec, -1")
    e("s_waitcnt lgkmcnt(0)")
    A.label("L_tdone")
    stamp(7)
    def task_srd(srd, typ, beta, voff):
        n = pollid[0]; pollid[0] += 1
        e(f"s_cmp_eq_u32 {typ}, 1")
        e(f"s_cbranch_scc1 L_sw2_{n}")
        e("s_mul_i32 s42, s37, 36864")
        e(f"s_lshl_b32 s43, {beta}, 8")
        e("s_add_u32 s42, s42, s43")
        e(f"s_add_u32 s{srd}, s16, s42\ns_addc_u32 s{srd+1}, s17, 0")
        e(f"s_sub_u32 s{srd+2}, 4718592, s42")
        e("s_mov_b32 s43, 9216")
        e(f"s_branch L_sd_{n}")
        A.label(f"L_sw2_{n}")
        e("s_mul_i32 s42, s37, 41472")
        e(f"s_lshl_b32 s43, {beta}, 8")
        e("s_add_u32 s42, s42, s43")
        e(f"s_add_u32 s{srd}, s24, s42\ns_addc_u32 s{srd+1}, s25, 0")
        e(f"s_sub_u32 s{srd+2}, 5308416, s42")
        e("s_mov_b32 s43, 10368")
        A.label(f"L_sd_{n}")
        e(f"s_and_b32 s{srd+1}, s{srd+1}, 0xffff\ns_mov_b32 s{srd+3}, 0x20000")
        e(f"s_cmp_eq_u32 {typ}, 2")
        e(f"s_cselect_b32 s{srd+2}, 0, s{srd+2}")
        e(f"v_mul_lo_u32 v{voff}, v10, s43")
        e(f"v_lshl_add_u32 v{voff}, v12, 4, v{voff}")
        e(f"v_mov_b32 v19, {OOB}")
        e("v_cmp_le_u32 vcc, 8, v12")
        e(f"v_cndmask_b32 v18, v{voff}, v19, vcc")
        e(f"s_cmp_eq_u32 {beta}, 4")
        e(f"s_cbranch_scc0 L_se_{n}")
        e(f"v_mov_b32 v{voff}, v18")
        A.label(f"L_se_{n}")
    task_srd(52, "s38", "s39", 13)
    task_srd(56, "s40", "s41", 14)
    e(f"v_mov_b32 v19, {OOB}")
    e("s_cmp_eq_u32 s38, 0\ns_cselect_b64 vcc, -1, 0")
    e("v_cndmask_b32 v15, v13, v19, vcc")
    e("s_cmp_eq_u32 s40, 0\ns_cselect_b64 vcc, -1, 0")
    e("v_cndmask_b32 v16, v14, v19, vcc")
    ldsspin(L_FC, 4)
    stamp(8)
    e("s_mov_b32 s42, 0")
    for t in range(9):
        vo = 13 if t < 8 else 15
        e(f"buffer_load_dwordx4 a[{4*t}:{4*t+3}], v{vo}, s[52:55], s42 offen{NT}")
        e("s_add_u32 s42, s42, 1152") if t < 8 else None
    e("s_mov_b32 s42, 0")
    for t in range(9):
        vo = 14 if t < 8 else 16
        e(f"buffer_load_dwordx4 a[{36+4*t}:{36+4*t+3}], v{vo}, s[56:59], s42 offen{NT}")
        e("s_add_u32 s42, s42, 1152") if t < 8 else None
    e("s_cmp_eq_u32 s3, 3")
    e("s_cbranch_scc0 L_nocomb")
    ldsspin(L_FB, 4)
    stamp(9)
    e("v_and_b32 v20, 31, v0")
    e("v_lshlrev_b32 v20, 4, v20")
    e("v_lshrrev_b32 v21, 5, v0")
    e("v_lshl_add_u32 v22, v21, 9, v20")
    e(f"ds_read_b128 v[24:27], v22 offset:{L_OW}")
    e(f"ds_read_b128 v[28:31], v22 offset:{L_OW + 1024}")
    e("v_lshlrev_b32 v23, 3, v21")
    e(f"ds_read_b64 v[40:41], v23 offset:{L_MLW}")
    e(f"ds_read_b64 v[42:43], v23 offset:{L_MLW+16}")
    e("s_waitcnt lgkmcnt(0)")
    e("v_max_f32 v48, v40, v42")
    e(f"s_mov_b32 s42, 0x{LOG2E:x}")
    e("v_sub_f32 v40, v40, v48\nv_sub_f32 v42, v42, v48")
    e("v_mul_f32 v40, s42, v40\nv_mul_f32 v42, s42, v42")
    e("v_exp_f32 v40, v40\nv_exp_f32 v42, v42")
    e("v_mul_f32 v49, v40, v41")
    e("v_fmac_f32 v49, v42, v43")
    for r in range(4):
        e(f"v_mul_f32 v{50+r}, v40, v{24+r}")
        e(f"v_fmac_f32 v{50+r}, v42, v{28+r}")
    tagpack(54, 50)
    e("s_lshl_b32 s42, s34, 13")
    e("s_lshl_b32 s43, s35, 9")
    e("s_add_u32 s42, s42, s43")
    e(f"s_add_u32 s42, s42, {OP}")
    e("v_lshl_add_u32 v22, v21, 12, v20")
    e("buffer_store_dwordx4 v[54:57], v22, s[48:51], s42 offen sc1")
    e("v_mov_b32 v50, v48\nv_mov_b32 v51, v49\nv_mov_b32 v52, 0\nv_mov_b32 v53, 0")
    tagpack(58, 50)
    e("s_lshl_b32 s42, s34, 8")
    e("s_lshl_b32 s43, s35, 4")
    e("s_add_u32 s42, s42, s43")
    e(f"s_add_u32 s42, s42, {ML}")
    e("v_lshlrev_b32 v22, 7, v21")
    e("s_mov_b32 exec_lo, 1\ns_mov_b32 exec_hi, 1")
    e("buffer_store_dwordx4 v[58:61], v22, s[48:51], s42 offen sc1")
    e("s_mov_b64 exec, -1")
    stamp(10)
    A.label("L_nocomb")

    def blocktask(which, typ, beta, abase):
        n = pollid[0]; pollid[0] += 1
        e(f"s_cmp_eq_u32 {typ}, 2")
        e(f"s_cbranch_scc1 L_bt_end{n}")
        e(f"s_cmp_eq_u32 {typ}, 1")
        e(f"s_cbranch_scc1 L_bt_w2{n}")
        e("v_lshrrev_b32 v20, 5, v0")
        e("v_bfe_u32 v21, v0, 3, 2")
        e("v_and_b32 v22, 7, v0")
        e("v_lshlrev_b32 v23, 12, v20")
        e("v_lshl_add_u32 v23, v21, 9, v23")
        e("v_lshl_add_u32 v23, v22, 4, v23")
        e("v_lshlrev_b32 v20, 7, v20")
        e("v_lshl_add_u32 v20, v21, 4, v20")
        e("s_lshr_b32 s42, s35, 1")
        e("s_lshl_b32 s42, s42, 7")
        e("s_lshl_b32 s43, s34, 13")
        e("s_add_u32 s42, s42, s43")
        e(f"s_add_u32 s42, s42, {OP}")
        e("s_lshl_b32 s43, s34, 8")
        e(f"s_add_u32 s43, s43, {ML}")
        def issue_o():
            e("buffer_load_dwordx4 v[24:27], v23, s[48:51], s42 offen sc1")
            e("buffer_load_dwordx4 v[36:39], v23, s[48:51], s42 offen offset:2048 sc1")
            e("buffer_load_dwordx4 v[28:31], v20, s[48:51], s43 offen sc1")
            e("buffer_load_dwordx4 v[40:43], v20, s[48:51], s43 offen offset:64 sc1")
        poll(issue_o, [24, 36, 28, 40], 32)
        stamp(11)
        for r in (24, 25, 26, 27, 36, 37, 38, 39, 28, 29, 40, 41): e(f"v_and_b32 v{r}, s45, v{r}")
        e("v_max_f32 v30, v28, v40")
        e("v_max_f32_dpp v30, v30, v30 row_ror:8 row_mask:0xf bank_mask:0xf")
        e("v_mov_b32 v31, v30")
        e("v_permlane16_swap_b32 v30, v31")
        e("v_max_f32 v30, v30, v31")
        e("v_sub_f32 v28, v28, v30\nv_sub_f32 v40, v40, v30")
        e(f"v_mul_f32 v28, 0x{LOG2E:x}, v28\nv_mul_f32 v40, 0x{LOG2E:x}, v40")
        e("v_exp_f32 v28, v28\nv_exp_f32 v40, v40")
        e("v_mul_f32 v29, v29, v28")
        e("v_fmac_f32 v29, v41, v40")
        for r in range(4):
            e(f"v_mul_f32 v{24+r}, v{24+r}, v28")
            e(f"v_fmac_f32 v{24+r}, v{36+r}, v40")
        for r in (29, 24, 25, 26, 27):
            e(f"v_add_f32_dpp v{r}, v{r}, v{r} row_ror:8 row_mask:0xf bank_mask:0xf")
        for k, r in enumerate((29, 24, 25, 26, 27)):
            e(f"v_mov_b32 v{32+k}, v{r}")
        for k, r in enumerate((29, 24, 25, 26, 27)):
            e(f"v_permlane16_swap_b32 v{r}, v{32+k}")
        for k, r in enumerate((29, 24, 25, 26, 27)):
            e(f"v_add_f32 v{r}, v{r}, v{32+k}")
        e("v_rcp_f32 v29, v29")
        for r in range(4): e(f"v_mul_f32 v{24+r}, v{24+r}, v29")
        for r in range(4): e(f"v_cvt_pk_bf16_f32 v{24+r}, v{24+r}, v{24+r}")
        e("v_lshrrev_b32 v20, 5, v0")
        e("v_lshlrev_b32 v20, 7, v20")
        e("v_lshl_add_u32 v20, v22, 4, v20")
        e("s_lshl_b32 s42, s3, 10")
        e("v_add_u32 v20, s42, v20")
        e(f"ds_write_b128 v20, v[24:27] offset:{L_PRIV + 0x200}")
        e("v_lshlrev_b32 v20, 7, v11")
        e("v_lshl_add_u32 v20, v10, 5, v20")
        e("v_add_u32 v20, s42, v20")
        e(f"v_add_u32 v20, {L_PRIV + 0x200}, v20")
        e(f"s_mov_b32 s43, {SP}")
        e(f"s_branch L_bt_go{n}")
        A.label(f"L_bt_w2{n}")
        e("v_mul_u32_u24 v20, 144, v11")
        e("v_mad_u32_u24 v20, v10, 36, v20")
        e("s_lshl_b32 s42, s3, 10")
        e("v_add_u32 v20, s42, v20")
        e(f"v_add_u32 v20, {L_PRIV}, v20")
        e(f"s_mov_b32 s43, {GP}")
        A.label(f"L_bt_go{n}")
        e("s_waitcnt lgkmcnt(0)")
        for t in range(9):
            e(f"ds_read_b32 v{24+t}, v20 offset:{4*t}")
        for r in range(4): e(f"v_mov_b32 v{70+r}, 0")
        e("s_waitcnt lgkmcnt(0)")
        e(f"s_cmp_eq_u32 {typ}, 0\ns_cselect_b64 vcc, -1, 0")
        e("v_cndmask_b32 v32, v32, 0, vcc") if False else None
        e("v_mov_b32 v33, 0")
        e("v_cndmask_b32 v32, v32, v33, vcc")
        e(f"s_waitcnt vmcnt({WAITX if which == 'X' else 0})")
        for t in range(9):
            B = 76 + 4 * (t & 1)
            for jj in range(4):
                e(f"v_and_b32 v{B+jj}, v{24+t}, v{6+jj}")
            e(f"v_mfma_f32_16x16x32_bf16 v[70:73], a[{abase+4*t}:{abase+4*t+3}], v[{B}:{B+3}], v[70:73]")
        tagpack(74, 70)
        e(f"s_lshl_b32 s42, {beta}, 17")
        e("s_add_u32 s43, s43, s42")
        e("s_lshl_b32 s42, s37, 7")
        e("s_add_u32 s43, s43, s42")
        e("v_lshrrev_b32 v20, 3, v0")
        e("v_lshlrev_b32 v20, 14, v20")
        e("v_and_b32 v21, 7, v0")
        e("v_lshl_add_u32 v20, v21, 4, v20")
        e(f"v_mov_b32 v21, {OOB}")
        e("v_cmp_le_u32 vcc, 32, v0")
        e("v_cndmask_b32 v21, v20, v21, vcc")
        e(f"s_cmp_eq_u32 {beta}, 4")
        e(f"s_cbranch_scc0 L_bt_st{n}")
        e("v_mov_b32 v20, v21")
        A.label(f"L_bt_st{n}")
        e("buffer_store_dwordx4 v[74:77], v20, s[48:51], s43 offen sc1")
        A.label(f"L_bt_end{n}")
    WAITX = 0
    blocktask("X", "s38", "s39", 0)
    stamp(12)
    blocktask("Y", "s40", "s41", 36)
    stamp(13)

    e("s_cmp_ge_u32 s2, 36")
    e("s_cbranch_scc1 L_auxend")
    e("s_lshr_b32 s36, s2, 3")
    e("s_and_b32 s37, s2, 7")
    e("s_lshl_b32 s38, s36, 7")
    e("s_lshr_b32 s39, s37, 1")
    e("s_lshl_b32 s39, s39, 5")
    e("s_add_u32 s38, s38, s39")
    e("s_and_b32 s39, s37, 1")
    e("s_mul_i32 s39, s39, 576")
    e("s_add_u32 s39, s39, s38")
    e("s_mov_b32 s60, s8\ns_and_b32 s61, s9, 0xffff\ns_mov_b32 s62, 2304\ns_mov_b32 s63, 0x20000")
    e("s_mov_b32 s56, s26\ns_and_b32 s57, s27, 0xffff\ns_mov_b32 s58, 1152\ns_mov_b32 s59, 0x20000")
    e("v_lshlrev_b32 v13, 1, v0")
    e("s_lshl_b32 s40, s39, 1")
    e("s_lshl_b32 s41, s38, 1")
    e("s_mov_b32 exec_lo, -1\ns_mov_b32 exec_hi, 0")
    e("buffer_load_ushort v14, v13, s[60:63], s40 offen")
    e("buffer_load_ushort v15, v13, s[56:59], s41 offen")
    e("s_mov_b64 exec, -1")
    e("v_lshlrev_b32 v16, 4, v0")
    e("s_lshl_b32 s42, s2, 14")
    e("s_lshl_b32 s43, s3, 12")
    e("s_add_u32 s42, s42, s43")
    for kind, base in ((0, GP), (1, SP)):
        e(f"s_add_u32 s43, s42, {base}")
        def issue_r():
            for k in range(4):
                e(f"buffer_load_dwordx4 v[{20+4*k}:{23+4*k}], v16, s[48:51], s43 offen offset:{1024*k} sc1")
        poll(issue_r, [20, 24, 28, 32], 36)
        stamp(14 + kind)
        for r in range(4):
            for k in range(4): e(f"v_and_b32 v{20+4*k+r}, s45, v{20+4*k+r}")
            e(f"v_add_f32 v{20+r}, v{20+r}, v{24+r}")
            e(f"v_add_f32 v{28+r}, v{28+r}, v{32+r}")
            e(f"v_add_f32 v{20+r}, v{20+r}, v{28+r}")
        for r in range(4):
            e(f"v_add_f32_dpp v{20+r}, v{20+r}, v{20+r} row_ror:8 row_mask:0xf bank_mask:0xf")
        for r in range(4): e(f"v_mov_b32 v{24+r}, v{20+r}")
        for r in range(4): e(f"v_permlane16_swap_b32 v{20+r}, v{24+r}")
        for r in range(4): e(f"v_add_f32 v{20+r}, v{20+r}, v{24+r}")
        for r in range(4): e(f"v_mov_b32 v{24+r}, v{20+r}")
        for r in range(4): e(f"v_permlane32_swap_b32 v{20+r}, v{24+r}")
        for r in range(4): e(f"v_add_f32 v{20+r}, v{20+r}, v{24+r}")
        e("v_and_b32 v17, 7, v0")
        e("v_lshlrev_b32 v17, 4, v17")
        e("s_lshl_b32 s43, s3, 7")
        e("v_add_u32 v17, s43, v17")
        e(f"ds_write_b128 v17, v[20:23] offset:{L_RED + 512*kind}")
    e("s_waitcnt lgkmcnt(0)")
    e("s_barrier")
    e("s_cmp_eq_u32 s3, 0")
    e("s_cbranch_scc0 L_auxend")
    e("v_and_b32 v17, 7, v0")
    e("v_lshlrev_b32 v17, 4, v17")
    e("v_bfe_u32 v18, v0, 3, 2")
    e("v_lshl_add_u32 v17, v18, 2, v17")
    for kind in range(2):
        for a in range(4):
            e(f"ds_read_b32 v{20+4*kind+a}, v17 offset:{L_RED + 512*kind + 128*a}")
    e("s_waitcnt lgkmcnt(0)")
    for kind in range(2):
        b = 20 + 4 * kind
        e(f"v_add_f32 v{b}, v{b}, v{b+1}")
        e(f"v_add_f32 v{b+2}, v{b+2}, v{b+3}")
        e(f"v_add_f32 v{b}, v{b}, v{b+2}")
    def rnd(r):
        e(f"v_cvt_pk_bf16_f32 v{r}, v{r}, v{r}")
        e(f"v_and_b32 v{r}, 0xffff0000, v{r}")
    e("s_waitcnt vmcnt(0)")
    e("v_lshlrev_b32 v14, 16, v14")
    e("v_lshlrev_b32 v15, 16, v15")
    rnd(20); rnd(24)
    e("v_add_f32 v20, v20, v15")
    rnd(20)
    e(f"v_mul_f32 v21, 0x{(LOG2E ^ 0x80000000):x}, v20")
    e("v_exp_f32 v21, v21")
    e("v_add_f32 v21, 1.0, v21")
    e("v_rcp_f32 v21, v21")
    e("v_mul_f32 v20, v20, v21")
    rnd(20)
    e("v_mul_f32 v20, v24, v20")
    rnd(20)
    e("v_add_f32 v20, v14, v20")
    e("v_cvt_pk_bf16_f32 v20, v20, v20")
    e("s_mov_b32 s60, s28\ns_and_b32 s61, s29, 0xffff\ns_mov_b32 s62, 2304\ns_mov_b32 s63, 0x20000")
    e("s_mov_b32 exec_lo, -1\ns_mov_b32 exec_hi, 0")
    e("buffer_store_short v20, v13, s[60:63], s40 offen")
    e("s_mov_b64 exec, -1")
    e("s_cmp_eq_u32 s2, 0")
    e("s_cbranch_scc0 L_auxend")
    e("s_mov_b64 exec, 1")
    e("v_mov_b32 v20, s46\nv_mov_b32 v21, s47\nv_mov_b32 v22, 0")
    e("buffer_store_dwordx2 v[20:21], v22, s[48:51], 0 offen sc1")
    e("s_mov_b64 exec, -1")
    A.label("L_auxend")
    stamp(15 + 1) if False else None
    dump_stamps(16)
    A.label("L_end")
    e("s_endpgm")
    A.raw('.section .rodata,"a"')
    A.raw(".p2align 6")
    A.raw(f".amdhsa_kernel {NAME}")
    acc = 40 + 16 * D
    acc = (acc + 3) // 4 * 4
    A.raw(f"  .amdhsa_next_free_vgpr {acc + max(16 * D, 88)}")
    A.raw("  .amdhsa_next_free_sgpr 100")
    A.raw(f"  .amdhsa_accum_offset {acc}")
    A.raw("  .amdhsa_group_segment_fixed_size 0")
    A.raw("  .amdhsa_kernarg_size 104")
    A.raw("  .amdhsa_user_sgpr_count 2")
    A.raw("  .amdhsa_user_sgpr_kernarg_segment_ptr 1")
    A.raw("  .amdhsa_system_sgpr_workgroup_id_x 1")
    A.raw("  .amdhsa_float_denorm_mode_32 3")
    A.raw(".end_amdhsa_kernel")
    n = A.fix_hazards()
    return A.text(), n

if __name__ == "__main__":
    cfg = json.loads(sys.argv[2]) if len(sys.argv) > 2 else {}
    t, n = gen(**cfg)
    hdr = open("cdna_kernels/" + NAME[:-7] + ".s.ref").read().split("; Override launch")[0]
    lines = t.split("\n")
    out = hdr + lines[0] + "\n" + "\n".join(lines[1:])
    open(sys.argv[1], "w").write(out)
    print("nops inserted:", n)
```

```python
import sys, json
from asmfw import Asm

NAME = "recurrent_scan__mha_block_cached__dense_activation_squared_relu__decode_kernel"

EP = 0
QP = 0x10000
HP = 0x60000
OP = 0xA0000
ML = 0xE0000
CNT = 0xF0000
SP = 0x100000
GP = 0x200000
TS = 0x300000
WS_BYTES = 0x500000
L_Q = 0x000
L_FC = 0x200
L_FB = 0x204
L_WANT = 0x208
L_MLW = 0x240
L_MB = 0x280
L_OW = 0x400
L_HT = 0xC00
L_PRIV = 0x1000
L_RED = 0x2000
LDS_BYTES = 0x2400

TAGB = 10
TAGM = (1 << TAGB) - 1
VALM = (~TAGM) & 0xffffffff
OOB = 0x40000000
LOG2E = 0x3fb8aa3b
SCALE = 0x3db504f3
SPIN = 1 << 17

def gen(D=6, A_=2, gss=((8, 4), (8, 2), (16, 1)), req_at=1, stamps=False, nt=True, sleep=1, bar0=True, tlog=False, noatom=False, ntk=None, tstep=False, static_tail=False, kpat=True):
    A = Asm()
    e = A
    NT = " nt" if nt else ""
    nstamp = [0]
    def stamp(k):
        if stamps:
            e(f"s_memrealtime s[{64+2*k}:{65+2*k}]")
    def dump_stamps(nk):
        if not stamps: return
        e("s_waitcnt lgkmcnt(0)")
        e("s_lshl_b32 s6, s2, 3")
        e("s_add_u32 s6, s6, s5")
        e("s_lshl_b32 s6, s6, 7")
        e(f"s_add_u32 s6, s6, {TS}")
        e("s_mov_b64 exec, 1")
        e("v_mov_b32 v1, 0")
        e(f"s_mov_b32 s60, s32\ns_mov_b32 s61, s33\ns_mov_b32 s62, {WS_BYTES}\ns_mov_b32 s63, 0x20000")
        for k in range(nk):
            e(f"v_mov_b32 v2, s{64+2*k}")
            e(f"buffer_store_dword v2, v1, s[60:63], s6 offen offset:{4*k}")
        e("s_mov_b64 exec, -1")

    A.raw("; @launch grid=(256,1,1) block=(512,1,1) lds=%d" % LDS_BYTES)
    A.raw('.amdgcn_target "amdgcn-amd-amdhsa--gfx950"')
    A.raw(".text")
    A.raw(f".globl {NAME}")
    A.raw(".p2align 8")
    A.raw(f".type {NAME},@function")
    A.label(NAME)
    e("s_cmp_ge_u32 s2, 256")
    e("s_cbranch_scc1 L_end")
    e("s_load_dwordx16 s[8:23], s[0:1], 0")
    e("s_load_dwordx8 s[24:31], s[0:1], 64")
    e("s_load_dwordx2 s[32:33], s[0:1], 96")
    stamp(0)
    e("v_lshrrev_b32 v1, 6, v0")
    e("v_and_b32 v0, 63, v0")
    e("v_readfirstlane_b32 s3, v1")
    e("s_lshr_b32 s34, s2, 3")
    e("s_and_b32 s35, s2, 7")
    e("v_and_b32 v1, 1, v0")
    e("v_lshlrev_b32 v1, 4, v1")
    e("v_mov_b32 v2, 0xffff")
    e("v_lshlrev_b32 v1, v1, v2")
    e("v_bfe_u32 v2, v0, 1, 2")
    for j in range(4):
        e(f"v_cmp_eq_u32 vcc, {j}, v2")
        e(f"v_cndmask_b32 v{6+j}, 0, v1, vcc")
    e("s_mov_b32 s5, s3")
    e("s_cmp_ge_u32 s3, 4")
    e("s_waitcnt lgkmcnt(0)")
    e("s_cbranch_scc1 L_stream")
    e("s_branch L_aux")

    A.label("L_stream")
    e("s_sub_u32 s3, s3, 4")
    e("s_and_b32 s37, s3, 1")
    e("s_lshl_b32 s36, s37, 5")
    e("s_add_u32 s36, s36, s34")
    e("s_lshl_b32 s36, s36, 20")
    e("s_add_u32 s48, s10, s36\ns_addc_u32 s49, s11, 0\ns_and_b32 s49, s49, 0xffff\ns_mov_b32 s50, 0x100000\ns_mov_b32 s51, 0x20000")
    e("s_add_u32 s52, s12, s36\ns_addc_u32 s53, s13, 0\ns_and_b32 s53, s53, 0xffff\ns_mov_b32 s54, 0x100000\ns_mov_b32 s55, 0x20000")
    e("s_lshr_b32 s39, s3, 1")
    STRIDE = 16 if kpat else 2
    e(f"s_lshl_b32 s80, s35, {1 if kpat else 4}")
    e("s_add_u32 s80, s80, s39")
    e("v_lshlrev_b32 v1, 4, v0")
    KR = lambda s, t: 40 + 16 * s + 4 * t
    VR = lambda s, t: 16 * s + 4 * t
    def loadK(s):
        for t in range(4):
            r = KR(s, t)
            e(f"buffer_load_dwordx4 v[{r}:{r+3}], v1, s[48:51], s38 offen offset:{1024*t}{NT}")
    def loadV(s):
        for t in range(4):
            r = VR(s, t)
            e(f"buffer_load_dwordx4 a[{r}:{r+3}], v1, s[52:55], s38 offen offset:{1024*t}{NT}")
    if tlog or tstep:
        e("s_mov_b32 s87, 0")
        e("v_mov_b32 v33, -1")
        e("v_mov_b32 v34, -1")
    if bar0: e("s_barrier")
    for c in range(D):
        if tlog:
            e("s_mov_b32 m0, s87")
            e("v_writelane_b32 v33, s80, m0")
            e("s_add_u32 s87, s87, 1")
        e("s_lshl_b32 s38, s80, 12")
        e(f"s_add_u32 s80, s80, {STRIDE}")
        loadK(c); loadV(c)
    stamp(1)
    e(f"s_mov_b32 s81, {8 - D}")
    e("s_mov_b32 s82, 0")
    for r in range(4): e(f"v_mov_b32 v{10+r}, 0")
    e("v_mov_b32 v14, 0xff800000")
    e("v_mov_b32 v15, 0")
    e("v_and_b32 v16, 15, v0")
    e("v_lshlrev_b32 v16, 4, v16")
    e("s_lshl_b32 s40, s37, 8")
    e("v_add_u32 v16, s40, v16")
    e("s_mov_b32 s86, 0")
    e("s_mov_b32 s88, 0x400000")
    e(f"s_mov_b32 s40, 0x{SCALE:x}")
    e(f"s_mov_b32 s41, 0x{LOG2E:x}")
    e(f"v_mov_b32 v36, {L_WANT}")
    e("s_barrier")
    e(f"ds_read_b128 v[2:5], v16 offset:{L_Q}")
    e("s_waitcnt lgkmcnt(0)")
    stamp(2)
    NKV = 8 * (D - 1)
    NTK = 12 if ntk is None else ntk
    A.label("L_sloop")
    for s in range(D):
        e("s_cmp_eq_u32 s86, 0")
        e(f"s_cbranch_scc1 L_nw{s}")
        e("s_cmp_eq_u32 s89, 0")
        e("s_cbranch_scc1 L_sdone")
        e("s_sub_u32 s89, s89, 1")
        e("s_cmp_ge_u32 s89, 2")
        e(f"s_cbranch_scc1 L_dw{s}")
        e("s_cmp_eq_u32 s89, 1")
        e(f"s_cbranch_scc1 L_w8{s}")
        e("s_waitcnt vmcnt(0)")
        e(f"s_branch L_go{s}")
        A.label(f"L_w8{s}")
        e("s_waitcnt vmcnt(8)")
        e(f"s_branch L_go{s}")
        A.label(f"L_dw{s}")
        e("s_waitcnt vmcnt(16)")
        e(f"s_branch L_go{s}")
        A.label(f"L_nw{s}")
        e(f"s_waitcnt vmcnt({NKV})")
        A.label(f"L_go{s}")
        if tstep:
            e("s_memrealtime s[90:91]")
            e("s_waitcnt lgkmcnt(0)")
            e("s_mov_b32 m0, s87")
            e("v_writelane_b32 v33, s90, m0")
            e("s_add_u32 s87, s87, 1")
        if tlog:
            e("s_mov_b32 m0, s87")
            e(f"v_writelane_b32 v33, s{64+s}, m0") if False else None
        for jj in range(4):
            for t in range(4):
                k = KR(s, t) + jj
                if jj == 0: e(f"v_dot2_f32_bf16 v{16+t}, v{k}, v2, 0")
                else: e(f"v_dot2c_f32_bf16 v{16+t}, v{k}, v{2+jj}")
        e("v_add_f32_dpp v20, v16, v16 row_ror:8 row_mask:0xf bank_mask:0x3")
        e("v_add_f32_dpp v21, v18, v18 row_ror:8 row_mask:0xf bank_mask:0x3")
        e("v_add_f32_dpp v20, v17, v17 row_ror:8 row_mask:0xf bank_mask:0xc")
        e("v_add_f32_dpp v21, v19, v19 row_ror:8 row_mask:0xf bank_mask:0xc")
        e("v_add_f32_dpp v22, v20, v20 row_shl:4 row_mask:0xf bank_mask:0x5")
        e("v_add_f32_dpp v22, v21, v21 row_shr:4 row_mask:0xf bank_mask:0xa")
        e("v_add_f32_dpp v22, v22, v22 quad_perm:[1,0,3,2] row_mask:0xf bank_mask:0xf")
        e("v_add_f32_dpp v22, v22, v22 quad_perm:[2,3,0,1] row_mask:0xf bank_mask:0xf")
        e("v_cvt_pk_bf16_f32 v23, v22, v22")
        e("v_and_b32 v23, 0xffff0000, v23")
        e("v_mul_f32 v23, s40, v23")
        e("v_cvt_pk_bf16_f32 v23, v23, v23")
        e("v_and_b32 v23, 0xffff0000, v23")
        e("v_max_f32_dpp v24, v23, v23 row_ror:4 row_mask:0xf bank_mask:0xf")
        e("v_max_f32_dpp v24, v24, v24 row_ror:8 row_mask:0xf bank_mask:0xf")
        e("v_mov_b32 v25, v24")
        e("v_permlane16_swap_b32 v24, v25")
        e("v_max_f32 v24, v24, v25")
        e("v_mov_b32 v25, v24")
        e("v_permlane32_swap_b32 v24, v25")
        e("v_max3_f32 v24, v24, v25, v14")
        e("v_sub_f32 v25, v14, v24")
        e("v_sub_f32 v26, v23, v24")
        e("v_mul_f32 v25, s41, v25")
        e("v_mul_f32 v26, s41, v26")
        e("v_exp_f32 v25, v25")
        e("v_exp_f32 v26, v26")
        e("v_mov_b32 v14, v24")
        e("v_fma_f32 v15, v15, v25, v26")
        e("v_cvt_pk_bf16_f32 v27, v26, v26")
        for r in range(4): e(f"v_mul_f32 v{10+r}, v{10+r}, v25")
        bank_lane = [0, 8, 4, 12]
        for t in range(4):
            B = 28 if (t & 1) == 0 else 16
            for jj in range(4):
                e(f"v_and_b32_dpp v{B+jj}, v27, v{6+jj} row_newbcast:{bank_lane[t]} row_mask:0xf bank_mask:0xf")
            r = VR(s, t)
            e(f"v_mfma_f32_16x16x32_bf16 v[10:13], a[{r}:{r+3}], v[{B}:{B+3}], v[10:13]")
        if tstep:
            e("s_memrealtime s[90:91]")
            e("s_waitcnt lgkmcnt(0)")
            e("v_writelane_b32 v34, s90, m0")
        e("s_cmp_lg_u32 s86, 0")
        e(f"s_cbranch_scc1 L_nx{s}")
        e(f"s_waitcnt vmcnt({NTK})")
        e("s_cmp_lg_u32 s81, 0")
        e(f"s_cbranch_scc1 L_have{s}")
        if static_tail:
            e("s_cmp_lg_u32 s82, 0")
            e(f"s_cbranch_scc1 L_drain{s}")
            e(f"s_lshl_b32 s90, s35, {1 if kpat else 4}")
            e("s_add_u32 s90, s90, 128")
            e("s_or_b32 s90, s90, 0x80000")
        else:
            e("s_lshl_b32 s90, s82, 2")
            e(f"s_add_u32 s90, s90, {L_MB}")
            e("v_mov_b32 v20, s90")
            A.label(f"L_mb{s}")
            e("ds_read_b32 v21, v20")
            e("s_waitcnt lgkmcnt(0)")
            e("v_readfirstlane_b32 s90, v21")
            e("s_cmp_lg_u32 s90, -1")
            e(f"s_cbranch_scc1 L_got{s}")
            e("s_sub_u32 s88, s88, 1")
            e("s_cmp_lg_u32 s88, 0")
            e(f"s_cbranch_scc1 L_mb{s}")
            e("s_mov_b32 s90, 256")
            A.label(f"L_got{s}")
        e("s_add_u32 s82, s82, 1")
        e("s_and_b32 s80, s90, 0xffff")
        e("s_lshr_b32 s81, s90, 16")
        e("s_cmp_lt_u32 s80, 256")
        e("s_addc_u32 s80, s80, 0") if False else None
        e(f"s_cbranch_scc1 L_ok{s}")
        A.label(f"L_drain{s}")
        e("s_mov_b32 s86, 1")
        e(f"s_mov_b32 s89, {D-1}")
        e("s_mov_b64 exec, 1")
        e(f"v_mov_b32 v20, {L_FC}")
        e("v_mov_b32 v21, 1")
        e("ds_add_u32 v20, v21")
        e("s_mov_b64 exec, -1")
        stamp(3)
        e(f"s_branch L_nx{s}")
        A.label(f"L_ok{s}")
        e("s_add_u32 s80, s80, s39")
        A.label(f"L_have{s}")
        e("s_lshl_b32 s38, s80, 12")
        e(f"s_add_u32 s80, s80, {STRIDE}")
        e("s_sub_u32 s81, s81, 1")
        if tlog:
            e("s_lshr_b32 s90, s38, 12")
            e("s_mov_b32 m0, s87")
            e("v_writelane_b32 v33, s90, m0")
            e("s_add_u32 s87, s87, 1")
        loadK(s)
        if not static_tail:
            e(f"s_cmp_le_u32 s81, {req_at}")
            e(f"s_cbranch_scc0 L_nr{s}")
            e("s_add_u32 s90, s82, 1")
            e("s_mov_b64 exec, 1")
            e("v_mov_b32 v21, s90")
            e("ds_max_u32 v36, v21")
            e("s_mov_b64 exec, -1")
            A.label(f"L_nr{s}")
        loadV(s)
        A.label(f"L_nx{s}")
        if s == D - 1:
            e("s_branch L_sloop")
    A.label("L_sdone")
    stamp(4)
    e("v_add_f32_dpp v15, v15, v15 row_ror:4 row_mask:0xf bank_mask:0xf")
    e("v_add_f32_dpp v15, v15, v15 row_ror:8 row_mask:0xf bank_mask:0xf")
    e("v_mov_b32 v25, v15")
    e("v_permlane16_swap_b32 v15, v25")
    e("v_add_f32 v15, v15, v25")
    e("v_mov_b32 v25, v15")
    e("v_permlane32_swap_b32 v15, v25")
    e("v_add_f32 v15, v15, v25")
    e("v_lshrrev_b32 v16, 4, v0")
    e("v_lshlrev_b32 v16, 7, v16")
    e("v_and_b32 v17, 7, v0")
    e("v_lshl_add_u32 v16, v17, 2, v16")
    e("s_lshl_b32 s37, s3, 9")
    e("v_add_u32 v16, s37, v16")
    for r in range(4):
        e(f"ds_write_b32 v16, v{10+r} offset:{L_OW + 32*r}")
    e("s_lshl_b32 s37, s3, 3")
    e("v_mov_b32 v17, s37")
    e(f"ds_write_b64 v17, v[14:15] offset:{L_MLW}")
    e("s_waitcnt lgkmcnt(0)")
    e("s_mov_b64 exec, 1")
    e(f"v_mov_b32 v28, {L_FB}")
    e("v_mov_b32 v29, 1")
    e("ds_add_u32 v28, v29")
    e("s_mov_b64 exec, -1")
    stamp(5)
    if tlog or tstep:
        e("s_lshl_b32 s6, s2, 3\ns_add_u32 s6, s6, s5\ns_lshl_b32 s6, s6, 8")
        e(f"s_add_u32 s6, s6, {TS + 0x80000}")
        e(f"s_mov_b32 s60, s32\ns_mov_b32 s61, s33\ns_mov_b32 s62, {WS_BYTES}\ns_mov_b32 s63, 0x20000")
        e("v_lshlrev_b32 v1, 2, v0")
        e("buffer_store_dword v33, v1, s[60:63], s6 offen")
        e(f"s_add_u32 s6, s6, 0x80000")
        e("buffer_store_dword v34, v1, s[60:63], s6 offen")
    dump_stamps(6)
    e("s_endpgm")

    A.label("L_aux")
    e("s_setprio 3")
    e("s_load_dwordx2 s[46:47], s[32:33], 0")
    e(f"s_mov_b32 s48, s32\ns_and_b32 s49, s33, 0xffff\ns_mov_b32 s50, {WS_BYTES}\ns_mov_b32 s51, 0x20000")
    e("v_lshrrev_b32 v10, 4, v0")
    e("v_bfe_u32 v11, v0, 3, 1")
    e("v_and_b32 v12, 15, v0")
    e("s_cmp_ge_u32 s3, 2")
    e("s_cbranch_scc1 L_aux23")
    e("s_mov_b32 s60, s8\ns_and_b32 s61, s9, 0xffff\ns_mov_b32 s62, 2304\ns_mov_b32 s63, 0x20000")
    e("s_cmp_eq_u32 s3, 1")
    e("s_cbranch_scc1 L_p1")
    e("s_mul_i32 s36, s35, 72")
    e("s_mov_b32 s37, 18")
    e("s_mov_b32 s38, 8192")
    e("s_lshl_b32 s39, s34, 8")
    e("s_mul_i32 s40, s36, 8192")
    e("s_add_u32 s39, s39, s40")
    e("s_add_u32 s52, s14, s39\ns_addc_u32 s53, s15, 0")
    e("s_sub_u32 s54, 4718592, s39")
    e("v_lshlrev_b32 v13, 2, v0")
    e("v_mov_b32 v14, 0")
    e("s_lshl_b32 s40, s34, 8")
    e(f"s_add_u32 s40, s40, {CNT}")
    e("s_add_u32 s56, s32, s40\ns_addc_u32 s57, s33, 0\ns_and_b32 s57, s57, 0xffff\ns_mov_b32 s59, 0x20000")
    e("s_cmp_eq_u32 s35, 0")
    e("s_cselect_b32 s58, 4, 0")
    e("buffer_store_dword v14, v13, s[56:59], 0 offen sc1")
    e("s_mov_b32 s41, 99")
    e("s_mov_b32 s42, 1")
    e("s_branch L_p2")
    A.label("L_p1")
    e("s_mul_hi_u32 s43, s2, 0x71c71c8")
    e("s_mul_i32 s44, s43, 36")
    e("s_sub_u32 s44, s2, s44")
    e("s_mul_i32 s36, s43, 82")
    e("s_cmp_eq_u32 s43, 0")
    e("s_cselect_b32 s40, 0, 2")
    e("s_add_u32 s36, s36, s40")
    e("s_mov_b32 s37, 22")
    e("s_mov_b32 s38, 9216")
    e("s_lshl_b32 s39, s44, 8")
    e("s_mul_i32 s40, s36, 9216")
    e("s_add_u32 s39, s39, s40")
    e("s_add_u32 s52, s20, s39\ns_addc_u32 s53, s21, 0")
    e("s_sub_u32 s54, 5308416, s39")
    e("s_cmp_eq_u32 s43, 0")
    e("s_cselect_b32 s41, 99, 3")
    e("s_mov_b32 s42, 0")
    e("s_cmp_ge_u32 s2, 252")
    e("s_cselect_b32 s54, 0, s54")
    A.label("L_p2")
    e("s_and_b32 s53, s53, 0xffff\ns_mov_b32 s55, 0x20000")
    e("v_lshrrev_b32 v13, 5, v0")
    e("v_mul_u32_u24 v13, 1152, v13")
    e("v_and_b32 v14, 31, v0")
    e("v_mad_u32_u24 v13, v14, 36, v13")
    e("buffer_load_dwordx4 v[20:23], v13, s[60:63], 0 offen")
    e("buffer_load_dwordx4 v[24:27], v13, s[60:63], 0 offen offset:16")
    e("buffer_load_dword v28, v13, s[60:63], 0 offen offset:32")
    e("v_mul_lo_u32 v14, v10, s37")
    e("v_add_u32 v15, s36, v14")
    e("v_lshlrev_b32 v15, 1, v15")
    e("v_mul_u32_u24 v16, 1152, v11")
    e("v_add_u32 v15, v15, v16")
    e("buffer_load_dwordx4 v[30:33], v15, s[60:63], 0 offen")
    e("buffer_load_dwordx4 v[34:37], v15, s[60:63], 0 offen offset:16")
    e("buffer_load_dwordx3 v[38:40], v15, s[60:63], 0 offen offset:32")
    e("v_mul_lo_u32 v16, v14, s38")
    e("v_lshl_add_u32 v16, v12, 4, v16")
    e(f"v_mov_b32 v19, {OOB}")
    e("v_cmp_eq_u32 vcc, s41, v10")
    e("v_cndmask_b32 v17, v16, v19, vcc")
    e("v_cmp_eq_u32 vcc, 3, v10")
    e("v_cndmask_b32 v18, v16, v19, vcc")
    e("s_cmp_eq_u32 s42, 1")
    e("s_cbranch_scc0 L_p3")
    e("v_mov_b32 v18, v19")
    A.label("L_p3")
    e("s_mov_b32 s44, 0") if False else None
    e("s_mov_b32 s45, 0")
    for t in range(22):
        vo = 16 if t < 16 else (17 if t < 18 else 18)
        e(f"buffer_load_dwordx4 a[{4*t}:{4*t+3}], v{vo}, s[52:55], s45 offen{NT}")
        if t < 21: e("s_add_u32 s45, s45, s38")
    if bar0: e("s_barrier")
    stamp(1)
    e("s_waitcnt vmcnt(25)")
    F = 44
    for k in range(9):
        e(f"v_lshlrev_b32 v{F+2*k}, 16, v{20+k}")
        e(f"v_and_b32 v{F+2*k+1}, 0xffff0000, v{20+k}")
    e(f"v_pk_add_f32 v[62:63], v[{F}:{F+1}], v[{F+2}:{F+3}]")
    for k in range(2, 9):
        e(f"v_pk_add_f32 v[62:63], v[62:63], v[{F+2*k}:{F+2*k+1}]")
    e("v_add_f32 v62, v62, v63")
    def red32(r, tmp):
        for sh in (8, 4, 2, 1):
            e(f"v_add_f32_dpp v{r}, v{r}, v{r} row_ror:{sh} row_mask:0xf bank_mask:0xf")
        e(f"v_mov_b32 v{tmp}, v{r}")
        e(f"v_permlane16_swap_b32 v{r}, v{tmp}")
        e(f"v_add_f32 v{r}, v{r}, v{tmp}")
    red32(62, 63)
    e("v_mul_f32 v62, 0x3ae38e39, v62")
    e("v_mov_b32 v63, v62")
    for k in range(9):
        e(f"v_pk_add_f32 v[{F+2*k}:{F+2*k+1}], v[{F+2*k}:{F+2*k+1}], v[62:63] neg_lo:[0,1] neg_hi:[0,1]")
    e(f"v_pk_mul_f32 v[64:65], v[{F}:{F+1}], v[{F}:{F+1}]")
    for k in range(1, 9):
        e(f"v_pk_fma_f32 v[64:65], v[{F+2*k}:{F+2*k+1}], v[{F+2*k}:{F+2*k+1}], v[64:65]")
    e("v_add_f32 v64, v64, v65")
    red32(64, 65)
    e("v_mul_f32 v64, 0x3ae38e39, v64")
    e("v_cvt_pk_bf16_f32 v62, v62, v62")
    e("v_and_b32 v62, 0xffff0000, v62")
    e("v_cvt_pk_bf16_f32 v64, v64, v64")
    e("v_and_b32 v64, 0xffff0000, v64")
    e("v_add_f32 v64, 0x3727c5ac, v64")
    e("v_cvt_pk_bf16_f32 v64, v64, v64")
    e("v_and_b32 v64, 0xffff0000, v64")
    e("v_sqrt_f32 v64, v64")
    e("v_cvt_pk_bf16_f32 v64, v64, v64")
    e("v_and_b32 v64, 0xffff0000, v64")
    e("v_rcp_f32 v64, v64")
    e("v_readlane_b32 s56, v62, 0")
    e("v_readlane_b32 s57, v62, 32")
    e("v_readlane_b32 s58, v64, 0")
    e("v_readlane_b32 s59, v64, 32")
    e("v_cmp_eq_u32 vcc, 1, v11")
    e("v_mov_b32 v62, s56")
    e("v_mov_b32 v63, s57")
    e("v_cndmask_b32 v62, v62, v63, vcc")
    e("v_mov_b32 v64, s58")
    e("v_mov_b32 v65, s59")
    e("v_cndmask_b32 v64, v64, v65, vcc")
    e("v_mov_b32 v63, v62")
    e("v_mov_b32 v65, v64")
    e("s_waitcnt vmcnt(22)")
    for k in range(11):
        x = 30 + k
        e(f"v_lshlrev_b32 v66, 16, v{x}")
        e(f"v_and_b32 v67, 0xffff0000, v{x}")
        e("v_pk_add_f32 v[66:67], v[66:67], v[62:63] neg_lo:[0,1] neg_hi:[0,1]")
        e("v_cvt_pk_bf16_f32 v68, v66, v67")
        e("v_lshlrev_b32 v66, 16, v68")
        e("v_and_b32 v67, 0xffff0000, v68")
        e("v_pk_mul_f32 v[66:67], v[66:67], v[64:65]")
        e(f"v_cvt_pk_bf16_f32 v{x}, v66, v67")
    stamp(2)
    e("s_mov_b32 s56, 0x01000100")
    e("s_mov_b32 s57, 0x03020302")
    for r in range(4): e(f"v_mov_b32 v{70+r}, 0")
    for t in range(22):
        B = 76 + 4 * (t & 1)
        e(f"v_perm_b32 v74, v{30 + t//2}, v{30 + t//2}, s{56 + (t & 1)}")
        for jj in range(4):
            e(f"v_and_b32 v{B+jj}, v74, v{6+jj}")
        e(f"s_waitcnt vmcnt({21 - t})")
        e(f"v_mfma_f32_16x16x32_bf16 v[70:73], a[{4*t}:{4*t+3}], v[{B}:{B+3}], v[70:73]")
    stamp(3)
    def make_tags():
        e("s_waitcnt lgkmcnt(0)")
        e("s_add_u32 s46, s46, 0x7f4a7c15\ns_addc_u32 s47, s47, 0x9e3779b9")
        e(f"s_and_b32 s44, s46, {TAGM}")
        e("v_mov_b32 v2, s44")
        e(f"s_bfe_u32 s44, s46, 0x{(TAGB<<16)|TAGB:x}")
        e("v_mov_b32 v3, s44")
        e(f"s_bfe_u32 s44, s46, 0x{(TAGB<<16)|(2*TAGB):x}")
        e("v_mov_b32 v4, s44")
        e("s_lshr_b64 s[56:57], s[46:47], 30")
        e(f"s_and_b32 s44, s56, {TAGM}")
        e("v_mov_b32 v5, s44")
        e(f"s_mov_b32 s44, {TAGM}")
        e(f"s_mov_b32 s45, 0x{VALM:x}")
    def tagpack(dst, src):
        for r in range(4):
            e(f"v_bfi_b32 v{dst+r}, s44, v{2+r}, v{src+r}")
    def tagcheck(regs, tmp):
        first = True
        for base in regs:
            for r in range(4):
                if first:
                    e(f"v_xor_b32 v{tmp}, v{base+r}, v{2+r}"); first = False
                else:
                    e(f"v_bitop3_b32 v{tmp}, v{base+r}, v{2+r}, v{tmp} bitop3:0xbe")
        e(f"v_and_b32 v{tmp}, s44, v{tmp}")
        e(f"v_cmp_eq_u32 vcc, 0, v{tmp}")
    pollid = [0]
    def poll(issue, regs, tmp, cnt="s4"):
        n = pollid[0]; pollid[0] += 1
        e(f"s_mov_b32 {cnt}, {SPIN}")
        A.label(f"L_poll{n}")
        issue()
        e("s_waitcnt vmcnt(0)")
        tagcheck(regs, tmp)
        e("s_cmp_eq_u64 vcc, exec")
        e(f"s_cbranch_scc1 L_pdone{n}")
        if sleep: e(f"s_sleep {sleep}")
        e(f"s_sub_u32 {cnt}, {cnt}, 1")
        e(f"s_cmp_lg_u32 {cnt}, 0")
        e(f"s_cbranch_scc1 L_poll{n}")
        A.label(f"L_pdone{n}")
    def ldsspin(addr, target):
        n = pollid[0]; pollid[0] += 1
        e(f"s_mov_b32 s4, {SPIN}")
        e(f"v_mov_b32 v20, {addr}")
        A.label(f"L_poll{n}")
        e("ds_read_b32 v21, v20")
        e("s_waitcnt lgkmcnt(0)")
        e("v_readfirstlane_b32 s6, v21")
        e(f"s_cmp_ge_u32 s6, {target}")
        e(f"s_cbranch_scc1 L_pdone{n}")
        if sleep: e(f"s_sleep {sleep}")
        e("s_sub_u32 s4, s4, 1")
        e("s_cmp_lg_u32 s4, 0")
        e(f"s_cbranch_scc1 L_poll{n}")
        A.label(f"L_pdone{n}")

    make_tags()
    e("s_cmp_eq_u32 s3, 1")
    e("s_cbranch_scc1 L_hpub")
    tagpack(74, 70)
    e("v_lshlrev_b32 v13, 4, v0")
    e("s_lshl_b32 s36, s2, 10")
    e(f"s_add_u32 s36, s36, {QP}")
    e("buffer_store_dwordx4 v[74:77], v13, s[48:51], s36 offen sc1")
    stamp(4)
    e("v_lshlrev_b32 v13, 4, v0")
    e("s_lshl_b32 s36, s34, 13")
    e(f"s_add_u32 s36, s36, {QP}")
    e("s_add_u32 s37, s36, 4096")
    def issue_q():
        for k in range(8):
            e(f"buffer_load_dwordx4 v[{20+4*k}:{23+4*k}], v13, s[48:51], s{36 + k//4} offen offset:{1024*(k%4)} sc1")
    poll(issue_q, [20 + 4 * k for k in range(8)], 52)
    for r in range(4):
        for k in range(8): e(f"v_and_b32 v{20+4*k+r}, s45, v{20+4*k+r}")
        for k in (0, 2, 4, 6): e(f"v_add_f32 v{20+4*k+r}, v{20+4*k+r}, v{24+4*k+r}")
        e(f"v_add_f32 v{20+r}, v{20+r}, v{28+r}")
        e(f"v_add_f32 v{36+r}, v{36+r}, v{44+r}")
        e(f"v_add_f32 v{20+r}, v{20+r}, v{36+r}")
    e("v_cvt_pk_bf16_f32 v24, v20, v21")
    e("v_cvt_pk_bf16_f32 v25, v22, v23")
    e("v_lshlrev_b32 v13, 8, v11")
    e("v_lshl_add_u32 v13, v10, 6, v13")
    e("v_and_b32 v14, 7, v0")
    e("v_lshl_add_u32 v13, v14, 1, v13")
    e(f"ds_write_b16 v13, v24 offset:{L_Q}")
    e(f"ds_write_b16_d16_hi v13, v24 offset:{L_Q+16}")
    e(f"ds_write_b16 v13, v25 offset:{L_Q+32}")
    e(f"ds_write_b16_d16_hi v13, v25 offset:{L_Q+48}")
    e("s_waitcnt lgkmcnt(0)")
    stamp(5)
    e("s_branch L_barA")
    A.label("L_hpub")
    e("s_cmp_ge_u32 s2, 252")
    e("s_cbranch_scc1 L_barA")
    e("v_lshlrev_b32 v13, 9, v11")
    e("v_lshl_add_u32 v13, v10, 7, v13")
    e("v_and_b32 v14, 7, v0")
    e("v_lshl_add_u32 v13, v14, 2, v13")
    for r in range(4):
        e(f"ds_write_b32 v13, v{70+r} offset:{L_HT + 32*r}")
    e("v_lshlrev_b32 v14, 4, v0")
    e("s_waitcnt lgkmcnt(0)")
    e(f"ds_read_b128 v[70:73], v14 offset:{L_HT}")
    e("v_lshrrev_b32 v13, 5, v0")
    e("v_mul_u32_u24 v13, 18432, v13")
    e("v_and_b32 v14, 31, v0")
    e("v_lshl_add_u32 v13, v14, 4, v13")
    e("s_mul_hi_u32 s43, s2, 0x71c71c8")
    e("s_mul_i32 s36, s43, 36")
    e("s_sub_u32 s36, s2, s36")
    e("s_lshl_b32 s36, s36, 9")
    e("s_mul_i32 s37, s43, 36864")
    e("s_add_u32 s36, s36, s37")
    e(f"s_add_u32 s36, s36, {HP}")
    e("s_waitcnt lgkmcnt(0)")
    tagpack(74, 70)
    e("buffer_store_dwordx4 v[74:77], v13, s[48:51], s36 offen sc1")
    stamp(4)
    e("s_branch L_barA")
    A.label("L_aux23")
    if bar0: e("s_barrier")
    make_tags()
    e("s_mov_b64 exec, 1")
    e(f"v_mov_b32 v13, {L_FC}")
    e("v_mov_b32 v14, 0")
    e("v_mov_b32 v15, 0")
    e("ds_write_b64 v13, v[14:15]")
    e("ds_write_b32 v13, v14 offset:8")
    e("s_mov_b64 exec, -1")
    e("v_lshlrev_b32 v13, 2, v0")
    e("v_mov_b32 v14, -1")
    e(f"ds_write_b32 v13, v14 offset:{L_MB}")
    e("s_waitcnt lgkmcnt(0)")
    A.label("L_barA")
    e("s_barrier")
    stamp(6)
    if not static_tail:
        e("s_cmp_eq_u32 s3, 1")
        e("s_cbranch_scc0 L_nodisp")
        e("s_lshl_b32 s40, s34, 8")
        e(f"s_add_u32 s40, s40, {CNT}")
        e("s_add_u32 s56, s32, s40\ns_addc_u32 s57, s33, 0\ns_and_b32 s57, s57, 0xffff\ns_mov_b32 s58, 4\ns_mov_b32 s59, 0x20000")
        e("v_mov_b32 v13, 0")
        e(f"v_mov_b32 v14, {L_WANT}")
        e("s_mov_b32 s36, 0")
        e(f"s_mov_b32 s4, {SPIN * 8}")
        e("s_mov_b64 exec, 1")
        A.label("L_dloop")
        e("ds_read_b32 v15, v14")
        e("s_waitcnt lgkmcnt(0)")
        e("v_readfirstlane_b32 s37, v15")
        e("s_cmp_gt_u32 s37, s36")
        e("s_cbranch_scc1 L_dget")
        e("s_sleep 1")
        e("s_sub_u32 s4, s4, 1")
        e("s_cmp_lg_u32 s4, 0")
        e("s_cbranch_scc1 L_dloop")
        e("s_mov_b32 s38, 256")
        e("s_branch L_dput")
        A.label("L_dget")
        e("v_mov_b32 v15, 1")
        e("buffer_atomic_add v15, v13, s[56:59], 0 offen sc0 sc1")
        e("s_waitcnt vmcnt(0)")
        e("v_readfirstlane_b32 s37, v15")
        e("s_mov_b32 s38, 256")
        k0, st0 = 0, 128
        for gi, (cnt, nper) in enumerate(gss):
            e(f"s_sub_u32 s39, s37, {k0}")
            if kpat:
                assert cnt % 8 == 0
                e("s_and_b32 s40, s39, 7")
                e("s_lshl_b32 s40, s40, 1")
                e("s_lshr_b32 s41, s39, 3")
                e(f"s_mul_i32 s41, s41, {16*nper}")
                e("s_add_u32 s40, s40, s41")
                e(f"s_add_u32 s40, s40, {st0 + (nper << 16)}")
            else:
                e(f"s_mul_i32 s40, s39, {2*nper}")
                e(f"s_add_u32 s40, s40, {st0 + (nper << 16)}")
            e(f"s_cmp_lt_u32 s39, {cnt}")
            e("s_cselect_b32 s38, s40, s38")
            k0 += cnt; st0 += cnt * 2 * nper
        assert st0 == 256, st0
        A.label("L_dput")
        e("s_lshl_b32 s39, s36, 2")
        e(f"s_add_u32 s39, s39, {L_MB}")
        e("v_mov_b32 v15, s39")
        e("v_mov_b32 v16, s38")
        e("ds_write_b32 v15, v16")
        e("s_add_u32 s36, s36, 1")
        e("s_cmp_eq_u32 s38, 256")
        e("s_cbranch_scc0 L_dloop")
        e("s_waitcnt lgkmcnt(0)")
        e("s_mov_b64 exec, -1")
        A.label("L_nodisp")
    e("s_and_b32 s36, s35, 1")
    e("s_lshr_b32 s37, s2, 1")
    e("s_mov_b32 s40, 2\ns_mov_b32 s41, 0")
    e("s_cmp_ge_u32 s3, 2")
    e("s_cbranch_scc1 L_t23")
    e("s_mov_b32 s38, 0")
    e("s_lshl_b32 s39, s36, 1")
    e("s_add_u32 s39, s39, s3")
    e("s_branch L_tdone")
    A.label("L_t23")
    e("s_mov_b32 s38, 1")
    e("s_lshl_b32 s39, s36, 1")
    e("s_sub_u32 s39, s3, s39")
    e("s_cmp_eq_u32 s3, 2")
    e("s_cbranch_scc0 L_th2")
    e("s_mov_b32 s41, 4")
    e("s_xor_b32 s40, s36, 1")
    A.label("L_th2")
    e("s_mov_b64 exec, 0x3ffff")
    e("v_cmp_le_u32 vcc, 9, v0")
    e("v_cndmask_b32 v13, 0, 1, vcc")
    e("v_mul_u32_u24 v14, 9, v13")
    e("v_sub_u32 v14, v0, v14")
    e("v_mul_u32_u24 v15, 18432, v13")
    e("v_lshl_add_u32 v15, v14, 4, v15")
    e("s_mul_i32 s42, s37, 144")
    e(f"s_add_u32 s42, s42, {HP}")
    e("s_mov_b32 s60, s22\ns_and_b32 s61, s23, 0xffff\ns_mov_b32 s62, 9216\ns_mov_b32 s63, 0x20000")
    e("s_mul_i32 s43, s37, 72")
    e("v_lshlrev_b32 v16, 3, v14")
    e("buffer_load_dwordx2 v[18:19], v16, s[60:63], s43 offen")
    def issue_h():
        e("s_mov_b32 s43, s42")
        for k in range(7):
            e(f"buffer_load_dwordx4 v[{20+4*k}:{23+4*k}], v15, s[48:51], s43 offen sc1")
            if k < 6: e("s_add_u32 s43, s43, 36864")
    poll(issue_h, [20 + 4 * k for k in range(7)], 48)
    for r in range(4):
        for k in range(7): e(f"v_and_b32 v{20+4*k+r}, s45, v{20+4*k+r}")
        for k in range(1, 7): e(f"v_add_f32 v{20+r}, v{20+r}, v{20+4*k+r}")
    e("v_lshlrev_b32 v24, 16, v18\nv_and_b32 v25, 0xffff0000, v18\nv_lshlrev_b32 v26, 16, v19\nv_and_b32 v27, 0xffff0000, v19")
    for r in range(4):
        e(f"v_cvt_pk_bf16_f32 v{20+r}, v{20+r}, v{20+r}")
        e(f"v_and_b32 v{20+r}, 0xffff0000, v{20+r}")
        e(f"v_add_f32 v{20+r}, v{20+r}, v{24+r}")
        e(f"v_cvt_pk_bf16_f32 v{20+r}, v{20+r}, v{20+r}")
        e(f"v_and_b32 v{20+r}, 0xffff0000, v{20+r}")
        e(f"v_max_f32 v{20+r}, 0, v{20+r}")
        e(f"v_mul_f32 v{20+r}, v{20+r}, v{20+r}")
        e(f"v_cvt_pk_bf16_f32 v{20+r}, v{20+r}, v{20+r}")
    e("v_mul_u32_u24 v16, 144, v13")
    e("v_lshl_add_u32 v16, v14, 4, v16")
    e("s_lshl_b32 s43, s3, 10")
    e("v_add_u32 v16, s43, v16")
    e(f"ds_write_b128 v16, v[20:23] offset:{L_PRIV}")
    e("s_mov_b64 exec, -1")
    e("s_waitcnt lgkmcnt(0)")
    A.label("L_tdone")
    stamp(7)
    def task_srd(srd, typ, beta, voff):
        n = pollid[0]; pollid[0] += 1
        e(f"s_cmp_eq_u32 {typ}, 1")
        e(f"s_cbranch_scc1 L_sw2_{n}")
        e("s_mul_i32 s42, s37, 36864")
        e(f"s_lshl_b32 s43, {beta}, 8")
        e("s_add_u32 s42, s42, s43")
        e(f"s_add_u32 s{srd}, s16, s42\ns_addc_u32 s{srd+1}, s17, 0")
        e(f"s_sub_u32 s{srd+2}, 4718592, s42")
        e("s_mov_b32 s43, 9216")
        e(f"s_branch L_sd_{n}")
        A.label(f"L_sw2_{n}")
        e("s_mul_i32 s42, s37, 41472")
        e(f"s_lshl_b32 s43, {beta}, 8")
        e("s_add_u32 s42, s42, s43")
        e(f"s_add_u32 s{srd}, s24, s42\ns_addc_u32 s{srd+1}, s25, 0")
        e(f"s_sub_u32 s{srd+2}, 5308416, s42")
        e("s_mov_b32 s43, 10368")
        A.label(f"L_sd_{n}")
        e(f"s_and_b32 s{srd+1}, s{srd+1}, 0xffff\ns_mov_b32 s{srd+3}, 0x20000")
        e(f"s_cmp_eq_u32 {typ}, 2")
        e(f"s_cselect_b32 s{srd+2}, 0, s{srd+2}")
        e(f"v_mul_lo_u32 v{voff}, v10, s43")
        e(f"v_lshl_add_u32 v{voff}, v12, 4, v{voff}")
        e(f"v_mov_b32 v19, {OOB}")
        e("v_cmp_le_u32 vcc, 8, v12")
        e(f"v_cndmask_b32 v18, v{voff}, v19, vcc")
        e(f"s_cmp_eq_u32 {beta}, 4")
        e(f"s_cbranch_scc0 L_se_{n}")
        e(f"v_mov_b32 v{voff}, v18")
        A.label(f"L_se_{n}")
    task_srd(52, "s38", "s39", 13)
    task_srd(56, "s40", "s41", 14)
    e(f"v_mov_b32 v19, {OOB}")
    e("s_cmp_eq_u32 s38, 0\ns_cselect_b64 vcc, -1, 0")
    e("v_cndmask_b32 v15, v13, v19, vcc")
    e("s_cmp_eq_u32 s40, 0\ns_cselect_b64 vcc, -1, 0")
    e("v_cndmask_b32 v16, v14, v19, vcc")
    ldsspin(L_FC, 4)
    stamp(8)
    e("s_mov_b32 s42, 0")
    for t in range(9):
        vo = 13 if t < 8 else 15
        e(f"buffer_load_dwordx4 a[{4*t}:{4*t+3}], v{vo}, s[52:55], s42 offen{NT}")
        e("s_add_u32 s42, s42, 1152") if t < 8 else None
    e("s_mov_b32 s42, 0")
    for t in range(9):
        vo = 14 if t < 8 else 16
        e(f"buffer_load_dwordx4 a[{36+4*t}:{36+4*t+3}], v{vo}, s[56:59], s42 offen{NT}")
        e("s_add_u32 s42, s42, 1152") if t < 8 else None
    e("s_cmp_eq_u32 s3, 3")
    e("s_cbranch_scc0 L_nocomb")
    ldsspin(L_FB, 4)
    stamp(9)
    e("v_and_b32 v20, 31, v0")
    e("v_lshlrev_b32 v20, 4, v20")
    e("v_lshrrev_b32 v21, 5, v0")
    e("v_lshl_add_u32 v22, v21, 9, v20")
    e(f"ds_read_b128 v[24:27], v22 offset:{L_OW}")
    e(f"ds_read_b128 v[28:31], v22 offset:{L_OW + 1024}")
    e("v_lshlrev_b32 v23, 3, v21")
    e(f"ds_read_b64 v[40:41], v23 offset:{L_MLW}")
    e(f"ds_read_b64 v[42:43], v23 offset:{L_MLW+16}")
    e("s_waitcnt lgkmcnt(0)")
    e("v_max_f32 v48, v40, v42")
    e(f"s_mov_b32 s42, 0x{LOG2E:x}")
    e("v_sub_f32 v40, v40, v48\nv_sub_f32 v42, v42, v48")
    e("v_mul_f32 v40, s42, v40\nv_mul_f32 v42, s42, v42")
    e("v_exp_f32 v40, v40\nv_exp_f32 v42, v42")
    e("v_mul_f32 v49, v40, v41")
    e("v_fmac_f32 v49, v42, v43")
    for r in range(4):
        e(f"v_mul_f32 v{50+r}, v40, v{24+r}")
        e(f"v_fmac_f32 v{50+r}, v42, v{28+r}")
    tagpack(54, 50)
    e("s_lshl_b32 s42, s34, 13")
    e("s_lshl_b32 s43, s35, 9")
    e("s_add_u32 s42, s42, s43")
    e(f"s_add_u32 s42, s42, {OP}")
    e("v_lshl_add_u32 v22, v21, 12, v20")
    e("buffer_store_dwordx4 v[54:57], v22, s[48:51], s42 offen sc1")
    e("v_mov_b32 v50, v48\nv_mov_b32 v51, v49\nv_mov_b32 v52, 0\nv_mov_b32 v53, 0")
    tagpack(58, 50)
    e("s_lshl_b32 s42, s34, 8")
    e("s_lshl_b32 s43, s35, 4")
    e("s_add_u32 s42, s42, s43")
    e(f"s_add_u32 s42, s42, {ML}")
    e("v_lshlrev_b32 v22, 7, v21")
    e("s_mov_b32 exec_lo, 1\ns_mov_b32 exec_hi, 1")
    e("buffer_store_dwordx4 v[58:61], v22, s[48:51], s42 offen sc1")
    e("s_mov_b64 exec, -1")
    stamp(10)
    A.label("L_nocomb")

    def blocktask(which, typ, beta, abase):
        n = pollid[0]; pollid[0] += 1
        e(f"s_cmp_eq_u32 {typ}, 2")
        e(f"s_cbranch_scc1 L_bt_end{n}")
        e(f"s_cmp_eq_u32 {typ}, 1")
        e(f"s_cbranch_scc1 L_bt_w2{n}")
        e("v_lshrrev_b32 v20, 5, v0")
        e("v_bfe_u32 v21, v0, 3, 2")
        e("v_and_b32 v22, 7, v0")
        e("v_lshlrev_b32 v23, 12, v20")
        e("v_lshl_add_u32 v23, v21, 9, v23")
        e("v_lshl_add_u32 v23, v22, 4, v23")
        e("v_lshlrev_b32 v20, 7, v20")
        e("v_lshl_add_u32 v20, v21, 4, v20")
        e("s_lshr_b32 s42, s35, 1")
        e("s_lshl_b32 s42, s42, 7")
        e("s_lshl_b32 s43, s34, 13")
        e("s_add_u32 s42, s42, s43")
        e(f"s_add_u32 s42, s42, {OP}")
        e("s_lshl_b32 s43, s34, 8")
        e(f"s_add_u32 s43, s43, {ML}")
        def issue_o():
            e("buffer_load_dwordx4 v[24:27], v23, s[48:51], s42 offen sc1")
            e("buffer_load_dwordx4 v[36:39], v23, s[48:51], s42 offen offset:2048 sc1")
            e("buffer_load_dwordx4 v[28:31], v20, s[48:51], s43 offen sc1")
            e("buffer_load_dwordx4 v[40:43], v20, s[48:51], s43 offen offset:64 sc1")
        poll(issue_o, [24, 36, 28, 40], 32)
        stamp(11)
        for r in (24, 25, 26, 27, 36, 37, 38, 39, 28, 29, 40, 41): e(f"v_and_b32 v{r}, s45, v{r}")
        e("v_max_f32 v30, v28, v40")
        e("v_max_f32_dpp v30, v30, v30 row_ror:8 row_mask:0xf bank_mask:0xf")
        e("v_mov_b32 v31, v30")
        e("v_permlane16_swap_b32 v30, v31")
        e("v_max_f32 v30, v30, v31")
        e("v_sub_f32 v28, v28, v30\nv_sub_f32 v40, v40, v30")
        e(f"v_mul_f32 v28, 0x{LOG2E:x}, v28\nv_mul_f32 v40, 0x{LOG2E:x}, v40")
        e("v_exp_f32 v28, v28\nv_exp_f32 v40, v40")
        e("v_mul_f32 v29, v29, v28")
        e("v_fmac_f32 v29, v41, v40")
        for r in range(4):
            e(f"v_mul_f32 v{24+r}, v{24+r}, v28")
            e(f"v_fmac_f32 v{24+r}, v{36+r}, v40")
        for r in (29, 24, 25, 26, 27):
            e(f"v_add_f32_dpp v{r}, v{r}, v{r} row_ror:8 row_mask:0xf bank_mask:0xf")
        for k, r in enumerate((29, 24, 25, 26, 27)):
            e(f"v_mov_b32 v{32+k}, v{r}")
        for k, r in enumerate((29, 24, 25, 26, 27)):
            e(f"v_permlane16_swap_b32 v{r}, v{32+k}")
        for k, r in enumerate((29, 24, 25, 26, 27)):
            e(f"v_add_f32 v{r}, v{r}, v{32+k}")
        e("v_rcp_f32 v29, v29")
        for r in range(4): e(f"v_mul_f32 v{24+r}, v{24+r}, v29")
        for r in range(4): e(f"v_cvt_pk_bf16_f32 v{24+r}, v{24+r}, v{24+r}")
        e("v_lshrrev_b32 v20, 5, v0")
        e("v_lshlrev_b32 v20, 7, v20")
        e("v_lshl_add_u32 v20, v22, 4, v20")
        e("s_lshl_b32 s42, s3, 10")
        e("v_add_u32 v20, s42, v20")
        e(f"ds_write_b128 v20, v[24:27] offset:{L_PRIV + 0x200}")
        e("v_lshlrev_b32 v20, 7, v11")
        e("v_lshl_add_u32 v20, v10, 5, v20")
        e("v_add_u32 v20, s42, v20")
        e(f"v_add_u32 v20, {L_PRIV + 0x200}, v20")
        e(f"s_mov_b32 s43, {SP}")
        e(f"s_branch L_bt_go{n}")
        A.label(f"L_bt_w2{n}")
        e("v_mul_u32_u24 v20, 144, v11")
        e("v_mad_u32_u24 v20, v10, 36, v20")
        e("s_lshl_b32 s42, s3, 10")
        e("v_add_u32 v20, s42, v20")
        e(f"v_add_u32 v20, {L_PRIV}, v20")
        e(f"s_mov_b32 s43, {GP}")
        A.label(f"L_bt_go{n}")
        e("s_waitcnt lgkmcnt(0)")
        for t in range(9):
            e(f"ds_read_b32 v{24+t}, v20 offset:{4*t}")
        for r in range(4): e(f"v_mov_b32 v{70+r}, 0")
        e("s_waitcnt lgkmcnt(0)")
        e(f"s_cmp_eq_u32 {typ}, 0\ns_cselect_b64 vcc, -1, 0")
        e("v_cndmask_b32 v32, v32, 0, vcc") if False else None
        e("v_mov_b32 v33, 0")
        e("v_cndmask_b32 v32, v32, v33, vcc")
        e(f"s_waitcnt vmcnt({WAITX if which == 'X' else 0})")
        for t in range(9):
            B = 76 + 4 * (t & 1)
            for jj in range(4):
                e(f"v_and_b32 v{B+jj}, v{24+t}, v{6+jj}")
            e(f"v_mfma_f32_16x16x32_bf16 v[70:73], a[{abase+4*t}:{abase+4*t+3}], v[{B}:{B+3}], v[70:73]")
        tagpack(74, 70)
        e(f"s_lshl_b32 s42, {beta}, 17")
        e("s_add_u32 s43, s43, s42")
        e("s_lshl_b32 s42, s37, 7")
        e("s_add_u32 s43, s43, s42")
        e("v_lshrrev_b32 v20, 3, v0")
        e("v_lshlrev_b32 v20, 14, v20")
        e("v_and_b32 v21, 7, v0")
        e("v_lshl_add_u32 v20, v21, 4, v20")
        e(f"v_mov_b32 v21, {OOB}")
        e("v_cmp_le_u32 vcc, 32, v0")
        e("v_cndmask_b32 v21, v20, v21, vcc")
        e(f"s_cmp_eq_u32 {beta}, 4")
        e(f"s_cbranch_scc0 L_bt_st{n}")
        e("v_mov_b32 v20, v21")
        A.label(f"L_bt_st{n}")
        e("buffer_store_dwordx4 v[74:77], v20, s[48:51], s43 offen sc1")
        A.label(f"L_bt_end{n}")
    WAITX = 0
    blocktask("X", "s38", "s39", 0)
    stamp(12)
    blocktask("Y", "s40", "s41", 36)
    stamp(13)

    e("s_cmp_ge_u32 s2, 36")
    e("s_cbranch_scc1 L_auxend")
    e("s_lshr_b32 s36, s2, 3")
    e("s_and_b32 s37, s2, 7")
    e("s_lshl_b32 s38, s36, 7")
    e("s_lshr_b32 s39, s37, 1")
    e("s_lshl_b32 s39, s39, 5")
    e("s_add_u32 s38, s38, s39")
    e("s_and_b32 s39, s37, 1")
    e("s_mul_i32 s39, s39, 576")
    e("s_add_u32 s39, s39, s38")
    e("s_mov_b32 s60, s8\ns_and_b32 s61, s9, 0xffff\ns_mov_b32 s62, 2304\ns_mov_b32 s63, 0x20000")
    e("s_mov_b32 s56, s26\ns_and_b32 s57, s27, 0xffff\ns_mov_b32 s58, 1152\ns_mov_b32 s59, 0x20000")
    e("v_lshlrev_b32 v13, 1, v0")
    e("s_lshl_b32 s40, s39, 1")
    e("s_lshl_b32 s41, s38, 1")
    e("s_mov_b32 exec_lo, -1\ns_mov_b32 exec_hi, 0")
    e("buffer_load_ushort v14, v13, s[60:63], s40 offen")
    e("buffer_load_ushort v15, v13, s[56:59], s41 offen")
    e("s_mov_b64 exec, -1")
    e("v_lshlrev_b32 v16, 4, v0")
    e("s_lshl_b32 s42, s2, 14")
    e("s_lshl_b32 s43, s3, 12")
    e("s_add_u32 s42, s42, s43")
    for kind, base in ((0, GP), (1, SP)):
        e(f"s_add_u32 s43, s42, {base}")
        def issue_r():
            for k in range(4):
                e(f"buffer_load_dwordx4 v[{20+4*k}:{23+4*k}], v16, s[48:51], s43 offen offset:{1024*k} sc1")
        poll(issue_r, [20, 24, 28, 32], 36)
        stamp(14 + kind)
        for r in range(4):
            for k in range(4): e(f"v_and_b32 v{20+4*k+r}, s45, v{20+4*k+r}")
            e(f"v_add_f32 v{20+r}, v{20+r}, v{24+r}")
            e(f"v_add_f32 v{28+r}, v{28+r}, v{32+r}")
            e(f"v_add_f32 v{20+r}, v{20+r}, v{28+r}")
        for r in range(4):
            e(f"v_add_f32_dpp v{20+r}, v{20+r}, v{20+r} row_ror:8 row_mask:0xf bank_mask:0xf")
        for r in range(4): e(f"v_mov_b32 v{24+r}, v{20+r}")
        for r in range(4): e(f"v_permlane16_swap_b32 v{20+r}, v{24+r}")
        for r in range(4): e(f"v_add_f32 v{20+r}, v{20+r}, v{24+r}")
        for r in range(4): e(f"v_mov_b32 v{24+r}, v{20+r}")
        for r in range(4): e(f"v_permlane32_swap_b32 v{20+r}, v{24+r}")
        for r in range(4): e(f"v_add_f32 v{20+r}, v{20+r}, v{24+r}")
        e("v_and_b32 v17, 7, v0")
        e("v_lshlrev_b32 v17, 4, v17")
        e("s_lshl_b32 s43, s3, 7")
        e("v_add_u32 v17, s43, v17")
        e(f"ds_write_b128 v17, v[20:23] offset:{L_RED + 512*kind}")
    e("s_waitcnt lgkmcnt(0)")
    e("s_barrier")
    e("s_cmp_eq_u32 s3, 0")
    e("s_cbranch_scc0 L_auxend")
    e("v_and_b32 v17, 7, v0")
    e("v_lshlrev_b32 v17, 4, v17")
    e("v_bfe_u32 v18, v0, 3, 2")
    e("v_lshl_add_u32 v17, v18, 2, v17")
    for kind in range(2):
        for a in range(4):
            e(f"ds_read_b32 v{20+4*kind+a}, v17 offset:{L_RED + 512*kind + 128*a}")
    e("s_waitcnt lgkmcnt(0)")
    for kind in range(2):
        b = 20 + 4 * kind
        e(f"v_add_f32 v{b}, v{b}, v{b+1}")
        e(f"v_add_f32 v{b+2}, v{b+2}, v{b+3}")
        e(f"v_add_f32 v{b}, v{b}, v{b+2}")
    def rnd(r):
        e(f"v_cvt_pk_bf16_f32 v{r}, v{r}, v{r}")
        e(f"v_and_b32 v{r}, 0xffff0000, v{r}")
    e("s_waitcnt vmcnt(0)")
    e("v_lshlrev_b32 v14, 16, v14")
    e("v_lshlrev_b32 v15, 16, v15")
    rnd(20); rnd(24)
    e("v_add_f32 v20, v20, v15")
    rnd(20)
    e(f"v_mul_f32 v21, 0x{(LOG2E ^ 0x80000000):x}, v20")
    e("v_exp_f32 v21, v21")
    e("v_add_f32 v21, 1.0, v21")
    e("v_rcp_f32 v21, v21")
    e("v_mul_f32 v20, v20, v21")
    rnd(20)
    e("v_mul_f32 v20, v24, v20")
    rnd(20)
    e("v_add_f32 v20, v14, v20")
    e("v_cvt_pk_bf16_f32 v20, v20, v20")
    e("s_mov_b32 s60, s28\ns_and_b32 s61, s29, 0xffff\ns_mov_b32 s62, 2304\ns_mov_b32 s63, 0x20000")
    e("s_mov_b32 exec_lo, -1\ns_mov_b32 exec_hi, 0")
    e("buffer_store_short v20, v13, s[60:63], s40 offen")
    e("s_mov_b64 exec, -1")
    e("s_cmp_eq_u32 s2, 0")
    e("s_cbranch_scc0 L_auxend")
    e("s_mov_b64 exec, 1")
    e("v_mov_b32 v20, s46\nv_mov_b32 v21, s47\nv_mov_b32 v22, 0")
    e("buffer_store_dwordx2 v[20:21], v22, s[48:51], 0 offen sc1")
    e("s_mov_b64 exec, -1")
    A.label("L_auxend")
    stamp(15 + 1) if False else None
    dump_stamps(16)
    A.label("L_end")
    e("s_endpgm")
    A.raw('.section .rodata,"a"')
    A.raw(".p2align 6")
    A.raw(f".amdhsa_kernel {NAME}")
    acc = 40 + 16 * D
    acc = (acc + 3) // 4 * 4
    A.raw(f"  .amdhsa_next_free_vgpr {acc + max(16 * D, 88)}")
    A.raw("  .amdhsa_next_free_sgpr 100")
    A.raw(f"  .amdhsa_accum_offset {acc}")
    A.raw("  .amdhsa_group_segment_fixed_size 0")
    A.raw("  .amdhsa_kernarg_size 104")
    A.raw("  .amdhsa_user_sgpr_count 2")
    A.raw("  .amdhsa_user_sgpr_kernarg_segment_ptr 1")
    A.raw("  .amdhsa_system_sgpr_workgroup_id_x 1")
    A.raw("  .amdhsa_float_denorm_mode_32 3")
    A.raw(".end_amdhsa_kernel")
    n = A.fix_hazards()
    return A.text(), n

if __name__ == "__main__":
    cfg = json.loads(sys.argv[2]) if len(sys.argv) > 2 else {}
    t, n = gen(**cfg)
    hdr = open("cdna_kernels/" + NAME[:-7] + ".s.ref").read().split("; Override launch")[0]
    lines = t.split("\n")
    out = hdr + lines[0] + "\n" + "\n".join(lines[1:])
    open(sys.argv[1], "w").write(out)
    print("nops inserted:", n)
```

```python
import sys, json
from asmfw import Asm

NAME = "recurrent_scan__mha_block_cached__dense_activation_squared_relu__decode_kernel"

EP = 0
QP = 0x10000
HP = 0x60000
OP = 0xA0000
ML = 0xE0000
CNT = 0xF0000
SP = 0x100000
GP = 0x200000
TS = 0x300000
WS_BYTES = 0x500000
L_Q = 0x000
L_FC = 0x200
L_FB = 0x204
L_WANT = 0x208
L_FQ = 0x20c
L_MLW = 0x240
L_MB = 0x280
L_OW = 0x400
L_HT = 0xC00
L_PRIV = 0x1000
L_RED = 0x2000
LDS_BYTES = 0x2800

TAGB = 10
TAGM = (1 << TAGB) - 1
VALM = (~TAGM) & 0xffffffff
OOB = 0x40000000
LOG2E = 0x3fb8aa3b
SCALE = 0x3db504f3
SPIN = 1 << 17

def gen(D=6, A_=2, gss=((8, 4), (8, 2), (16, 1)), req_at=1, stamps=False, nt=True, sleep=1, bar0=True, tlog=False, noatom=False, ntk=None, tstep=False, static_tail=False, kpat=True, ahead2=True, prefetch=True, pstamps=False, fillq=None, latew1=True, wmode='flagC', rot=1, fast=True, ntk_end=None, diag='', split=None, nomask=True, warm=True):
    A = Asm()
    e = A
    NT = " nt" if nt else ""
    nstamp = [0]
    def stamp(k):
        if stamps and (not pstamps or k == 0):
            e(f"s_memrealtime s[{64+2*k}:{65+2*k}]")
    def pst(k):
        if stamps and pstamps:
            e(f"s_memrealtime s[{64+2*k}:{65+2*k}]")
    def dump_stamps(nk):
        if not stamps: return
        e("s_waitcnt lgkmcnt(0)")
        e("s_lshl_b32 s6, s2, 3")
        e("s_add_u32 s6, s6, s5")
        e("s_lshl_b32 s6, s6, 7")
        e(f"s_add_u32 s6, s6, {TS}")
        e("s_mov_b64 exec, 1")
        e("v_mov_b32 v1, 0")
        e(f"s_mov_b32 s60, s32\ns_mov_b32 s61, s33\ns_mov_b32 s62, {WS_BYTES}\ns_mov_b32 s63, 0x20000")
        for k in range(nk):
            e(f"v_mov_b32 v2, s{64+2*k}")
            e(f"buffer_store_dword v2, v1, s[60:63], s6 offen offset:{4*k}")
        e("s_mov_b64 exec, -1")

    A.raw("; @launch grid=(256,1,1) block=(512,1,1) lds=%d" % LDS_BYTES)
    A.raw('.amdgcn_target "amdgcn-amd-amdhsa--gfx950"')
    A.raw(".text")
    A.raw(f".globl {NAME}")
    A.raw(".p2align 8")
    A.raw(f".type {NAME},@function")
    A.label(NAME)
    e("s_cmp_ge_u32 s2, 256")
    e("s_cbranch_scc1 L_end")
    e("s_load_dwordx16 s[8:23], s[0:1], 0")
    e("s_load_dwordx8 s[24:31], s[0:1], 64")
    e("s_load_dwordx2 s[32:33], s[0:1], 96")
    stamp(0)
    e("v_lshrrev_b32 v1, 6, v0")
    e("v_and_b32 v0, 63, v0")
    e("v_readfirstlane_b32 s3, v1")
    e("s_lshr_b32 s34, s2, 3")
    e("s_and_b32 s35, s2, 7")
    e("s_mov_b32 s5, s3")
    if prefetch:
        e("s_cmp_eq_u32 s3, 3")
        e("s_cbranch_scc0 L_nopf")
        e("s_getpc_b64 s[60:61]")
        A.label("L_pc")
        e(f"s_sub_u32 s60, s60, L_pc-{NAME}")
        e("s_subb_u32 s61, s61, 0")
        e("s_and_b32 s61, s61, 0xffff")
        e(f"s_mov_b32 s62, L_codeend-{NAME}")
        e("s_mov_b32 s63, 0x20000")
        e("s_and_b32 s36, s34, 3")
        e("s_mul_i32 s36, s36, 5120")
        e("v_lshlrev_b32 v13, 4, v0")
        for k in range(4):
            e(f"buffer_load_dwordx4 v[40:43], v13, s[60:63], s36 offen offset:{1024*k}")
        e("s_add_u32 s36, s36, 4096")
        e(f"buffer_load_dwordx4 v[40:43], v13, s[60:63], s36 offen")
        A.label("L_nopf")
    e("s_cmp_ge_u32 s3, 4")
    e("s_cbranch_scc1 L_stream")
    def masks(t1=1, t2=2):
        e(f"v_and_b32 v{t1}, 1, v0")
        e(f"v_lshlrev_b32 v{t1}, 4, v{t1}")
        e(f"v_mov_b32 v{t2}, 0xffff")
        e(f"v_lshlrev_b32 v{t1}, v{t1}, v{t2}")
        e(f"v_bfe_u32 v{t2}, v0, 1, 2")
        for j in range(4):
            e(f"v_cmp_eq_u32 vcc, {j}, v{t2}")
            e(f"v_cndmask_b32 v{6+j}, 0, v{t1}, vcc")
    MARK_STREAM0 = len(A.items)

    A.label("L_stream")
    e("s_sub_u32 s3, s3, 4")
    e("s_and_b32 s37, s3, 1")
    e("s_lshl_b32 s36, s37, 5")
    e("s_add_u32 s36, s36, s34")
    e("s_lshl_b32 s36, s36, 20")
    e("s_waitcnt lgkmcnt(0)")
    e("s_add_u32 s48, s10, s36\ns_addc_u32 s49, s11, 0\ns_and_b32 s49, s49, 0xffff\ns_mov_b32 s50, 0x100000\ns_mov_b32 s51, 0x20000")
    e("s_add_u32 s52, s12, s36\ns_addc_u32 s53, s13, 0\ns_and_b32 s53, s53, 0xffff\ns_mov_b32 s54, 0x100000\ns_mov_b32 s55, 0x20000")
    e("s_lshr_b32 s39, s3, 1")
    STRIDE = 16 if kpat else 2
    e(f"s_lshl_b32 s80, s35, {1 if kpat else 4}")
    e("s_add_u32 s80, s80, s39")
    e("v_lshlrev_b32 v1, 4, v0")
    def chunk_off():
        if rot and kpat:
            e("s_lshr_b32 s84, s80, 4")
            if rot != 1: e(f"s_mul_i32 s84, s84, {rot}")
            e("s_lshl_b32 s84, s84, 1")
            e("s_add_u32 s84, s84, s80")
            e("s_and_b32 s84, s84, 15")
            e("s_andn2_b32 s85, s80, 15")
            e("s_or_b32 s84, s84, s85")
            e("s_lshl_b32 s38, s84, 12")
        else:
            e("s_lshl_b32 s38, s80, 12")
    KR = lambda s, t: 40 + 16 * s + 4 * t
    VR = lambda s, t: 16 * s + 4 * t
    def loadK(s):
        for t in range(4):
            r = KR(s, t)
            e(f"buffer_load_dwordx4 v[{r}:{r+3}], v1, s[48:51], s38 offen offset:{1024*t}{NT}")
    def loadV(s):
        for t in range(4):
            r = VR(s, t)
            e(f"buffer_load_dwordx4 a[{r}:{r+3}], v1, s[52:55], s38 offen offset:{1024*t}{NT}")
    if tlog or tstep:
        e("s_mov_b32 s87, 0")
        e("v_mov_b32 v33, -1")
        e("v_mov_b32 v34, -1")
    if bar0: e("s_barrier")
    for c in range(D):
        if tlog:
            e("s_mov_b32 m0, s87")
            e("v_writelane_b32 v33, s80, m0")
            e("s_add_u32 s87, s87, 1")
        chunk_off()
        e(f"s_add_u32 s80, s80, {STRIDE}")
        if fillq is None:
            loadK(c); loadV(c)
        else:
            for half in range(2):
                if c * 8 + half * 4 + 4 > fillq:
                    e(f"s_waitcnt vmcnt({max(fillq - 4, 0)})")
                (loadK if half == 0 else loadV)(c)
    stamp(1)
    masks(20, 21)
    e(f"s_mov_b32 s81, {8 - D}")
    e("s_mov_b32 s82, 0")
    e("s_mov_b32 s83, 8")
    for r in range(4): e(f"v_mov_b32 v{10+r}, 0")
    e("v_mov_b32 v14, 0xff800000")
    e("v_mov_b32 v15, 0")
    e("v_and_b32 v16, 15, v0")
    e("v_lshlrev_b32 v16, 4, v16")
    e("s_lshl_b32 s40, s37, 8")
    e("v_add_u32 v16, s40, v16")
    e("s_mov_b32 s86, 0")
    e("s_mov_b32 s88, 0x400000")
    e(f"s_mov_b32 s40, 0x{SCALE:x}")
    e(f"s_mov_b32 s41, 0x{LOG2E:x}")
    e(f"v_mov_b32 v36, {L_WANT}")
    e(f"v_mov_b32 v20, {L_FQ}")
    A.label("L_qspin")
    e("ds_read_b32 v21, v20")
    e("s_waitcnt lgkmcnt(0)")
    e("v_readfirstlane_b32 s90, v21")
    e("s_cmp_lg_u32 s90, 0")
    e("s_cbranch_scc1 L_qgo")
    e("s_sleep 1")
    e("s_sub_u32 s88, s88, 1")
    e("s_cmp_lg_u32 s88, 0")
    e("s_cbranch_scc1 L_qspin")
    A.label("L_qgo")
    e(f"ds_read_b128 v[2:5], v16 offset:{L_Q}")
    e("s_waitcnt lgkmcnt(0)")
    stamp(2)
    NKV = 8 * (D - 1)
    NTK = 12 if ntk is None else ntk
    A.label("L_sloop")
    for s in range(D):
        e("s_cmp_eq_u32 s86, 0")
        e(f"s_cbranch_scc1 L_nw{s}")
        e("s_cmp_eq_u32 s89, 0")
        e("s_cbranch_scc1 L_sdone")
        e("s_sub_u32 s89, s89, 1")
        e("s_cmp_ge_u32 s89, 2")
        e(f"s_cbranch_scc1 L_dw{s}")
        e("s_cmp_eq_u32 s89, 1")
        e(f"s_cbranch_scc1 L_w8{s}")
        e("s_waitcnt vmcnt(0)")
        e(f"s_branch L_go{s}")
        A.label(f"L_w8{s}")
        e("s_waitcnt vmcnt(8)")
        e(f"s_branch L_go{s}")
        A.label(f"L_dw{s}")
        e("s_waitcnt vmcnt(16)")
        e(f"s_branch L_go{s}")
        A.label(f"L_nw{s}")
        e(f"s_waitcnt vmcnt({NKV})")
        A.label(f"L_go{s}")
        if tstep:
            e("s_memrealtime s[90:91]")
            e("s_waitcnt lgkmcnt(0)")
            e("s_mov_b32 m0, s87")
            e("v_writelane_b32 v33, s90, m0")
            e("s_add_u32 s87, s87, 1")
        if tlog:
            e("s_mov_b32 m0, s87")
            e(f"v_writelane_b32 v33, s{64+s}, m0") if False else None
        for jj in range(4):
            for t in range(4):
                k = KR(s, t) + jj
                if jj == 0: e(f"v_dot2_f32_bf16 v{16+t}, v{k}, v2, 0")
                else: e(f"v_dot2c_f32_bf16 v{16+t}, v{k}, v{2+jj}")
        e("v_add_f32_dpp v20, v16, v16 row_ror:8 row_mask:0xf bank_mask:0x3")
        e("v_add_f32_dpp v21, v18, v18 row_ror:8 row_mask:0xf bank_mask:0x3")
        e("v_add_f32_dpp v20, v17, v17 row_ror:8 row_mask:0xf bank_mask:0xc")
        e("v_add_f32_dpp v21, v19, v19 row_ror:8 row_mask:0xf bank_mask:0xc")
        e("v_add_f32_dpp v22, v20, v20 row_shl:4 row_mask:0xf bank_mask:0x5")
        e("v_add_f32_dpp v22, v21, v21 row_shr:4 row_mask:0xf bank_mask:0xa")
        e("v_add_f32_dpp v22, v22, v22 quad_perm:[1,0,3,2] row_mask:0xf bank_mask:0xf")
        e("v_add_f32_dpp v22, v22, v22 quad_perm:[2,3,0,1] row_mask:0xf bank_mask:0xf")
        e("v_cvt_pk_bf16_f32 v23, v22, v22")
        e("v_and_b32 v23, 0xffff0000, v23")
        e("v_mul_f32 v23, s40, v23")
        e("v_cvt_pk_bf16_f32 v23, v23, v23")
        e("v_and_b32 v23, 0xffff0000, v23")
        if fast:
            e("v_cmp_lt_f32 vcc, v14, v23")
            e("s_cmp_lg_u64 vcc, 0")
            e(f"s_cbranch_scc0 L_nomax{s}")
            e("v_max_f32_dpp v24, v23, v23 row_ror:4 row_mask:0xf bank_mask:0xf")
            e("v_max_f32_dpp v24, v24, v24 row_ror:8 row_mask:0xf bank_mask:0xf")
            e("v_mov_b32 v25, v24")
            e("v_permlane16_swap_b32 v24, v25")
            e("v_max_f32 v24, v24, v25")
            e("v_mov_b32 v25, v24")
            e("v_permlane32_swap_b32 v24, v25")
            e("v_max3_f32 v24, v24, v25, v14")
            e("v_sub_f32 v25, v14, v24")
            e("v_mul_f32 v25, s41, v25")
            e("v_exp_f32 v25, v25")
            e("v_mov_b32 v14, v24")
            e("v_mul_f32 v15, v15, v25")
            for r in range(4): e(f"v_mul_f32 v{10+r}, v{10+r}, v25")
            A.label(f"L_nomax{s}")
            e("v_sub_f32 v26, v23, v14")
            e("v_mul_f32 v26, s41, v26")
            e("v_exp_f32 v26, v26")
            e("v_cvt_pk_bf16_f32 v27, v26, v26")
            e("v_add_f32 v15, v15, v26")
            bank_lane = [0, 8, 4, 12]
            def bb(t):
                B = 28 if (t & 1) == 0 else 16
                for jj in range(4):
                    e(f"v_and_b32_dpp v{B+jj}, v27, v{6+jj} row_newbcast:{bank_lane[t]} row_mask:0xf bank_mask:0xf")
            def mm(t):
                B = 28 if (t & 1) == 0 else 16
                r = VR(s, t)
                e(f"v_mfma_f32_16x16x32_bf16 v[10:13], a[{r}:{r+3}], v[{B}:{B+3}], v[10:13]")
            bb(0); bb(1); mm(0); bb(2); mm(1); bb(3); mm(2); mm(3)
        else:
            e("v_max_f32_dpp v24, v23, v23 row_ror:4 row_mask:0xf bank_mask:0xf")
            e("v_max_f32_dpp v24, v24, v24 row_ror:8 row_mask:0xf bank_mask:0xf")
            e("v_mov_b32 v25, v24")
            e("v_permlane16_swap_b32 v24, v25")
            e("v_max_f32 v24, v24, v25")
            e("v_mov_b32 v25, v24")
            e("v_permlane32_swap_b32 v24, v25")
            e("v_max3_f32 v24, v24, v25, v14")
            e("v_sub_f32 v25, v14, v24")
            e("v_sub_f32 v26, v23, v24")
            e("v_mul_f32 v25, s41, v25")
            e("v_mul_f32 v26, s41, v26")
            e("v_exp_f32 v25, v25")
            e("v_exp_f32 v26, v26")
            e("v_mov_b32 v14, v24")
            e("v_fma_f32 v15, v15, v25, v26")
            e("v_cvt_pk_bf16_f32 v27, v26, v26")
            for r in range(4): e(f"v_mul_f32 v{10+r}, v{10+r}, v25")
            bank_lane = [0, 8, 4, 12]
            for t in range(4):
                B = 28 if (t & 1) == 0 else 16
                for jj in range(4):
                    e(f"v_and_b32_dpp v{B+jj}, v27, v{6+jj} row_newbcast:{bank_lane[t]} row_mask:0xf bank_mask:0xf")
                r = VR(s, t)
                e(f"v_mfma_f32_16x16x32_bf16 v[10:13], a[{r}:{r+3}], v[{B}:{B+3}], v[10:13]")
        if tstep:
            e("s_memrealtime s[90:91]")
            e("s_waitcnt lgkmcnt(0)")
            e("v_writelane_b32 v34, s90, m0")
        e("s_cmp_lg_u32 s86, 0")
        e(f"s_cbranch_scc1 L_nx{s}")
        if ntk_end is not None:
            e("s_cmp_eq_u32 s83, 1")
            e(f"s_cbranch_scc1 L_ne{s}")
            e(f"s_waitcnt vmcnt({NTK})")
            A.label(f"L_ne{s}")
            e(f"s_waitcnt vmcnt({ntk_end})")
        else:
            e(f"s_waitcnt vmcnt({NTK})")
        e("s_cmp_lg_u32 s81, 0")
        e(f"s_cbranch_scc1 L_have{s}")
        if static_tail:
            e("s_cmp_lg_u32 s82, 0")
            e(f"s_cbranch_scc1 L_drain{s}")
            e(f"s_lshl_b32 s90, s35, {1 if kpat else 4}")
            e("s_add_u32 s90, s90, 128")
            e("s_or_b32 s90, s90, 0x80000")
        else:
            e("s_lshl_b32 s90, s82, 2")
            e(f"s_add_u32 s90, s90, {L_MB}")
            e("v_mov_b32 v20, s90")
            A.label(f"L_mb{s}")
            e("ds_read_b32 v21, v20")
            e("s_waitcnt lgkmcnt(0)")
            e("v_readfirstlane_b32 s90, v21")
            e("s_cmp_lg_u32 s90, -1")
            e(f"s_cbranch_scc1 L_got{s}")
            e("s_sub_u32 s88, s88, 1")
            e("s_cmp_lg_u32 s88, 0")
            e(f"s_cbranch_scc1 L_mb{s}")
            e("s_mov_b32 s90, 256")
            A.label(f"L_got{s}")
        e("s_add_u32 s82, s82, 1")
        e("s_and_b32 s80, s90, 0xffff")
        e("s_lshr_b32 s81, s90, 16")
        e("s_mov_b32 s83, s81")
        e("s_cmp_lt_u32 s80, 256")
        e("s_addc_u32 s80, s80, 0") if False else None
        e(f"s_cbranch_scc1 L_ok{s}")
        A.label(f"L_drain{s}")
        e("s_mov_b32 s86, 1")
        e(f"s_mov_b32 s89, {D-1}")
        e("s_mov_b64 exec, 1")
        e(f"v_mov_b32 v20, {L_FC}")
        e("v_mov_b32 v21, 1")
        e("ds_add_u32 v20, v21")
        e("s_mov_b64 exec, -1")
        stamp(3)
        e(f"s_branch L_nx{s}")
        A.label(f"L_ok{s}")
        e("s_add_u32 s80, s80, s39")
        A.label(f"L_have{s}")
        chunk_off()
        e(f"s_add_u32 s80, s80, {STRIDE}")
        e("s_sub_u32 s81, s81, 1")
        if tlog:
            e("s_lshr_b32 s90, s38, 12")
            e("s_mov_b32 m0, s87")
            e("v_writelane_b32 v33, s90, m0")
            e("s_add_u32 s87, s87, 1")
        loadK(s)
        if not static_tail:
            e(f"s_cmp_le_u32 s81, {req_at}")
            e(f"s_cbranch_scc0 L_nr{s}")
            e("s_add_u32 s90, s82, 1")
            if ahead2:
                e("s_cmp_eq_u32 s83, 1")
                e("s_addc_u32 s90, s90, 0")
            e("s_mov_b64 exec, 1")
            e("v_mov_b32 v21, s90")
            e("ds_max_u32 v36, v21")
            e("s_mov_b64 exec, -1")
            A.label(f"L_nr{s}")
        if split is not None: e(f"s_waitcnt vmcnt({split})")
        loadV(s)
        A.label(f"L_nx{s}")
        if s == D - 1:
            e("s_branch L_sloop")
    A.label("L_sdone")
    stamp(4)
    e("v_add_f32_dpp v15, v15, v15 row_ror:4 row_mask:0xf bank_mask:0xf")
    e("v_add_f32_dpp v15, v15, v15 row_ror:8 row_mask:0xf bank_mask:0xf")
    e("v_mov_b32 v25, v15")
    e("v_permlane16_swap_b32 v15, v25")
    e("v_add_f32 v15, v15, v25")
    e("v_mov_b32 v25, v15")
    e("v_permlane32_swap_b32 v15, v25")
    e("v_add_f32 v15, v15, v25")
    e("v_lshrrev_b32 v16, 4, v0")
    e("v_lshlrev_b32 v16, 7, v16")
    e("v_and_b32 v17, 7, v0")
    e("v_lshl_add_u32 v16, v17, 2, v16")
    e("s_lshl_b32 s37, s3, 9")
    e("v_add_u32 v16, s37, v16")
    for r in range(4):
        e(f"ds_write_b32 v16, v{10+r} offset:{L_OW + 32*r}")
    e("s_lshl_b32 s37, s3, 3")
    e("v_mov_b32 v17, s37")
    e(f"ds_write_b64 v17, v[14:15] offset:{L_MLW}")
    e("s_waitcnt lgkmcnt(0)")
    e("s_mov_b64 exec, 1")
    e(f"v_mov_b32 v28, {L_FB}")
    e("v_mov_b32 v29, 1")
    e("ds_add_u32 v28, v29")
    e("s_mov_b64 exec, -1")
    stamp(5)
    if tlog or tstep:
        e("s_lshl_b32 s6, s2, 3\ns_add_u32 s6, s6, s5\ns_lshl_b32 s6, s6, 8")
        e(f"s_add_u32 s6, s6, {TS + 0x80000}")
        e(f"s_mov_b32 s60, s32\ns_mov_b32 s61, s33\ns_mov_b32 s62, {WS_BYTES}\ns_mov_b32 s63, 0x20000")
        e("v_lshlrev_b32 v1, 2, v0")
        e("buffer_store_dword v33, v1, s[60:63], s6 offen")
        e(f"s_add_u32 s6, s6, 0x80000")
        e("buffer_store_dword v34, v1, s[60:63], s6 offen")
    dump_stamps(6)
    e("s_endpgm")

    MARK_STREAM1 = len(A.items)
    A.label("L_aux")
    e("s_setprio 3")
    e(f"s_mov_b32 s100, {SPIN}")
    e("s_mov_b32 s101, 0")
    e("v_lshrrev_b32 v10, 4, v0")
    e("v_bfe_u32 v11, v0, 3, 1")
    e("v_and_b32 v12, 15, v0")
    e("s_cmp_ge_u32 s3, 2")
    e("s_cbranch_scc1 L_aux23")
    e("s_cmp_eq_u32 s3, 1")
    e("s_cbranch_scc1 L_p1")
    e("s_mul_i32 s36, s35, 72")
    e("s_mov_b32 s37, 18")
    e("s_mov_b32 s38, 8192")
    e("s_lshl_b32 s39, s34, 8")
    e("s_mul_i32 s40, s36, 8192")
    e("s_add_u32 s39, s39, s40")
    e("s_sub_u32 s54, 4718592, s39")
    e("s_mov_b32 s41, 99")
    e("s_mov_b32 s42, 1")
    e("s_mov_b32 s43, 14")
    e("s_branch L_p2")
    A.label("L_p1")
    e("s_mul_hi_u32 s43, s2, 0x71c71c8")
    e("s_mul_i32 s44, s43, 36")
    e("s_sub_u32 s44, s2, s44")
    e("s_mul_i32 s36, s43, 82")
    e("s_cmp_eq_u32 s43, 0")
    e("s_cselect_b32 s40, 0, 2")
    e("s_cselect_b32 s41, 99, 3")
    e("s_add_u32 s36, s36, s40")
    e("s_mov_b32 s37, 22")
    e("s_mov_b32 s38, 9216")
    e("s_lshl_b32 s39, s44, 8")
    e("s_mul_i32 s40, s36, 9216")
    e("s_add_u32 s39, s39, s40")
    e("s_sub_u32 s54, 5308416, s39")
    e("s_mov_b32 s42, 0")
    e("s_cmp_ge_u32 s2, 252")
    e("s_cselect_b32 s54, 0, s54")
    A.label("L_p2")
    e("v_lshrrev_b32 v13, 5, v0")
    e("v_mul_u32_u24 v13, 1152, v13")
    e("v_and_b32 v14, 31, v0")
    e("v_mad_u32_u24 v13, v14, 36, v13")
    e("v_mul_lo_u32 v14, v10, s37")
    e("v_add_u32 v15, s36, v14")
    e("v_lshlrev_b32 v15, 1, v15")
    e("v_mul_u32_u24 v16, 1152, v11")
    e("v_add_u32 v15, v15, v16")
    e("v_mul_lo_u32 v16, v14, s38")
    e("v_lshl_add_u32 v16, v12, 4, v16")
    e(f"v_mov_b32 v19, {OOB}")
    e("v_cmp_eq_u32 vcc, s41, v10")
    e("v_cndmask_b32 v17, v16, v19, vcc")
    e("v_cmp_eq_u32 vcc, 3, v10")
    e("v_cndmask_b32 v18, v16, v19, vcc")
    e("s_cmp_eq_u32 s42, 1")
    e("s_cselect_b64 vcc, -1, 0")
    e("v_cndmask_b32 v18, v18, v19, vcc")
    if 'now1' in diag: e("s_mov_b32 s54, 0")
    e("s_mov_b32 s62, 2304\ns_mov_b32 s63, 0x20000\ns_mov_b32 s55, 0x20000")
    pst(1)
    e("s_waitcnt lgkmcnt(0)")
    pst(2)
    e("s_mov_b32 s60, s8\ns_and_b32 s61, s9, 0xffff")
    e("buffer_load_dwordx4 v[20:23], v13, s[60:63], 0 offen")
    e("buffer_load_dwordx4 v[24:27], v13, s[60:63], 0 offen offset:16")
    e("buffer_load_dword v28, v13, s[60:63], 0 offen offset:32")
    e("buffer_load_dwordx4 v[30:33], v15, s[60:63], 0 offen")
    e("buffer_load_dwordx4 v[34:37], v15, s[60:63], 0 offen offset:16")
    e("buffer_load_dwordx3 v[38:40], v15, s[60:63], 0 offen offset:32")
    e("s_cmp_eq_u32 s3, 1")
    e("s_cselect_b32 s52, s20, s14")
    e("s_cselect_b32 s53, s21, s15")
    e("s_add_u32 s52, s52, s39\ns_addc_u32 s53, s53, 0\ns_and_b32 s53, s53, 0xffff")
    def wloads():
        e("s_mov_b32 s45, 0")
        for t in range(22):
            vo = 16 if t < 16 else (17 if t < 18 else 18)
            e(f"buffer_load_dwordx4 a[{4*t}:{4*t+3}], v{vo}, s[52:55], s45 offen{NT}")
            if t < 21: e("s_add_u32 s45, s45, s38")
    if latew1:
        e("s_cmp_eq_u32 s3, 1")
        e("s_cbranch_scc1 L_now")
    wloads()
    if latew1: A.label("L_now")
    pst(3)
    if bar0: e("s_barrier")
    pst(4)
    stamp(1)
    e("s_load_dwordx2 s[46:47], s[32:33], 0")
    e(f"s_mov_b32 s48, s32\ns_and_b32 s49, s33, 0xffff\ns_mov_b32 s50, {WS_BYTES}\ns_mov_b32 s51, 0x20000")
    masks()
    e("v_lshlrev_b32 v41, 2, v0")
    e("v_mov_b32 v42, 0")
    e("s_lshl_b32 s40, s34, 8")
    e(f"s_add_u32 s40, s40, {CNT}")
    e("s_add_u32 s56, s32, s40\ns_addc_u32 s57, s33, 0\ns_and_b32 s57, s57, 0xffff\ns_mov_b32 s59, 0x20000")
    e("s_or_b32 s40, s35, s3")
    e("s_cmp_eq_u32 s40, 0")
    e("s_cselect_b32 s58, 4, 0")
    e("buffer_store_dword v42, v41, s[56:59], 0 offen sc1")
    pst(5)
    if latew1:
        e("s_cmp_eq_u32 s3, 1")
        e("s_cbranch_scc0 L_xw0")
        e("s_waitcnt vmcnt(0)")
        A.label("L_xw0")
    e("s_waitcnt vmcnt(25)")
    pst(6)
    F = 44
    for k in range(9):
        e(f"v_lshlrev_b32 v{F+2*k}, 16, v{20+k}")
        e(f"v_and_b32 v{F+2*k+1}, 0xffff0000, v{20+k}")
    e(f"v_pk_add_f32 v[62:63], v[{F}:{F+1}], v[{F+2}:{F+3}]")
    for k in range(2, 9):
        e(f"v_pk_add_f32 v[62:63], v[62:63], v[{F+2*k}:{F+2*k+1}]")
    e("v_add_f32 v62, v62, v63")
    def red32(r, tmp):
        for sh in (8, 4, 2, 1):
            e(f"v_add_f32_dpp v{r}, v{r}, v{r} row_ror:{sh} row_mask:0xf bank_mask:0xf")
        e(f"v_mov_b32 v{tmp}, v{r}")
        e(f"v_permlane16_swap_b32 v{r}, v{tmp}")
        e(f"v_add_f32 v{r}, v{r}, v{tmp}")
    red32(62, 63)
    e("v_mul_f32 v62, 0x3ae38e39, v62")
    e("v_mov_b32 v63, v62")
    for k in range(9):
        e(f"v_pk_add_f32 v[{F+2*k}:{F+2*k+1}], v[{F+2*k}:{F+2*k+1}], v[62:63] neg_lo:[0,1] neg_hi:[0,1]")
    e(f"v_pk_mul_f32 v[64:65], v[{F}:{F+1}], v[{F}:{F+1}]")
    for k in range(1, 9):
        e(f"v_pk_fma_f32 v[64:65], v[{F+2*k}:{F+2*k+1}], v[{F+2*k}:{F+2*k+1}], v[64:65]")
    e("v_add_f32 v64, v64, v65")
    red32(64, 65)
    e("v_mul_f32 v64, 0x3ae38e39, v64")
    e("v_cvt_pk_bf16_f32 v62, v62, v62")
    e("v_and_b32 v62, 0xffff0000, v62")
    e("v_cvt_pk_bf16_f32 v64, v64, v64")
    e("v_and_b32 v64, 0xffff0000, v64")
    e("v_add_f32 v64, 0x3727c5ac, v64")
    e("v_cvt_pk_bf16_f32 v64, v64, v64")
    e("v_and_b32 v64, 0xffff0000, v64")
    e("v_sqrt_f32 v64, v64")
    e("v_cvt_pk_bf16_f32 v64, v64, v64")
    e("v_and_b32 v64, 0xffff0000, v64")
    e("v_rcp_f32 v64, v64")
    e("v_readlane_b32 s56, v62, 0")
    e("v_readlane_b32 s57, v62, 32")
    e("v_readlane_b32 s58, v64, 0")
    e("v_readlane_b32 s59, v64, 32")
    e("v_cmp_eq_u32 vcc, 1, v11")
    e("v_mov_b32 v62, s56")
    e("v_mov_b32 v63, s57")
    e("v_cndmask_b32 v62, v62, v63, vcc")
    e("v_mov_b32 v64, s58")
    e("v_mov_b32 v65, s59")
    e("v_cndmask_b32 v64, v64, v65, vcc")
    e("v_mov_b32 v63, v62")
    e("v_mov_b32 v65, v64")
    pst(7)
    e("s_waitcnt vmcnt(22)")
    pst(8)
    for k in range(11):
        x = 30 + k
        e(f"v_lshlrev_b32 v66, 16, v{x}")
        e(f"v_and_b32 v67, 0xffff0000, v{x}")
        e("v_pk_add_f32 v[66:67], v[66:67], v[62:63] neg_lo:[0,1] neg_hi:[0,1]")
        e("v_cvt_pk_bf16_f32 v68, v66, v67")
        e("v_lshlrev_b32 v66, 16, v68")
        e("v_and_b32 v67, 0xffff0000, v68")
        e("v_pk_mul_f32 v[66:67], v[66:67], v[64:65]")
        e(f"v_cvt_pk_bf16_f32 v{x}, v66, v67")
    stamp(2)
    pst(9)
    if latew1:
        e("s_cmp_eq_u32 s3, 1")
        e("s_cbranch_scc0 L_now2")
        wloads()
        A.label("L_now2")
    e("s_mov_b32 s56, 0x01000100")
    e("s_mov_b32 s57, 0x03020302")
    for r in range(4): e(f"v_mov_b32 v{70+r}, 0")
    for t in range(22):
        B = 76 + 4 * (t & 1)
        e(f"v_perm_b32 v74, v{30 + t//2}, v{30 + t//2}, s{56 + (t & 1)}")
        for jj in range(4):
            e(f"v_and_b32 v{B+jj}, v74, v{6+jj}")
        e(f"s_waitcnt vmcnt({21 - t})")
        e(f"v_mfma_f32_16x16x32_bf16 v[70:73], a[{4*t}:{4*t+3}], v[{B}:{B+3}], v[70:73]")
    stamp(3)
    pst(10)
    def make_tags():
        e("s_waitcnt lgkmcnt(0)")
        e("s_add_u32 s46, s46, 0x7f4a7c15\ns_addc_u32 s47, s47, 0x9e3779b9")
        e(f"s_and_b32 s44, s46, {TAGM}")
        e("v_mov_b32 v2, s44")
        e(f"s_bfe_u32 s44, s46, 0x{(TAGB<<16)|TAGB:x}")
        e("v_mov_b32 v3, s44")
        e(f"s_bfe_u32 s44, s46, 0x{(TAGB<<16)|(2*TAGB):x}")
        e("v_mov_b32 v4, s44")
        e("s_lshr_b64 s[56:57], s[46:47], 30")
        e(f"s_and_b32 s44, s56, {TAGM}")
        e("v_mov_b32 v5, s44")
        e(f"s_mov_b32 s44, {TAGM}")
        e(f"s_mov_b32 s45, 0x{VALM:x}")
    def tagpack(dst, src):
        for r in range(4):
            e(f"v_bfi_b32 v{dst+r}, s44, v{2+r}, v{src+r}")
    def tagcheck(regs, tmp):
        first = True
        for base in regs:
            for r in range(4):
                if first:
                    e(f"v_xor_b32 v{tmp}, v{base+r}, v{2+r}"); first = False
                else:
                    e(f"v_bitop3_b32 v{tmp}, v{base+r}, v{2+r}, v{tmp} bitop3:0xbe")
        e(f"v_and_b32 v{tmp}, s44, v{tmp}")
        e(f"v_cmp_eq_u32 vcc, 0, v{tmp}")
    pollid = [0]
    def poll(issue, regs, tmp, cnt="s4", nosleep=False):
        n = pollid[0]; pollid[0] += 1
        e(f"s_mov_b32 {cnt}, s100")
        A.label(f"L_poll{n}")
        issue()
        e("s_waitcnt vmcnt(0)")
        tagcheck(regs, tmp)
        e("s_cmp_eq_u64 vcc, exec")
        e(f"s_cbranch_scc1 L_pdone{n}")
        if sleep and not nosleep: e(f"s_sleep {sleep}")
        e(f"s_sub_u32 {cnt}, {cnt}, 1")
        e(f"s_cmp_lg_u32 {cnt}, 0")
        e(f"s_cbranch_scc1 L_poll{n}")
        A.label(f"L_pdone{n}")
    def ldsspin(addr, target, nosleep=False):
        n = pollid[0]; pollid[0] += 1
        e(f"s_mov_b32 s4, {SPIN}")
        e(f"v_mov_b32 v20, {addr}")
        A.label(f"L_poll{n}")
        e("ds_read_b32 v21, v20")
        e("s_waitcnt lgkmcnt(0)")
        e("v_readfirstlane_b32 s6, v21")
        e(f"s_cmp_ge_u32 s6, {target}")
        e(f"s_cbranch_scc1 L_pdone{n}")
        if sleep and not nosleep: e(f"s_sleep {sleep}")
        e("s_sub_u32 s4, s4, 1")
        e("s_cmp_lg_u32 s4, 0")
        e(f"s_cbranch_scc1 L_poll{n}")
        A.label(f"L_pdone{n}")

    def dispatcher():
        if static_tail: return
        e("s_cmp_eq_u32 s3, 0")
        e("s_cbranch_scc0 L_nodisp")
        e("s_lshl_b32 s94, s34, 8")
        e(f"s_add_u32 s94, s94, {CNT}")
        e("s_add_u32 s56, s32, s94\ns_addc_u32 s57, s33, 0\ns_and_b32 s57, s57, 0xffff\ns_mov_b32 s58, 4\ns_mov_b32 s59, 0x20000")
        e("v_mov_b32 v13, 0")
        e(f"v_mov_b32 v14, {L_WANT}")
        e("s_mov_b32 s90, 0")
        e(f"s_mov_b32 s4, {SPIN * 8}")
        e("s_mov_b64 exec, 1")
        A.label("L_dloop")
        e("ds_read_b32 v15, v14")
        e("s_waitcnt lgkmcnt(0)")
        e("v_readfirstlane_b32 s91, v15")
        e("s_cmp_gt_u32 s91, s90")
        e("s_cbranch_scc1 L_dget")
        e("s_sleep 1")
        e("s_sub_u32 s4, s4, 1")
        e("s_cmp_lg_u32 s4, 0")
        e("s_cbranch_scc1 L_dloop")
        e("s_mov_b32 s92, 256")
        e("s_branch L_dput")
        A.label("L_dget")
        e("v_mov_b32 v15, 1")
        e("buffer_atomic_add v15, v13, s[56:59], 0 offen sc0 sc1")
        e("s_waitcnt vmcnt(0)")
        e("v_readfirstlane_b32 s91, v15")
        e("s_mov_b32 s92, 256")
        k0, st0 = 0, 128
        for gi, (cnt, nper) in enumerate(gss):
            e(f"s_sub_u32 s93, s91, {k0}")
            if kpat:
                assert cnt % 8 == 0
                e("s_and_b32 s94, s93, 7")
                e("s_lshl_b32 s94, s94, 1")
                e("s_lshr_b32 s95, s93, 3")
                e(f"s_mul_i32 s95, s95, {16*nper}")
                e("s_add_u32 s94, s94, s95")
                e(f"s_add_u32 s94, s94, {st0 + (nper << 16)}")
            else:
                e(f"s_mul_i32 s94, s93, {2*nper}")
                e(f"s_add_u32 s94, s94, {st0 + (nper << 16)}")
            e(f"s_cmp_lt_u32 s93, {cnt}")
            e("s_cselect_b32 s92, s94, s92")
            k0 += cnt; st0 += cnt * 2 * nper
        assert st0 == 256, st0
        A.label("L_dput")
        e("s_lshl_b32 s93, s90, 2")
        e(f"s_add_u32 s93, s93, {L_MB}")
        e("v_mov_b32 v15, s93")
        e("v_mov_b32 v16, s92")
        e("ds_write_b32 v15, v16")
        e("s_add_u32 s90, s90, 1")
        e("s_cmp_eq_u32 s92, 256")
        e("s_cbranch_scc0 L_dloop")
        e("s_waitcnt lgkmcnt(0)")
        e("s_mov_b64 exec, -1")
        A.label("L_nodisp")

    make_tags()
    e("s_cmp_eq_u32 s3, 1")
    e("s_cbranch_scc1 L_hpub")
    e("s_waitcnt vmcnt(0)")
    tagpack(74, 70)
    e("v_lshlrev_b32 v13, 4, v0")
    e("s_lshl_b32 s36, s2, 10")
    e(f"s_add_u32 s36, s36, {QP}")
    e("buffer_store_dwordx4 v[74:77], v13, s[48:51], s36 offen sc1")
    stamp(4)
    pst(11)
    e("v_lshlrev_b32 v13, 4, v0")
    e("s_lshl_b32 s36, s34, 13")
    e(f"s_add_u32 s36, s36, {QP}")
    e("s_add_u32 s37, s36, 4096")
    def issue_q():
        for k in range(8):
            e(f"buffer_load_dwordx4 v[{20+4*k}:{23+4*k}], v13, s[48:51], s{36 + k//4} offen offset:{1024*(k%4)} sc1")
    poll(issue_q, [20 + 4 * k for k in range(8)], 52)
    pst(12)
    for r in range(4):
        for k in range(8): e(f"v_and_b32 v{20+4*k+r}, s45, v{20+4*k+r}")
        for k in (0, 2, 4, 6): e(f"v_add_f32 v{20+4*k+r}, v{20+4*k+r}, v{24+4*k+r}")
        e(f"v_add_f32 v{20+r}, v{20+r}, v{28+r}")
        e(f"v_add_f32 v{36+r}, v{36+r}, v{44+r}")
        e(f"v_add_f32 v{20+r}, v{20+r}, v{36+r}")
    e("v_cvt_pk_bf16_f32 v24, v20, v21")
    e("v_cvt_pk_bf16_f32 v25, v22, v23")
    e("v_lshlrev_b32 v13, 8, v11")
    e("v_lshl_add_u32 v13, v10, 6, v13")
    e("v_and_b32 v14, 7, v0")
    e("v_lshl_add_u32 v13, v14, 1, v13")
    e(f"ds_write_b16 v13, v24 offset:{L_Q}")
    e(f"ds_write_b16_d16_hi v13, v24 offset:{L_Q+16}")
    e(f"ds_write_b16 v13, v25 offset:{L_Q+32}")
    e(f"ds_write_b16_d16_hi v13, v25 offset:{L_Q+48}")
    e("s_waitcnt lgkmcnt(0)")
    e(f"v_mov_b32 v13, {L_FQ}")
    e("v_mov_b32 v14, 1")
    e("ds_write_b32 v13, v14")
    stamp(5)
    pst(13)
    e("s_branch L_barA")
    A.label("L_hpub")
    e("s_cmp_ge_u32 s2, 252")
    e("s_cbranch_scc1 L_barA")
    e("v_lshlrev_b32 v13, 9, v11")
    e("v_lshl_add_u32 v13, v10, 7, v13")
    e("v_and_b32 v14, 7, v0")
    e("v_lshl_add_u32 v13, v14, 2, v13")
    for r in range(4):
        e(f"ds_write_b32 v13, v{70+r} offset:{L_HT + 32*r}")
    e("v_lshlrev_b32 v14, 4, v0")
    e("s_waitcnt lgkmcnt(0)")
    e(f"ds_read_b128 v[70:73], v14 offset:{L_HT}")
    e("v_lshrrev_b32 v13, 5, v0")
    e("v_mul_u32_u24 v13, 18432, v13")
    e("v_and_b32 v14, 31, v0")
    e("v_lshl_add_u32 v13, v14, 4, v13")
    e("s_mul_hi_u32 s43, s2, 0x71c71c8")
    e("s_mul_i32 s36, s43, 36")
    e("s_sub_u32 s36, s2, s36")
    e("s_lshl_b32 s36, s36, 9")
    e("s_mul_i32 s37, s43, 36864")
    e("s_add_u32 s36, s36, s37")
    e(f"s_add_u32 s36, s36, {HP}")
    e("s_waitcnt lgkmcnt(0)")
    tagpack(74, 70)
    e("buffer_store_dwordx4 v[74:77], v13, s[48:51], s36 offen sc1")
    stamp(4)
    e("s_branch L_barA")
    A.label("L_aux23")
    e("s_mov_b64 exec, 1")
    e(f"v_mov_b32 v13, {L_FC}")
    e("v_mov_b32 v14, 0")
    e("v_mov_b32 v15, 0")
    e("ds_write_b64 v13, v[14:15]")
    if 'noq' in diag: e("v_mov_b32 v15, 1")
    e("ds_write_b64 v13, v[14:15] offset:8")
    e("s_mov_b64 exec, -1")
    e("v_lshlrev_b32 v13, 2, v0")
    e("v_mov_b32 v14, -1")
    e(f"ds_write_b32 v13, v14 offset:{L_MB}")
    e("s_waitcnt lgkmcnt(0)")
    e("s_load_dwordx2 s[46:47], s[32:33], 0")
    e(f"s_mov_b32 s48, s32\ns_and_b32 s49, s33, 0xffff\ns_mov_b32 s50, {WS_BYTES}\ns_mov_b32 s51, 0x20000")
    if bar0: e("s_barrier")
    masks()
    make_tags()
    A.label("L_barA")
    stamp(6)
    if wmode != 'early': dispatcher()
    if warm:
        e("s_cmp_eq_u32 s3, 1")
        e("s_cbranch_scc0 L_nodry1")
        e("s_cmp_lt_u32 s2, 36")
        e("s_cbranch_scc0 L_nodry1")
        e("s_mov_b32 s100, 1\ns_mov_b32 s101, 1\ns_mov_b32 s50, 0")
        e("s_branch L_red")
        A.label("L_drydone1")
        e(f"s_mov_b32 s100, {SPIN}\ns_mov_b32 s101, 0\ns_mov_b32 s50, {WS_BYTES}")
        A.label("L_nodry1")
    e("s_and_b32 s36, s35, 1")
    e("s_lshr_b32 s37, s2, 1")
    e("s_mov_b32 s40, 2\ns_mov_b32 s41, 0")
    e("s_cmp_ge_u32 s3, 2")
    e("s_cbranch_scc1 L_t23")
    e("s_mov_b32 s38, 0")
    e("s_lshl_b32 s39, s36, 1")
    e("s_add_u32 s39, s39, s3")
    e("s_branch L_tdone")
    A.label("L_t23")
    e("s_mov_b32 s38, 1")
    e("s_lshl_b32 s39, s36, 1")
    e("s_sub_u32 s39, s3, s39")
    e("s_cmp_eq_u32 s3, 2")
    e("s_cbranch_scc0 L_th2")
    e("s_mov_b32 s41, 4")
    e("s_xor_b32 s40, s36, 1")
    A.label("L_th2")
    e("s_mov_b64 exec, 0x3ffff")
    e("v_cmp_le_u32 vcc, 9, v0")
    e("v_cndmask_b32 v13, 0, 1, vcc")
    e("v_mul_u32_u24 v14, 9, v13")
    e("v_sub_u32 v14, v0, v14")
    e("v_mul_u32_u24 v15, 18432, v13")
    e("v_lshl_add_u32 v15, v14, 4, v15")
    e("s_mul_i32 s42, s37, 144")
    e(f"s_add_u32 s42, s42, {HP}")
    e("s_mov_b32 s60, s22\ns_and_b32 s61, s23, 0xffff\ns_mov_b32 s62, 9216\ns_mov_b32 s63, 0x20000")
    e("s_mul_i32 s43, s37, 72")
    e("v_lshlrev_b32 v16, 3, v14")
    e("buffer_load_dwordx2 v[18:19], v16, s[60:63], s43 offen")
    def issue_h():
        e("s_mov_b32 s43, s42")
        for k in range(7):
            e(f"buffer_load_dwordx4 v[{20+4*k}:{23+4*k}], v15, s[48:51], s43 offen sc1")
            if k < 6: e("s_add_u32 s43, s43, 36864")
    poll(issue_h, [20 + 4 * k for k in range(7)], 48)
    for r in range(4):
        for k in range(7): e(f"v_and_b32 v{20+4*k+r}, s45, v{20+4*k+r}")
        for k in range(1, 7): e(f"v_add_f32 v{20+r}, v{20+r}, v{20+4*k+r}")
    e("v_lshlrev_b32 v24, 16, v18\nv_and_b32 v25, 0xffff0000, v18\nv_lshlrev_b32 v26, 16, v19\nv_and_b32 v27, 0xffff0000, v19")
    for r in range(4):
        e(f"v_cvt_pk_bf16_f32 v{20+r}, v{20+r}, v{20+r}")
        e(f"v_and_b32 v{20+r}, 0xffff0000, v{20+r}")
        e(f"v_add_f32 v{20+r}, v{20+r}, v{24+r}")
        e(f"v_cvt_pk_bf16_f32 v{20+r}, v{20+r}, v{20+r}")
        e(f"v_and_b32 v{20+r}, 0xffff0000, v{20+r}")
        e(f"v_max_f32 v{20+r}, 0, v{20+r}")
        e(f"v_mul_f32 v{20+r}, v{20+r}, v{20+r}")
        e(f"v_cvt_pk_bf16_f32 v{20+r}, v{20+r}, v{20+r}")
    e("v_mul_u32_u24 v16, 144, v13")
    e("v_lshl_add_u32 v16, v14, 4, v16")
    e("s_lshl_b32 s43, s3, 10")
    e("v_add_u32 v16, s43, v16")
    e(f"ds_write_b128 v16, v[20:23] offset:{L_PRIV}")
    e("s_mov_b64 exec, -1")
    e("s_waitcnt lgkmcnt(0)")
    A.label("L_tdone")
    stamp(7)
    def task_srd(srd, typ, beta, voff):
        n = pollid[0]; pollid[0] += 1
        e(f"s_cmp_eq_u32 {typ}, 1")
        e(f"s_cbranch_scc1 L_sw2_{n}")
        e("s_mul_i32 s42, s37, 36864")
        e(f"s_lshl_b32 s43, {beta}, 8")
        e("s_add_u32 s42, s42, s43")
        e(f"s_add_u32 s{srd}, s16, s42\ns_addc_u32 s{srd+1}, s17, 0")
        e(f"s_sub_u32 s{srd+2}, 4718592, s42")
        e("s_mov_b32 s43, 9216")
        e(f"s_branch L_sd_{n}")
        A.label(f"L_sw2_{n}")
        e("s_mul_i32 s42, s37, 41472")
        e(f"s_lshl_b32 s43, {beta}, 8")
        e("s_add_u32 s42, s42, s43")
        e(f"s_add_u32 s{srd}, s24, s42\ns_addc_u32 s{srd+1}, s25, 0")
        e(f"s_sub_u32 s{srd+2}, 5308416, s42")
        e("s_mov_b32 s43, 10368")
        A.label(f"L_sd_{n}")
        e(f"s_and_b32 s{srd+1}, s{srd+1}, 0xffff\ns_mov_b32 s{srd+3}, 0x20000")
        e(f"s_cmp_eq_u32 {typ}, 2")
        e(f"s_cselect_b32 s{srd+2}, 0, s{srd+2}")
        e(f"v_mul_lo_u32 v{voff}, v10, s43")
        e(f"v_lshl_add_u32 v{voff}, v12, 4, v{voff}")
        e(f"v_mov_b32 v19, {OOB}")
        e("v_cmp_le_u32 vcc, 8, v12")
        e(f"v_cndmask_b32 v18, v{voff}, v19, vcc")
        e(f"s_cmp_eq_u32 {beta}, 4")
        e(f"s_cbranch_scc0 L_se_{n}")
        e(f"v_mov_b32 v{voff}, v18")
        A.label(f"L_se_{n}")
    task_srd(52, "s38", "s39", 13)
    task_srd(56, "s40", "s41", 14)
    if 'nowo' in diag:
        e("s_mov_b32 s54, 0\ns_mov_b32 s58, 0")
    e(f"v_mov_b32 v19, {OOB}")
    e("s_cmp_eq_u32 s38, 0\ns_cselect_b64 vcc, -1, 0")
    e("v_cndmask_b32 v15, v13, v19, vcc")
    e("s_cmp_eq_u32 s40, 0\ns_cselect_b64 vcc, -1, 0")
    e("v_cndmask_b32 v16, v14, v19, vcc")
    e("v_lshrrev_b32 v90, 3, v0")
    e("v_lshlrev_b32 v90, 14, v90")
    e("v_and_b32 v91, 7, v0")
    e("v_lshl_add_u32 v90, v91, 4, v90")
    e("v_cmp_le_u32 vcc, 32, v0")
    e("v_cndmask_b32 v92, v90, v19, vcc")
    e("s_cmp_eq_u32 s41, 4\ns_cselect_b64 vcc, -1, 0")
    e("v_cndmask_b32 v91, v90, v92, vcc")
    e("s_cmp_eq_u32 s39, 4\ns_cselect_b64 vcc, -1, 0")
    e("v_cndmask_b32 v90, v90, v92, vcc")
    for (typ, beta, dst) in (("s38", "s39", "s96"), ("s40", "s41", "s97")):
        e(f"s_mov_b32 {dst}, {SP}")
        e(f"s_cmp_eq_u32 {typ}, 1")
        e(f"s_cselect_b32 {dst}, {GP}, {dst}")
        e(f"s_lshl_b32 s42, {beta}, 17")
        e(f"s_add_u32 {dst}, {dst}, s42")
        e("s_lshl_b32 s42, s37, 7")
        e(f"s_add_u32 {dst}, {dst}, s42")
    e("v_and_b32 v93, 3, v0")
    e("v_bfe_u32 v94, v0, 4, 1")
    e("v_lshl_add_u32 v93, v94, 2, v93")
    e("v_bfe_u32 v94, v0, 2, 2")
    e("v_lshrrev_b32 v95, 5, v0")
    e("v_lshlrev_b32 v96, 12, v95")
    e("v_lshl_add_u32 v96, v94, 9, v96")
    e("v_lshl_add_u32 v96, v93, 4, v96")
    e("v_lshlrev_b32 v97, 7, v95")
    e("v_lshl_add_u32 v97, v94, 4, v97")
    e("s_lshr_b32 s98, s35, 1")
    e("s_lshl_b32 s98, s98, 7")
    e("s_lshl_b32 s42, s34, 13")
    e("s_add_u32 s98, s98, s42")
    e(f"s_add_u32 s98, s98, {OP}")
    e("s_lshl_b32 s99, s34, 8")
    e(f"s_add_u32 s99, s99, {ML}")
    e("s_lshl_b32 s42, s3, 10")
    e(f"s_add_u32 s42, s42, {L_PRIV + 0x200}")
    e("v_lshlrev_b32 v98, 7, v95")
    e("v_lshl_add_u32 v98, v93, 4, v98")
    e("v_add_u32 v98, s42, v98")
    e("v_lshlrev_b32 v99, 7, v11")
    e("v_lshl_add_u32 v99, v10, 5, v99")
    e("v_add_u32 v99, s42, v99")
    e("s_cmp_ge_u32 s3, 2")
    e("s_cbranch_scc0 L_noh2")
    e("v_mul_u32_u24 v20, 144, v11")
    e("v_mad_u32_u24 v20, v10, 36, v20")
    e("s_lshl_b32 s42, s3, 10")
    e("v_add_u32 v20, s42, v20")
    for t in range(9):
        e(f"ds_read_b32 v{100+t}, v20 offset:{L_PRIV + 4*t}")
    e("s_waitcnt lgkmcnt(0)")
    A.label("L_noh2")
    e("v_and_b32 v110, 31, v0")
    e("v_lshlrev_b32 v110, 4, v110")
    e("v_lshl_add_u32 v111, v95, 9, v110")
    e("v_lshlrev_b32 v112, 3, v95")
    e("v_lshl_add_u32 v113, v95, 12, v110")
    e("v_lshlrev_b32 v114, 7, v95")
    e("s_lshl_b32 s60, s34, 13")
    e("s_lshl_b32 s43, s35, 9")
    e("s_add_u32 s60, s60, s43")
    e(f"s_add_u32 s60, s60, {OP}")
    e("s_lshl_b32 s61, s34, 8")
    e("s_lshl_b32 s43, s35, 4")
    e("s_add_u32 s61, s61, s43")
    e(f"s_add_u32 s61, s61, {ML}")
    e(f"s_mov_b32 s62, 0x{LOG2E:x}")
    if warm:
        e("s_cmp_eq_u32 s3, 1")
        e("s_cbranch_scc1 L_dry2")
        e("s_cmp_eq_u32 s3, 3")
        e("s_cbranch_scc0 L_nodry2")
        e("s_mov_b32 s100, 1\ns_mov_b32 s101, 1\ns_mov_b32 s50, 0")
        e("s_branch L_comb")
        A.label("L_dry2")
        e("s_mov_b32 s100, 1\ns_mov_b32 s101, 1\ns_mov_b32 s50, 0")
        e("s_branch L_btX")
        A.label("L_drydone2")
        e(f"s_mov_b32 s100, {SPIN}\ns_mov_b32 s101, 0\ns_mov_b32 s50, {WS_BYTES}")
        A.label("L_nodry2")
    if wmode == 'flagC': ldsspin(L_FC, 4)
    if wmode == 'flagB': ldsspin(L_FB, 4)
    stamp(8)
    e("s_mov_b32 s42, 0")
    for t in range(9):
        vo = 13 if t < 8 else 15
        e(f"buffer_load_dwordx4 a[{4*t}:{4*t+3}], v{vo}, s[52:55], s42 offen{NT}")
        e("s_add_u32 s42, s42, 1152") if t < 8 else None
    e("s_mov_b32 s42, 0")
    for t in range(9):
        vo = 14 if t < 8 else 16
        e(f"buffer_load_dwordx4 a[{36+4*t}:{36+4*t+3}], v{vo}, s[56:59], s42 offen{NT}")
        e("s_add_u32 s42, s42, 1152") if t < 8 else None
    if wmode == 'early': dispatcher()
    e("s_cmp_eq_u32 s3, 3")
    e("s_cbranch_scc0 L_nocomb")
    ldsspin(L_FB, 4, nosleep=True)
    stamp(9)
    A.label("L_comb")
    e(f"ds_read_b64 v[40:41], v112 offset:{L_MLW}")
    e(f"ds_read_b64 v[42:43], v112 offset:{L_MLW+16}")
    e(f"ds_read_b128 v[24:27], v111 offset:{L_OW}")
    e(f"ds_read_b128 v[28:31], v111 offset:{L_OW + 1024}")
    e("s_waitcnt lgkmcnt(2)")
    e("v_max_f32 v48, v40, v42")
    e("v_sub_f32 v40, v40, v48\nv_sub_f32 v42, v42, v48")
    e("v_mul_f32 v40, s62, v40\nv_mul_f32 v42, s62, v42")
    e("v_exp_f32 v40, v40\nv_exp_f32 v42, v42")
    e("v_mov_b32 v52, 0\nv_mov_b32 v53, 0")
    e("v_mul_f32 v49, v40, v41")
    e("v_fmac_f32 v49, v42, v43")
    e("s_waitcnt lgkmcnt(0)")
    for r in range(4):
        e(f"v_mul_f32 v{44+r}, v40, v{24+r}")
    for r in range(4):
        e(f"v_fmac_f32 v{44+r}, v42, v{28+r}")
    tagpack(54, 44)
    e("buffer_store_dwordx4 v[54:57], v113, s[48:51], s60 offen sc1")
    e(f"v_bfi_b32 v58, s44, v2, v48\nv_bfi_b32 v59, s44, v3, v49\nv_bfi_b32 v60, s44, v4, v52\nv_bfi_b32 v61, s44, v5, v53")
    e("s_mov_b32 exec_lo, 1\ns_mov_b32 exec_hi, 1")
    e("buffer_store_dwordx4 v[58:61], v114, s[48:51], s61 offen sc1")
    e("s_mov_b64 exec, -1")
    if warm:
        e("s_cmp_lg_u32 s101, 0")
        e("s_cbranch_scc1 L_drydone2")
    stamp(10)
    A.label("L_nocomb")

    def mchain(n, srcs, abase):
        def bb(t):
            B = 76 + 4 * (t & 1)
            for jj in range(4): e(f"v_and_b32 v{B+jj}, v{srcs[t]}, v{6+jj}")
        def mm(t):
            B = 76 + 4 * (t & 1)
            c = "0" if t == 0 else "v[70:73]"
            e(f"v_mfma_f32_16x16x32_bf16 v[70:73], a[{abase+4*t}:{abase+4*t+3}], v[{B}:{B+3}], {c}")
        bb(0); bb(1)
        for t in range(n):
            mm(t)
            if t + 2 < n: bb(t + 2)
    def blocktask(which, typ, abase, vst, sst):
        n = pollid[0]; pollid[0] += 1
        e(f"s_cmp_eq_u32 {typ}, 2")
        e(f"s_cbranch_scc1 L_bt_end{n}")
        e(f"s_cmp_eq_u32 {typ}, 1")
        e(f"s_cbranch_scc1 L_bt_w2{n}")
        def issue_o():
            e("buffer_load_dwordx4 v[24:27], v96, s[48:51], s98 offen sc1")
            e("buffer_load_dwordx4 v[36:39], v96, s[48:51], s98 offen offset:2048 sc1")
            e("buffer_load_dwordx4 v[28:31], v97, s[48:51], s99 offen sc1")
            e("buffer_load_dwordx4 v[40:43], v97, s[48:51], s99 offen offset:64 sc1")
        poll(issue_o, [24, 36, 28, 40], 32, nosleep=True)
        stamp(11)
        if not nomask:
            for r in (24, 25, 26, 27, 36, 37, 38, 39, 28, 29, 40, 41): e(f"v_and_b32 v{r}, s45, v{r}")
        e("v_max_f32 v30, v28, v40")
        e("v_max_f32_dpp v30, v30, v30 row_ror:4 row_mask:0xf bank_mask:0xf")
        e("v_max_f32_dpp v30, v30, v30 row_ror:8 row_mask:0xf bank_mask:0xf")
        e("v_sub_f32 v28, v28, v30\nv_sub_f32 v40, v40, v30")
        e("v_mul_f32 v28, s62, v28\nv_mul_f32 v40, s62, v40")
        e("v_exp_f32 v28, v28\nv_exp_f32 v40, v40")
        e("v_mul_f32 v29, v29, v28")
        for r in range(4): e(f"v_mul_f32 v{24+r}, v{24+r}, v28")
        e("v_fmac_f32 v29, v41, v40")
        for r in range(4): e(f"v_fmac_f32 v{24+r}, v{36+r}, v40")
        for r in (29, 24, 25, 26, 27):
            e(f"v_add_f32_dpp v{r}, v{r}, v{r} row_ror:4 row_mask:0xf bank_mask:0xf")
        for r in (29, 24, 25, 26, 27):
            e(f"v_add_f32_dpp v{r}, v{r}, v{r} row_ror:8 row_mask:0xf bank_mask:0xf")
        e("v_rcp_f32 v29, v29")
        for r in range(4): e(f"v_mul_f32 v{24+r}, v{24+r}, v29")
        for r in range(4): e(f"v_cvt_pk_bf16_f32 v{24+r}, v{24+r}, v{24+r}")
        e("ds_write_b128 v98, v[24:27]")
        e("s_waitcnt lgkmcnt(0)")
        e("ds_read_b128 v[24:27], v99")
        e("ds_read_b128 v[28:31], v99 offset:16")
        e("s_waitcnt lgkmcnt(0)")
        mchain(8, [24 + t for t in range(8)], abase)
        e(f"s_branch L_bt_pub{n}")
        A.label(f"L_bt_w2{n}")
        e(f"s_waitcnt vmcnt({0 if which == 'Y' else 9})") if False else e("s_waitcnt vmcnt(0)")
        mchain(9, [100 + t for t in range(9)], abase)
        A.label(f"L_bt_pub{n}")
        tagpack(74, 70)
        e(f"buffer_store_dwordx4 v[74:77], v{vst}, s[48:51], {sst} offen sc1")
        A.label(f"L_bt_end{n}")
    A.label("L_btX")
    blocktask("X", "s38", 0, 90, "s96")
    if warm:
        e("s_cmp_lg_u32 s101, 0")
        e("s_cbranch_scc1 L_drydone2")
    stamp(12)
    blocktask("Y", "s40", 36, 91, "s97")
    stamp(13)

    e("s_cmp_ge_u32 s2, 36")
    e("s_cbranch_scc1 L_auxend")
    A.label("L_red")
    e("s_lshr_b32 s36, s2, 3")
    e("s_and_b32 s37, s2, 7")
    e("s_lshl_b32 s38, s36, 7")
    e("s_lshr_b32 s39, s37, 1")
    e("s_lshl_b32 s39, s39, 5")
    e("s_add_u32 s38, s38, s39")
    e("s_and_b32 s39, s37, 1")
    e("s_mul_i32 s39, s39, 576")
    e("s_add_u32 s39, s39, s38")
    e("s_mov_b32 s60, s8\ns_and_b32 s61, s9, 0xffff\ns_mov_b32 s62, 2304\ns_mov_b32 s63, 0x20000")
    e("s_mov_b32 s56, s26\ns_and_b32 s57, s27, 0xffff\ns_mov_b32 s58, 1152\ns_mov_b32 s59, 0x20000")
    e("v_lshlrev_b32 v13, 1, v0")
    e("s_lshl_b32 s40, s39, 1")
    e("s_lshl_b32 s41, s38, 1")
    e("v_and_b32 v16, 3, v0")
    e("v_bfe_u32 v17, v0, 4, 1")
    e("v_lshl_add_u32 v16, v17, 2, v16")
    e("v_bfe_u32 v17, v0, 2, 2")
    e("v_lshrrev_b32 v18, 5, v0")
    e("v_lshl_add_u32 v17, v18, 2, v17")
    e("v_lshlrev_b32 v19, 4, v16")
    e("v_lshl_add_u32 v16, v17, 7, v19")
    e("v_lshl_add_u32 v17, v18, 7, v19")
    e("s_lshl_b32 s43, s3, 8")
    e("v_add_u32 v17, s43, v17")
    e("s_lshl_b32 s42, s2, 14")
    e("s_lshl_b32 s43, s3, 12")
    e("s_add_u32 s42, s42, s43")
    e(f"s_add_u32 s43, s42, {SP}")
    e(f"s_add_u32 s42, s42, {GP}")
    e("s_mov_b32 exec_lo, -1\ns_mov_b32 exec_hi, 0")
    e("buffer_load_ushort v14, v13, s[60:63], s40 offen")
    e("buffer_load_ushort v15, v13, s[56:59], s41 offen")
    e("s_mov_b64 exec, -1")
    e("s_mov_b32 s60, s28\ns_and_b32 s61, s29, 0xffff")
    def issue_r():
        for k in range(4):
            e(f"buffer_load_dwordx4 v[{20+4*k}:{23+4*k}], v16, s[48:51], s42 offen offset:{1024*k} sc1")
        for k in range(4):
            e(f"buffer_load_dwordx4 v[{36+4*k}:{39+4*k}], v16, s[48:51], s43 offen offset:{1024*k} sc1")
    poll(issue_r, [20 + 4 * k for k in range(8)], 52, nosleep=True)
    stamp(14)
    for base in (20, 36):
        for r in range(4):
            if not nomask:
                for k in range(4): e(f"v_and_b32 v{base+4*k+r}, s45, v{base+4*k+r}")
        for r in range(4): e(f"v_add_f32 v{base+r}, v{base+r}, v{base+4+r}")
        for r in range(4): e(f"v_add_f32 v{base+8+r}, v{base+8+r}, v{base+12+r}")
        for r in range(4): e(f"v_add_f32 v{base+r}, v{base+r}, v{base+8+r}")
    for sh in (4, 8):
        for base in (20, 36):
            for r in range(4):
                e(f"v_add_f32_dpp v{base+r}, v{base+r}, v{base+r} row_ror:{sh} row_mask:0xf bank_mask:0xf")
    e(f"ds_write_b128 v17, v[20:23] offset:{L_RED}")
    e(f"ds_write_b128 v17, v[36:39] offset:{L_RED + 1024}")
    e("v_and_b32 v17, 7, v0")
    e("v_lshlrev_b32 v17, 4, v17")
    e("v_bfe_u32 v18, v0, 3, 2")
    e("v_lshl_add_u32 v17, v18, 2, v17")
    e("s_waitcnt lgkmcnt(0)")
    if warm:
        e("s_cmp_lg_u32 s101, 0")
        e("s_cbranch_scc1 L_redfin")
    e("s_barrier")
    e("s_cmp_eq_u32 s3, 0")
    e("s_cbranch_scc0 L_auxend")
    A.label("L_redfin")
    for kind in range(2):
        for a in range(8):
            e(f"ds_read_b32 v{20+8*kind+a}, v17 offset:{L_RED + 1024*kind + 128*a}")
    e("v_lshlrev_b32 v14, 16, v14")
    e("v_lshlrev_b32 v15, 16, v15")
    e("s_waitcnt lgkmcnt(8)")
    def sum8(b):
        for k in (0, 2, 4, 6): e(f"v_add_f32 v{b+k}, v{b+k}, v{b+k+1}")
        e(f"v_add_f32 v{b}, v{b}, v{b+2}")
        e(f"v_add_f32 v{b+4}, v{b+4}, v{b+6}")
        e(f"v_add_f32 v{b}, v{b}, v{b+4}")
    def rnd(r):
        e(f"v_cvt_pk_bf16_f32 v{r}, v{r}, v{r}")
        e(f"v_and_b32 v{r}, 0xffff0000, v{r}")
    sum8(20)
    rnd(20)
    e("v_add_f32 v20, v20, v15")
    rnd(20)
    e(f"v_mul_f32 v21, 0x{(LOG2E ^ 0x80000000):x}, v20")
    e("v_exp_f32 v21, v21")
    e("s_waitcnt lgkmcnt(0)")
    sum8(28)
    e("v_add_f32 v21, 1.0, v21")
    e("v_rcp_f32 v21, v21")
    rnd(28)
    e("v_mul_f32 v20, v20, v21")
    rnd(20)
    e("v_mul_f32 v20, v28, v20")
    rnd(20)
    e("v_add_f32 v20, v14, v20")
    e("v_cvt_pk_bf16_f32 v20, v20, v20")
    if warm:
        e("s_cmp_lg_u32 s101, 0")
        e("s_cselect_b32 s62, 0, s62")
    e("s_mov_b32 exec_lo, -1\ns_mov_b32 exec_hi, 0")
    e("buffer_store_short v20, v13, s[60:63], s40 offen")
    e("s_mov_b64 exec, -1")
    if warm:
        e("s_cmp_lg_u32 s101, 0")
        e("s_cbranch_scc1 L_drydone1")
    stamp(15)
    e("s_cmp_eq_u32 s2, 0")
    e("s_cbranch_scc0 L_auxend")
    e("s_mov_b64 exec, 1")
    e("v_mov_b32 v20, s46\nv_mov_b32 v21, s47\nv_mov_b32 v22, 0")
    e("buffer_store_dwordx2 v[20:21], v22, s[48:51], 0 offen sc1")
    e("s_mov_b64 exec, -1")
    A.label("L_auxend")
    stamp(15 + 1) if False else None
    dump_stamps(16)
    A.label("L_end")
    e("s_endpgm")
    st = A.items[MARK_STREAM0:MARK_STREAM1]
    A.items = A.items[:MARK_STREAM0] + A.items[MARK_STREAM1:] + st
    A.label("L_codeend")
    e("s_endpgm")
    A.raw('.section .rodata,"a"')
    A.raw(".p2align 6")
    A.raw(f".amdhsa_kernel {NAME}")
    acc = 40 + 16 * D
    acc = (acc + 3) // 4 * 4
    A.raw(f"  .amdhsa_next_free_vgpr {acc + max(16 * D, 88)}")
    A.raw("  .amdhsa_next_free_sgpr 102")
    A.raw(f"  .amdhsa_accum_offset {acc}")
    A.raw("  .amdhsa_group_segment_fixed_size 0")
    A.raw("  .amdhsa_kernarg_size 104")
    A.raw("  .amdhsa_user_sgpr_count 2")
    A.raw("  .amdhsa_user_sgpr_kernarg_segment_ptr 1")
    A.raw("  .amdhsa_system_sgpr_workgroup_id_x 1")
    A.raw("  .amdhsa_float_denorm_mode_32 3")
    A.raw(".end_amdhsa_kernel")
    n = A.fix_hazards()
    return A.text(), n

if __name__ == "__main__":
    cfg = json.loads(sys.argv[2]) if len(sys.argv) > 2 else {}
    t, n = gen(**cfg)
    hdr = open("cdna_kernels/" + NAME[:-7] + ".s.ref").read().split("; Override launch")[0]
    lines = t.split("\n")
    out = hdr + lines[0] + "\n" + "\n".join(lines[1:])
    open(sys.argv[1], "w").write(out)
    print("nops inserted:", n)
```

```python
import sys, json
from asmfw import Asm

NAME = "recurrent_scan__mha_block_cached__dense_activation_squared_relu__decode_kernel"

EP = 0
QP = 0x10000
HP = 0x60000
OP = 0xA0000
ML = 0xE0000
CNT = 0xF0000
SP = 0x100000
GP = 0x200000
TS = 0x300000
WS_BYTES = 0x500000
L_Q = 0x000
L_FC = 0x200
L_FB = 0x204
L_WANT = 0x208
L_FQ = 0x20c
L_MLW = 0x240
L_MB = 0x280
L_OW = 0x400
L_HT = 0xC00
L_PRIV = 0x1000
L_RED = 0x2000
LDS_BYTES = 0x2800

TAGB = 10
TAGM = (1 << TAGB) - 1
VALM = (~TAGM) & 0xffffffff
OOB = 0x40000000
LOG2E = 0x3fb8aa3b
SCALE = 0x3db504f3
SPIN = 1 << 17

def gen(D=6, A_=2, gss=((8, 4), (8, 2), (16, 1)), req_at=1, stamps=False, nt=True, sleep=1, bar0=True, tlog=False, noatom=False, ntk=None, tstep=False, static_tail=False, kpat=True, ahead2=True, prefetch=True, pstamps=False, fillq=None, latew1=True, wmode='flagC', rot=1, fast=True, ntk_end=None, diag='', split=None, nomask=True, warm=True, tlb=False, outsc1=False):
    A = Asm()
    e = A
    NT = " nt" if nt else ""
    nstamp = [0]
    def stamp(k):
        if stamps and (not pstamps or k == 0):
            e(f"s_memrealtime s[{64+2*k}:{65+2*k}]")
    def pst(k):
        if stamps and pstamps:
            e(f"s_memrealtime s[{64+2*k}:{65+2*k}]")
    def dump_stamps(nk):
        if not stamps: return
        e("s_waitcnt lgkmcnt(0)")
        e("s_lshl_b32 s6, s2, 3")
        e("s_add_u32 s6, s6, s5")
        e("s_lshl_b32 s6, s6, 7")
        e(f"s_add_u32 s6, s6, {TS}")
        e("s_mov_b64 exec, 1")
        e("v_mov_b32 v1, 0")
        e(f"s_mov_b32 s60, s32\ns_mov_b32 s61, s33\ns_mov_b32 s62, {WS_BYTES}\ns_mov_b32 s63, 0x20000")
        for k in range(nk):
            e(f"v_mov_b32 v2, s{64+2*k}")
            e(f"buffer_store_dword v2, v1, s[60:63], s6 offen offset:{4*k}")
        e("s_mov_b64 exec, -1")

    A.raw("; @launch grid=(256,1,1) block=(512,1,1) lds=%d" % LDS_BYTES)
    A.raw('.amdgcn_target "amdgcn-amd-amdhsa--gfx950"')
    A.raw(".text")
    A.raw(f".globl {NAME}")
    A.raw(".p2align 8")
    A.raw(f".type {NAME},@function")
    A.label(NAME)
    e("s_cmp_ge_u32 s2, 256")
    e("s_cbranch_scc1 L_end")
    e("s_load_dwordx16 s[8:23], s[0:1], 0")
    e("s_load_dwordx8 s[24:31], s[0:1], 64")
    e("s_load_dwordx2 s[32:33], s[0:1], 96")
    stamp(0)
    e("v_lshrrev_b32 v1, 6, v0")
    e("v_and_b32 v0, 63, v0")
    e("v_readfirstlane_b32 s3, v1")
    e("s_lshr_b32 s34, s2, 3")
    e("s_and_b32 s35, s2, 7")
    e("s_mov_b32 s5, s3")
    if prefetch:
        e("s_cmp_eq_u32 s3, 3")
        e("s_cbranch_scc0 L_nopf")
        e("s_getpc_b64 s[60:61]")
        A.label("L_pc")
        e(f"s_sub_u32 s60, s60, L_pc-{NAME}")
        e("s_subb_u32 s61, s61, 0")
        e("s_and_b32 s61, s61, 0xffff")
        e(f"s_mov_b32 s62, L_codeend-{NAME}")
        e("s_mov_b32 s63, 0x20000")
        e("s_and_b32 s36, s34, 3")
        e("s_mul_i32 s36, s36, 5120")
        e("v_lshlrev_b32 v13, 4, v0")
        for k in range(4):
            e(f"buffer_load_dwordx4 v[40:43], v13, s[60:63], s36 offen offset:{1024*k}")
        e("s_add_u32 s36, s36, 4096")
        e(f"buffer_load_dwordx4 v[40:43], v13, s[60:63], s36 offen")
        A.label("L_nopf")
    e("s_cmp_ge_u32 s3, 4")
    e("s_cbranch_scc1 L_stream")
    def masks(t1=1, t2=2):
        e(f"v_and_b32 v{t1}, 1, v0")
        e(f"v_lshlrev_b32 v{t1}, 4, v{t1}")
        e(f"v_mov_b32 v{t2}, 0xffff")
        e(f"v_lshlrev_b32 v{t1}, v{t1}, v{t2}")
        e(f"v_bfe_u32 v{t2}, v0, 1, 2")
        for j in range(4):
            e(f"v_cmp_eq_u32 vcc, {j}, v{t2}")
            e(f"v_cndmask_b32 v{6+j}, 0, v{t1}, vcc")
    MARK_STREAM0 = len(A.items)

    A.label("L_stream")
    e("s_sub_u32 s3, s3, 4")
    e("s_and_b32 s37, s3, 1")
    e("s_lshl_b32 s36, s37, 5")
    e("s_add_u32 s36, s36, s34")
    e("s_lshl_b32 s36, s36, 20")
    e("s_waitcnt lgkmcnt(0)")
    e("s_add_u32 s48, s10, s36\ns_addc_u32 s49, s11, 0\ns_and_b32 s49, s49, 0xffff\ns_mov_b32 s50, 0x100000\ns_mov_b32 s51, 0x20000")
    e("s_add_u32 s52, s12, s36\ns_addc_u32 s53, s13, 0\ns_and_b32 s53, s53, 0xffff\ns_mov_b32 s54, 0x100000\ns_mov_b32 s55, 0x20000")
    e("s_lshr_b32 s39, s3, 1")
    STRIDE = 16 if kpat else 2
    e(f"s_lshl_b32 s80, s35, {1 if kpat else 4}")
    e("s_add_u32 s80, s80, s39")
    e("v_lshlrev_b32 v1, 4, v0")
    def chunk_off():
        if rot and kpat:
            e("s_lshr_b32 s84, s80, 4")
            if rot != 1: e(f"s_mul_i32 s84, s84, {rot}")
            e("s_lshl_b32 s84, s84, 1")
            e("s_add_u32 s84, s84, s80")
            e("s_and_b32 s84, s84, 15")
            e("s_andn2_b32 s85, s80, 15")
            e("s_or_b32 s84, s84, s85")
            e("s_lshl_b32 s38, s84, 12")
        else:
            e("s_lshl_b32 s38, s80, 12")
    KR = lambda s, t: 40 + 16 * s + 4 * t
    VR = lambda s, t: 16 * s + 4 * t
    def loadK(s):
        for t in range(4):
            r = KR(s, t)
            e(f"buffer_load_dwordx4 v[{r}:{r+3}], v1, s[48:51], s38 offen offset:{1024*t}{NT}")
    def loadV(s):
        for t in range(4):
            r = VR(s, t)
            e(f"buffer_load_dwordx4 a[{r}:{r+3}], v1, s[52:55], s38 offen offset:{1024*t}{NT}")
    if tlog or tstep:
        e("s_mov_b32 s87, 0")
        e("v_mov_b32 v33, -1")
        e("v_mov_b32 v34, -1")
    if bar0: e("s_barrier")
    for c in range(D):
        if tlog:
            e("s_mov_b32 m0, s87")
            e("v_writelane_b32 v33, s80, m0")
            e("s_add_u32 s87, s87, 1")
        chunk_off()
        e(f"s_add_u32 s80, s80, {STRIDE}")
        if fillq is None:
            loadK(c); loadV(c)
        else:
            for half in range(2):
                if c * 8 + half * 4 + 4 > fillq:
                    e(f"s_waitcnt vmcnt({max(fillq - 4, 0)})")
                (loadK if half == 0 else loadV)(c)
    stamp(1)
    masks(20, 21)
    e(f"s_mov_b32 s81, {8 - D}")
    e("s_mov_b32 s82, 0")
    e("s_mov_b32 s83, 8")
    for r in range(4): e(f"v_mov_b32 v{10+r}, 0")
    e("v_mov_b32 v14, 0xff800000")
    e("v_mov_b32 v15, 0")
    e("v_and_b32 v16, 15, v0")
    e("v_lshlrev_b32 v16, 4, v16")
    e("s_lshl_b32 s40, s37, 8")
    e("v_add_u32 v16, s40, v16")
    e("s_mov_b32 s86, 0")
    e("s_mov_b32 s88, 0x400000")
    e(f"s_mov_b32 s40, 0x{SCALE:x}")
    e(f"s_mov_b32 s41, 0x{LOG2E:x}")
    e(f"v_mov_b32 v36, {L_WANT}")
    e(f"v_mov_b32 v20, {L_FQ}")
    A.label("L_qspin")
    e("ds_read_b32 v21, v20")
    e("s_waitcnt lgkmcnt(0)")
    e("v_readfirstlane_b32 s90, v21")
    e("s_cmp_lg_u32 s90, 0")
    e("s_cbranch_scc1 L_qgo")
    e("s_sleep 1")
    e("s_sub_u32 s88, s88, 1")
    e("s_cmp_lg_u32 s88, 0")
    e("s_cbranch_scc1 L_qspin")
    A.label("L_qgo")
    e(f"ds_read_b128 v[2:5], v16 offset:{L_Q}")
    e("s_waitcnt lgkmcnt(0)")
    stamp(2)
    NKV = 8 * (D - 1)
    NTK = 12 if ntk is None else ntk
    A.label("L_sloop")
    for s in range(D):
        e("s_cmp_eq_u32 s86, 0")
        e(f"s_cbranch_scc1 L_nw{s}")
        e("s_cmp_eq_u32 s89, 0")
        e("s_cbranch_scc1 L_sdone")
        e("s_sub_u32 s89, s89, 1")
        e("s_cmp_ge_u32 s89, 2")
        e(f"s_cbranch_scc1 L_dw{s}")
        e("s_cmp_eq_u32 s89, 1")
        e(f"s_cbranch_scc1 L_w8{s}")
        e("s_waitcnt vmcnt(0)")
        e(f"s_branch L_go{s}")
        A.label(f"L_w8{s}")
        e("s_waitcnt vmcnt(8)")
        e(f"s_branch L_go{s}")
        A.label(f"L_dw{s}")
        e("s_waitcnt vmcnt(16)")
        e(f"s_branch L_go{s}")
        A.label(f"L_nw{s}")
        e(f"s_waitcnt vmcnt({NKV})")
        A.label(f"L_go{s}")
        if tstep:
            e("s_memrealtime s[90:91]")
            e("s_waitcnt lgkmcnt(0)")
            e("s_mov_b32 m0, s87")
            e("v_writelane_b32 v33, s90, m0")
            e("s_add_u32 s87, s87, 1")
        if tlog:
            e("s_mov_b32 m0, s87")
            e(f"v_writelane_b32 v33, s{64+s}, m0") if False else None
        for jj in range(4):
            for t in range(4):
                k = KR(s, t) + jj
                if jj == 0: e(f"v_dot2_f32_bf16 v{16+t}, v{k}, v2, 0")
                else: e(f"v_dot2c_f32_bf16 v{16+t}, v{k}, v{2+jj}")
        e("v_add_f32_dpp v20, v16, v16 row_ror:8 row_mask:0xf bank_mask:0x3")
        e("v_add_f32_dpp v21, v18, v18 row_ror:8 row_mask:0xf bank_mask:0x3")
        e("v_add_f32_dpp v20, v17, v17 row_ror:8 row_mask:0xf bank_mask:0xc")
        e("v_add_f32_dpp v21, v19, v19 row_ror:8 row_mask:0xf bank_mask:0xc")
        e("v_add_f32_dpp v22, v20, v20 row_shl:4 row_mask:0xf bank_mask:0x5")
        e("v_add_f32_dpp v22, v21, v21 row_shr:4 row_mask:0xf bank_mask:0xa")
        e("v_add_f32_dpp v22, v22, v22 quad_perm:[1,0,3,2] row_mask:0xf bank_mask:0xf")
        e("v_add_f32_dpp v22, v22, v22 quad_perm:[2,3,0,1] row_mask:0xf bank_mask:0xf")
        e("v_cvt_pk_bf16_f32 v23, v22, v22")
        e("v_and_b32 v23, 0xffff0000, v23")
        e("v_mul_f32 v23, s40, v23")
        e("v_cvt_pk_bf16_f32 v23, v23, v23")
        e("v_and_b32 v23, 0xffff0000, v23")
        if fast:
            e("v_cmp_lt_f32 vcc, v14, v23")
            e("s_cmp_lg_u64 vcc, 0")
            e(f"s_cbranch_scc0 L_nomax{s}")
            e("v_max_f32_dpp v24, v23, v23 row_ror:4 row_mask:0xf bank_mask:0xf")
            e("v_max_f32_dpp v24, v24, v24 row_ror:8 row_mask:0xf bank_mask:0xf")
            e("v_mov_b32 v25, v24")
            e("v_permlane16_swap_b32 v24, v25")
            e("v_max_f32 v24, v24, v25")
            e("v_mov_b32 v25, v24")
            e("v_permlane32_swap_b32 v24, v25")
            e("v_max3_f32 v24, v24, v25, v14")
            e("v_sub_f32 v25, v14, v24")
            e("v_mul_f32 v25, s41, v25")
            e("v_exp_f32 v25, v25")
            e("v_mov_b32 v14, v24")
            e("v_mul_f32 v15, v15, v25")
            for r in range(4): e(f"v_mul_f32 v{10+r}, v{10+r}, v25")
            A.label(f"L_nomax{s}")
            e("v_sub_f32 v26, v23, v14")
            e("v_mul_f32 v26, s41, v26")
            e("v_exp_f32 v26, v26")
            e("v_cvt_pk_bf16_f32 v27, v26, v26")
            e("v_add_f32 v15, v15, v26")
            bank_lane = [0, 8, 4, 12]
            def bb(t):
                B = 28 if (t & 1) == 0 else 16
                for jj in range(4):
                    e(f"v_and_b32_dpp v{B+jj}, v27, v{6+jj} row_newbcast:{bank_lane[t]} row_mask:0xf bank_mask:0xf")
            def mm(t):
                B = 28 if (t & 1) == 0 else 16
                r = VR(s, t)
                e(f"v_mfma_f32_16x16x32_bf16 v[10:13], a[{r}:{r+3}], v[{B}:{B+3}], v[10:13]")
            bb(0); bb(1); mm(0); bb(2); mm(1); bb(3); mm(2); mm(3)
        else:
            e("v_max_f32_dpp v24, v23, v23 row_ror:4 row_mask:0xf bank_mask:0xf")
            e("v_max_f32_dpp v24, v24, v24 row_ror:8 row_mask:0xf bank_mask:0xf")
            e("v_mov_b32 v25, v24")
            e("v_permlane16_swap_b32 v24, v25")
            e("v_max_f32 v24, v24, v25")
            e("v_mov_b32 v25, v24")
            e("v_permlane32_swap_b32 v24, v25")
            e("v_max3_f32 v24, v24, v25, v14")
            e("v_sub_f32 v25, v14, v24")
            e("v_sub_f32 v26, v23, v24")
            e("v_mul_f32 v25, s41, v25")
            e("v_mul_f32 v26, s41, v26")
            e("v_exp_f32 v25, v25")
            e("v_exp_f32 v26, v26")
            e("v_mov_b32 v14, v24")
            e("v_fma_f32 v15, v15, v25, v26")
            e("v_cvt_pk_bf16_f32 v27, v26, v26")
            for r in range(4): e(f"v_mul_f32 v{10+r}, v{10+r}, v25")
            bank_lane = [0, 8, 4, 12]
            for t in range(4):
                B = 28 if (t & 1) == 0 else 16
                for jj in range(4):
                    e(f"v_and_b32_dpp v{B+jj}, v27, v{6+jj} row_newbcast:{bank_lane[t]} row_mask:0xf bank_mask:0xf")
                r = VR(s, t)
                e(f"v_mfma_f32_16x16x32_bf16 v[10:13], a[{r}:{r+3}], v[{B}:{B+3}], v[10:13]")
        if tstep:
            e("s_memrealtime s[90:91]")
            e("s_waitcnt lgkmcnt(0)")
            e("v_writelane_b32 v34, s90, m0")
        e("s_cmp_lg_u32 s86, 0")
        e(f"s_cbranch_scc1 L_nx{s}")
        if ntk_end is not None:
            e("s_cmp_eq_u32 s83, 1")
            e(f"s_cbranch_scc1 L_ne{s}")
            e(f"s_waitcnt vmcnt({NTK})")
            A.label(f"L_ne{s}")
            e(f"s_waitcnt vmcnt({ntk_end})")
        else:
            e(f"s_waitcnt vmcnt({NTK})")
        e("s_cmp_lg_u32 s81, 0")
        e(f"s_cbranch_scc1 L_have{s}")
        if static_tail:
            e("s_cmp_lg_u32 s82, 0")
            e(f"s_cbranch_scc1 L_drain{s}")
            e(f"s_lshl_b32 s90, s35, {1 if kpat else 4}")
            e("s_add_u32 s90, s90, 128")
            e("s_or_b32 s90, s90, 0x80000")
        else:
            e("s_lshl_b32 s90, s82, 2")
            e(f"s_add_u32 s90, s90, {L_MB}")
            e("v_mov_b32 v20, s90")
            A.label(f"L_mb{s}")
            e("ds_read_b32 v21, v20")
            e("s_waitcnt lgkmcnt(0)")
            e("v_readfirstlane_b32 s90, v21")
            e("s_cmp_lg_u32 s90, -1")
            e(f"s_cbranch_scc1 L_got{s}")
            e("s_sub_u32 s88, s88, 1")
            e("s_cmp_lg_u32 s88, 0")
            e(f"s_cbranch_scc1 L_mb{s}")
            e("s_mov_b32 s90, 256")
            A.label(f"L_got{s}")
        e("s_add_u32 s82, s82, 1")
        e("s_and_b32 s80, s90, 0xffff")
        e("s_lshr_b32 s81, s90, 16")
        e("s_mov_b32 s83, s81")
        e("s_cmp_lt_u32 s80, 256")
        e("s_addc_u32 s80, s80, 0") if False else None
        e(f"s_cbranch_scc1 L_ok{s}")
        A.label(f"L_drain{s}")
        e("s_mov_b32 s86, 1")
        e(f"s_mov_b32 s89, {D-1}")
        e("s_mov_b64 exec, 1")
        e(f"v_mov_b32 v20, {L_FC}")
        e("v_mov_b32 v21, 1")
        e("ds_add_u32 v20, v21")
        e("s_mov_b64 exec, -1")
        stamp(3)
        e(f"s_branch L_nx{s}")
        A.label(f"L_ok{s}")
        e("s_add_u32 s80, s80, s39")
        A.label(f"L_have{s}")
        chunk_off()
        e(f"s_add_u32 s80, s80, {STRIDE}")
        e("s_sub_u32 s81, s81, 1")
        if tlog:
            e("s_lshr_b32 s90, s38, 12")
            e("s_mov_b32 m0, s87")
            e("v_writelane_b32 v33, s90, m0")
            e("s_add_u32 s87, s87, 1")
        loadK(s)
        if not static_tail:
            e(f"s_cmp_le_u32 s81, {req_at}")
            e(f"s_cbranch_scc0 L_nr{s}")
            e("s_add_u32 s90, s82, 1")
            if ahead2:
                e("s_cmp_eq_u32 s83, 1")
                e("s_addc_u32 s90, s90, 0")
            e("s_mov_b64 exec, 1")
            e("v_mov_b32 v21, s90")
            e("ds_max_u32 v36, v21")
            e("s_mov_b64 exec, -1")
            A.label(f"L_nr{s}")
        if split is not None: e(f"s_waitcnt vmcnt({split})")
        loadV(s)
        A.label(f"L_nx{s}")
        if s == D - 1:
            e("s_branch L_sloop")
    A.label("L_sdone")
    stamp(4)
    e("v_add_f32_dpp v15, v15, v15 row_ror:4 row_mask:0xf bank_mask:0xf")
    e("v_add_f32_dpp v15, v15, v15 row_ror:8 row_mask:0xf bank_mask:0xf")
    e("v_mov_b32 v25, v15")
    e("v_permlane16_swap_b32 v15, v25")
    e("v_add_f32 v15, v15, v25")
    e("v_mov_b32 v25, v15")
    e("v_permlane32_swap_b32 v15, v25")
    e("v_add_f32 v15, v15, v25")
    e("v_lshrrev_b32 v16, 4, v0")
    e("v_lshlrev_b32 v16, 7, v16")
    e("v_and_b32 v17, 7, v0")
    e("v_lshl_add_u32 v16, v17, 2, v16")
    e("s_lshl_b32 s37, s3, 9")
    e("v_add_u32 v16, s37, v16")
    for r in range(4):
        e(f"ds_write_b32 v16, v{10+r} offset:{L_OW + 32*r}")
    e("s_lshl_b32 s37, s3, 3")
    e("v_mov_b32 v17, s37")
    e(f"ds_write_b64 v17, v[14:15] offset:{L_MLW}")
    e("s_waitcnt lgkmcnt(0)")
    e("s_mov_b64 exec, 1")
    e(f"v_mov_b32 v28, {L_FB}")
    e("v_mov_b32 v29, 1")
    e("ds_add_u32 v28, v29")
    e("s_mov_b64 exec, -1")
    stamp(5)
    if tlog or tstep:
        e("s_lshl_b32 s6, s2, 3\ns_add_u32 s6, s6, s5\ns_lshl_b32 s6, s6, 8")
        e(f"s_add_u32 s6, s6, {TS + 0x80000}")
        e(f"s_mov_b32 s60, s32\ns_mov_b32 s61, s33\ns_mov_b32 s62, {WS_BYTES}\ns_mov_b32 s63, 0x20000")
        e("v_lshlrev_b32 v1, 2, v0")
        e("buffer_store_dword v33, v1, s[60:63], s6 offen")
        e(f"s_add_u32 s6, s6, 0x80000")
        e("buffer_store_dword v34, v1, s[60:63], s6 offen")
    dump_stamps(6)
    e("s_endpgm")

    MARK_STREAM1 = len(A.items)
    A.label("L_aux")
    e("s_setprio 3")
    e(f"s_mov_b32 s100, {SPIN}")
    e("s_mov_b32 s101, 0")
    e("v_lshrrev_b32 v10, 4, v0")
    e("v_bfe_u32 v11, v0, 3, 1")
    e("v_and_b32 v12, 15, v0")
    e("s_cmp_ge_u32 s3, 2")
    e("s_cbranch_scc1 L_aux23")
    e("s_cmp_eq_u32 s3, 1")
    e("s_cbranch_scc1 L_p1")
    e("s_mul_i32 s36, s35, 72")
    e("s_mov_b32 s37, 18")
    e("s_mov_b32 s38, 8192")
    e("s_lshl_b32 s39, s34, 8")
    e("s_mul_i32 s40, s36, 8192")
    e("s_add_u32 s39, s39, s40")
    e("s_sub_u32 s54, 4718592, s39")
    e("s_mov_b32 s41, 99")
    e("s_mov_b32 s42, 1")
    e("s_mov_b32 s43, 14")
    e("s_branch L_p2")
    A.label("L_p1")
    e("s_mul_hi_u32 s43, s2, 0x71c71c8")
    e("s_mul_i32 s44, s43, 36")
    e("s_sub_u32 s44, s2, s44")
    e("s_mul_i32 s36, s43, 82")
    e("s_cmp_eq_u32 s43, 0")
    e("s_cselect_b32 s40, 0, 2")
    e("s_cselect_b32 s41, 99, 3")
    e("s_add_u32 s36, s36, s40")
    e("s_mov_b32 s37, 22")
    e("s_mov_b32 s38, 9216")
    e("s_lshl_b32 s39, s44, 8")
    e("s_mul_i32 s40, s36, 9216")
    e("s_add_u32 s39, s39, s40")
    e("s_sub_u32 s54, 5308416, s39")
    e("s_mov_b32 s42, 0")
    e("s_cmp_ge_u32 s2, 252")
    e("s_cselect_b32 s54, 0, s54")
    A.label("L_p2")
    e("v_lshrrev_b32 v13, 5, v0")
    e("v_mul_u32_u24 v13, 1152, v13")
    e("v_and_b32 v14, 31, v0")
    e("v_mad_u32_u24 v13, v14, 36, v13")
    e("v_mul_lo_u32 v14, v10, s37")
    e("v_add_u32 v15, s36, v14")
    e("v_lshlrev_b32 v15, 1, v15")
    e("v_mul_u32_u24 v16, 1152, v11")
    e("v_add_u32 v15, v15, v16")
    e("v_mul_lo_u32 v16, v14, s38")
    e("v_lshl_add_u32 v16, v12, 4, v16")
    e(f"v_mov_b32 v19, {OOB}")
    e("v_cmp_eq_u32 vcc, s41, v10")
    e("v_cndmask_b32 v17, v16, v19, vcc")
    e("v_cmp_eq_u32 vcc, 3, v10")
    e("v_cndmask_b32 v18, v16, v19, vcc")
    e("s_cmp_eq_u32 s42, 1")
    e("s_cselect_b64 vcc, -1, 0")
    e("v_cndmask_b32 v18, v18, v19, vcc")
    if 'now1' in diag: e("s_mov_b32 s54, 0")
    e("s_mov_b32 s62, 2304\ns_mov_b32 s63, 0x20000\ns_mov_b32 s55, 0x20000")
    pst(1)
    e("s_waitcnt lgkmcnt(0)")
    pst(2)
    e("s_mov_b32 s60, s8\ns_and_b32 s61, s9, 0xffff")
    e("buffer_load_dwordx4 v[20:23], v13, s[60:63], 0 offen")
    e("buffer_load_dwordx4 v[24:27], v13, s[60:63], 0 offen offset:16")
    e("buffer_load_dword v28, v13, s[60:63], 0 offen offset:32")
    e("buffer_load_dwordx4 v[30:33], v15, s[60:63], 0 offen")
    e("buffer_load_dwordx4 v[34:37], v15, s[60:63], 0 offen offset:16")
    e("buffer_load_dwordx3 v[38:40], v15, s[60:63], 0 offen offset:32")
    e("s_cmp_eq_u32 s3, 1")
    e("s_cselect_b32 s52, s20, s14")
    e("s_cselect_b32 s53, s21, s15")
    e("s_add_u32 s52, s52, s39\ns_addc_u32 s53, s53, 0\ns_and_b32 s53, s53, 0xffff")
    def wloads():
        e("s_mov_b32 s45, 0")
        for t in range(22):
            vo = 16 if t < 16 else (17 if t < 18 else 18)
            e(f"buffer_load_dwordx4 a[{4*t}:{4*t+3}], v{vo}, s[52:55], s45 offen{NT}")
            if t < 21: e("s_add_u32 s45, s45, s38")
    if latew1:
        e("s_cmp_eq_u32 s3, 1")
        e("s_cbranch_scc1 L_now")
    wloads()
    if latew1: A.label("L_now")
    pst(3)
    if bar0: e("s_barrier")
    pst(4)
    stamp(1)
    e("s_load_dwordx2 s[46:47], s[32:33], 0")
    e(f"s_mov_b32 s48, s32\ns_and_b32 s49, s33, 0xffff\ns_mov_b32 s50, {WS_BYTES}\ns_mov_b32 s51, 0x20000")
    masks()
    e("v_lshlrev_b32 v41, 2, v0")
    e("v_mov_b32 v42, 0")
    e("s_lshl_b32 s40, s34, 8")
    e(f"s_add_u32 s40, s40, {CNT}")
    e("s_add_u32 s56, s32, s40\ns_addc_u32 s57, s33, 0\ns_and_b32 s57, s57, 0xffff\ns_mov_b32 s59, 0x20000")
    e("s_or_b32 s40, s35, s3")
    e("s_cmp_eq_u32 s40, 0")
    e("s_cselect_b32 s58, 4, 0")
    e("buffer_store_dword v42, v41, s[56:59], 0 offen sc1")
    pst(5)
    if latew1:
        e("s_cmp_eq_u32 s3, 1")
        e("s_cbranch_scc0 L_xw0")
        e("s_waitcnt vmcnt(0)")
        A.label("L_xw0")
    e("s_waitcnt vmcnt(25)")
    pst(6)
    F = 44
    for k in range(9):
        e(f"v_lshlrev_b32 v{F+2*k}, 16, v{20+k}")
        e(f"v_and_b32 v{F+2*k+1}, 0xffff0000, v{20+k}")
    e(f"v_pk_add_f32 v[62:63], v[{F}:{F+1}], v[{F+2}:{F+3}]")
    for k in range(2, 9):
        e(f"v_pk_add_f32 v[62:63], v[62:63], v[{F+2*k}:{F+2*k+1}]")
    e("v_add_f32 v62, v62, v63")
    def red32(r, tmp):
        for sh in (8, 4, 2, 1):
            e(f"v_add_f32_dpp v{r}, v{r}, v{r} row_ror:{sh} row_mask:0xf bank_mask:0xf")
        e(f"v_mov_b32 v{tmp}, v{r}")
        e(f"v_permlane16_swap_b32 v{r}, v{tmp}")
        e(f"v_add_f32 v{r}, v{r}, v{tmp}")
    red32(62, 63)
    e("v_mul_f32 v62, 0x3ae38e39, v62")
    e("v_mov_b32 v63, v62")
    for k in range(9):
        e(f"v_pk_add_f32 v[{F+2*k}:{F+2*k+1}], v[{F+2*k}:{F+2*k+1}], v[62:63] neg_lo:[0,1] neg_hi:[0,1]")
    e(f"v_pk_mul_f32 v[64:65], v[{F}:{F+1}], v[{F}:{F+1}]")
    for k in range(1, 9):
        e(f"v_pk_fma_f32 v[64:65], v[{F+2*k}:{F+2*k+1}], v[{F+2*k}:{F+2*k+1}], v[64:65]")
    e("v_add_f32 v64, v64, v65")
    red32(64, 65)
    e("v_mul_f32 v64, 0x3ae38e39, v64")
    e("v_cvt_pk_bf16_f32 v62, v62, v62")
    e("v_and_b32 v62, 0xffff0000, v62")
    e("v_cvt_pk_bf16_f32 v64, v64, v64")
    e("v_and_b32 v64, 0xffff0000, v64")
    e("v_add_f32 v64, 0x3727c5ac, v64")
    e("v_cvt_pk_bf16_f32 v64, v64, v64")
    e("v_and_b32 v64, 0xffff0000, v64")
    e("v_sqrt_f32 v64, v64")
    e("v_cvt_pk_bf16_f32 v64, v64, v64")
    e("v_and_b32 v64, 0xffff0000, v64")
    e("v_rcp_f32 v64, v64")
    e("v_readlane_b32 s56, v62, 0")
    e("v_readlane_b32 s57, v62, 32")
    e("v_readlane_b32 s58, v64, 0")
    e("v_readlane_b32 s59, v64, 32")
    e("v_cmp_eq_u32 vcc, 1, v11")
    e("v_mov_b32 v62, s56")
    e("v_mov_b32 v63, s57")
    e("v_cndmask_b32 v62, v62, v63, vcc")
    e("v_mov_b32 v64, s58")
    e("v_mov_b32 v65, s59")
    e("v_cndmask_b32 v64, v64, v65, vcc")
    e("v_mov_b32 v63, v62")
    e("v_mov_b32 v65, v64")
    pst(7)
    e("s_waitcnt vmcnt(22)")
    pst(8)
    for k in range(11):
        x = 30 + k
        e(f"v_lshlrev_b32 v66, 16, v{x}")
        e(f"v_and_b32 v67, 0xffff0000, v{x}")
        e("v_pk_add_f32 v[66:67], v[66:67], v[62:63] neg_lo:[0,1] neg_hi:[0,1]")
        e("v_cvt_pk_bf16_f32 v68, v66, v67")
        e("v_lshlrev_b32 v66, 16, v68")
        e("v_and_b32 v67, 0xffff0000, v68")
        e("v_pk_mul_f32 v[66:67], v[66:67], v[64:65]")
        e(f"v_cvt_pk_bf16_f32 v{x}, v66, v67")
    stamp(2)
    pst(9)
    if latew1:
        e("s_cmp_eq_u32 s3, 1")
        e("s_cbranch_scc0 L_now2")
        wloads()
        A.label("L_now2")
    e("s_mov_b32 s56, 0x01000100")
    e("s_mov_b32 s57, 0x03020302")
    for r in range(4): e(f"v_mov_b32 v{70+r}, 0")
    for t in range(22):
        B = 76 + 4 * (t & 1)
        e(f"v_perm_b32 v74, v{30 + t//2}, v{30 + t//2}, s{56 + (t & 1)}")
        for jj in range(4):
            e(f"v_and_b32 v{B+jj}, v74, v{6+jj}")
        e(f"s_waitcnt vmcnt({21 - t})")
        e(f"v_mfma_f32_16x16x32_bf16 v[70:73], a[{4*t}:{4*t+3}], v[{B}:{B+3}], v[70:73]")
    stamp(3)
    pst(10)
    def make_tags():
        e("s_waitcnt lgkmcnt(0)")
        e("s_add_u32 s46, s46, 0x7f4a7c15\ns_addc_u32 s47, s47, 0x9e3779b9")
        e(f"s_and_b32 s44, s46, {TAGM}")
        e("v_mov_b32 v2, s44")
        e(f"s_bfe_u32 s44, s46, 0x{(TAGB<<16)|TAGB:x}")
        e("v_mov_b32 v3, s44")
        e(f"s_bfe_u32 s44, s46, 0x{(TAGB<<16)|(2*TAGB):x}")
        e("v_mov_b32 v4, s44")
        e("s_lshr_b64 s[56:57], s[46:47], 30")
        e(f"s_and_b32 s44, s56, {TAGM}")
        e("v_mov_b32 v5, s44")
        e(f"s_mov_b32 s44, {TAGM}")
        e(f"s_mov_b32 s45, 0x{VALM:x}")
    def tagpack(dst, src):
        for r in range(4):
            e(f"v_bfi_b32 v{dst+r}, s44, v{2+r}, v{src+r}")
    def tagcheck(regs, tmp):
        first = True
        for base in regs:
            for r in range(4):
                if first:
                    e(f"v_xor_b32 v{tmp}, v{base+r}, v{2+r}"); first = False
                else:
                    e(f"v_bitop3_b32 v{tmp}, v{base+r}, v{2+r}, v{tmp} bitop3:0xbe")
        e(f"v_and_b32 v{tmp}, s44, v{tmp}")
        e(f"v_cmp_eq_u32 vcc, 0, v{tmp}")
    pollid = [0]
    def poll(issue, regs, tmp, cnt="s4", nosleep=False):
        n = pollid[0]; pollid[0] += 1
        e(f"s_mov_b32 {cnt}, s100")
        A.label(f"L_poll{n}")
        issue()
        e("s_waitcnt vmcnt(0)")
        tagcheck(regs, tmp)
        e("s_cmp_eq_u64 vcc, exec")
        e(f"s_cbranch_scc1 L_pdone{n}")
        if sleep and not nosleep: e(f"s_sleep {sleep}")
        e(f"s_sub_u32 {cnt}, {cnt}, 1")
        e(f"s_cmp_lg_u32 {cnt}, 0")
        e(f"s_cbranch_scc1 L_poll{n}")
        A.label(f"L_pdone{n}")
    def ldsspin(addr, target, nosleep=False):
        n = pollid[0]; pollid[0] += 1
        e(f"s_mov_b32 s4, {SPIN}")
        e(f"v_mov_b32 v20, {addr}")
        A.label(f"L_poll{n}")
        e("ds_read_b32 v21, v20")
        e("s_waitcnt lgkmcnt(0)")
        e("v_readfirstlane_b32 s6, v21")
        e(f"s_cmp_ge_u32 s6, {target}")
        e(f"s_cbranch_scc1 L_pdone{n}")
        if sleep and not nosleep: e(f"s_sleep {sleep}")
        e("s_sub_u32 s4, s4, 1")
        e("s_cmp_lg_u32 s4, 0")
        e(f"s_cbranch_scc1 L_poll{n}")
        A.label(f"L_pdone{n}")

    def dispatcher():
        if static_tail: return
        e("s_cmp_eq_u32 s3, 0")
        e("s_cbranch_scc0 L_nodisp")
        e("s_lshl_b32 s94, s34, 8")
        e(f"s_add_u32 s94, s94, {CNT}")
        e("s_add_u32 s56, s32, s94\ns_addc_u32 s57, s33, 0\ns_and_b32 s57, s57, 0xffff\ns_mov_b32 s58, 4\ns_mov_b32 s59, 0x20000")
        e("v_mov_b32 v13, 0")
        e(f"v_mov_b32 v14, {L_WANT}")
        e("s_mov_b32 s90, 0")
        e(f"s_mov_b32 s4, {SPIN * 8}")
        e("s_mov_b64 exec, 1")
        A.label("L_dloop")
        e("ds_read_b32 v15, v14")
        e("s_waitcnt lgkmcnt(0)")
        e("v_readfirstlane_b32 s91, v15")
        e("s_cmp_gt_u32 s91, s90")
        e("s_cbranch_scc1 L_dget")
        e("s_sleep 1")
        e("s_sub_u32 s4, s4, 1")
        e("s_cmp_lg_u32 s4, 0")
        e("s_cbranch_scc1 L_dloop")
        e("s_mov_b32 s92, 256")
        e("s_branch L_dput")
        A.label("L_dget")
        e("v_mov_b32 v15, 1")
        e("buffer_atomic_add v15, v13, s[56:59], 0 offen sc0 sc1")
        e("s_waitcnt vmcnt(0)")
        e("v_readfirstlane_b32 s91, v15")
        e("s_mov_b32 s92, 256")
        k0, st0 = 0, 128
        for gi, (cnt, nper) in enumerate(gss):
            e(f"s_sub_u32 s93, s91, {k0}")
            if kpat:
                assert cnt % 8 == 0
                e("s_and_b32 s94, s93, 7")
                e("s_lshl_b32 s94, s94, 1")
                e("s_lshr_b32 s95, s93, 3")
                e(f"s_mul_i32 s95, s95, {16*nper}")
                e("s_add_u32 s94, s94, s95")
                e(f"s_add_u32 s94, s94, {st0 + (nper << 16)}")
            else:
                e(f"s_mul_i32 s94, s93, {2*nper}")
                e(f"s_add_u32 s94, s94, {st0 + (nper << 16)}")
            e(f"s_cmp_lt_u32 s93, {cnt}")
            e("s_cselect_b32 s92, s94, s92")
            k0 += cnt; st0 += cnt * 2 * nper
        assert st0 == 256, st0
        A.label("L_dput")
        e("s_lshl_b32 s93, s90, 2")
        e(f"s_add_u32 s93, s93, {L_MB}")
        e("v_mov_b32 v15, s93")
        e("v_mov_b32 v16, s92")
        e("ds_write_b32 v15, v16")
        e("s_add_u32 s90, s90, 1")
        e("s_cmp_eq_u32 s92, 256")
        e("s_cbranch_scc0 L_dloop")
        e("s_waitcnt lgkmcnt(0)")
        e("s_mov_b64 exec, -1")
        A.label("L_nodisp")

    make_tags()
    e("s_cmp_eq_u32 s3, 1")
    e("s_cbranch_scc1 L_hpub")
    e("s_waitcnt vmcnt(0)")
    tagpack(74, 70)
    e("v_lshlrev_b32 v13, 4, v0")
    e("s_lshl_b32 s36, s2, 10")
    e(f"s_add_u32 s36, s36, {QP}")
    e("buffer_store_dwordx4 v[74:77], v13, s[48:51], s36 offen sc1")
    stamp(4)
    pst(11)
    e("v_lshlrev_b32 v13, 4, v0")
    e("s_lshl_b32 s36, s34, 13")
    e(f"s_add_u32 s36, s36, {QP}")
    e("s_add_u32 s37, s36, 4096")
    def issue_q():
        for k in range(8):
            e(f"buffer_load_dwordx4 v[{20+4*k}:{23+4*k}], v13, s[48:51], s{36 + k//4} offen offset:{1024*(k%4)} sc1")
    poll(issue_q, [20 + 4 * k for k in range(8)], 52)
    pst(12)
    for r in range(4):
        for k in range(8): e(f"v_and_b32 v{20+4*k+r}, s45, v{20+4*k+r}")
        for k in (0, 2, 4, 6): e(f"v_add_f32 v{20+4*k+r}, v{20+4*k+r}, v{24+4*k+r}")
        e(f"v_add_f32 v{20+r}, v{20+r}, v{28+r}")
        e(f"v_add_f32 v{36+r}, v{36+r}, v{44+r}")
        e(f"v_add_f32 v{20+r}, v{20+r}, v{36+r}")
    e("v_cvt_pk_bf16_f32 v24, v20, v21")
    e("v_cvt_pk_bf16_f32 v25, v22, v23")
    e("v_lshlrev_b32 v13, 8, v11")
    e("v_lshl_add_u32 v13, v10, 6, v13")
    e("v_and_b32 v14, 7, v0")
    e("v_lshl_add_u32 v13, v14, 1, v13")
    e(f"ds_write_b16 v13, v24 offset:{L_Q}")
    e(f"ds_write_b16_d16_hi v13, v24 offset:{L_Q+16}")
    e(f"ds_write_b16 v13, v25 offset:{L_Q+32}")
    e(f"ds_write_b16_d16_hi v13, v25 offset:{L_Q+48}")
    e("s_waitcnt lgkmcnt(0)")
    e(f"v_mov_b32 v13, {L_FQ}")
    e("v_mov_b32 v14, 1")
    e("ds_write_b32 v13, v14")
    stamp(5)
    pst(13)
    e("s_branch L_barA")
    A.label("L_hpub")
    e("s_cmp_ge_u32 s2, 252")
    e("s_cbranch_scc1 L_barA")
    e("v_lshlrev_b32 v13, 9, v11")
    e("v_lshl_add_u32 v13, v10, 7, v13")
    e("v_and_b32 v14, 7, v0")
    e("v_lshl_add_u32 v13, v14, 2, v13")
    for r in range(4):
        e(f"ds_write_b32 v13, v{70+r} offset:{L_HT + 32*r}")
    e("v_lshlrev_b32 v14, 4, v0")
    e("s_waitcnt lgkmcnt(0)")
    e(f"ds_read_b128 v[70:73], v14 offset:{L_HT}")
    e("v_lshrrev_b32 v13, 5, v0")
    e("v_mul_u32_u24 v13, 18432, v13")
    e("v_and_b32 v14, 31, v0")
    e("v_lshl_add_u32 v13, v14, 4, v13")
    e("s_mul_hi_u32 s43, s2, 0x71c71c8")
    e("s_mul_i32 s36, s43, 36")
    e("s_sub_u32 s36, s2, s36")
    e("s_lshl_b32 s36, s36, 9")
    e("s_mul_i32 s37, s43, 36864")
    e("s_add_u32 s36, s36, s37")
    e(f"s_add_u32 s36, s36, {HP}")
    e("s_waitcnt lgkmcnt(0)")
    tagpack(74, 70)
    e("buffer_store_dwordx4 v[74:77], v13, s[48:51], s36 offen sc1")
    stamp(4)
    e("s_branch L_barA")
    A.label("L_aux23")
    e("s_mov_b64 exec, 1")
    e(f"v_mov_b32 v13, {L_FC}")
    e("v_mov_b32 v14, 0")
    e("v_mov_b32 v15, 0")
    e("ds_write_b64 v13, v[14:15]")
    if 'noq' in diag: e("v_mov_b32 v15, 1")
    e("ds_write_b64 v13, v[14:15] offset:8")
    e("s_mov_b64 exec, -1")
    e("v_lshlrev_b32 v13, 2, v0")
    e("v_mov_b32 v14, -1")
    e(f"ds_write_b32 v13, v14 offset:{L_MB}")
    e("s_waitcnt lgkmcnt(0)")
    e("s_load_dwordx2 s[46:47], s[32:33], 0")
    e(f"s_mov_b32 s48, s32\ns_and_b32 s49, s33, 0xffff\ns_mov_b32 s50, {WS_BYTES}\ns_mov_b32 s51, 0x20000")
    if tlb:
        e("s_cmp_eq_u32 s3, 2")
        e("s_cbranch_scc0 L_notlb")
        e("v_lshlrev_b32 v13, 16, v0")
        e("s_cmp_lt_u32 s2, 16")
        e(f"s_cselect_b32 s50, 0x300000, 0")
        e("buffer_load_dword v120, v13, s[48:51], 0 offen")
        e(f"s_mov_b32 s50, {WS_BYTES}")
        e("s_lshr_b32 s36, s2, 1")
        e("v_lshlrev_b32 v14, 15, v0")
        e("s_mul_i32 s37, s36, 36864")
        e("s_add_u32 s60, s16, s37\ns_addc_u32 s61, s17, 0\ns_and_b32 s61, s61, 0xffff\ns_mov_b32 s62, 36864\ns_mov_b32 s63, 0x20000")
        e("buffer_load_dword v121, v14, s[60:63], 0 offen")
        e("s_mul_i32 s37, s36, 41472")
        e("s_add_u32 s60, s24, s37\ns_addc_u32 s61, s25, 0\ns_and_b32 s61, s61, 0xffff\ns_mov_b32 s62, 41472")
        e("buffer_load_dword v122, v14, s[60:63], 0 offen")
        e("s_mov_b32 s60, s28\ns_and_b32 s61, s29, 0xffff\ns_mov_b32 s62, 4")
        e("buffer_load_dword v123, v14, s[60:63], 0 offen")
        e("s_mov_b32 s60, s26\ns_and_b32 s61, s27, 0xffff")
        e("buffer_load_dword v124, v14, s[60:63], 0 offen")
        e("s_mov_b32 s60, s22\ns_and_b32 s61, s23, 0xffff")
        e("buffer_load_dword v125, v14, s[60:63], 0 offen")
        A.label("L_notlb")
    if bar0: e("s_barrier")
    masks()
    make_tags()
    A.label("L_barA")
    stamp(6)
    if wmode != 'early': dispatcher()
    if warm:
        e("s_cmp_eq_u32 s3, 1")
        e("s_cbranch_scc0 L_nodry1")
        e("s_cmp_lt_u32 s2, 36")
        e("s_cbranch_scc0 L_nodry1")
        e("s_mov_b32 s100, 1\ns_mov_b32 s101, 1\ns_mov_b32 s50, 0")
        e("s_branch L_red")
        A.label("L_drydone1")
        e(f"s_mov_b32 s100, {SPIN}\ns_mov_b32 s101, 0\ns_mov_b32 s50, {WS_BYTES}")
        A.label("L_nodry1")
    e("s_and_b32 s36, s35, 1")
    e("s_lshr_b32 s37, s2, 1")
    e("s_mov_b32 s40, 2\ns_mov_b32 s41, 0")
    e("s_cmp_ge_u32 s3, 2")
    e("s_cbranch_scc1 L_t23")
    e("s_mov_b32 s38, 0")
    e("s_lshl_b32 s39, s36, 1")
    e("s_add_u32 s39, s39, s3")
    e("s_branch L_tdone")
    A.label("L_t23")
    e("s_mov_b32 s38, 1")
    e("s_lshl_b32 s39, s36, 1")
    e("s_sub_u32 s39, s3, s39")
    e("s_cmp_eq_u32 s3, 2")
    e("s_cbranch_scc0 L_th2")
    e("s_mov_b32 s41, 4")
    e("s_xor_b32 s40, s36, 1")
    A.label("L_th2")
    e("s_mov_b64 exec, 0x3ffff")
    e("v_cmp_le_u32 vcc, 9, v0")
    e("v_cndmask_b32 v13, 0, 1, vcc")
    e("v_mul_u32_u24 v14, 9, v13")
    e("v_sub_u32 v14, v0, v14")
    e("v_mul_u32_u24 v15, 18432, v13")
    e("v_lshl_add_u32 v15, v14, 4, v15")
    e("s_mul_i32 s42, s37, 144")
    e(f"s_add_u32 s42, s42, {HP}")
    e("s_mov_b32 s60, s22\ns_and_b32 s61, s23, 0xffff\ns_mov_b32 s62, 9216\ns_mov_b32 s63, 0x20000")
    e("s_mul_i32 s43, s37, 72")
    e("v_lshlrev_b32 v16, 3, v14")
    e("buffer_load_dwordx2 v[18:19], v16, s[60:63], s43 offen")
    def issue_h():
        e("s_mov_b32 s43, s42")
        for k in range(7):
            e(f"buffer_load_dwordx4 v[{20+4*k}:{23+4*k}], v15, s[48:51], s43 offen sc1")
            if k < 6: e("s_add_u32 s43, s43, 36864")
    poll(issue_h, [20 + 4 * k for k in range(7)], 48)
    for r in range(4):
        for k in range(7): e(f"v_and_b32 v{20+4*k+r}, s45, v{20+4*k+r}")
        for k in range(1, 7): e(f"v_add_f32 v{20+r}, v{20+r}, v{20+4*k+r}")
    e("v_lshlrev_b32 v24, 16, v18\nv_and_b32 v25, 0xffff0000, v18\nv_lshlrev_b32 v26, 16, v19\nv_and_b32 v27, 0xffff0000, v19")
    for r in range(4):
        e(f"v_cvt_pk_bf16_f32 v{20+r}, v{20+r}, v{20+r}")
        e(f"v_and_b32 v{20+r}, 0xffff0000, v{20+r}")
        e(f"v_add_f32 v{20+r}, v{20+r}, v{24+r}")
        e(f"v_cvt_pk_bf16_f32 v{20+r}, v{20+r}, v{20+r}")
        e(f"v_and_b32 v{20+r}, 0xffff0000, v{20+r}")
        e(f"v_max_f32 v{20+r}, 0, v{20+r}")
        e(f"v_mul_f32 v{20+r}, v{20+r}, v{20+r}")
        e(f"v_cvt_pk_bf16_f32 v{20+r}, v{20+r}, v{20+r}")
    e("v_mul_u32_u24 v16, 144, v13")
    e("v_lshl_add_u32 v16, v14, 4, v16")
    e("s_lshl_b32 s43, s3, 10")
    e("v_add_u32 v16, s43, v16")
    e(f"ds_write_b128 v16, v[20:23] offset:{L_PRIV}")
    e("s_mov_b64 exec, -1")
    e("s_waitcnt lgkmcnt(0)")
    A.label("L_tdone")
    stamp(7)
    def task_srd(srd, typ, beta, voff):
        n = pollid[0]; pollid[0] += 1
        e(f"s_cmp_eq_u32 {typ}, 1")
        e(f"s_cbranch_scc1 L_sw2_{n}")
        e("s_mul_i32 s42, s37, 36864")
        e(f"s_lshl_b32 s43, {beta}, 8")
        e("s_add_u32 s42, s42, s43")
        e(f"s_add_u32 s{srd}, s16, s42\ns_addc_u32 s{srd+1}, s17, 0")
        e(f"s_sub_u32 s{srd+2}, 4718592, s42")
        e("s_mov_b32 s43, 9216")
        e(f"s_branch L_sd_{n}")
        A.label(f"L_sw2_{n}")
        e("s_mul_i32 s42, s37, 41472")
        e(f"s_lshl_b32 s43, {beta}, 8")
        e("s_add_u32 s42, s42, s43")
        e(f"s_add_u32 s{srd}, s24, s42\ns_addc_u32 s{srd+1}, s25, 0")
        e(f"s_sub_u32 s{srd+2}, 5308416, s42")
        e("s_mov_b32 s43, 10368")
        A.label(f"L_sd_{n}")
        e(f"s_and_b32 s{srd+1}, s{srd+1}, 0xffff\ns_mov_b32 s{srd+3}, 0x20000")
        e(f"s_cmp_eq_u32 {typ}, 2")
        e(f"s_cselect_b32 s{srd+2}, 0, s{srd+2}")
        e(f"v_mul_lo_u32 v{voff}, v10, s43")
        e(f"v_lshl_add_u32 v{voff}, v12, 4, v{voff}")
        e(f"v_mov_b32 v19, {OOB}")
        e("v_cmp_le_u32 vcc, 8, v12")
        e(f"v_cndmask_b32 v18, v{voff}, v19, vcc")
        e(f"s_cmp_eq_u32 {beta}, 4")
        e(f"s_cbranch_scc0 L_se_{n}")
        e(f"v_mov_b32 v{voff}, v18")
        A.label(f"L_se_{n}")
    task_srd(52, "s38", "s39", 13)
    task_srd(56, "s40", "s41", 14)
    if 'nowo' in diag:
        e("s_mov_b32 s54, 0\ns_mov_b32 s58, 0")
    e(f"v_mov_b32 v19, {OOB}")
    e("s_cmp_eq_u32 s38, 0\ns_cselect_b64 vcc, -1, 0")
    e("v_cndmask_b32 v15, v13, v19, vcc")
    e("s_cmp_eq_u32 s40, 0\ns_cselect_b64 vcc, -1, 0")
    e("v_cndmask_b32 v16, v14, v19, vcc")
    e("v_lshrrev_b32 v90, 3, v0")
    e("v_lshlrev_b32 v90, 14, v90")
    e("v_and_b32 v91, 7, v0")
    e("v_lshl_add_u32 v90, v91, 4, v90")
    e("v_cmp_le_u32 vcc, 32, v0")
    e("v_cndmask_b32 v92, v90, v19, vcc")
    e("s_cmp_eq_u32 s41, 4\ns_cselect_b64 vcc, -1, 0")
    e("v_cndmask_b32 v91, v90, v92, vcc")
    e("s_cmp_eq_u32 s39, 4\ns_cselect_b64 vcc, -1, 0")
    e("v_cndmask_b32 v90, v90, v92, vcc")
    for (typ, beta, dst) in (("s38", "s39", "s96"), ("s40", "s41", "s97")):
        e(f"s_mov_b32 {dst}, {SP}")
        e(f"s_cmp_eq_u32 {typ}, 1")
        e(f"s_cselect_b32 {dst}, {GP}, {dst}")
        e(f"s_lshl_b32 s42, {beta}, 17")
        e(f"s_add_u32 {dst}, {dst}, s42")
        e("s_lshl_b32 s42, s37, 7")
        e(f"s_add_u32 {dst}, {dst}, s42")
    e("v_and_b32 v93, 3, v0")
    e("v_bfe_u32 v94, v0, 4, 1")
    e("v_lshl_add_u32 v93, v94, 2, v93")
    e("v_bfe_u32 v94, v0, 2, 2")
    e("v_lshrrev_b32 v95, 5, v0")
    e("v_lshlrev_b32 v96, 12, v95")
    e("v_lshl_add_u32 v96, v94, 9, v96")
    e("v_lshl_add_u32 v96, v93, 4, v96")
    e("v_lshlrev_b32 v97, 7, v95")
    e("v_lshl_add_u32 v97, v94, 4, v97")
    e("s_lshr_b32 s98, s35, 1")
    e("s_lshl_b32 s98, s98, 7")
    e("s_lshl_b32 s42, s34, 13")
    e("s_add_u32 s98, s98, s42")
    e(f"s_add_u32 s98, s98, {OP}")
    e("s_lshl_b32 s99, s34, 8")
    e(f"s_add_u32 s99, s99, {ML}")
    e("s_lshl_b32 s42, s3, 10")
    e(f"s_add_u32 s42, s42, {L_PRIV + 0x200}")
    e("v_lshlrev_b32 v98, 7, v95")
    e("v_lshl_add_u32 v98, v93, 4, v98")
    e("v_add_u32 v98, s42, v98")
    e("v_lshlrev_b32 v99, 7, v11")
    e("v_lshl_add_u32 v99, v10, 5, v99")
    e("v_add_u32 v99, s42, v99")
    e("s_cmp_ge_u32 s3, 2")
    e("s_cbranch_scc0 L_noh2")
    e("v_mul_u32_u24 v20, 144, v11")
    e("v_mad_u32_u24 v20, v10, 36, v20")
    e("s_lshl_b32 s42, s3, 10")
    e("v_add_u32 v20, s42, v20")
    for t in range(9):
        e(f"ds_read_b32 v{100+t}, v20 offset:{L_PRIV + 4*t}")
    e("s_waitcnt lgkmcnt(0)")
    A.label("L_noh2")
    e("v_and_b32 v110, 31, v0")
    e("v_lshlrev_b32 v110, 4, v110")
    e("v_lshl_add_u32 v111, v95, 9, v110")
    e("v_lshlrev_b32 v112, 3, v95")
    e("v_lshl_add_u32 v113, v95, 12, v110")
    e("v_lshlrev_b32 v114, 7, v95")
    e("s_lshl_b32 s60, s34, 13")
    e("s_lshl_b32 s43, s35, 9")
    e("s_add_u32 s60, s60, s43")
    e(f"s_add_u32 s60, s60, {OP}")
    e("s_lshl_b32 s61, s34, 8")
    e("s_lshl_b32 s43, s35, 4")
    e("s_add_u32 s61, s61, s43")
    e(f"s_add_u32 s61, s61, {ML}")
    e(f"s_mov_b32 s62, 0x{LOG2E:x}")
    if warm:
        e("s_cmp_eq_u32 s3, 1")
        e("s_cbranch_scc1 L_dry2")
        e("s_cmp_eq_u32 s3, 3")
        e("s_cbranch_scc0 L_nodry2")
        e("s_mov_b32 s100, 1\ns_mov_b32 s101, 1\ns_mov_b32 s50, 0")
        e("s_branch L_comb")
        A.label("L_dry2")
        e("s_mov_b32 s100, 1\ns_mov_b32 s101, 1\ns_mov_b32 s50, 0")
        e("s_branch L_btX")
        A.label("L_drydone2")
        e(f"s_mov_b32 s100, {SPIN}\ns_mov_b32 s101, 0\ns_mov_b32 s50, {WS_BYTES}")
        A.label("L_nodry2")
    if wmode == 'flagC': ldsspin(L_FC, 4)
    if wmode == 'flagB': ldsspin(L_FB, 4)
    stamp(8)
    e("s_mov_b32 s42, 0")
    for t in range(9):
        vo = 13 if t < 8 else 15
        e(f"buffer_load_dwordx4 a[{4*t}:{4*t+3}], v{vo}, s[52:55], s42 offen{NT}")
        e("s_add_u32 s42, s42, 1152") if t < 8 else None
    e("s_mov_b32 s42, 0")
    for t in range(9):
        vo = 14 if t < 8 else 16
        e(f"buffer_load_dwordx4 a[{36+4*t}:{36+4*t+3}], v{vo}, s[56:59], s42 offen{NT}")
        e("s_add_u32 s42, s42, 1152") if t < 8 else None
    if wmode == 'early': dispatcher()
    e("s_cmp_eq_u32 s3, 3")
    e("s_cbranch_scc0 L_nocomb")
    ldsspin(L_FB, 4, nosleep=True)
    stamp(9)
    A.label("L_comb")
    e(f"ds_read_b64 v[40:41], v112 offset:{L_MLW}")
    e(f"ds_read_b64 v[42:43], v112 offset:{L_MLW+16}")
    e(f"ds_read_b128 v[24:27], v111 offset:{L_OW}")
    e(f"ds_read_b128 v[28:31], v111 offset:{L_OW + 1024}")
    e("s_waitcnt lgkmcnt(2)")
    e("v_max_f32 v48, v40, v42")
    e("v_sub_f32 v40, v40, v48\nv_sub_f32 v42, v42, v48")
    e("v_mul_f32 v40, s62, v40\nv_mul_f32 v42, s62, v42")
    e("v_exp_f32 v40, v40\nv_exp_f32 v42, v42")
    e("v_mov_b32 v52, 0\nv_mov_b32 v53, 0")
    e("v_mul_f32 v49, v40, v41")
    e("v_fmac_f32 v49, v42, v43")
    e("s_waitcnt lgkmcnt(0)")
    for r in range(4):
        e(f"v_mul_f32 v{44+r}, v40, v{24+r}")
    for r in range(4):
        e(f"v_fmac_f32 v{44+r}, v42, v{28+r}")
    tagpack(54, 44)
    e("buffer_store_dwordx4 v[54:57], v113, s[48:51], s60 offen sc1")
    e(f"v_bfi_b32 v58, s44, v2, v48\nv_bfi_b32 v59, s44, v3, v49\nv_bfi_b32 v60, s44, v4, v52\nv_bfi_b32 v61, s44, v5, v53")
    e("s_mov_b32 exec_lo, 1\ns_mov_b32 exec_hi, 1")
    e("buffer_store_dwordx4 v[58:61], v114, s[48:51], s61 offen sc1")
    e("s_mov_b64 exec, -1")
    if warm:
        e("s_cmp_lg_u32 s101, 0")
        e("s_cbranch_scc1 L_drydone2")
    stamp(10)
    A.label("L_nocomb")

    def mchain(n, srcs, abase):
        def bb(t):
            B = 76 + 4 * (t & 1)
            for jj in range(4): e(f"v_and_b32 v{B+jj}, v{srcs[t]}, v{6+jj}")
        def mm(t):
            B = 76 + 4 * (t & 1)
            c = "0" if t == 0 else "v[70:73]"
            e(f"v_mfma_f32_16x16x32_bf16 v[70:73], a[{abase+4*t}:{abase+4*t+3}], v[{B}:{B+3}], {c}")
        bb(0); bb(1)
        for t in range(n):
            mm(t)
            if t + 2 < n: bb(t + 2)
    def blocktask(which, typ, abase, vst, sst):
        n = pollid[0]; pollid[0] += 1
        e(f"s_cmp_eq_u32 {typ}, 2")
        e(f"s_cbranch_scc1 L_bt_end{n}")
        e(f"s_cmp_eq_u32 {typ}, 1")
        e(f"s_cbranch_scc1 L_bt_w2{n}")
        def issue_o():
            e("buffer_load_dwordx4 v[24:27], v96, s[48:51], s98 offen sc1")
            e("buffer_load_dwordx4 v[36:39], v96, s[48:51], s98 offen offset:2048 sc1")
            e("buffer_load_dwordx4 v[28:31], v97, s[48:51], s99 offen sc1")
            e("buffer_load_dwordx4 v[40:43], v97, s[48:51], s99 offen offset:64 sc1")
        poll(issue_o, [24, 36, 28, 40], 32, nosleep=True)
        stamp(11)
        if not nomask:
            for r in (24, 25, 26, 27, 36, 37, 38, 39, 28, 29, 40, 41): e(f"v_and_b32 v{r}, s45, v{r}")
        e("v_max_f32 v30, v28, v40")
        e("v_max_f32_dpp v30, v30, v30 row_ror:4 row_mask:0xf bank_mask:0xf")
        e("v_max_f32_dpp v30, v30, v30 row_ror:8 row_mask:0xf bank_mask:0xf")
        e("v_sub_f32 v28, v28, v30\nv_sub_f32 v40, v40, v30")
        e("v_mul_f32 v28, s62, v28\nv_mul_f32 v40, s62, v40")
        e("v_exp_f32 v28, v28\nv_exp_f32 v40, v40")
        e("v_mul_f32 v29, v29, v28")
        for r in range(4): e(f"v_mul_f32 v{24+r}, v{24+r}, v28")
        e("v_fmac_f32 v29, v41, v40")
        for r in range(4): e(f"v_fmac_f32 v{24+r}, v{36+r}, v40")
        for r in (29, 24, 25, 26, 27):
            e(f"v_add_f32_dpp v{r}, v{r}, v{r} row_ror:4 row_mask:0xf bank_mask:0xf")
        for r in (29, 24, 25, 26, 27):
            e(f"v_add_f32_dpp v{r}, v{r}, v{r} row_ror:8 row_mask:0xf bank_mask:0xf")
        e("v_rcp_f32 v29, v29")
        for r in range(4): e(f"v_mul_f32 v{24+r}, v{24+r}, v29")
        for r in range(4): e(f"v_cvt_pk_bf16_f32 v{24+r}, v{24+r}, v{24+r}")
        e("ds_write_b128 v98, v[24:27]")
        e("s_waitcnt lgkmcnt(0)")
        e("ds_read_b128 v[24:27], v99")
        e("ds_read_b128 v[28:31], v99 offset:16")
        e("s_waitcnt lgkmcnt(0)")
        mchain(8, [24 + t for t in range(8)], abase)
        e(f"s_branch L_bt_pub{n}")
        A.label(f"L_bt_w2{n}")
        e(f"s_waitcnt vmcnt({0 if which == 'Y' else 9})") if False else e("s_waitcnt vmcnt(0)")
        mchain(9, [100 + t for t in range(9)], abase)
        A.label(f"L_bt_pub{n}")
        tagpack(74, 70)
        e(f"buffer_store_dwordx4 v[74:77], v{vst}, s[48:51], {sst} offen sc1")
        A.label(f"L_bt_end{n}")
    A.label("L_btX")
    blocktask("X", "s38", 0, 90, "s96")
    if warm:
        e("s_cmp_lg_u32 s101, 0")
        e("s_cbranch_scc1 L_drydone2")
    stamp(12)
    blocktask("Y", "s40", 36, 91, "s97")
    stamp(13)

    e("s_cmp_ge_u32 s2, 36")
    e("s_cbranch_scc1 L_auxend")
    A.label("L_red")
    e("s_lshr_b32 s36, s2, 3")
    e("s_and_b32 s37, s2, 7")
    e("s_lshl_b32 s38, s36, 7")
    e("s_lshr_b32 s39, s37, 1")
    e("s_lshl_b32 s39, s39, 5")
    e("s_add_u32 s38, s38, s39")
    e("s_and_b32 s39, s37, 1")
    e("s_mul_i32 s39, s39, 576")
    e("s_add_u32 s39, s39, s38")
    e("s_mov_b32 s60, s8\ns_and_b32 s61, s9, 0xffff\ns_mov_b32 s62, 2304\ns_mov_b32 s63, 0x20000")
    e("s_mov_b32 s56, s26\ns_and_b32 s57, s27, 0xffff\ns_mov_b32 s58, 1152\ns_mov_b32 s59, 0x20000")
    e("v_lshlrev_b32 v13, 1, v0")
    e("s_lshl_b32 s40, s39, 1")
    e("s_lshl_b32 s41, s38, 1")
    e("v_and_b32 v16, 3, v0")
    e("v_bfe_u32 v17, v0, 4, 1")
    e("v_lshl_add_u32 v16, v17, 2, v16")
    e("v_bfe_u32 v17, v0, 2, 2")
    e("v_lshrrev_b32 v18, 5, v0")
    e("v_lshl_add_u32 v17, v18, 2, v17")
    e("v_lshlrev_b32 v19, 4, v16")
    e("v_lshl_add_u32 v16, v17, 7, v19")
    e("v_lshl_add_u32 v17, v18, 7, v19")
    e("s_lshl_b32 s43, s3, 8")
    e("v_add_u32 v17, s43, v17")
    e("s_lshl_b32 s42, s2, 14")
    e("s_lshl_b32 s43, s3, 12")
    e("s_add_u32 s42, s42, s43")
    e(f"s_add_u32 s43, s42, {SP}")
    e(f"s_add_u32 s42, s42, {GP}")
    e("s_mov_b32 exec_lo, -1\ns_mov_b32 exec_hi, 0")
    e("buffer_load_ushort v14, v13, s[60:63], s40 offen")
    e("buffer_load_ushort v15, v13, s[56:59], s41 offen")
    e("s_mov_b64 exec, -1")
    e("s_mov_b32 s60, s28\ns_and_b32 s61, s29, 0xffff")
    def issue_r():
        for k in range(4):
            e(f"buffer_load_dwordx4 v[{20+4*k}:{23+4*k}], v16, s[48:51], s42 offen offset:{1024*k} sc1")
        for k in range(4):
            e(f"buffer_load_dwordx4 v[{36+4*k}:{39+4*k}], v16, s[48:51], s43 offen offset:{1024*k} sc1")
    poll(issue_r, [20 + 4 * k for k in range(8)], 52, nosleep=True)
    stamp(14)
    for base in (20, 36):
        for r in range(4):
            if not nomask:
                for k in range(4): e(f"v_and_b32 v{base+4*k+r}, s45, v{base+4*k+r}")
        for r in range(4): e(f"v_add_f32 v{base+r}, v{base+r}, v{base+4+r}")
        for r in range(4): e(f"v_add_f32 v{base+8+r}, v{base+8+r}, v{base+12+r}")
        for r in range(4): e(f"v_add_f32 v{base+r}, v{base+r}, v{base+8+r}")
    for sh in (4, 8):
        for base in (20, 36):
            for r in range(4):
                e(f"v_add_f32_dpp v{base+r}, v{base+r}, v{base+r} row_ror:{sh} row_mask:0xf bank_mask:0xf")
    e(f"ds_write_b128 v17, v[20:23] offset:{L_RED}")
    e(f"ds_write_b128 v17, v[36:39] offset:{L_RED + 1024}")
    e("v_and_b32 v17, 7, v0")
    e("v_lshlrev_b32 v17, 4, v17")
    e("v_bfe_u32 v18, v0, 3, 2")
    e("v_lshl_add_u32 v17, v18, 2, v17")
    e("s_waitcnt lgkmcnt(0)")
    if warm:
        e("s_cmp_lg_u32 s101, 0")
        e("s_cbranch_scc1 L_redfin")
    e("s_barrier")
    e("s_cmp_eq_u32 s3, 0")
    e("s_cbranch_scc0 L_auxend")
    A.label("L_redfin")
    for kind in range(2):
        for a in range(8):
            e(f"ds_read_b32 v{20+8*kind+a}, v17 offset:{L_RED + 1024*kind + 128*a}")
    e("v_lshlrev_b32 v14, 16, v14")
    e("v_lshlrev_b32 v15, 16, v15")
    e("s_waitcnt lgkmcnt(8)")
    def sum8(b):
        for k in (0, 2, 4, 6): e(f"v_add_f32 v{b+k}, v{b+k}, v{b+k+1}")
        e(f"v_add_f32 v{b}, v{b}, v{b+2}")
        e(f"v_add_f32 v{b+4}, v{b+4}, v{b+6}")
        e(f"v_add_f32 v{b}, v{b}, v{b+4}")
    def rnd(r):
        e(f"v_cvt_pk_bf16_f32 v{r}, v{r}, v{r}")
        e(f"v_and_b32 v{r}, 0xffff0000, v{r}")
    sum8(20)
    rnd(20)
    e("v_add_f32 v20, v20, v15")
    rnd(20)
    e(f"v_mul_f32 v21, 0x{(LOG2E ^ 0x80000000):x}, v20")
    e("v_exp_f32 v21, v21")
    e("s_waitcnt lgkmcnt(0)")
    sum8(28)
    e("v_add_f32 v21, 1.0, v21")
    e("v_rcp_f32 v21, v21")
    rnd(28)
    e("v_mul_f32 v20, v20, v21")
    rnd(20)
    e("v_mul_f32 v20, v28, v20")
    rnd(20)
    e("v_add_f32 v20, v14, v20")
    e("v_cvt_pk_bf16_f32 v20, v20, v20")
    if warm:
        e("s_cmp_lg_u32 s101, 0")
        e("s_cselect_b32 s62, 0, s62")
    e("s_mov_b32 exec_lo, -1\ns_mov_b32 exec_hi, 0")
    e("buffer_store_short v20, v13, s[60:63], s40 offen" + (" sc0 sc1" if outsc1 else ""))
    e("s_mov_b64 exec, -1")
    if warm:
        e("s_cmp_lg_u32 s101, 0")
        e("s_cbranch_scc1 L_drydone1")
    stamp(15)
    e("s_cmp_eq_u32 s2, 0")
    e("s_cbranch_scc0 L_auxend")
    e("s_mov_b64 exec, 1")
    e("v_mov_b32 v20, s46\nv_mov_b32 v21, s47\nv_mov_b32 v22, 0")
    e("buffer_store_dwordx2 v[20:21], v22, s[48:51], 0 offen sc1")
    e("s_mov_b64 exec, -1")
    A.label("L_auxend")
    stamp(15 + 1) if False else None
    dump_stamps(16)
    A.label("L_end")
    e("s_endpgm")
    st = A.items[MARK_STREAM0:MARK_STREAM1]
    A.items = A.items[:MARK_STREAM0] + A.items[MARK_STREAM1:] + st
    A.label("L_codeend")
    e("s_endpgm")
    A.raw('.section .rodata,"a"')
    A.raw(".p2align 6")
    A.raw(f".amdhsa_kernel {NAME}")
    acc = 40 + 16 * D
    acc = (acc + 3) // 4 * 4
    A.raw(f"  .amdhsa_next_free_vgpr {acc + max(16 * D, 88)}")
    A.raw("  .amdhsa_next_free_sgpr 102")
    A.raw(f"  .amdhsa_accum_offset {acc}")
    A.raw("  .amdhsa_group_segment_fixed_size 0")
    A.raw("  .amdhsa_kernarg_size 104")
    A.raw("  .amdhsa_user_sgpr_count 2")
    A.raw("  .amdhsa_user_sgpr_kernarg_segment_ptr 1")
    A.raw("  .amdhsa_system_sgpr_workgroup_id_x 1")
    A.raw("  .amdhsa_float_denorm_mode_32 3")
    A.raw(".end_amdhsa_kernel")
    n = A.fix_hazards()
    return A.text(), n

if __name__ == "__main__":
    cfg = json.loads(sys.argv[2]) if len(sys.argv) > 2 else {}
    t, n = gen(**cfg)
    hdr = open("cdna_kernels/" + NAME[:-7] + ".s.ref").read().split("; Override launch")[0]
    lines = t.split("\n")
    out = hdr + lines[0] + "\n" + "\n".join(lines[1:])
    open(sys.argv[1], "w").write(out)
    print("nops inserted:", n)
```

```python
import sys, json
from asmfw import Asm

NAME = "recurrent_scan__mha_block_cached__dense_activation_squared_relu__decode_kernel"

EP = 0
QP = 0x10000
HP = 0x60000
OP = 0xA0000
ML = 0xE0000
CNT = 0xF0000
SP = 0x100000
GP = 0x200000
TS = 0x300000
WS_BYTES = 0x500000
L_Q = 0x000
L_FC = 0x200
L_FB = 0x204
L_WANT = 0x208
L_FQ = 0x20c
L_MLW = 0x240
L_MB = 0x280
L_OW = 0x400
L_HT = 0xC00
L_PRIV = 0x1000
L_RED = 0x2000
LDS_BYTES = 0x2800

TAGB = 10
TAGM = (1 << TAGB) - 1
VALM = (~TAGM) & 0xffffffff
OOB = 0x40000000
LOG2E = 0x3fb8aa3b
SCALE = 0x3db504f3
SPIN = 1 << 17

def gen(D=6, A_=2, gss=((8, 4), (8, 2), (16, 1)), req_at=1, stamps=False, nt=True, sleep=1, bar0=True, tlog=False, noatom=False, ntk=None, tstep=False, static_tail=False, kpat=True, ahead2=True, prefetch=True, pstamps=False, fillq=None, latew1=True, wmode='flagC', rot=1, fast=True, ntk_end=None, diag='', split=None, nomask=True, warm=True, tlb=False, outsc1=False, dbgspan=False):
    A = Asm()
    e = A
    NT = " nt" if nt else ""
    nstamp = [0]
    def stamp(k):
        if stamps and (not pstamps or k == 0):
            e(f"s_memrealtime s[{64+2*k}:{65+2*k}]")
    def pst(k):
        if stamps and pstamps:
            e(f"s_memrealtime s[{64+2*k}:{65+2*k}]")
    def dbg(idx, neg=False, r=126):
        if not dbgspan: return
        e("s_memrealtime s[6:7]")
        e("s_mov_b32 s92, s30\ns_and_b32 s93, s31, 0xffff\ns_mov_b32 s94, 256\ns_mov_b32 s95, 0x20000")
        e("s_waitcnt lgkmcnt(0)")
        if neg: e("s_not_b32 s6, s6")
        e("s_mov_b64 exec, 1")
        e(f"v_mov_b32 v{r}, s6")
        e(f"v_mov_b32 v{r+1}, {4*idx}")
        e(f"buffer_atomic_umax v{r}, v{r+1}, s[92:95], 0 offen sc1")
        e("s_mov_b64 exec, -1")
    def dump_stamps(nk):
        if not stamps: return
        e("s_waitcnt lgkmcnt(0)")
        e("s_lshl_b32 s6, s2, 3")
        e("s_add_u32 s6, s6, s5")
        e("s_lshl_b32 s6, s6, 7")
        e(f"s_add_u32 s6, s6, {TS}")
        e("s_mov_b64 exec, 1")
        e("v_mov_b32 v1, 0")
        e(f"s_mov_b32 s60, s32\ns_mov_b32 s61, s33\ns_mov_b32 s62, {WS_BYTES}\ns_mov_b32 s63, 0x20000")
        for k in range(nk):
            e(f"v_mov_b32 v2, s{64+2*k}")
            e(f"buffer_store_dword v2, v1, s[60:63], s6 offen offset:{4*k}")
        e("s_mov_b64 exec, -1")

    A.raw("; @launch grid=(256,1,1) block=(512,1,1) lds=%d" % LDS_BYTES)
    A.raw('.amdgcn_target "amdgcn-amd-amdhsa--gfx950"')
    A.raw(".text")
    A.raw(f".globl {NAME}")
    A.raw(".p2align 8")
    A.raw(f".type {NAME},@function")
    A.label(NAME)
    e("s_cmp_ge_u32 s2, 256")
    e("s_cbranch_scc1 L_end")
    e("s_load_dwordx16 s[8:23], s[0:1], 0")
    e("s_load_dwordx8 s[24:31], s[0:1], 64")
    e("s_load_dwordx2 s[32:33], s[0:1], 96")
    stamp(0)
    e("v_lshrrev_b32 v1, 6, v0")
    e("v_and_b32 v0, 63, v0")
    e("v_readfirstlane_b32 s3, v1")
    e("s_lshr_b32 s34, s2, 3")
    e("s_and_b32 s35, s2, 7")
    e("s_mov_b32 s5, s3")
    if prefetch:
        e("s_cmp_eq_u32 s3, 3")
        e("s_cbranch_scc0 L_nopf")
        e("s_getpc_b64 s[60:61]")
        A.label("L_pc")
        e(f"s_sub_u32 s60, s60, L_pc-{NAME}")
        e("s_subb_u32 s61, s61, 0")
        e("s_and_b32 s61, s61, 0xffff")
        e(f"s_mov_b32 s62, L_codeend-{NAME}")
        e("s_mov_b32 s63, 0x20000")
        e("s_and_b32 s36, s34, 3")
        e("s_mul_i32 s36, s36, 5120")
        e("v_lshlrev_b32 v13, 4, v0")
        for k in range(4):
            e(f"buffer_load_dwordx4 v[40:43], v13, s[60:63], s36 offen offset:{1024*k}")
        e("s_add_u32 s36, s36, 4096")
        e(f"buffer_load_dwordx4 v[40:43], v13, s[60:63], s36 offen")
        A.label("L_nopf")
    e("s_cmp_ge_u32 s3, 4")
    e("s_cbranch_scc1 L_stream")
    def masks(t1=1, t2=2):
        e(f"v_and_b32 v{t1}, 1, v0")
        e(f"v_lshlrev_b32 v{t1}, 4, v{t1}")
        e(f"v_mov_b32 v{t2}, 0xffff")
        e(f"v_lshlrev_b32 v{t1}, v{t1}, v{t2}")
        e(f"v_bfe_u32 v{t2}, v0, 1, 2")
        for j in range(4):
            e(f"v_cmp_eq_u32 vcc, {j}, v{t2}")
            e(f"v_cndmask_b32 v{6+j}, 0, v{t1}, vcc")
    MARK_STREAM0 = len(A.items)

    A.label("L_stream")
    e("s_sub_u32 s3, s3, 4")
    e("s_and_b32 s37, s3, 1")
    e("s_lshl_b32 s36, s37, 5")
    e("s_add_u32 s36, s36, s34")
    e("s_lshl_b32 s36, s36, 20")
    e("s_waitcnt lgkmcnt(0)")
    dbg(0, True, 34)
    dbg(1, False, 34)
    e("s_add_u32 s48, s10, s36\ns_addc_u32 s49, s11, 0\ns_and_b32 s49, s49, 0xffff\ns_mov_b32 s50, 0x100000\ns_mov_b32 s51, 0x20000")
    e("s_add_u32 s52, s12, s36\ns_addc_u32 s53, s13, 0\ns_and_b32 s53, s53, 0xffff\ns_mov_b32 s54, 0x100000\ns_mov_b32 s55, 0x20000")
    e("s_lshr_b32 s39, s3, 1")
    STRIDE = 16 if kpat else 2
    e(f"s_lshl_b32 s80, s35, {1 if kpat else 4}")
    e("s_add_u32 s80, s80, s39")
    e("v_lshlrev_b32 v1, 4, v0")
    def chunk_off():
        if rot and kpat:
            e("s_lshr_b32 s84, s80, 4")
            if rot != 1: e(f"s_mul_i32 s84, s84, {rot}")
            e("s_lshl_b32 s84, s84, 1")
            e("s_add_u32 s84, s84, s80")
            e("s_and_b32 s84, s84, 15")
            e("s_andn2_b32 s85, s80, 15")
            e("s_or_b32 s84, s84, s85")
            e("s_lshl_b32 s38, s84, 12")
        else:
            e("s_lshl_b32 s38, s80, 12")
    KR = lambda s, t: 40 + 16 * s + 4 * t
    VR = lambda s, t: 16 * s + 4 * t
    def loadK(s):
        for t in range(4):
            r = KR(s, t)
            e(f"buffer_load_dwordx4 v[{r}:{r+3}], v1, s[48:51], s38 offen offset:{1024*t}{NT}")
    def loadV(s):
        for t in range(4):
            r = VR(s, t)
            e(f"buffer_load_dwordx4 a[{r}:{r+3}], v1, s[52:55], s38 offen offset:{1024*t}{NT}")
    if tlog or tstep:
        e("s_mov_b32 s87, 0")
        e("v_mov_b32 v33, -1")
        e("v_mov_b32 v34, -1")
    if bar0: e("s_barrier")
    for c in range(D):
        if tlog:
            e("s_mov_b32 m0, s87")
            e("v_writelane_b32 v33, s80, m0")
            e("s_add_u32 s87, s87, 1")
        chunk_off()
        e(f"s_add_u32 s80, s80, {STRIDE}")
        if fillq is None:
            loadK(c); loadV(c)
        else:
            for half in range(2):
                if c * 8 + half * 4 + 4 > fillq:
                    e(f"s_waitcnt vmcnt({max(fillq - 4, 0)})")
                (loadK if half == 0 else loadV)(c)
    stamp(1)
    masks(20, 21)
    e(f"s_mov_b32 s81, {8 - D}")
    e("s_mov_b32 s82, 0")
    e("s_mov_b32 s83, 8")
    for r in range(4): e(f"v_mov_b32 v{10+r}, 0")
    e("v_mov_b32 v14, 0xff800000")
    e("v_mov_b32 v15, 0")
    e("v_and_b32 v16, 15, v0")
    e("v_lshlrev_b32 v16, 4, v16")
    e("s_lshl_b32 s40, s37, 8")
    e("v_add_u32 v16, s40, v16")
    e("s_mov_b32 s86, 0")
    e("s_mov_b32 s88, 0x400000")
    e(f"s_mov_b32 s40, 0x{SCALE:x}")
    e(f"s_mov_b32 s41, 0x{LOG2E:x}")
    e(f"v_mov_b32 v36, {L_WANT}")
    e(f"v_mov_b32 v20, {L_FQ}")
    A.label("L_qspin")
    e("ds_read_b32 v21, v20")
    e("s_waitcnt lgkmcnt(0)")
    e("v_readfirstlane_b32 s90, v21")
    e("s_cmp_lg_u32 s90, 0")
    e("s_cbranch_scc1 L_qgo")
    e("s_sleep 1")
    e("s_sub_u32 s88, s88, 1")
    e("s_cmp_lg_u32 s88, 0")
    e("s_cbranch_scc1 L_qspin")
    A.label("L_qgo")
    dbg(2, False, 34)
    e(f"ds_read_b128 v[2:5], v16 offset:{L_Q}")
    e("s_waitcnt lgkmcnt(0)")
    stamp(2)
    NKV = 8 * (D - 1)
    NTK = 12 if ntk is None else ntk
    A.label("L_sloop")
    for s in range(D):
        e("s_cmp_eq_u32 s86, 0")
        e(f"s_cbranch_scc1 L_nw{s}")
        e("s_cmp_eq_u32 s89, 0")
        e("s_cbranch_scc1 L_sdone")
        e("s_sub_u32 s89, s89, 1")
        e("s_cmp_ge_u32 s89, 2")
        e(f"s_cbranch_scc1 L_dw{s}")
        e("s_cmp_eq_u32 s89, 1")
        e(f"s_cbranch_scc1 L_w8{s}")
        e("s_waitcnt vmcnt(0)")
        e(f"s_branch L_go{s}")
        A.label(f"L_w8{s}")
        e("s_waitcnt vmcnt(8)")
        e(f"s_branch L_go{s}")
        A.label(f"L_dw{s}")
        e("s_waitcnt vmcnt(16)")
        e(f"s_branch L_go{s}")
        A.label(f"L_nw{s}")
        e(f"s_waitcnt vmcnt({NKV})")
        A.label(f"L_go{s}")
        if tstep:
            e("s_memrealtime s[90:91]")
            e("s_waitcnt lgkmcnt(0)")
            e("s_mov_b32 m0, s87")
            e("v_writelane_b32 v33, s90, m0")
            e("s_add_u32 s87, s87, 1")
        if tlog:
            e("s_mov_b32 m0, s87")
            e(f"v_writelane_b32 v33, s{64+s}, m0") if False else None
        for jj in range(4):
            for t in range(4):
                k = KR(s, t) + jj
                if jj == 0: e(f"v_dot2_f32_bf16 v{16+t}, v{k}, v2, 0")
                else: e(f"v_dot2c_f32_bf16 v{16+t}, v{k}, v{2+jj}")
        e("v_add_f32_dpp v20, v16, v16 row_ror:8 row_mask:0xf bank_mask:0x3")
        e("v_add_f32_dpp v21, v18, v18 row_ror:8 row_mask:0xf bank_mask:0x3")
        e("v_add_f32_dpp v20, v17, v17 row_ror:8 row_mask:0xf bank_mask:0xc")
        e("v_add_f32_dpp v21, v19, v19 row_ror:8 row_mask:0xf bank_mask:0xc")
        e("v_add_f32_dpp v22, v20, v20 row_shl:4 row_mask:0xf bank_mask:0x5")
        e("v_add_f32_dpp v22, v21, v21 row_shr:4 row_mask:0xf bank_mask:0xa")
        e("v_add_f32_dpp v22, v22, v22 quad_perm:[1,0,3,2] row_mask:0xf bank_mask:0xf")
        e("v_add_f32_dpp v22, v22, v22 quad_perm:[2,3,0,1] row_mask:0xf bank_mask:0xf")
        e("v_cvt_pk_bf16_f32 v23, v22, v22")
        e("v_and_b32 v23, 0xffff0000, v23")
        e("v_mul_f32 v23, s40, v23")
        e("v_cvt_pk_bf16_f32 v23, v23, v23")
        e("v_and_b32 v23, 0xffff0000, v23")
        if fast:
            e("v_cmp_lt_f32 vcc, v14, v23")
            e("s_cmp_lg_u64 vcc, 0")
            e(f"s_cbranch_scc0 L_nomax{s}")
            e("v_max_f32_dpp v24, v23, v23 row_ror:4 row_mask:0xf bank_mask:0xf")
            e("v_max_f32_dpp v24, v24, v24 row_ror:8 row_mask:0xf bank_mask:0xf")
            e("v_mov_b32 v25, v24")
            e("v_permlane16_swap_b32 v24, v25")
            e("v_max_f32 v24, v24, v25")
            e("v_mov_b32 v25, v24")
            e("v_permlane32_swap_b32 v24, v25")
            e("v_max3_f32 v24, v24, v25, v14")
            e("v_sub_f32 v25, v14, v24")
            e("v_mul_f32 v25, s41, v25")
            e("v_exp_f32 v25, v25")
            e("v_mov_b32 v14, v24")
            e("v_mul_f32 v15, v15, v25")
            for r in range(4): e(f"v_mul_f32 v{10+r}, v{10+r}, v25")
            A.label(f"L_nomax{s}")
            e("v_sub_f32 v26, v23, v14")
            e("v_mul_f32 v26, s41, v26")
            e("v_exp_f32 v26, v26")
            e("v_cvt_pk_bf16_f32 v27, v26, v26")
            e("v_add_f32 v15, v15, v26")
            bank_lane = [0, 8, 4, 12]
            def bb(t):
                B = 28 if (t & 1) == 0 else 16
                for jj in range(4):
                    e(f"v_and_b32_dpp v{B+jj}, v27, v{6+jj} row_newbcast:{bank_lane[t]} row_mask:0xf bank_mask:0xf")
            def mm(t):
                B = 28 if (t & 1) == 0 else 16
                r = VR(s, t)
                e(f"v_mfma_f32_16x16x32_bf16 v[10:13], a[{r}:{r+3}], v[{B}:{B+3}], v[10:13]")
            bb(0); bb(1); mm(0); bb(2); mm(1); bb(3); mm(2); mm(3)
        else:
            e("v_max_f32_dpp v24, v23, v23 row_ror:4 row_mask:0xf bank_mask:0xf")
            e("v_max_f32_dpp v24, v24, v24 row_ror:8 row_mask:0xf bank_mask:0xf")
            e("v_mov_b32 v25, v24")
            e("v_permlane16_swap_b32 v24, v25")
            e("v_max_f32 v24, v24, v25")
            e("v_mov_b32 v25, v24")
            e("v_permlane32_swap_b32 v24, v25")
            e("v_max3_f32 v24, v24, v25, v14")
            e("v_sub_f32 v25, v14, v24")
            e("v_sub_f32 v26, v23, v24")
            e("v_mul_f32 v25, s41, v25")
            e("v_mul_f32 v26, s41, v26")
            e("v_exp_f32 v25, v25")
            e("v_exp_f32 v26, v26")
            e("v_mov_b32 v14, v24")
            e("v_fma_f32 v15, v15, v25, v26")
            e("v_cvt_pk_bf16_f32 v27, v26, v26")
            for r in range(4): e(f"v_mul_f32 v{10+r}, v{10+r}, v25")
            bank_lane = [0, 8, 4, 12]
            for t in range(4):
                B = 28 if (t & 1) == 0 else 16
                for jj in range(4):
                    e(f"v_and_b32_dpp v{B+jj}, v27, v{6+jj} row_newbcast:{bank_lane[t]} row_mask:0xf bank_mask:0xf")
                r = VR(s, t)
                e(f"v_mfma_f32_16x16x32_bf16 v[10:13], a[{r}:{r+3}], v[{B}:{B+3}], v[10:13]")
        if tstep:
            e("s_memrealtime s[90:91]")
            e("s_waitcnt lgkmcnt(0)")
            e("v_writelane_b32 v34, s90, m0")
        e("s_cmp_lg_u32 s86, 0")
        e(f"s_cbranch_scc1 L_nx{s}")
        if ntk_end is not None:
            e("s_cmp_eq_u32 s83, 1")
            e(f"s_cbranch_scc1 L_ne{s}")
            e(f"s_waitcnt vmcnt({NTK})")
            A.label(f"L_ne{s}")
            e(f"s_waitcnt vmcnt({ntk_end})")
        else:
            e(f"s_waitcnt vmcnt({NTK})")
        e("s_cmp_lg_u32 s81, 0")
        e(f"s_cbranch_scc1 L_have{s}")
        if static_tail:
            e("s_cmp_lg_u32 s82, 0")
            e(f"s_cbranch_scc1 L_drain{s}")
            e(f"s_lshl_b32 s90, s35, {1 if kpat else 4}")
            e("s_add_u32 s90, s90, 128")
            e("s_or_b32 s90, s90, 0x80000")
        else:
            e("s_lshl_b32 s90, s82, 2")
            e(f"s_add_u32 s90, s90, {L_MB}")
            e("v_mov_b32 v20, s90")
            A.label(f"L_mb{s}")
            e("ds_read_b32 v21, v20")
            e("s_waitcnt lgkmcnt(0)")
            e("v_readfirstlane_b32 s90, v21")
            e("s_cmp_lg_u32 s90, -1")
            e(f"s_cbranch_scc1 L_got{s}")
            e("s_sub_u32 s88, s88, 1")
            e("s_cmp_lg_u32 s88, 0")
            e(f"s_cbranch_scc1 L_mb{s}")
            e("s_mov_b32 s90, 256")
            A.label(f"L_got{s}")
        e("s_add_u32 s82, s82, 1")
        e("s_and_b32 s80, s90, 0xffff")
        e("s_lshr_b32 s81, s90, 16")
        e("s_mov_b32 s83, s81")
        e("s_cmp_lt_u32 s80, 256")
        e("s_addc_u32 s80, s80, 0") if False else None
        e(f"s_cbranch_scc1 L_ok{s}")
        A.label(f"L_drain{s}")
        e("s_mov_b32 s86, 1")
        e(f"s_mov_b32 s89, {D-1}")
        e("s_mov_b64 exec, 1")
        e(f"v_mov_b32 v20, {L_FC}")
        e("v_mov_b32 v21, 1")
        e("ds_add_u32 v20, v21")
        e("s_mov_b64 exec, -1")
        stamp(3)
        e(f"s_branch L_nx{s}")
        A.label(f"L_ok{s}")
        e("s_add_u32 s80, s80, s39")
        A.label(f"L_have{s}")
        chunk_off()
        e(f"s_add_u32 s80, s80, {STRIDE}")
        e("s_sub_u32 s81, s81, 1")
        if tlog:
            e("s_lshr_b32 s90, s38, 12")
            e("s_mov_b32 m0, s87")
            e("v_writelane_b32 v33, s90, m0")
            e("s_add_u32 s87, s87, 1")
        loadK(s)
        if not static_tail:
            e(f"s_cmp_le_u32 s81, {req_at}")
            e(f"s_cbranch_scc0 L_nr{s}")
            e("s_add_u32 s90, s82, 1")
            if ahead2:
                e("s_cmp_eq_u32 s83, 1")
                e("s_addc_u32 s90, s90, 0")
            e("s_mov_b64 exec, 1")
            e("v_mov_b32 v21, s90")
            e("ds_max_u32 v36, v21")
            e("s_mov_b64 exec, -1")
            A.label(f"L_nr{s}")
        if split is not None: e(f"s_waitcnt vmcnt({split})")
        loadV(s)
        A.label(f"L_nx{s}")
        if s == D - 1:
            e("s_branch L_sloop")
    A.label("L_sdone")
    dbg(3, False, 34)
    dbg(6, True, 34)
    stamp(4)
    e("v_add_f32_dpp v15, v15, v15 row_ror:4 row_mask:0xf bank_mask:0xf")
    e("v_add_f32_dpp v15, v15, v15 row_ror:8 row_mask:0xf bank_mask:0xf")
    e("v_mov_b32 v25, v15")
    e("v_permlane16_swap_b32 v15, v25")
    e("v_add_f32 v15, v15, v25")
    e("v_mov_b32 v25, v15")
    e("v_permlane32_swap_b32 v15, v25")
    e("v_add_f32 v15, v15, v25")
    e("v_lshrrev_b32 v16, 4, v0")
    e("v_lshlrev_b32 v16, 7, v16")
    e("v_and_b32 v17, 7, v0")
    e("v_lshl_add_u32 v16, v17, 2, v16")
    e("s_lshl_b32 s37, s3, 9")
    e("v_add_u32 v16, s37, v16")
    for r in range(4):
        e(f"ds_write_b32 v16, v{10+r} offset:{L_OW + 32*r}")
    e("s_lshl_b32 s37, s3, 3")
    e("v_mov_b32 v17, s37")
    e(f"ds_write_b64 v17, v[14:15] offset:{L_MLW}")
    e("s_waitcnt lgkmcnt(0)")
    e("s_mov_b64 exec, 1")
    e(f"v_mov_b32 v28, {L_FB}")
    e("v_mov_b32 v29, 1")
    e("ds_add_u32 v28, v29")
    e("s_mov_b64 exec, -1")
    stamp(5)
    if tlog or tstep:
        e("s_lshl_b32 s6, s2, 3\ns_add_u32 s6, s6, s5\ns_lshl_b32 s6, s6, 8")
        e(f"s_add_u32 s6, s6, {TS + 0x80000}")
        e(f"s_mov_b32 s60, s32\ns_mov_b32 s61, s33\ns_mov_b32 s62, {WS_BYTES}\ns_mov_b32 s63, 0x20000")
        e("v_lshlrev_b32 v1, 2, v0")
        e("buffer_store_dword v33, v1, s[60:63], s6 offen")
        e(f"s_add_u32 s6, s6, 0x80000")
        e("buffer_store_dword v34, v1, s[60:63], s6 offen")
    dump_stamps(6)
    e("s_endpgm")

    MARK_STREAM1 = len(A.items)
    A.label("L_aux")
    e("s_setprio 3")
    e(f"s_mov_b32 s100, {SPIN}")
    e("s_mov_b32 s101, 0")
    e("v_lshrrev_b32 v10, 4, v0")
    e("v_bfe_u32 v11, v0, 3, 1")
    e("v_and_b32 v12, 15, v0")
    e("s_cmp_ge_u32 s3, 2")
    e("s_cbranch_scc1 L_aux23")
    e("s_cmp_eq_u32 s3, 1")
    e("s_cbranch_scc1 L_p1")
    e("s_mul_i32 s36, s35, 72")
    e("s_mov_b32 s37, 18")
    e("s_mov_b32 s38, 8192")
    e("s_lshl_b32 s39, s34, 8")
    e("s_mul_i32 s40, s36, 8192")
    e("s_add_u32 s39, s39, s40")
    e("s_sub_u32 s54, 4718592, s39")
    e("s_mov_b32 s41, 99")
    e("s_mov_b32 s42, 1")
    e("s_mov_b32 s43, 14")
    e("s_branch L_p2")
    A.label("L_p1")
    e("s_mul_hi_u32 s43, s2, 0x71c71c8")
    e("s_mul_i32 s44, s43, 36")
    e("s_sub_u32 s44, s2, s44")
    e("s_mul_i32 s36, s43, 82")
    e("s_cmp_eq_u32 s43, 0")
    e("s_cselect_b32 s40, 0, 2")
    e("s_cselect_b32 s41, 99, 3")
    e("s_add_u32 s36, s36, s40")
    e("s_mov_b32 s37, 22")
    e("s_mov_b32 s38, 9216")
    e("s_lshl_b32 s39, s44, 8")
    e("s_mul_i32 s40, s36, 9216")
    e("s_add_u32 s39, s39, s40")
    e("s_sub_u32 s54, 5308416, s39")
    e("s_mov_b32 s42, 0")
    e("s_cmp_ge_u32 s2, 252")
    e("s_cselect_b32 s54, 0, s54")
    A.label("L_p2")
    e("v_lshrrev_b32 v13, 5, v0")
    e("v_mul_u32_u24 v13, 1152, v13")
    e("v_and_b32 v14, 31, v0")
    e("v_mad_u32_u24 v13, v14, 36, v13")
    e("v_mul_lo_u32 v14, v10, s37")
    e("v_add_u32 v15, s36, v14")
    e("v_lshlrev_b32 v15, 1, v15")
    e("v_mul_u32_u24 v16, 1152, v11")
    e("v_add_u32 v15, v15, v16")
    e("v_mul_lo_u32 v16, v14, s38")
    e("v_lshl_add_u32 v16, v12, 4, v16")
    e(f"v_mov_b32 v19, {OOB}")
    e("v_cmp_eq_u32 vcc, s41, v10")
    e("v_cndmask_b32 v17, v16, v19, vcc")
    e("v_cmp_eq_u32 vcc, 3, v10")
    e("v_cndmask_b32 v18, v16, v19, vcc")
    e("s_cmp_eq_u32 s42, 1")
    e("s_cselect_b64 vcc, -1, 0")
    e("v_cndmask_b32 v18, v18, v19, vcc")
    if 'now1' in diag: e("s_mov_b32 s54, 0")
    e("s_mov_b32 s62, 2304\ns_mov_b32 s63, 0x20000\ns_mov_b32 s55, 0x20000")
    pst(1)
    e("s_waitcnt lgkmcnt(0)")
    pst(2)
    e("s_mov_b32 s60, s8\ns_and_b32 s61, s9, 0xffff")
    e("buffer_load_dwordx4 v[20:23], v13, s[60:63], 0 offen")
    e("buffer_load_dwordx4 v[24:27], v13, s[60:63], 0 offen offset:16")
    e("buffer_load_dword v28, v13, s[60:63], 0 offen offset:32")
    e("buffer_load_dwordx4 v[30:33], v15, s[60:63], 0 offen")
    e("buffer_load_dwordx4 v[34:37], v15, s[60:63], 0 offen offset:16")
    e("buffer_load_dwordx3 v[38:40], v15, s[60:63], 0 offen offset:32")
    e("s_cmp_eq_u32 s3, 1")
    e("s_cselect_b32 s52, s20, s14")
    e("s_cselect_b32 s53, s21, s15")
    e("s_add_u32 s52, s52, s39\ns_addc_u32 s53, s53, 0\ns_and_b32 s53, s53, 0xffff")
    def wloads():
        e("s_mov_b32 s45, 0")
        for t in range(22):
            vo = 16 if t < 16 else (17 if t < 18 else 18)
            e(f"buffer_load_dwordx4 a[{4*t}:{4*t+3}], v{vo}, s[52:55], s45 offen{NT}")
            if t < 21: e("s_add_u32 s45, s45, s38")
    if latew1:
        e("s_cmp_eq_u32 s3, 1")
        e("s_cbranch_scc1 L_now")
    wloads()
    if latew1: A.label("L_now")
    pst(3)
    if bar0: e("s_barrier")
    pst(4)
    stamp(1)
    e("s_load_dwordx2 s[46:47], s[32:33], 0")
    e(f"s_mov_b32 s48, s32\ns_and_b32 s49, s33, 0xffff\ns_mov_b32 s50, {WS_BYTES}\ns_mov_b32 s51, 0x20000")
    masks()
    e("v_lshlrev_b32 v41, 2, v0")
    e("v_mov_b32 v42, 0")
    e("s_lshl_b32 s40, s34, 8")
    e(f"s_add_u32 s40, s40, {CNT}")
    e("s_add_u32 s56, s32, s40\ns_addc_u32 s57, s33, 0\ns_and_b32 s57, s57, 0xffff\ns_mov_b32 s59, 0x20000")
    e("s_or_b32 s40, s35, s3")
    e("s_cmp_eq_u32 s40, 0")
    e("s_cselect_b32 s58, 4, 0")
    e("buffer_store_dword v42, v41, s[56:59], 0 offen sc1")
    pst(5)
    if latew1:
        e("s_cmp_eq_u32 s3, 1")
        e("s_cbranch_scc0 L_xw0")
        e("s_waitcnt vmcnt(0)")
        A.label("L_xw0")
    e("s_waitcnt vmcnt(25)")
    pst(6)
    F = 44
    for k in range(9):
        e(f"v_lshlrev_b32 v{F+2*k}, 16, v{20+k}")
        e(f"v_and_b32 v{F+2*k+1}, 0xffff0000, v{20+k}")
    e(f"v_pk_add_f32 v[62:63], v[{F}:{F+1}], v[{F+2}:{F+3}]")
    for k in range(2, 9):
        e(f"v_pk_add_f32 v[62:63], v[62:63], v[{F+2*k}:{F+2*k+1}]")
    e("v_add_f32 v62, v62, v63")
    def red32(r, tmp):
        for sh in (8, 4, 2, 1):
            e(f"v_add_f32_dpp v{r}, v{r}, v{r} row_ror:{sh} row_mask:0xf bank_mask:0xf")
        e(f"v_mov_b32 v{tmp}, v{r}")
        e(f"v_permlane16_swap_b32 v{r}, v{tmp}")
        e(f"v_add_f32 v{r}, v{r}, v{tmp}")
    red32(62, 63)
    e("v_mul_f32 v62, 0x3ae38e39, v62")
    e("v_mov_b32 v63, v62")
    for k in range(9):
        e(f"v_pk_add_f32 v[{F+2*k}:{F+2*k+1}], v[{F+2*k}:{F+2*k+1}], v[62:63] neg_lo:[0,1] neg_hi:[0,1]")
    e(f"v_pk_mul_f32 v[64:65], v[{F}:{F+1}], v[{F}:{F+1}]")
    for k in range(1, 9):
        e(f"v_pk_fma_f32 v[64:65], v[{F+2*k}:{F+2*k+1}], v[{F+2*k}:{F+2*k+1}], v[64:65]")
    e("v_add_f32 v64, v64, v65")
    red32(64, 65)
    e("v_mul_f32 v64, 0x3ae38e39, v64")
    e("v_cvt_pk_bf16_f32 v62, v62, v62")
    e("v_and_b32 v62, 0xffff0000, v62")
    e("v_cvt_pk_bf16_f32 v64, v64, v64")
    e("v_and_b32 v64, 0xffff0000, v64")
    e("v_add_f32 v64, 0x3727c5ac, v64")
    e("v_cvt_pk_bf16_f32 v64, v64, v64")
    e("v_and_b32 v64, 0xffff0000, v64")
    e("v_sqrt_f32 v64, v64")
    e("v_cvt_pk_bf16_f32 v64, v64, v64")
    e("v_and_b32 v64, 0xffff0000, v64")
    e("v_rcp_f32 v64, v64")
    e("v_readlane_b32 s56, v62, 0")
    e("v_readlane_b32 s57, v62, 32")
    e("v_readlane_b32 s58, v64, 0")
    e("v_readlane_b32 s59, v64, 32")
    e("v_cmp_eq_u32 vcc, 1, v11")
    e("v_mov_b32 v62, s56")
    e("v_mov_b32 v63, s57")
    e("v_cndmask_b32 v62, v62, v63, vcc")
    e("v_mov_b32 v64, s58")
    e("v_mov_b32 v65, s59")
    e("v_cndmask_b32 v64, v64, v65, vcc")
    e("v_mov_b32 v63, v62")
    e("v_mov_b32 v65, v64")
    pst(7)
    e("s_waitcnt vmcnt(22)")
    pst(8)
    for k in range(11):
        x = 30 + k
        e(f"v_lshlrev_b32 v66, 16, v{x}")
        e(f"v_and_b32 v67, 0xffff0000, v{x}")
        e("v_pk_add_f32 v[66:67], v[66:67], v[62:63] neg_lo:[0,1] neg_hi:[0,1]")
        e("v_cvt_pk_bf16_f32 v68, v66, v67")
        e("v_lshlrev_b32 v66, 16, v68")
        e("v_and_b32 v67, 0xffff0000, v68")
        e("v_pk_mul_f32 v[66:67], v[66:67], v[64:65]")
        e(f"v_cvt_pk_bf16_f32 v{x}, v66, v67")
    stamp(2)
    pst(9)
    if latew1:
        e("s_cmp_eq_u32 s3, 1")
        e("s_cbranch_scc0 L_now2")
        wloads()
        A.label("L_now2")
    e("s_mov_b32 s56, 0x01000100")
    e("s_mov_b32 s57, 0x03020302")
    for r in range(4): e(f"v_mov_b32 v{70+r}, 0")
    for t in range(22):
        B = 76 + 4 * (t & 1)
        e(f"v_perm_b32 v74, v{30 + t//2}, v{30 + t//2}, s{56 + (t & 1)}")
        for jj in range(4):
            e(f"v_and_b32 v{B+jj}, v74, v{6+jj}")
        e(f"s_waitcnt vmcnt({21 - t})")
        e(f"v_mfma_f32_16x16x32_bf16 v[70:73], a[{4*t}:{4*t+3}], v[{B}:{B+3}], v[70:73]")
    stamp(3)
    pst(10)
    def make_tags():
        e("s_waitcnt lgkmcnt(0)")
        e("s_add_u32 s46, s46, 0x7f4a7c15\ns_addc_u32 s47, s47, 0x9e3779b9")
        e(f"s_and_b32 s44, s46, {TAGM}")
        e("v_mov_b32 v2, s44")
        e(f"s_bfe_u32 s44, s46, 0x{(TAGB<<16)|TAGB:x}")
        e("v_mov_b32 v3, s44")
        e(f"s_bfe_u32 s44, s46, 0x{(TAGB<<16)|(2*TAGB):x}")
        e("v_mov_b32 v4, s44")
        e("s_lshr_b64 s[56:57], s[46:47], 30")
        e(f"s_and_b32 s44, s56, {TAGM}")
        e("v_mov_b32 v5, s44")
        e(f"s_mov_b32 s44, {TAGM}")
        e(f"s_mov_b32 s45, 0x{VALM:x}")
    def tagpack(dst, src):
        for r in range(4):
            e(f"v_bfi_b32 v{dst+r}, s44, v{2+r}, v{src+r}")
    def tagcheck(regs, tmp):
        first = True
        for base in regs:
            for r in range(4):
                if first:
                    e(f"v_xor_b32 v{tmp}, v{base+r}, v{2+r}"); first = False
                else:
                    e(f"v_bitop3_b32 v{tmp}, v{base+r}, v{2+r}, v{tmp} bitop3:0xbe")
        e(f"v_and_b32 v{tmp}, s44, v{tmp}")
        e(f"v_cmp_eq_u32 vcc, 0, v{tmp}")
    pollid = [0]
    def poll(issue, regs, tmp, cnt="s4", nosleep=False):
        n = pollid[0]; pollid[0] += 1
        e(f"s_mov_b32 {cnt}, s100")
        A.label(f"L_poll{n}")
        issue()
        e("s_waitcnt vmcnt(0)")
        tagcheck(regs, tmp)
        e("s_cmp_eq_u64 vcc, exec")
        e(f"s_cbranch_scc1 L_pdone{n}")
        if sleep and not nosleep: e(f"s_sleep {sleep}")
        e(f"s_sub_u32 {cnt}, {cnt}, 1")
        e(f"s_cmp_lg_u32 {cnt}, 0")
        e(f"s_cbranch_scc1 L_poll{n}")
        A.label(f"L_pdone{n}")
    def ldsspin(addr, target, nosleep=False):
        n = pollid[0]; pollid[0] += 1
        e(f"s_mov_b32 s4, {SPIN}")
        e(f"v_mov_b32 v20, {addr}")
        A.label(f"L_poll{n}")
        e("ds_read_b32 v21, v20")
        e("s_waitcnt lgkmcnt(0)")
        e("v_readfirstlane_b32 s6, v21")
        e(f"s_cmp_ge_u32 s6, {target}")
        e(f"s_cbranch_scc1 L_pdone{n}")
        if sleep and not nosleep: e(f"s_sleep {sleep}")
        e("s_sub_u32 s4, s4, 1")
        e("s_cmp_lg_u32 s4, 0")
        e(f"s_cbranch_scc1 L_poll{n}")
        A.label(f"L_pdone{n}")

    def dispatcher():
        if static_tail: return
        e("s_cmp_eq_u32 s3, 0")
        e("s_cbranch_scc0 L_nodisp")
        e("s_lshl_b32 s94, s34, 8")
        e(f"s_add_u32 s94, s94, {CNT}")
        e("s_add_u32 s56, s32, s94\ns_addc_u32 s57, s33, 0\ns_and_b32 s57, s57, 0xffff\ns_mov_b32 s58, 4\ns_mov_b32 s59, 0x20000")
        e("v_mov_b32 v13, 0")
        e(f"v_mov_b32 v14, {L_WANT}")
        e("s_mov_b32 s90, 0")
        e(f"s_mov_b32 s4, {SPIN * 8}")
        e("s_mov_b64 exec, 1")
        A.label("L_dloop")
        e("ds_read_b32 v15, v14")
        e("s_waitcnt lgkmcnt(0)")
        e("v_readfirstlane_b32 s91, v15")
        e("s_cmp_gt_u32 s91, s90")
        e("s_cbranch_scc1 L_dget")
        e("s_sleep 1")
        e("s_sub_u32 s4, s4, 1")
        e("s_cmp_lg_u32 s4, 0")
        e("s_cbranch_scc1 L_dloop")
        e("s_mov_b32 s92, 256")
        e("s_branch L_dput")
        A.label("L_dget")
        e("v_mov_b32 v15, 1")
        e("buffer_atomic_add v15, v13, s[56:59], 0 offen sc0 sc1")
        e("s_waitcnt vmcnt(0)")
        e("v_readfirstlane_b32 s91, v15")
        e("s_mov_b32 s92, 256")
        k0, st0 = 0, 128
        for gi, (cnt, nper) in enumerate(gss):
            e(f"s_sub_u32 s93, s91, {k0}")
            if kpat:
                assert cnt % 8 == 0
                e("s_and_b32 s94, s93, 7")
                e("s_lshl_b32 s94, s94, 1")
                e("s_lshr_b32 s95, s93, 3")
                e(f"s_mul_i32 s95, s95, {16*nper}")
                e("s_add_u32 s94, s94, s95")
                e(f"s_add_u32 s94, s94, {st0 + (nper << 16)}")
            else:
                e(f"s_mul_i32 s94, s93, {2*nper}")
                e(f"s_add_u32 s94, s94, {st0 + (nper << 16)}")
            e(f"s_cmp_lt_u32 s93, {cnt}")
            e("s_cselect_b32 s92, s94, s92")
            k0 += cnt; st0 += cnt * 2 * nper
        assert st0 == 256, st0
        A.label("L_dput")
        e("s_lshl_b32 s93, s90, 2")
        e(f"s_add_u32 s93, s93, {L_MB}")
        e("v_mov_b32 v15, s93")
        e("v_mov_b32 v16, s92")
        e("ds_write_b32 v15, v16")
        e("s_add_u32 s90, s90, 1")
        e("s_cmp_eq_u32 s92, 256")
        e("s_cbranch_scc0 L_dloop")
        e("s_waitcnt lgkmcnt(0)")
        e("s_mov_b64 exec, -1")
        A.label("L_nodisp")

    make_tags()
    e("s_cmp_eq_u32 s3, 1")
    e("s_cbranch_scc1 L_hpub")
    e("s_waitcnt vmcnt(0)")
    tagpack(74, 70)
    e("v_lshlrev_b32 v13, 4, v0")
    e("s_lshl_b32 s36, s2, 10")
    e(f"s_add_u32 s36, s36, {QP}")
    e("buffer_store_dwordx4 v[74:77], v13, s[48:51], s36 offen sc1")
    stamp(4)
    pst(11)
    e("v_lshlrev_b32 v13, 4, v0")
    e("s_lshl_b32 s36, s34, 13")
    e(f"s_add_u32 s36, s36, {QP}")
    e("s_add_u32 s37, s36, 4096")
    def issue_q():
        for k in range(8):
            e(f"buffer_load_dwordx4 v[{20+4*k}:{23+4*k}], v13, s[48:51], s{36 + k//4} offen offset:{1024*(k%4)} sc1")
    poll(issue_q, [20 + 4 * k for k in range(8)], 52)
    pst(12)
    for r in range(4):
        for k in range(8): e(f"v_and_b32 v{20+4*k+r}, s45, v{20+4*k+r}")
        for k in (0, 2, 4, 6): e(f"v_add_f32 v{20+4*k+r}, v{20+4*k+r}, v{24+4*k+r}")
        e(f"v_add_f32 v{20+r}, v{20+r}, v{28+r}")
        e(f"v_add_f32 v{36+r}, v{36+r}, v{44+r}")
        e(f"v_add_f32 v{20+r}, v{20+r}, v{36+r}")
    e("v_cvt_pk_bf16_f32 v24, v20, v21")
    e("v_cvt_pk_bf16_f32 v25, v22, v23")
    e("v_lshlrev_b32 v13, 8, v11")
    e("v_lshl_add_u32 v13, v10, 6, v13")
    e("v_and_b32 v14, 7, v0")
    e("v_lshl_add_u32 v13, v14, 1, v13")
    e(f"ds_write_b16 v13, v24 offset:{L_Q}")
    e(f"ds_write_b16_d16_hi v13, v24 offset:{L_Q+16}")
    e(f"ds_write_b16 v13, v25 offset:{L_Q+32}")
    e(f"ds_write_b16_d16_hi v13, v25 offset:{L_Q+48}")
    e("s_waitcnt lgkmcnt(0)")
    e(f"v_mov_b32 v13, {L_FQ}")
    e("v_mov_b32 v14, 1")
    e("ds_write_b32 v13, v14")
    stamp(5)
    pst(13)
    e("s_branch L_barA")
    A.label("L_hpub")
    e("s_cmp_ge_u32 s2, 252")
    e("s_cbranch_scc1 L_barA")
    e("v_lshlrev_b32 v13, 9, v11")
    e("v_lshl_add_u32 v13, v10, 7, v13")
    e("v_and_b32 v14, 7, v0")
    e("v_lshl_add_u32 v13, v14, 2, v13")
    for r in range(4):
        e(f"ds_write_b32 v13, v{70+r} offset:{L_HT + 32*r}")
    e("v_lshlrev_b32 v14, 4, v0")
    e("s_waitcnt lgkmcnt(0)")
    e(f"ds_read_b128 v[70:73], v14 offset:{L_HT}")
    e("v_lshrrev_b32 v13, 5, v0")
    e("v_mul_u32_u24 v13, 18432, v13")
    e("v_and_b32 v14, 31, v0")
    e("v_lshl_add_u32 v13, v14, 4, v13")
    e("s_mul_hi_u32 s43, s2, 0x71c71c8")
    e("s_mul_i32 s36, s43, 36")
    e("s_sub_u32 s36, s2, s36")
    e("s_lshl_b32 s36, s36, 9")
    e("s_mul_i32 s37, s43, 36864")
    e("s_add_u32 s36, s36, s37")
    e(f"s_add_u32 s36, s36, {HP}")
    e("s_waitcnt lgkmcnt(0)")
    tagpack(74, 70)
    e("buffer_store_dwordx4 v[74:77], v13, s[48:51], s36 offen sc1")
    stamp(4)
    e("s_branch L_barA")
    A.label("L_aux23")
    e("s_mov_b64 exec, 1")
    e(f"v_mov_b32 v13, {L_FC}")
    e("v_mov_b32 v14, 0")
    e("v_mov_b32 v15, 0")
    e("ds_write_b64 v13, v[14:15]")
    if 'noq' in diag: e("v_mov_b32 v15, 1")
    e("ds_write_b64 v13, v[14:15] offset:8")
    e("s_mov_b64 exec, -1")
    e("v_lshlrev_b32 v13, 2, v0")
    e("v_mov_b32 v14, -1")
    e(f"ds_write_b32 v13, v14 offset:{L_MB}")
    e("s_waitcnt lgkmcnt(0)")
    e("s_load_dwordx2 s[46:47], s[32:33], 0")
    e(f"s_mov_b32 s48, s32\ns_and_b32 s49, s33, 0xffff\ns_mov_b32 s50, {WS_BYTES}\ns_mov_b32 s51, 0x20000")
    if tlb:
        e("s_cmp_eq_u32 s3, 2")
        e("s_cbranch_scc0 L_notlb")
        e("v_lshlrev_b32 v13, 16, v0")
        e("s_cmp_lt_u32 s2, 16")
        e(f"s_cselect_b32 s50, 0x300000, 0")
        e("buffer_load_dword v120, v13, s[48:51], 0 offen")
        e(f"s_mov_b32 s50, {WS_BYTES}")
        e("s_lshr_b32 s36, s2, 1")
        e("v_lshlrev_b32 v14, 15, v0")
        e("s_mul_i32 s37, s36, 36864")
        e("s_add_u32 s60, s16, s37\ns_addc_u32 s61, s17, 0\ns_and_b32 s61, s61, 0xffff\ns_mov_b32 s62, 36864\ns_mov_b32 s63, 0x20000")
        e("buffer_load_dword v121, v14, s[60:63], 0 offen")
        e("s_mul_i32 s37, s36, 41472")
        e("s_add_u32 s60, s24, s37\ns_addc_u32 s61, s25, 0\ns_and_b32 s61, s61, 0xffff\ns_mov_b32 s62, 41472")
        e("buffer_load_dword v122, v14, s[60:63], 0 offen")
        e("s_mov_b32 s60, s28\ns_and_b32 s61, s29, 0xffff\ns_mov_b32 s62, 4")
        e("buffer_load_dword v123, v14, s[60:63], 0 offen")
        e("s_mov_b32 s60, s26\ns_and_b32 s61, s27, 0xffff")
        e("buffer_load_dword v124, v14, s[60:63], 0 offen")
        e("s_mov_b32 s60, s22\ns_and_b32 s61, s23, 0xffff")
        e("buffer_load_dword v125, v14, s[60:63], 0 offen")
        A.label("L_notlb")
    if bar0: e("s_barrier")
    masks()
    make_tags()
    A.label("L_barA")
    stamp(6)
    if wmode != 'early': dispatcher()
    if warm:
        e("s_cmp_eq_u32 s3, 1")
        e("s_cbranch_scc0 L_nodry1")
        e("s_cmp_lt_u32 s2, 36")
        e("s_cbranch_scc0 L_nodry1")
        e("s_mov_b32 s100, 1\ns_mov_b32 s101, 1\ns_mov_b32 s50, 0")
        e("s_branch L_red")
        A.label("L_drydone1")
        e(f"s_mov_b32 s100, {SPIN}\ns_mov_b32 s101, 0\ns_mov_b32 s50, {WS_BYTES}")
        A.label("L_nodry1")
    e("s_and_b32 s36, s35, 1")
    e("s_lshr_b32 s37, s2, 1")
    e("s_mov_b32 s40, 2\ns_mov_b32 s41, 0")
    e("s_cmp_ge_u32 s3, 2")
    e("s_cbranch_scc1 L_t23")
    e("s_mov_b32 s38, 0")
    e("s_lshl_b32 s39, s36, 1")
    e("s_add_u32 s39, s39, s3")
    e("s_branch L_tdone")
    A.label("L_t23")
    e("s_mov_b32 s38, 1")
    e("s_lshl_b32 s39, s36, 1")
    e("s_sub_u32 s39, s3, s39")
    e("s_cmp_eq_u32 s3, 2")
    e("s_cbranch_scc0 L_th2")
    e("s_mov_b32 s41, 4")
    e("s_xor_b32 s40, s36, 1")
    A.label("L_th2")
    e("s_mov_b64 exec, 0x3ffff")
    e("v_cmp_le_u32 vcc, 9, v0")
    e("v_cndmask_b32 v13, 0, 1, vcc")
    e("v_mul_u32_u24 v14, 9, v13")
    e("v_sub_u32 v14, v0, v14")
    e("v_mul_u32_u24 v15, 18432, v13")
    e("v_lshl_add_u32 v15, v14, 4, v15")
    e("s_mul_i32 s42, s37, 144")
    e(f"s_add_u32 s42, s42, {HP}")
    e("s_mov_b32 s60, s22\ns_and_b32 s61, s23, 0xffff\ns_mov_b32 s62, 9216\ns_mov_b32 s63, 0x20000")
    e("s_mul_i32 s43, s37, 72")
    e("v_lshlrev_b32 v16, 3, v14")
    e("buffer_load_dwordx2 v[18:19], v16, s[60:63], s43 offen")
    def issue_h():
        e("s_mov_b32 s43, s42")
        for k in range(7):
            e(f"buffer_load_dwordx4 v[{20+4*k}:{23+4*k}], v15, s[48:51], s43 offen sc1")
            if k < 6: e("s_add_u32 s43, s43, 36864")
    poll(issue_h, [20 + 4 * k for k in range(7)], 48)
    for r in range(4):
        for k in range(7): e(f"v_and_b32 v{20+4*k+r}, s45, v{20+4*k+r}")
        for k in range(1, 7): e(f"v_add_f32 v{20+r}, v{20+r}, v{20+4*k+r}")
    e("v_lshlrev_b32 v24, 16, v18\nv_and_b32 v25, 0xffff0000, v18\nv_lshlrev_b32 v26, 16, v19\nv_and_b32 v27, 0xffff0000, v19")
    for r in range(4):
        e(f"v_cvt_pk_bf16_f32 v{20+r}, v{20+r}, v{20+r}")
        e(f"v_and_b32 v{20+r}, 0xffff0000, v{20+r}")
        e(f"v_add_f32 v{20+r}, v{20+r}, v{24+r}")
        e(f"v_cvt_pk_bf16_f32 v{20+r}, v{20+r}, v{20+r}")
        e(f"v_and_b32 v{20+r}, 0xffff0000, v{20+r}")
        e(f"v_max_f32 v{20+r}, 0, v{20+r}")
        e(f"v_mul_f32 v{20+r}, v{20+r}, v{20+r}")
        e(f"v_cvt_pk_bf16_f32 v{20+r}, v{20+r}, v{20+r}")
    e("v_mul_u32_u24 v16, 144, v13")
    e("v_lshl_add_u32 v16, v14, 4, v16")
    e("s_lshl_b32 s43, s3, 10")
    e("v_add_u32 v16, s43, v16")
    e(f"ds_write_b128 v16, v[20:23] offset:{L_PRIV}")
    e("s_mov_b64 exec, -1")
    e("s_waitcnt lgkmcnt(0)")
    A.label("L_tdone")
    stamp(7)
    def task_srd(srd, typ, beta, voff):
        n = pollid[0]; pollid[0] += 1
        e(f"s_cmp_eq_u32 {typ}, 1")
        e(f"s_cbranch_scc1 L_sw2_{n}")
        e("s_mul_i32 s42, s37, 36864")
        e(f"s_lshl_b32 s43, {beta}, 8")
        e("s_add_u32 s42, s42, s43")
        e(f"s_add_u32 s{srd}, s16, s42\ns_addc_u32 s{srd+1}, s17, 0")
        e(f"s_sub_u32 s{srd+2}, 4718592, s42")
        e("s_mov_b32 s43, 9216")
        e(f"s_branch L_sd_{n}")
        A.label(f"L_sw2_{n}")
        e("s_mul_i32 s42, s37, 41472")
        e(f"s_lshl_b32 s43, {beta}, 8")
        e("s_add_u32 s42, s42, s43")
        e(f"s_add_u32 s{srd}, s24, s42\ns_addc_u32 s{srd+1}, s25, 0")
        e(f"s_sub_u32 s{srd+2}, 5308416, s42")
        e("s_mov_b32 s43, 10368")
        A.label(f"L_sd_{n}")
        e(f"s_and_b32 s{srd+1}, s{srd+1}, 0xffff\ns_mov_b32 s{srd+3}, 0x20000")
        e(f"s_cmp_eq_u32 {typ}, 2")
        e(f"s_cselect_b32 s{srd+2}, 0, s{srd+2}")
        e(f"v_mul_lo_u32 v{voff}, v10, s43")
        e(f"v_lshl_add_u32 v{voff}, v12, 4, v{voff}")
        e(f"v_mov_b32 v19, {OOB}")
        e("v_cmp_le_u32 vcc, 8, v12")
        e(f"v_cndmask_b32 v18, v{voff}, v19, vcc")
        e(f"s_cmp_eq_u32 {beta}, 4")
        e(f"s_cbranch_scc0 L_se_{n}")
        e(f"v_mov_b32 v{voff}, v18")
        A.label(f"L_se_{n}")
    task_srd(52, "s38", "s39", 13)
    task_srd(56, "s40", "s41", 14)
    if 'nowo' in diag:
        e("s_mov_b32 s54, 0\ns_mov_b32 s58, 0")
    e(f"v_mov_b32 v19, {OOB}")
    e("s_cmp_eq_u32 s38, 0\ns_cselect_b64 vcc, -1, 0")
    e("v_cndmask_b32 v15, v13, v19, vcc")
    e("s_cmp_eq_u32 s40, 0\ns_cselect_b64 vcc, -1, 0")
    e("v_cndmask_b32 v16, v14, v19, vcc")
    e("v_lshrrev_b32 v90, 3, v0")
    e("v_lshlrev_b32 v90, 14, v90")
    e("v_and_b32 v91, 7, v0")
    e("v_lshl_add_u32 v90, v91, 4, v90")
    e("v_cmp_le_u32 vcc, 32, v0")
    e("v_cndmask_b32 v92, v90, v19, vcc")
    e("s_cmp_eq_u32 s41, 4\ns_cselect_b64 vcc, -1, 0")
    e("v_cndmask_b32 v91, v90, v92, vcc")
    e("s_cmp_eq_u32 s39, 4\ns_cselect_b64 vcc, -1, 0")
    e("v_cndmask_b32 v90, v90, v92, vcc")
    for (typ, beta, dst) in (("s38", "s39", "s96"), ("s40", "s41", "s97")):
        e(f"s_mov_b32 {dst}, {SP}")
        e(f"s_cmp_eq_u32 {typ}, 1")
        e(f"s_cselect_b32 {dst}, {GP}, {dst}")
        e(f"s_lshl_b32 s42, {beta}, 17")
        e(f"s_add_u32 {dst}, {dst}, s42")
        e("s_lshl_b32 s42, s37, 7")
        e(f"s_add_u32 {dst}, {dst}, s42")
    e("v_and_b32 v93, 3, v0")
    e("v_bfe_u32 v94, v0, 4, 1")
    e("v_lshl_add_u32 v93, v94, 2, v93")
    e("v_bfe_u32 v94, v0, 2, 2")
    e("v_lshrrev_b32 v95, 5, v0")
    e("v_lshlrev_b32 v96, 12, v95")
    e("v_lshl_add_u32 v96, v94, 9, v96")
    e("v_lshl_add_u32 v96, v93, 4, v96")
    e("v_lshlrev_b32 v97, 7, v95")
    e("v_lshl_add_u32 v97, v94, 4, v97")
    e("s_lshr_b32 s98, s35, 1")
    e("s_lshl_b32 s98, s98, 7")
    e("s_lshl_b32 s42, s34, 13")
    e("s_add_u32 s98, s98, s42")
    e(f"s_add_u32 s98, s98, {OP}")
    e("s_lshl_b32 s99, s34, 8")
    e(f"s_add_u32 s99, s99, {ML}")
    e("s_lshl_b32 s42, s3, 10")
    e(f"s_add_u32 s42, s42, {L_PRIV + 0x200}")
    e("v_lshlrev_b32 v98, 7, v95")
    e("v_lshl_add_u32 v98, v93, 4, v98")
    e("v_add_u32 v98, s42, v98")
    e("v_lshlrev_b32 v99, 7, v11")
    e("v_lshl_add_u32 v99, v10, 5, v99")
    e("v_add_u32 v99, s42, v99")
    e("s_cmp_ge_u32 s3, 2")
    e("s_cbranch_scc0 L_noh2")
    e("v_mul_u32_u24 v20, 144, v11")
    e("v_mad_u32_u24 v20, v10, 36, v20")
    e("s_lshl_b32 s42, s3, 10")
    e("v_add_u32 v20, s42, v20")
    for t in range(9):
        e(f"ds_read_b32 v{100+t}, v20 offset:{L_PRIV + 4*t}")
    e("s_waitcnt lgkmcnt(0)")
    A.label("L_noh2")
    e("v_and_b32 v110, 31, v0")
    e("v_lshlrev_b32 v110, 4, v110")
    e("v_lshl_add_u32 v111, v95, 9, v110")
    e("v_lshlrev_b32 v112, 3, v95")
    e("v_lshl_add_u32 v113, v95, 12, v110")
    e("v_lshlrev_b32 v114, 7, v95")
    e("s_lshl_b32 s60, s34, 13")
    e("s_lshl_b32 s43, s35, 9")
    e("s_add_u32 s60, s60, s43")
    e(f"s_add_u32 s60, s60, {OP}")
    e("s_lshl_b32 s61, s34, 8")
    e("s_lshl_b32 s43, s35, 4")
    e("s_add_u32 s61, s61, s43")
    e(f"s_add_u32 s61, s61, {ML}")
    e(f"s_mov_b32 s62, 0x{LOG2E:x}")
    if warm:
        e("s_cmp_eq_u32 s3, 1")
        e("s_cbranch_scc1 L_dry2")
        e("s_cmp_eq_u32 s3, 3")
        e("s_cbranch_scc0 L_nodry2")
        e("s_mov_b32 s100, 1\ns_mov_b32 s101, 1\ns_mov_b32 s50, 0")
        e("s_branch L_comb")
        A.label("L_dry2")
        e("s_mov_b32 s100, 1\ns_mov_b32 s101, 1\ns_mov_b32 s50, 0")
        e("s_branch L_btX")
        A.label("L_drydone2")
        e(f"s_mov_b32 s100, {SPIN}\ns_mov_b32 s101, 0\ns_mov_b32 s50, {WS_BYTES}")
        A.label("L_nodry2")
    if wmode == 'flagC': ldsspin(L_FC, 4)
    if wmode == 'flagB': ldsspin(L_FB, 4)
    stamp(8)
    e("s_mov_b32 s42, 0")
    for t in range(9):
        vo = 13 if t < 8 else 15
        e(f"buffer_load_dwordx4 a[{4*t}:{4*t+3}], v{vo}, s[52:55], s42 offen{NT}")
        e("s_add_u32 s42, s42, 1152") if t < 8 else None
    e("s_mov_b32 s42, 0")
    for t in range(9):
        vo = 14 if t < 8 else 16
        e(f"buffer_load_dwordx4 a[{36+4*t}:{36+4*t+3}], v{vo}, s[56:59], s42 offen{NT}")
        e("s_add_u32 s42, s42, 1152") if t < 8 else None
    if wmode == 'early': dispatcher()
    e("s_cmp_eq_u32 s3, 3")
    e("s_cbranch_scc0 L_nocomb")
    ldsspin(L_FB, 4, nosleep=True)
    stamp(9)
    A.label("L_comb")
    e(f"ds_read_b64 v[40:41], v112 offset:{L_MLW}")
    e(f"ds_read_b64 v[42:43], v112 offset:{L_MLW+16}")
    e(f"ds_read_b128 v[24:27], v111 offset:{L_OW}")
    e(f"ds_read_b128 v[28:31], v111 offset:{L_OW + 1024}")
    e("s_waitcnt lgkmcnt(2)")
    e("v_max_f32 v48, v40, v42")
    e("v_sub_f32 v40, v40, v48\nv_sub_f32 v42, v42, v48")
    e("v_mul_f32 v40, s62, v40\nv_mul_f32 v42, s62, v42")
    e("v_exp_f32 v40, v40\nv_exp_f32 v42, v42")
    e("v_mov_b32 v52, 0\nv_mov_b32 v53, 0")
    e("v_mul_f32 v49, v40, v41")
    e("v_fmac_f32 v49, v42, v43")
    e("s_waitcnt lgkmcnt(0)")
    for r in range(4):
        e(f"v_mul_f32 v{44+r}, v40, v{24+r}")
    for r in range(4):
        e(f"v_fmac_f32 v{44+r}, v42, v{28+r}")
    tagpack(54, 44)
    e("buffer_store_dwordx4 v[54:57], v113, s[48:51], s60 offen sc1")
    e(f"v_bfi_b32 v58, s44, v2, v48\nv_bfi_b32 v59, s44, v3, v49\nv_bfi_b32 v60, s44, v4, v52\nv_bfi_b32 v61, s44, v5, v53")
    e("s_mov_b32 exec_lo, 1\ns_mov_b32 exec_hi, 1")
    e("buffer_store_dwordx4 v[58:61], v114, s[48:51], s61 offen sc1")
    e("s_mov_b64 exec, -1")
    if warm:
        e("s_cmp_lg_u32 s101, 0")
        e("s_cbranch_scc1 L_drydone2")
    stamp(10)
    A.label("L_nocomb")

    def mchain(n, srcs, abase):
        def bb(t):
            B = 76 + 4 * (t & 1)
            for jj in range(4): e(f"v_and_b32 v{B+jj}, v{srcs[t]}, v{6+jj}")
        def mm(t):
            B = 76 + 4 * (t & 1)
            c = "0" if t == 0 else "v[70:73]"
            e(f"v_mfma_f32_16x16x32_bf16 v[70:73], a[{abase+4*t}:{abase+4*t+3}], v[{B}:{B+3}], {c}")
        bb(0); bb(1)
        for t in range(n):
            mm(t)
            if t + 2 < n: bb(t + 2)
    def blocktask(which, typ, abase, vst, sst):
        n = pollid[0]; pollid[0] += 1
        e(f"s_cmp_eq_u32 {typ}, 2")
        e(f"s_cbranch_scc1 L_bt_end{n}")
        e(f"s_cmp_eq_u32 {typ}, 1")
        e(f"s_cbranch_scc1 L_bt_w2{n}")
        def issue_o():
            e("buffer_load_dwordx4 v[24:27], v96, s[48:51], s98 offen sc1")
            e("buffer_load_dwordx4 v[36:39], v96, s[48:51], s98 offen offset:2048 sc1")
            e("buffer_load_dwordx4 v[28:31], v97, s[48:51], s99 offen sc1")
            e("buffer_load_dwordx4 v[40:43], v97, s[48:51], s99 offen offset:64 sc1")
        poll(issue_o, [24, 36, 28, 40], 32, nosleep=True)
        stamp(11)
        if not nomask:
            for r in (24, 25, 26, 27, 36, 37, 38, 39, 28, 29, 40, 41): e(f"v_and_b32 v{r}, s45, v{r}")
        e("v_max_f32 v30, v28, v40")
        e("v_max_f32_dpp v30, v30, v30 row_ror:4 row_mask:0xf bank_mask:0xf")
        e("v_max_f32_dpp v30, v30, v30 row_ror:8 row_mask:0xf bank_mask:0xf")
        e("v_sub_f32 v28, v28, v30\nv_sub_f32 v40, v40, v30")
        e("v_mul_f32 v28, s62, v28\nv_mul_f32 v40, s62, v40")
        e("v_exp_f32 v28, v28\nv_exp_f32 v40, v40")
        e("v_mul_f32 v29, v29, v28")
        for r in range(4): e(f"v_mul_f32 v{24+r}, v{24+r}, v28")
        e("v_fmac_f32 v29, v41, v40")
        for r in range(4): e(f"v_fmac_f32 v{24+r}, v{36+r}, v40")
        for r in (29, 24, 25, 26, 27):
            e(f"v_add_f32_dpp v{r}, v{r}, v{r} row_ror:4 row_mask:0xf bank_mask:0xf")
        for r in (29, 24, 25, 26, 27):
            e(f"v_add_f32_dpp v{r}, v{r}, v{r} row_ror:8 row_mask:0xf bank_mask:0xf")
        e("v_rcp_f32 v29, v29")
        for r in range(4): e(f"v_mul_f32 v{24+r}, v{24+r}, v29")
        for r in range(4): e(f"v_cvt_pk_bf16_f32 v{24+r}, v{24+r}, v{24+r}")
        e("ds_write_b128 v98, v[24:27]")
        e("s_waitcnt lgkmcnt(0)")
        e("ds_read_b128 v[24:27], v99")
        e("ds_read_b128 v[28:31], v99 offset:16")
        e("s_waitcnt lgkmcnt(0)")
        mchain(8, [24 + t for t in range(8)], abase)
        e(f"s_branch L_bt_pub{n}")
        A.label(f"L_bt_w2{n}")
        e(f"s_waitcnt vmcnt({0 if which == 'Y' else 9})") if False else e("s_waitcnt vmcnt(0)")
        mchain(9, [100 + t for t in range(9)], abase)
        A.label(f"L_bt_pub{n}")
        tagpack(74, 70)
        e(f"buffer_store_dwordx4 v[74:77], v{vst}, s[48:51], {sst} offen sc1")
        A.label(f"L_bt_end{n}")
    A.label("L_btX")
    blocktask("X", "s38", 0, 90, "s96")
    if warm:
        e("s_cmp_lg_u32 s101, 0")
        e("s_cbranch_scc1 L_drydone2")
    dbg(4)
    stamp(12)
    blocktask("Y", "s40", 36, 91, "s97")
    stamp(13)

    e("s_cmp_ge_u32 s2, 36")
    e("s_cbranch_scc1 L_auxend")
    A.label("L_red")
    e("s_lshr_b32 s36, s2, 3")
    e("s_and_b32 s37, s2, 7")
    e("s_lshl_b32 s38, s36, 7")
    e("s_lshr_b32 s39, s37, 1")
    e("s_lshl_b32 s39, s39, 5")
    e("s_add_u32 s38, s38, s39")
    e("s_and_b32 s39, s37, 1")
    e("s_mul_i32 s39, s39, 576")
    e("s_add_u32 s39, s39, s38")
    e("s_mov_b32 s60, s8\ns_and_b32 s61, s9, 0xffff\ns_mov_b32 s62, 2304\ns_mov_b32 s63, 0x20000")
    e("s_mov_b32 s56, s26\ns_and_b32 s57, s27, 0xffff\ns_mov_b32 s58, 1152\ns_mov_b32 s59, 0x20000")
    e("v_lshlrev_b32 v13, 1, v0")
    e("s_lshl_b32 s40, s39, 1")
    e("s_lshl_b32 s41, s38, 1")
    e("v_and_b32 v16, 3, v0")
    e("v_bfe_u32 v17, v0, 4, 1")
    e("v_lshl_add_u32 v16, v17, 2, v16")
    e("v_bfe_u32 v17, v0, 2, 2")
    e("v_lshrrev_b32 v18, 5, v0")
    e("v_lshl_add_u32 v17, v18, 2, v17")
    e("v_lshlrev_b32 v19, 4, v16")
    e("v_lshl_add_u32 v16, v17, 7, v19")
    e("v_lshl_add_u32 v17, v18, 7, v19")
    e("s_lshl_b32 s43, s3, 8")
    e("v_add_u32 v17, s43, v17")
    e("s_lshl_b32 s42, s2, 14")
    e("s_lshl_b32 s43, s3, 12")
    e("s_add_u32 s42, s42, s43")
    e(f"s_add_u32 s43, s42, {SP}")
    e(f"s_add_u32 s42, s42, {GP}")
    e("s_mov_b32 exec_lo, -1\ns_mov_b32 exec_hi, 0")
    e("buffer_load_ushort v14, v13, s[60:63], s40 offen")
    e("buffer_load_ushort v15, v13, s[56:59], s41 offen")
    e("s_mov_b64 exec, -1")
    e("s_mov_b32 s60, s28\ns_and_b32 s61, s29, 0xffff")
    def issue_r():
        for k in range(4):
            e(f"buffer_load_dwordx4 v[{20+4*k}:{23+4*k}], v16, s[48:51], s42 offen offset:{1024*k} sc1")
        for k in range(4):
            e(f"buffer_load_dwordx4 v[{36+4*k}:{39+4*k}], v16, s[48:51], s43 offen offset:{1024*k} sc1")
    poll(issue_r, [20 + 4 * k for k in range(8)], 52, nosleep=True)
    stamp(14)
    for base in (20, 36):
        for r in range(4):
            if not nomask:
                for k in range(4): e(f"v_and_b32 v{base+4*k+r}, s45, v{base+4*k+r}")
        for r in range(4): e(f"v_add_f32 v{base+r}, v{base+r}, v{base+4+r}")
        for r in range(4): e(f"v_add_f32 v{base+8+r}, v{base+8+r}, v{base+12+r}")
        for r in range(4): e(f"v_add_f32 v{base+r}, v{base+r}, v{base+8+r}")
    for sh in (4, 8):
        for base in (20, 36):
            for r in range(4):
                e(f"v_add_f32_dpp v{base+r}, v{base+r}, v{base+r} row_ror:{sh} row_mask:0xf bank_mask:0xf")
    e(f"ds_write_b128 v17, v[20:23] offset:{L_RED}")
    e(f"ds_write_b128 v17, v[36:39] offset:{L_RED + 1024}")
    e("v_and_b32 v17, 7, v0")
    e("v_lshlrev_b32 v17, 4, v17")
    e("v_bfe_u32 v18, v0, 3, 2")
    e("v_lshl_add_u32 v17, v18, 2, v17")
    e("s_waitcnt lgkmcnt(0)")
    if warm:
        e("s_cmp_lg_u32 s101, 0")
        e("s_cbranch_scc1 L_redfin")
    e("s_barrier")
    e("s_cmp_eq_u32 s3, 0")
    e("s_cbranch_scc0 L_auxend")
    A.label("L_redfin")
    for kind in range(2):
        for a in range(8):
            e(f"ds_read_b32 v{20+8*kind+a}, v17 offset:{L_RED + 1024*kind + 128*a}")
    e("v_lshlrev_b32 v14, 16, v14")
    e("v_lshlrev_b32 v15, 16, v15")
    e("s_waitcnt lgkmcnt(8)")
    def sum8(b):
        for k in (0, 2, 4, 6): e(f"v_add_f32 v{b+k}, v{b+k}, v{b+k+1}")
        e(f"v_add_f32 v{b}, v{b}, v{b+2}")
        e(f"v_add_f32 v{b+4}, v{b+4}, v{b+6}")
        e(f"v_add_f32 v{b}, v{b}, v{b+4}")
    def rnd(r):
        e(f"v_cvt_pk_bf16_f32 v{r}, v{r}, v{r}")
        e(f"v_and_b32 v{r}, 0xffff0000, v{r}")
    sum8(20)
    rnd(20)
    e("v_add_f32 v20, v20, v15")
    rnd(20)
    e(f"v_mul_f32 v21, 0x{(LOG2E ^ 0x80000000):x}, v20")
    e("v_exp_f32 v21, v21")
    e("s_waitcnt lgkmcnt(0)")
    sum8(28)
    e("v_add_f32 v21, 1.0, v21")
    e("v_rcp_f32 v21, v21")
    rnd(28)
    e("v_mul_f32 v20, v20, v21")
    rnd(20)
    e("v_mul_f32 v20, v28, v20")
    rnd(20)
    e("v_add_f32 v20, v14, v20")
    e("v_cvt_pk_bf16_f32 v20, v20, v20")
    if warm:
        e("s_cmp_lg_u32 s101, 0")
        e("s_cselect_b32 s62, 0, s62")
    e("s_mov_b32 exec_lo, -1\ns_mov_b32 exec_hi, 0")
    e("buffer_store_short v20, v13, s[60:63], s40 offen" + (" sc0 sc1" if outsc1 else ""))
    e("s_mov_b64 exec, -1")
    if warm:
        e("s_cmp_lg_u32 s101, 0")
        e("s_cbranch_scc1 L_drydone1")
    dbg(5)
    stamp(15)
    e("s_cmp_eq_u32 s2, 0")
    e("s_cbranch_scc0 L_auxend")
    e("s_mov_b64 exec, 1")
    e("v_mov_b32 v20, s46\nv_mov_b32 v21, s47\nv_mov_b32 v22, 0")
    e("buffer_store_dwordx2 v[20:21], v22, s[48:51], 0 offen sc1")
    e("s_mov_b64 exec, -1")
    A.label("L_auxend")
    stamp(15 + 1) if False else None
    dump_stamps(16)
    A.label("L_end")
    e("s_endpgm")
    st = A.items[MARK_STREAM0:MARK_STREAM1]
    A.items = A.items[:MARK_STREAM0] + A.items[MARK_STREAM1:] + st
    A.label("L_codeend")
    e("s_endpgm")
    A.raw('.section .rodata,"a"')
    A.raw(".p2align 6")
    A.raw(f".amdhsa_kernel {NAME}")
    acc = 40 + 16 * D
    acc = (acc + 3) // 4 * 4
    A.raw(f"  .amdhsa_next_free_vgpr {acc + max(16 * D, 88)}")
    A.raw("  .amdhsa_next_free_sgpr 102")
    A.raw(f"  .amdhsa_accum_offset {acc}")
    A.raw("  .amdhsa_group_segment_fixed_size 0")
    A.raw("  .amdhsa_kernarg_size 104")
    A.raw("  .amdhsa_user_sgpr_count 2")
    A.raw("  .amdhsa_user_sgpr_kernarg_segment_ptr 1")
    A.raw("  .amdhsa_system_sgpr_workgroup_id_x 1")
    A.raw("  .amdhsa_float_denorm_mode_32 3")
    A.raw(".end_amdhsa_kernel")
    n = A.fix_hazards()
    return A.text(), n

if __name__ == "__main__":
    cfg = json.loads(sys.argv[2]) if len(sys.argv) > 2 else {}
    t, n = gen(**cfg)
    hdr = open("cdna_kernels/" + NAME[:-7] + ".s.ref").read().split("; Override launch")[0]
    lines = t.split("\n")
    out = hdr + lines[0] + "\n" + "\n".join(lines[1:])
    open(sys.argv[1], "w").write(out)
    print("nops inserted:", n)
```

```python
import sys, json
from asmfw import Asm

NAME = "recurrent_scan__mha_block_cached__dense_activation_squared_relu__decode_kernel"

EP = 0
QP = 0x10000
HP = 0x60000
OP = 0xA0000
ML = 0xE0000
CNT = 0xF0000
SP = 0x100000
GP = 0x200000
TS = 0x300000
WS_BYTES = 0x500000
L_Q = 0x000
L_FC = 0x200
L_FB = 0x204
L_WANT = 0x208
L_FQ = 0x20c
L_MLW = 0x240
L_MB = 0x280
L_OW = 0x400
L_HT = 0xC00
L_PRIV = 0x1000
L_RED = 0x2000
LDS_BYTES = 0x2800

TAGB = 10
TAGM = (1 << TAGB) - 1
VALM = (~TAGM) & 0xffffffff
OOB = 0x40000000
LOG2E = 0x3fb8aa3b
SCALE = 0x3db504f3
SPIN = 1 << 17

def gen(D=6, A_=2, gss=((8, 4), (8, 2), (16, 1)), req_at=1, stamps=False, nt=True, sleep=1, bar0=True, tlog=False, noatom=False, ntk=None, tstep=False, static_tail=False, kpat=True, ahead2=True, prefetch=True, pstamps=False, fillq=None, latew1=True, wmode='flagC', rot=1, fast=True, ntk_end=None, diag='', split=None, nomask=True, warm=True, tlb=False, outsc1=False, dbgspan=False):
    A = Asm()
    e = A
    NT = " nt" if nt else ""
    nstamp = [0]
    def stamp(k):
        if stamps and (not pstamps or k == 0):
            e(f"s_memrealtime s[{64+2*k}:{65+2*k}]")
    def pst(k):
        if stamps and pstamps:
            e(f"s_memrealtime s[{64+2*k}:{65+2*k}]")
    def dbg(idx, neg=False, r=126):
        if not dbgspan: return
        e("s_memrealtime s[6:7]")
        e("s_mov_b32 s92, s30\ns_and_b32 s93, s31, 0xffff\ns_mov_b32 s94, 256\ns_mov_b32 s95, 0x20000")
        e("s_waitcnt lgkmcnt(0)")
        if neg: e("s_not_b32 s6, s6")
        e("s_mov_b64 exec, 1")
        e(f"v_mov_b32 v{r}, s6")
        e(f"v_mov_b32 v{r+1}, {4*idx}")
        e(f"buffer_atomic_umax v{r}, v{r+1}, s[92:95], 0 offen sc1")
        e("s_mov_b64 exec, -1")
    def dump_stamps(nk):
        if not stamps: return
        e("s_waitcnt lgkmcnt(0)")
        e("s_lshl_b32 s6, s2, 3")
        e("s_add_u32 s6, s6, s5")
        e("s_lshl_b32 s6, s6, 7")
        e(f"s_add_u32 s6, s6, {TS}")
        e("s_mov_b64 exec, 1")
        e("v_mov_b32 v1, 0")
        e(f"s_mov_b32 s60, s32\ns_mov_b32 s61, s33\ns_mov_b32 s62, {WS_BYTES}\ns_mov_b32 s63, 0x20000")
        for k in range(nk):
            e(f"v_mov_b32 v2, s{64+2*k}")
            e(f"buffer_store_dword v2, v1, s[60:63], s6 offen offset:{4*k}")
        e("s_mov_b64 exec, -1")

    A.raw("; @launch grid=(256,1,1) block=(512,1,1) lds=%d" % LDS_BYTES)
    A.raw('.amdgcn_target "amdgcn-amd-amdhsa--gfx950"')
    A.raw(".text")
    A.raw(f".globl {NAME}")
    A.raw(".p2align 8")
    A.raw(f".type {NAME},@function")
    A.label(NAME)
    e("s_cmp_ge_u32 s2, 256")
    e("s_cbranch_scc1 L_end")
    e("s_load_dwordx16 s[8:23], s[0:1], 0")
    e("s_load_dwordx8 s[24:31], s[0:1], 64")
    e("s_load_dwordx2 s[32:33], s[0:1], 96")
    stamp(0)
    e("v_lshrrev_b32 v1, 6, v0")
    e("v_and_b32 v0, 63, v0")
    e("v_readfirstlane_b32 s3, v1")
    e("s_lshr_b32 s34, s2, 3")
    e("s_and_b32 s35, s2, 7")
    e("s_mov_b32 s5, s3")
    if prefetch:
        e("s_cmp_eq_u32 s3, 3")
        e("s_cbranch_scc0 L_nopf")
        e("s_getpc_b64 s[60:61]")
        A.label("L_pc")
        e(f"s_sub_u32 s60, s60, L_pc-{NAME}")
        e("s_subb_u32 s61, s61, 0")
        e("s_and_b32 s61, s61, 0xffff")
        e(f"s_mov_b32 s62, L_codeend-{NAME}")
        e("s_mov_b32 s63, 0x20000")
        e("s_and_b32 s36, s34, 3")
        e("s_mul_i32 s36, s36, 5120")
        e("v_lshlrev_b32 v13, 4, v0")
        for k in range(4):
            e(f"buffer_load_dwordx4 v[40:43], v13, s[60:63], s36 offen offset:{1024*k}")
        e("s_add_u32 s36, s36, 4096")
        e(f"buffer_load_dwordx4 v[40:43], v13, s[60:63], s36 offen")
        A.label("L_nopf")
    e("s_cmp_ge_u32 s3, 4")
    e("s_cbranch_scc1 L_stream")
    def masks(t1=1, t2=2):
        e(f"v_and_b32 v{t1}, 1, v0")
        e(f"v_lshlrev_b32 v{t1}, 4, v{t1}")
        e(f"v_mov_b32 v{t2}, 0xffff")
        e(f"v_lshlrev_b32 v{t1}, v{t1}, v{t2}")
        e(f"v_bfe_u32 v{t2}, v0, 1, 2")
        for j in range(4):
            e(f"v_cmp_eq_u32 vcc, {j}, v{t2}")
            e(f"v_cndmask_b32 v{6+j}, 0, v{t1}, vcc")
    MARK_STREAM0 = len(A.items)

    A.label("L_stream")
    e("s_sub_u32 s3, s3, 4")
    e("s_and_b32 s37, s3, 1")
    e("s_lshl_b32 s36, s37, 5")
    e("s_add_u32 s36, s36, s34")
    e("s_lshl_b32 s36, s36, 20")
    e("s_waitcnt lgkmcnt(0)")
    if dbgspan:
        e("s_or_b32 s6, s34, s3")
        e("s_cmp_eq_u32 s6, 0")
        e("s_cbranch_scc0 L_nd0")
        dbg(0, True, 34)
        dbg(1, False, 34)
        A.label("L_nd0")
    e("s_add_u32 s48, s10, s36\ns_addc_u32 s49, s11, 0\ns_and_b32 s49, s49, 0xffff\ns_mov_b32 s50, 0x100000\ns_mov_b32 s51, 0x20000")
    e("s_add_u32 s52, s12, s36\ns_addc_u32 s53, s13, 0\ns_and_b32 s53, s53, 0xffff\ns_mov_b32 s54, 0x100000\ns_mov_b32 s55, 0x20000")
    e("s_lshr_b32 s39, s3, 1")
    STRIDE = 16 if kpat else 2
    e(f"s_lshl_b32 s80, s35, {1 if kpat else 4}")
    e("s_add_u32 s80, s80, s39")
    e("v_lshlrev_b32 v1, 4, v0")
    def chunk_off():
        if rot and kpat:
            e("s_lshr_b32 s84, s80, 4")
            if rot != 1: e(f"s_mul_i32 s84, s84, {rot}")
            e("s_lshl_b32 s84, s84, 1")
            e("s_add_u32 s84, s84, s80")
            e("s_and_b32 s84, s84, 15")
            e("s_andn2_b32 s85, s80, 15")
            e("s_or_b32 s84, s84, s85")
            e("s_lshl_b32 s38, s84, 12")
        else:
            e("s_lshl_b32 s38, s80, 12")
    KR = lambda s, t: 40 + 16 * s + 4 * t
    VR = lambda s, t: 16 * s + 4 * t
    def loadK(s):
        for t in range(4):
            r = KR(s, t)
            e(f"buffer_load_dwordx4 v[{r}:{r+3}], v1, s[48:51], s38 offen offset:{1024*t}{NT}")
    def loadV(s):
        for t in range(4):
            r = VR(s, t)
            e(f"buffer_load_dwordx4 a[{r}:{r+3}], v1, s[52:55], s38 offen offset:{1024*t}{NT}")
    if tlog or tstep:
        e("s_mov_b32 s87, 0")
        e("v_mov_b32 v33, -1")
        e("v_mov_b32 v34, -1")
    if bar0: e("s_barrier")
    for c in range(D):
        if tlog:
            e("s_mov_b32 m0, s87")
            e("v_writelane_b32 v33, s80, m0")
            e("s_add_u32 s87, s87, 1")
        chunk_off()
        e(f"s_add_u32 s80, s80, {STRIDE}")
        if fillq is None:
            loadK(c); loadV(c)
        else:
            for half in range(2):
                if c * 8 + half * 4 + 4 > fillq:
                    e(f"s_waitcnt vmcnt({max(fillq - 4, 0)})")
                (loadK if half == 0 else loadV)(c)
    stamp(1)
    masks(20, 21)
    e(f"s_mov_b32 s81, {8 - D}")
    e("s_mov_b32 s82, 0")
    e("s_mov_b32 s83, 8")
    for r in range(4): e(f"v_mov_b32 v{10+r}, 0")
    e("v_mov_b32 v14, 0xff800000")
    e("v_mov_b32 v15, 0")
    e("v_and_b32 v16, 15, v0")
    e("v_lshlrev_b32 v16, 4, v16")
    e("s_lshl_b32 s40, s37, 8")
    e("v_add_u32 v16, s40, v16")
    e("s_mov_b32 s86, 0")
    e("s_mov_b32 s88, 0x400000")
    e(f"s_mov_b32 s40, 0x{SCALE:x}")
    e(f"s_mov_b32 s41, 0x{LOG2E:x}")
    e(f"v_mov_b32 v36, {L_WANT}")
    e(f"v_mov_b32 v20, {L_FQ}")
    A.label("L_qspin")
    e("ds_read_b32 v21, v20")
    e("s_waitcnt lgkmcnt(0)")
    e("v_readfirstlane_b32 s90, v21")
    e("s_cmp_lg_u32 s90, 0")
    e("s_cbranch_scc1 L_qgo")
    e("s_sleep 1")
    e("s_sub_u32 s88, s88, 1")
    e("s_cmp_lg_u32 s88, 0")
    e("s_cbranch_scc1 L_qspin")
    A.label("L_qgo")
    e(f"ds_read_b128 v[2:5], v16 offset:{L_Q}")
    e("s_waitcnt lgkmcnt(0)")
    stamp(2)
    NKV = 8 * (D - 1)
    NTK = 12 if ntk is None else ntk
    A.label("L_sloop")
    for s in range(D):
        e("s_cmp_eq_u32 s86, 0")
        e(f"s_cbranch_scc1 L_nw{s}")
        e("s_cmp_eq_u32 s89, 0")
        e("s_cbranch_scc1 L_sdone")
        e("s_sub_u32 s89, s89, 1")
        e("s_cmp_ge_u32 s89, 2")
        e(f"s_cbranch_scc1 L_dw{s}")
        e("s_cmp_eq_u32 s89, 1")
        e(f"s_cbranch_scc1 L_w8{s}")
        e("s_waitcnt vmcnt(0)")
        e(f"s_branch L_go{s}")
        A.label(f"L_w8{s}")
        e("s_waitcnt vmcnt(8)")
        e(f"s_branch L_go{s}")
        A.label(f"L_dw{s}")
        e("s_waitcnt vmcnt(16)")
        e(f"s_branch L_go{s}")
        A.label(f"L_nw{s}")
        e(f"s_waitcnt vmcnt({NKV})")
        A.label(f"L_go{s}")
        if tstep:
            e("s_memrealtime s[90:91]")
            e("s_waitcnt lgkmcnt(0)")
            e("s_mov_b32 m0, s87")
            e("v_writelane_b32 v33, s90, m0")
            e("s_add_u32 s87, s87, 1")
        if tlog:
            e("s_mov_b32 m0, s87")
            e(f"v_writelane_b32 v33, s{64+s}, m0") if False else None
        for jj in range(4):
            for t in range(4):
                k = KR(s, t) + jj
                if jj == 0: e(f"v_dot2_f32_bf16 v{16+t}, v{k}, v2, 0")
                else: e(f"v_dot2c_f32_bf16 v{16+t}, v{k}, v{2+jj}")
        e("v_add_f32_dpp v20, v16, v16 row_ror:8 row_mask:0xf bank_mask:0x3")
        e("v_add_f32_dpp v21, v18, v18 row_ror:8 row_mask:0xf bank_mask:0x3")
        e("v_add_f32_dpp v20, v17, v17 row_ror:8 row_mask:0xf bank_mask:0xc")
        e("v_add_f32_dpp v21, v19, v19 row_ror:8 row_mask:0xf bank_mask:0xc")
        e("v_add_f32_dpp v22, v20, v20 row_shl:4 row_mask:0xf bank_mask:0x5")
        e("v_add_f32_dpp v22, v21, v21 row_shr:4 row_mask:0xf bank_mask:0xa")
        e("v_add_f32_dpp v22, v22, v22 quad_perm:[1,0,3,2] row_mask:0xf bank_mask:0xf")
        e("v_add_f32_dpp v22, v22, v22 quad_perm:[2,3,0,1] row_mask:0xf bank_mask:0xf")
        e("v_cvt_pk_bf16_f32 v23, v22, v22")
        e("v_and_b32 v23, 0xffff0000, v23")
        e("v_mul_f32 v23, s40, v23")
        e("v_cvt_pk_bf16_f32 v23, v23, v23")
        e("v_and_b32 v23, 0xffff0000, v23")
        if fast:
            e("v_cmp_lt_f32 vcc, v14, v23")
            e("s_cmp_lg_u64 vcc, 0")
            e(f"s_cbranch_scc0 L_nomax{s}")
            e("v_max_f32_dpp v24, v23, v23 row_ror:4 row_mask:0xf bank_mask:0xf")
            e("v_max_f32_dpp v24, v24, v24 row_ror:8 row_mask:0xf bank_mask:0xf")
            e("v_mov_b32 v25, v24")
            e("v_permlane16_swap_b32 v24, v25")
            e("v_max_f32 v24, v24, v25")
            e("v_mov_b32 v25, v24")
            e("v_permlane32_swap_b32 v24, v25")
            e("v_max3_f32 v24, v24, v25, v14")
            e("v_sub_f32 v25, v14, v24")
            e("v_mul_f32 v25, s41, v25")
            e("v_exp_f32 v25, v25")
            e("v_mov_b32 v14, v24")
            e("v_mul_f32 v15, v15, v25")
            for r in range(4): e(f"v_mul_f32 v{10+r}, v{10+r}, v25")
            A.label(f"L_nomax{s}")
            e("v_sub_f32 v26, v23, v14")
            e("v_mul_f32 v26, s41, v26")
            e("v_exp_f32 v26, v26")
            e("v_cvt_pk_bf16_f32 v27, v26, v26")
            e("v_add_f32 v15, v15, v26")
            bank_lane = [0, 8, 4, 12]
            def bb(t):
                B = 28 if (t & 1) == 0 else 16
                for jj in range(4):
                    e(f"v_and_b32_dpp v{B+jj}, v27, v{6+jj} row_newbcast:{bank_lane[t]} row_mask:0xf bank_mask:0xf")
            def mm(t):
                B = 28 if (t & 1) == 0 else 16
                r = VR(s, t)
                e(f"v_mfma_f32_16x16x32_bf16 v[10:13], a[{r}:{r+3}], v[{B}:{B+3}], v[10:13]")
            bb(0); bb(1); mm(0); bb(2); mm(1); bb(3); mm(2); mm(3)
        else:
            e("v_max_f32_dpp v24, v23, v23 row_ror:4 row_mask:0xf bank_mask:0xf")
            e("v_max_f32_dpp v24, v24, v24 row_ror:8 row_mask:0xf bank_mask:0xf")
            e("v_mov_b32 v25, v24")
            e("v_permlane16_swap_b32 v24, v25")
            e("v_max_f32 v24, v24, v25")
            e("v_mov_b32 v25, v24")
            e("v_permlane32_swap_b32 v24, v25")
            e("v_max3_f32 v24, v24, v25, v14")
            e("v_sub_f32 v25, v14, v24")
            e("v_sub_f32 v26, v23, v24")
            e("v_mul_f32 v25, s41, v25")
            e("v_mul_f32 v26, s41, v26")
            e("v_exp_f32 v25, v25")
            e("v_exp_f32 v26, v26")
            e("v_mov_b32 v14, v24")
            e("v_fma_f32 v15, v15, v25, v26")
            e("v_cvt_pk_bf16_f32 v27, v26, v26")
            for r in range(4): e(f"v_mul_f32 v{10+r}, v{10+r}, v25")
            bank_lane = [0, 8, 4, 12]
            for t in range(4):
                B = 28 if (t & 1) == 0 else 16
                for jj in range(4):
                    e(f"v_and_b32_dpp v{B+jj}, v27, v{6+jj} row_newbcast:{bank_lane[t]} row_mask:0xf bank_mask:0xf")
                r = VR(s, t)
                e(f"v_mfma_f32_16x16x32_bf16 v[10:13], a[{r}:{r+3}], v[{B}:{B+3}], v[10:13]")
        if tstep:
            e("s_memrealtime s[90:91]")
            e("s_waitcnt lgkmcnt(0)")
            e("v_writelane_b32 v34, s90, m0")
        e("s_cmp_lg_u32 s86, 0")
        e(f"s_cbranch_scc1 L_nx{s}")
        if ntk_end is not None:
            e("s_cmp_eq_u32 s83, 1")
            e(f"s_cbranch_scc1 L_ne{s}")
            e(f"s_waitcnt vmcnt({NTK})")
            A.label(f"L_ne{s}")
            e(f"s_waitcnt vmcnt({ntk_end})")
        else:
            e(f"s_waitcnt vmcnt({NTK})")
        e("s_cmp_lg_u32 s81, 0")
        e(f"s_cbranch_scc1 L_have{s}")
        if static_tail:
            e("s_cmp_lg_u32 s82, 0")
            e(f"s_cbranch_scc1 L_drain{s}")
            e(f"s_lshl_b32 s90, s35, {1 if kpat else 4}")
            e("s_add_u32 s90, s90, 128")
            e("s_or_b32 s90, s90, 0x80000")
        else:
            e("s_lshl_b32 s90, s82, 2")
            e(f"s_add_u32 s90, s90, {L_MB}")
            e("v_mov_b32 v20, s90")
            A.label(f"L_mb{s}")
            e("ds_read_b32 v21, v20")
            e("s_waitcnt lgkmcnt(0)")
            e("v_readfirstlane_b32 s90, v21")
            e("s_cmp_lg_u32 s90, -1")
            e(f"s_cbranch_scc1 L_got{s}")
            e("s_sub_u32 s88, s88, 1")
            e("s_cmp_lg_u32 s88, 0")
            e(f"s_cbranch_scc1 L_mb{s}")
            e("s_mov_b32 s90, 256")
            A.label(f"L_got{s}")
        e("s_add_u32 s82, s82, 1")
        e("s_and_b32 s80, s90, 0xffff")
        e("s_lshr_b32 s81, s90, 16")
        e("s_mov_b32 s83, s81")
        e("s_cmp_lt_u32 s80, 256")
        e("s_addc_u32 s80, s80, 0") if False else None
        e(f"s_cbranch_scc1 L_ok{s}")
        A.label(f"L_drain{s}")
        e("s_mov_b32 s86, 1")
        e(f"s_mov_b32 s89, {D-1}")
        e("s_mov_b64 exec, 1")
        e(f"v_mov_b32 v20, {L_FC}")
        e("v_mov_b32 v21, 1")
        e("ds_add_u32 v20, v21")
        e("s_mov_b64 exec, -1")
        stamp(3)
        e(f"s_branch L_nx{s}")
        A.label(f"L_ok{s}")
        e("s_add_u32 s80, s80, s39")
        A.label(f"L_have{s}")
        chunk_off()
        e(f"s_add_u32 s80, s80, {STRIDE}")
        e("s_sub_u32 s81, s81, 1")
        if tlog:
            e("s_lshr_b32 s90, s38, 12")
            e("s_mov_b32 m0, s87")
            e("v_writelane_b32 v33, s90, m0")
            e("s_add_u32 s87, s87, 1")
        loadK(s)
        if not static_tail:
            e(f"s_cmp_le_u32 s81, {req_at}")
            e(f"s_cbranch_scc0 L_nr{s}")
            e("s_add_u32 s90, s82, 1")
            if ahead2:
                e("s_cmp_eq_u32 s83, 1")
                e("s_addc_u32 s90, s90, 0")
            e("s_mov_b64 exec, 1")
            e("v_mov_b32 v21, s90")
            e("ds_max_u32 v36, v21")
            e("s_mov_b64 exec, -1")
            A.label(f"L_nr{s}")
        if split is not None: e(f"s_waitcnt vmcnt({split})")
        loadV(s)
        A.label(f"L_nx{s}")
        if s == D - 1:
            e("s_branch L_sloop")
    A.label("L_sdone")
    if dbgspan:
        e("s_and_b32 s6, s34, 7")
        e("s_or_b32 s6, s6, s3")
        e("s_cmp_eq_u32 s6, 0")
        e("s_cbranch_scc0 L_nd3")
        dbg(3, False, 34)
        A.label("L_nd3")
    stamp(4)
    e("v_add_f32_dpp v15, v15, v15 row_ror:4 row_mask:0xf bank_mask:0xf")
    e("v_add_f32_dpp v15, v15, v15 row_ror:8 row_mask:0xf bank_mask:0xf")
    e("v_mov_b32 v25, v15")
    e("v_permlane16_swap_b32 v15, v25")
    e("v_add_f32 v15, v15, v25")
    e("v_mov_b32 v25, v15")
    e("v_permlane32_swap_b32 v15, v25")
    e("v_add_f32 v15, v15, v25")
    e("v_lshrrev_b32 v16, 4, v0")
    e("v_lshlrev_b32 v16, 7, v16")
    e("v_and_b32 v17, 7, v0")
    e("v_lshl_add_u32 v16, v17, 2, v16")
    e("s_lshl_b32 s37, s3, 9")
    e("v_add_u32 v16, s37, v16")
    for r in range(4):
        e(f"ds_write_b32 v16, v{10+r} offset:{L_OW + 32*r}")
    e("s_lshl_b32 s37, s3, 3")
    e("v_mov_b32 v17, s37")
    e(f"ds_write_b64 v17, v[14:15] offset:{L_MLW}")
    e("s_waitcnt lgkmcnt(0)")
    e("s_mov_b64 exec, 1")
    e(f"v_mov_b32 v28, {L_FB}")
    e("v_mov_b32 v29, 1")
    e("ds_add_u32 v28, v29")
    e("s_mov_b64 exec, -1")
    stamp(5)
    if tlog or tstep:
        e("s_lshl_b32 s6, s2, 3\ns_add_u32 s6, s6, s5\ns_lshl_b32 s6, s6, 8")
        e(f"s_add_u32 s6, s6, {TS + 0x80000}")
        e(f"s_mov_b32 s60, s32\ns_mov_b32 s61, s33\ns_mov_b32 s62, {WS_BYTES}\ns_mov_b32 s63, 0x20000")
        e("v_lshlrev_b32 v1, 2, v0")
        e("buffer_store_dword v33, v1, s[60:63], s6 offen")
        e(f"s_add_u32 s6, s6, 0x80000")
        e("buffer_store_dword v34, v1, s[60:63], s6 offen")
    dump_stamps(6)
    e("s_endpgm")

    MARK_STREAM1 = len(A.items)
    A.label("L_aux")
    e("s_setprio 3")
    e(f"s_mov_b32 s100, {SPIN}")
    e("s_mov_b32 s101, 0")
    e("v_lshrrev_b32 v10, 4, v0")
    e("v_bfe_u32 v11, v0, 3, 1")
    e("v_and_b32 v12, 15, v0")
    e("s_cmp_ge_u32 s3, 2")
    e("s_cbranch_scc1 L_aux23")
    e("s_cmp_eq_u32 s3, 1")
    e("s_cbranch_scc1 L_p1")
    e("s_mul_i32 s36, s35, 72")
    e("s_mov_b32 s37, 18")
    e("s_mov_b32 s38, 8192")
    e("s_lshl_b32 s39, s34, 8")
    e("s_mul_i32 s40, s36, 8192")
    e("s_add_u32 s39, s39, s40")
    e("s_sub_u32 s54, 4718592, s39")
    e("s_mov_b32 s41, 99")
    e("s_mov_b32 s42, 1")
    e("s_mov_b32 s43, 14")
    e("s_branch L_p2")
    A.label("L_p1")
    e("s_mul_hi_u32 s43, s2, 0x71c71c8")
    e("s_mul_i32 s44, s43, 36")
    e("s_sub_u32 s44, s2, s44")
    e("s_mul_i32 s36, s43, 82")
    e("s_cmp_eq_u32 s43, 0")
    e("s_cselect_b32 s40, 0, 2")
    e("s_cselect_b32 s41, 99, 3")
    e("s_add_u32 s36, s36, s40")
    e("s_mov_b32 s37, 22")
    e("s_mov_b32 s38, 9216")
    e("s_lshl_b32 s39, s44, 8")
    e("s_mul_i32 s40, s36, 9216")
    e("s_add_u32 s39, s39, s40")
    e("s_sub_u32 s54, 5308416, s39")
    e("s_mov_b32 s42, 0")
    e("s_cmp_ge_u32 s2, 252")
    e("s_cselect_b32 s54, 0, s54")
    A.label("L_p2")
    e("v_lshrrev_b32 v13, 5, v0")
    e("v_mul_u32_u24 v13, 1152, v13")
    e("v_and_b32 v14, 31, v0")
    e("v_mad_u32_u24 v13, v14, 36, v13")
    e("v_mul_lo_u32 v14, v10, s37")
    e("v_add_u32 v15, s36, v14")
    e("v_lshlrev_b32 v15, 1, v15")
    e("v_mul_u32_u24 v16, 1152, v11")
    e("v_add_u32 v15, v15, v16")
    e("v_mul_lo_u32 v16, v14, s38")
    e("v_lshl_add_u32 v16, v12, 4, v16")
    e(f"v_mov_b32 v19, {OOB}")
    e("v_cmp_eq_u32 vcc, s41, v10")
    e("v_cndmask_b32 v17, v16, v19, vcc")
    e("v_cmp_eq_u32 vcc, 3, v10")
    e("v_cndmask_b32 v18, v16, v19, vcc")
    e("s_cmp_eq_u32 s42, 1")
    e("s_cselect_b64 vcc, -1, 0")
    e("v_cndmask_b32 v18, v18, v19, vcc")
    if 'now1' in diag: e("s_mov_b32 s54, 0")
    e("s_mov_b32 s62, 2304\ns_mov_b32 s63, 0x20000\ns_mov_b32 s55, 0x20000")
    pst(1)
    e("s_waitcnt lgkmcnt(0)")
    pst(2)
    e("s_mov_b32 s60, s8\ns_and_b32 s61, s9, 0xffff")
    e("buffer_load_dwordx4 v[20:23], v13, s[60:63], 0 offen")
    e("buffer_load_dwordx4 v[24:27], v13, s[60:63], 0 offen offset:16")
    e("buffer_load_dword v28, v13, s[60:63], 0 offen offset:32")
    e("buffer_load_dwordx4 v[30:33], v15, s[60:63], 0 offen")
    e("buffer_load_dwordx4 v[34:37], v15, s[60:63], 0 offen offset:16")
    e("buffer_load_dwordx3 v[38:40], v15, s[60:63], 0 offen offset:32")
    e("s_cmp_eq_u32 s3, 1")
    e("s_cselect_b32 s52, s20, s14")
    e("s_cselect_b32 s53, s21, s15")
    e("s_add_u32 s52, s52, s39\ns_addc_u32 s53, s53, 0\ns_and_b32 s53, s53, 0xffff")
    def wloads():
        e("s_mov_b32 s45, 0")
        for t in range(22):
            vo = 16 if t < 16 else (17 if t < 18 else 18)
            e(f"buffer_load_dwordx4 a[{4*t}:{4*t+3}], v{vo}, s[52:55], s45 offen{NT}")
            if t < 21: e("s_add_u32 s45, s45, s38")
    if latew1:
        e("s_cmp_eq_u32 s3, 1")
        e("s_cbranch_scc1 L_now")
    wloads()
    if latew1: A.label("L_now")
    pst(3)
    if bar0: e("s_barrier")
    pst(4)
    stamp(1)
    e("s_load_dwordx2 s[46:47], s[32:33], 0")
    e(f"s_mov_b32 s48, s32\ns_and_b32 s49, s33, 0xffff\ns_mov_b32 s50, {WS_BYTES}\ns_mov_b32 s51, 0x20000")
    masks()
    e("v_lshlrev_b32 v41, 2, v0")
    e("v_mov_b32 v42, 0")
    e("s_lshl_b32 s40, s34, 8")
    e(f"s_add_u32 s40, s40, {CNT}")
    e("s_add_u32 s56, s32, s40\ns_addc_u32 s57, s33, 0\ns_and_b32 s57, s57, 0xffff\ns_mov_b32 s59, 0x20000")
    e("s_or_b32 s40, s35, s3")
    e("s_cmp_eq_u32 s40, 0")
    e("s_cselect_b32 s58, 4, 0")
    e("buffer_store_dword v42, v41, s[56:59], 0 offen sc1")
    pst(5)
    if latew1:
        e("s_cmp_eq_u32 s3, 1")
        e("s_cbranch_scc0 L_xw0")
        e("s_waitcnt vmcnt(0)")
        A.label("L_xw0")
    e("s_waitcnt vmcnt(25)")
    pst(6)
    F = 44
    for k in range(9):
        e(f"v_lshlrev_b32 v{F+2*k}, 16, v{20+k}")
        e(f"v_and_b32 v{F+2*k+1}, 0xffff0000, v{20+k}")
    e(f"v_pk_add_f32 v[62:63], v[{F}:{F+1}], v[{F+2}:{F+3}]")
    for k in range(2, 9):
        e(f"v_pk_add_f32 v[62:63], v[62:63], v[{F+2*k}:{F+2*k+1}]")
    e("v_add_f32 v62, v62, v63")
    def red32(r, tmp):
        for sh in (8, 4, 2, 1):
            e(f"v_add_f32_dpp v{r}, v{r}, v{r} row_ror:{sh} row_mask:0xf bank_mask:0xf")
        e(f"v_mov_b32 v{tmp}, v{r}")
        e(f"v_permlane16_swap_b32 v{r}, v{tmp}")
        e(f"v_add_f32 v{r}, v{r}, v{tmp}")
    red32(62, 63)
    e("v_mul_f32 v62, 0x3ae38e39, v62")
    e("v_mov_b32 v63, v62")
    for k in range(9):
        e(f"v_pk_add_f32 v[{F+2*k}:{F+2*k+1}], v[{F+2*k}:{F+2*k+1}], v[62:63] neg_lo:[0,1] neg_hi:[0,1]")
    e(f"v_pk_mul_f32 v[64:65], v[{F}:{F+1}], v[{F}:{F+1}]")
    for k in range(1, 9):
        e(f"v_pk_fma_f32 v[64:65], v[{F+2*k}:{F+2*k+1}], v[{F+2*k}:{F+2*k+1}], v[64:65]")
    e("v_add_f32 v64, v64, v65")
    red32(64, 65)
    e("v_mul_f32 v64, 0x3ae38e39, v64")
    e("v_cvt_pk_bf16_f32 v62, v62, v62")
    e("v_and_b32 v62, 0xffff0000, v62")
    e("v_cvt_pk_bf16_f32 v64, v64, v64")
    e("v_and_b32 v64, 0xffff0000, v64")
    e("v_add_f32 v64, 0x3727c5ac, v64")
    e("v_cvt_pk_bf16_f32 v64, v64, v64")
    e("v_and_b32 v64, 0xffff0000, v64")
    e("v_sqrt_f32 v64, v64")
    e("v_cvt_pk_bf16_f32 v64, v64, v64")
    e("v_and_b32 v64, 0xffff0000, v64")
    e("v_rcp_f32 v64, v64")
    e("v_readlane_b32 s56, v62, 0")
    e("v_readlane_b32 s57, v62, 32")
    e("v_readlane_b32 s58, v64, 0")
    e("v_readlane_b32 s59, v64, 32")
    e("v_cmp_eq_u32 vcc, 1, v11")
    e("v_mov_b32 v62, s56")
    e("v_mov_b32 v63, s57")
    e("v_cndmask_b32 v62, v62, v63, vcc")
    e("v_mov_b32 v64, s58")
    e("v_mov_b32 v65, s59")
    e("v_cndmask_b32 v64, v64, v65, vcc")
    e("v_mov_b32 v63, v62")
    e("v_mov_b32 v65, v64")
    pst(7)
    e("s_waitcnt vmcnt(22)")
    pst(8)
    for k in range(11):
        x = 30 + k
        e(f"v_lshlrev_b32 v66, 16, v{x}")
        e(f"v_and_b32 v67, 0xffff0000, v{x}")
        e("v_pk_add_f32 v[66:67], v[66:67], v[62:63] neg_lo:[0,1] neg_hi:[0,1]")
        e("v_cvt_pk_bf16_f32 v68, v66, v67")
        e("v_lshlrev_b32 v66, 16, v68")
        e("v_and_b32 v67, 0xffff0000, v68")
        e("v_pk_mul_f32 v[66:67], v[66:67], v[64:65]")
        e(f"v_cvt_pk_bf16_f32 v{x}, v66, v67")
    stamp(2)
    pst(9)
    if latew1:
        e("s_cmp_eq_u32 s3, 1")
        e("s_cbranch_scc0 L_now2")
        wloads()
        A.label("L_now2")
    e("s_mov_b32 s56, 0x01000100")
    e("s_mov_b32 s57, 0x03020302")
    for r in range(4): e(f"v_mov_b32 v{70+r}, 0")
    for t in range(22):
        B = 76 + 4 * (t & 1)
        e(f"v_perm_b32 v74, v{30 + t//2}, v{30 + t//2}, s{56 + (t & 1)}")
        for jj in range(4):
            e(f"v_and_b32 v{B+jj}, v74, v{6+jj}")
        e(f"s_waitcnt vmcnt({21 - t})")
        e(f"v_mfma_f32_16x16x32_bf16 v[70:73], a[{4*t}:{4*t+3}], v[{B}:{B+3}], v[70:73]")
    stamp(3)
    pst(10)
    def make_tags():
        e("s_waitcnt lgkmcnt(0)")
        e("s_add_u32 s46, s46, 0x7f4a7c15\ns_addc_u32 s47, s47, 0x9e3779b9")
        e(f"s_and_b32 s44, s46, {TAGM}")
        e("v_mov_b32 v2, s44")
        e(f"s_bfe_u32 s44, s46, 0x{(TAGB<<16)|TAGB:x}")
        e("v_mov_b32 v3, s44")
        e(f"s_bfe_u32 s44, s46, 0x{(TAGB<<16)|(2*TAGB):x}")
        e("v_mov_b32 v4, s44")
        e("s_lshr_b64 s[56:57], s[46:47], 30")
        e(f"s_and_b32 s44, s56, {TAGM}")
        e("v_mov_b32 v5, s44")
        e(f"s_mov_b32 s44, {TAGM}")
        e(f"s_mov_b32 s45, 0x{VALM:x}")
    def tagpack(dst, src):
        for r in range(4):
            e(f"v_bfi_b32 v{dst+r}, s44, v{2+r}, v{src+r}")
    def tagcheck(regs, tmp):
        first = True
        for base in regs:
            for r in range(4):
                if first:
                    e(f"v_xor_b32 v{tmp}, v{base+r}, v{2+r}"); first = False
                else:
                    e(f"v_bitop3_b32 v{tmp}, v{base+r}, v{2+r}, v{tmp} bitop3:0xbe")
        e(f"v_and_b32 v{tmp}, s44, v{tmp}")
        e(f"v_cmp_eq_u32 vcc, 0, v{tmp}")
    pollid = [0]
    def poll(issue, regs, tmp, cnt="s4", nosleep=False):
        n = pollid[0]; pollid[0] += 1
        e(f"s_mov_b32 {cnt}, s100")
        A.label(f"L_poll{n}")
        issue()
        e("s_waitcnt vmcnt(0)")
        tagcheck(regs, tmp)
        e("s_cmp_eq_u64 vcc, exec")
        e(f"s_cbranch_scc1 L_pdone{n}")
        if sleep and not nosleep: e(f"s_sleep {sleep}")
        e(f"s_sub_u32 {cnt}, {cnt}, 1")
        e(f"s_cmp_lg_u32 {cnt}, 0")
        e(f"s_cbranch_scc1 L_poll{n}")
        A.label(f"L_pdone{n}")
    def ldsspin(addr, target, nosleep=False):
        n = pollid[0]; pollid[0] += 1
        e(f"s_mov_b32 s4, {SPIN}")
        e(f"v_mov_b32 v20, {addr}")
        A.label(f"L_poll{n}")
        e("ds_read_b32 v21, v20")
        e("s_waitcnt lgkmcnt(0)")
        e("v_readfirstlane_b32 s6, v21")
        e(f"s_cmp_ge_u32 s6, {target}")
        e(f"s_cbranch_scc1 L_pdone{n}")
        if sleep and not nosleep: e(f"s_sleep {sleep}")
        e("s_sub_u32 s4, s4, 1")
        e("s_cmp_lg_u32 s4, 0")
        e(f"s_cbranch_scc1 L_poll{n}")
        A.label(f"L_pdone{n}")

    def dispatcher():
        if static_tail: return
        e("s_cmp_eq_u32 s3, 0")
        e("s_cbranch_scc0 L_nodisp")
        e("s_lshl_b32 s94, s34, 8")
        e(f"s_add_u32 s94, s94, {CNT}")
        e("s_add_u32 s56, s32, s94\ns_addc_u32 s57, s33, 0\ns_and_b32 s57, s57, 0xffff\ns_mov_b32 s58, 4\ns_mov_b32 s59, 0x20000")
        e("v_mov_b32 v13, 0")
        e(f"v_mov_b32 v14, {L_WANT}")
        e("s_mov_b32 s90, 0")
        e(f"s_mov_b32 s4, {SPIN * 8}")
        e("s_mov_b64 exec, 1")
        A.label("L_dloop")
        e("ds_read_b32 v15, v14")
        e("s_waitcnt lgkmcnt(0)")
        e("v_readfirstlane_b32 s91, v15")
        e("s_cmp_gt_u32 s91, s90")
        e("s_cbranch_scc1 L_dget")
        e("s_sleep 1")
        e("s_sub_u32 s4, s4, 1")
        e("s_cmp_lg_u32 s4, 0")
        e("s_cbranch_scc1 L_dloop")
        e("s_mov_b32 s92, 256")
        e("s_branch L_dput")
        A.label("L_dget")
        e("v_mov_b32 v15, 1")
        e("buffer_atomic_add v15, v13, s[56:59], 0 offen sc0 sc1")
        e("s_waitcnt vmcnt(0)")
        e("v_readfirstlane_b32 s91, v15")
        e("s_mov_b32 s92, 256")
        k0, st0 = 0, 128
        for gi, (cnt, nper) in enumerate(gss):
            e(f"s_sub_u32 s93, s91, {k0}")
            if kpat:
                assert cnt % 8 == 0
                e("s_and_b32 s94, s93, 7")
                e("s_lshl_b32 s94, s94, 1")
                e("s_lshr_b32 s95, s93, 3")
                e(f"s_mul_i32 s95, s95, {16*nper}")
                e("s_add_u32 s94, s94, s95")
                e(f"s_add_u32 s94, s94, {st0 + (nper << 16)}")
            else:
                e(f"s_mul_i32 s94, s93, {2*nper}")
                e(f"s_add_u32 s94, s94, {st0 + (nper << 16)}")
            e(f"s_cmp_lt_u32 s93, {cnt}")
            e("s_cselect_b32 s92, s94, s92")
            k0 += cnt; st0 += cnt * 2 * nper
        assert st0 == 256, st0
        A.label("L_dput")
        e("s_lshl_b32 s93, s90, 2")
        e(f"s_add_u32 s93, s93, {L_MB}")
        e("v_mov_b32 v15, s93")
        e("v_mov_b32 v16, s92")
        e("ds_write_b32 v15, v16")
        e("s_add_u32 s90, s90, 1")
        e("s_cmp_eq_u32 s92, 256")
        e("s_cbranch_scc0 L_dloop")
        e("s_waitcnt lgkmcnt(0)")
        e("s_mov_b64 exec, -1")
        A.label("L_nodisp")

    make_tags()
    e("s_cmp_eq_u32 s3, 1")
    e("s_cbranch_scc1 L_hpub")
    e("s_waitcnt vmcnt(0)")
    tagpack(74, 70)
    e("v_lshlrev_b32 v13, 4, v0")
    e("s_lshl_b32 s36, s2, 10")
    e(f"s_add_u32 s36, s36, {QP}")
    e("buffer_store_dwordx4 v[74:77], v13, s[48:51], s36 offen sc1")
    stamp(4)
    pst(11)
    e("v_lshlrev_b32 v13, 4, v0")
    e("s_lshl_b32 s36, s34, 13")
    e(f"s_add_u32 s36, s36, {QP}")
    e("s_add_u32 s37, s36, 4096")
    def issue_q():
        for k in range(8):
            e(f"buffer_load_dwordx4 v[{20+4*k}:{23+4*k}], v13, s[48:51], s{36 + k//4} offen offset:{1024*(k%4)} sc1")
    poll(issue_q, [20 + 4 * k for k in range(8)], 52)
    pst(12)
    for r in range(4):
        for k in range(8): e(f"v_and_b32 v{20+4*k+r}, s45, v{20+4*k+r}")
        for k in (0, 2, 4, 6): e(f"v_add_f32 v{20+4*k+r}, v{20+4*k+r}, v{24+4*k+r}")
        e(f"v_add_f32 v{20+r}, v{20+r}, v{28+r}")
        e(f"v_add_f32 v{36+r}, v{36+r}, v{44+r}")
        e(f"v_add_f32 v{20+r}, v{20+r}, v{36+r}")
    e("v_cvt_pk_bf16_f32 v24, v20, v21")
    e("v_cvt_pk_bf16_f32 v25, v22, v23")
    e("v_lshlrev_b32 v13, 8, v11")
    e("v_lshl_add_u32 v13, v10, 6, v13")
    e("v_and_b32 v14, 7, v0")
    e("v_lshl_add_u32 v13, v14, 1, v13")
    e(f"ds_write_b16 v13, v24 offset:{L_Q}")
    e(f"ds_write_b16_d16_hi v13, v24 offset:{L_Q+16}")
    e(f"ds_write_b16 v13, v25 offset:{L_Q+32}")
    e(f"ds_write_b16_d16_hi v13, v25 offset:{L_Q+48}")
    e("s_waitcnt lgkmcnt(0)")
    e(f"v_mov_b32 v13, {L_FQ}")
    e("v_mov_b32 v14, 1")
    e("ds_write_b32 v13, v14")
    stamp(5)
    pst(13)
    e("s_branch L_barA")
    A.label("L_hpub")
    e("s_cmp_ge_u32 s2, 252")
    e("s_cbranch_scc1 L_barA")
    e("v_lshlrev_b32 v13, 9, v11")
    e("v_lshl_add_u32 v13, v10, 7, v13")
    e("v_and_b32 v14, 7, v0")
    e("v_lshl_add_u32 v13, v14, 2, v13")
    for r in range(4):
        e(f"ds_write_b32 v13, v{70+r} offset:{L_HT + 32*r}")
    e("v_lshlrev_b32 v14, 4, v0")
    e("s_waitcnt lgkmcnt(0)")
    e(f"ds_read_b128 v[70:73], v14 offset:{L_HT}")
    e("v_lshrrev_b32 v13, 5, v0")
    e("v_mul_u32_u24 v13, 18432, v13")
    e("v_and_b32 v14, 31, v0")
    e("v_lshl_add_u32 v13, v14, 4, v13")
    e("s_mul_hi_u32 s43, s2, 0x71c71c8")
    e("s_mul_i32 s36, s43, 36")
    e("s_sub_u32 s36, s2, s36")
    e("s_lshl_b32 s36, s36, 9")
    e("s_mul_i32 s37, s43, 36864")
    e("s_add_u32 s36, s36, s37")
    e(f"s_add_u32 s36, s36, {HP}")
    e("s_waitcnt lgkmcnt(0)")
    tagpack(74, 70)
    e("buffer_store_dwordx4 v[74:77], v13, s[48:51], s36 offen sc1")
    stamp(4)
    e("s_branch L_barA")
    A.label("L_aux23")
    e("s_mov_b64 exec, 1")
    e(f"v_mov_b32 v13, {L_FC}")
    e("v_mov_b32 v14, 0")
    e("v_mov_b32 v15, 0")
    e("ds_write_b64 v13, v[14:15]")
    if 'noq' in diag: e("v_mov_b32 v15, 1")
    e("ds_write_b64 v13, v[14:15] offset:8")
    e("s_mov_b64 exec, -1")
    e("v_lshlrev_b32 v13, 2, v0")
    e("v_mov_b32 v14, -1")
    e(f"ds_write_b32 v13, v14 offset:{L_MB}")
    e("s_waitcnt lgkmcnt(0)")
    e("s_load_dwordx2 s[46:47], s[32:33], 0")
    e(f"s_mov_b32 s48, s32\ns_and_b32 s49, s33, 0xffff\ns_mov_b32 s50, {WS_BYTES}\ns_mov_b32 s51, 0x20000")
    if tlb:
        e("s_cmp_eq_u32 s3, 2")
        e("s_cbranch_scc0 L_notlb")
        e("v_lshlrev_b32 v13, 16, v0")
        e("s_cmp_lt_u32 s2, 16")
        e(f"s_cselect_b32 s50, 0x300000, 0")
        e("buffer_load_dword v120, v13, s[48:51], 0 offen")
        e(f"s_mov_b32 s50, {WS_BYTES}")
        e("s_lshr_b32 s36, s2, 1")
        e("v_lshlrev_b32 v14, 15, v0")
        e("s_mul_i32 s37, s36, 36864")
        e("s_add_u32 s60, s16, s37\ns_addc_u32 s61, s17, 0\ns_and_b32 s61, s61, 0xffff\ns_mov_b32 s62, 36864\ns_mov_b32 s63, 0x20000")
        e("buffer_load_dword v121, v14, s[60:63], 0 offen")
        e("s_mul_i32 s37, s36, 41472")
        e("s_add_u32 s60, s24, s37\ns_addc_u32 s61, s25, 0\ns_and_b32 s61, s61, 0xffff\ns_mov_b32 s62, 41472")
        e("buffer_load_dword v122, v14, s[60:63], 0 offen")
        e("s_mov_b32 s60, s28\ns_and_b32 s61, s29, 0xffff\ns_mov_b32 s62, 4")
        e("buffer_load_dword v123, v14, s[60:63], 0 offen")
        e("s_mov_b32 s60, s26\ns_and_b32 s61, s27, 0xffff")
        e("buffer_load_dword v124, v14, s[60:63], 0 offen")
        e("s_mov_b32 s60, s22\ns_and_b32 s61, s23, 0xffff")
        e("buffer_load_dword v125, v14, s[60:63], 0 offen")
        A.label("L_notlb")
    if bar0: e("s_barrier")
    masks()
    make_tags()
    A.label("L_barA")
    stamp(6)
    if wmode != 'early': dispatcher()
    if warm:
        e("s_cmp_eq_u32 s3, 1")
        e("s_cbranch_scc0 L_nodry1")
        e("s_cmp_lt_u32 s2, 36")
        e("s_cbranch_scc0 L_nodry1")
        e("s_mov_b32 s100, 1\ns_mov_b32 s101, 1\ns_mov_b32 s50, 0")
        e("s_branch L_red")
        A.label("L_drydone1")
        e(f"s_mov_b32 s100, {SPIN}\ns_mov_b32 s101, 0\ns_mov_b32 s50, {WS_BYTES}")
        A.label("L_nodry1")
    e("s_and_b32 s36, s35, 1")
    e("s_lshr_b32 s37, s2, 1")
    e("s_mov_b32 s40, 2\ns_mov_b32 s41, 0")
    e("s_cmp_ge_u32 s3, 2")
    e("s_cbranch_scc1 L_t23")
    e("s_mov_b32 s38, 0")
    e("s_lshl_b32 s39, s36, 1")
    e("s_add_u32 s39, s39, s3")
    e("s_branch L_tdone")
    A.label("L_t23")
    e("s_mov_b32 s38, 1")
    e("s_lshl_b32 s39, s36, 1")
    e("s_sub_u32 s39, s3, s39")
    e("s_cmp_eq_u32 s3, 2")
    e("s_cbranch_scc0 L_th2")
    e("s_mov_b32 s41, 4")
    e("s_xor_b32 s40, s36, 1")
    A.label("L_th2")
    e("s_mov_b64 exec, 0x3ffff")
    e("v_cmp_le_u32 vcc, 9, v0")
    e("v_cndmask_b32 v13, 0, 1, vcc")
    e("v_mul_u32_u24 v14, 9, v13")
    e("v_sub_u32 v14, v0, v14")
    e("v_mul_u32_u24 v15, 18432, v13")
    e("v_lshl_add_u32 v15, v14, 4, v15")
    e("s_mul_i32 s42, s37, 144")
    e(f"s_add_u32 s42, s42, {HP}")
    e("s_mov_b32 s60, s22\ns_and_b32 s61, s23, 0xffff\ns_mov_b32 s62, 9216\ns_mov_b32 s63, 0x20000")
    e("s_mul_i32 s43, s37, 72")
    e("v_lshlrev_b32 v16, 3, v14")
    e("buffer_load_dwordx2 v[18:19], v16, s[60:63], s43 offen")
    def issue_h():
        e("s_mov_b32 s43, s42")
        for k in range(7):
            e(f"buffer_load_dwordx4 v[{20+4*k}:{23+4*k}], v15, s[48:51], s43 offen sc1")
            if k < 6: e("s_add_u32 s43, s43, 36864")
    poll(issue_h, [20 + 4 * k for k in range(7)], 48)
    for r in range(4):
        for k in range(7): e(f"v_and_b32 v{20+4*k+r}, s45, v{20+4*k+r}")
        for k in range(1, 7): e(f"v_add_f32 v{20+r}, v{20+r}, v{20+4*k+r}")
    e("v_lshlrev_b32 v24, 16, v18\nv_and_b32 v25, 0xffff0000, v18\nv_lshlrev_b32 v26, 16, v19\nv_and_b32 v27, 0xffff0000, v19")
    for r in range(4):
        e(f"v_cvt_pk_bf16_f32 v{20+r}, v{20+r}, v{20+r}")
        e(f"v_and_b32 v{20+r}, 0xffff0000, v{20+r}")
        e(f"v_add_f32 v{20+r}, v{20+r}, v{24+r}")
        e(f"v_cvt_pk_bf16_f32 v{20+r}, v{20+r}, v{20+r}")
        e(f"v_and_b32 v{20+r}, 0xffff0000, v{20+r}")
        e(f"v_max_f32 v{20+r}, 0, v{20+r}")
        e(f"v_mul_f32 v{20+r}, v{20+r}, v{20+r}")
        e(f"v_cvt_pk_bf16_f32 v{20+r}, v{20+r}, v{20+r}")
    e("v_mul_u32_u24 v16, 144, v13")
    e("v_lshl_add_u32 v16, v14, 4, v16")
    e("s_lshl_b32 s43, s3, 10")
    e("v_add_u32 v16, s43, v16")
    e(f"ds_write_b128 v16, v[20:23] offset:{L_PRIV}")
    e("s_mov_b64 exec, -1")
    e("s_waitcnt lgkmcnt(0)")
    A.label("L_tdone")
    stamp(7)
    def task_srd(srd, typ, beta, voff):
        n = pollid[0]; pollid[0] += 1
        e(f"s_cmp_eq_u32 {typ}, 1")
        e(f"s_cbranch_scc1 L_sw2_{n}")
        e("s_mul_i32 s42, s37, 36864")
        e(f"s_lshl_b32 s43, {beta}, 8")
        e("s_add_u32 s42, s42, s43")
        e(f"s_add_u32 s{srd}, s16, s42\ns_addc_u32 s{srd+1}, s17, 0")
        e(f"s_sub_u32 s{srd+2}, 4718592, s42")
        e("s_mov_b32 s43, 9216")
        e(f"s_branch L_sd_{n}")
        A.label(f"L_sw2_{n}")
        e("s_mul_i32 s42, s37, 41472")
        e(f"s_lshl_b32 s43, {beta}, 8")
        e("s_add_u32 s42, s42, s43")
        e(f"s_add_u32 s{srd}, s24, s42\ns_addc_u32 s{srd+1}, s25, 0")
        e(f"s_sub_u32 s{srd+2}, 5308416, s42")
        e("s_mov_b32 s43, 10368")
        A.label(f"L_sd_{n}")
        e(f"s_and_b32 s{srd+1}, s{srd+1}, 0xffff\ns_mov_b32 s{srd+3}, 0x20000")
        e(f"s_cmp_eq_u32 {typ}, 2")
        e(f"s_cselect_b32 s{srd+2}, 0, s{srd+2}")
        e(f"v_mul_lo_u32 v{voff}, v10, s43")
        e(f"v_lshl_add_u32 v{voff}, v12, 4, v{voff}")
        e(f"v_mov_b32 v19, {OOB}")
        e("v_cmp_le_u32 vcc, 8, v12")
        e(f"v_cndmask_b32 v18, v{voff}, v19, vcc")
        e(f"s_cmp_eq_u32 {beta}, 4")
        e(f"s_cbranch_scc0 L_se_{n}")
        e(f"v_mov_b32 v{voff}, v18")
        A.label(f"L_se_{n}")
    task_srd(52, "s38", "s39", 13)
    task_srd(56, "s40", "s41", 14)
    if 'nowo' in diag:
        e("s_mov_b32 s54, 0\ns_mov_b32 s58, 0")
    e(f"v_mov_b32 v19, {OOB}")
    e("s_cmp_eq_u32 s38, 0\ns_cselect_b64 vcc, -1, 0")
    e("v_cndmask_b32 v15, v13, v19, vcc")
    e("s_cmp_eq_u32 s40, 0\ns_cselect_b64 vcc, -1, 0")
    e("v_cndmask_b32 v16, v14, v19, vcc")
    e("v_lshrrev_b32 v90, 3, v0")
    e("v_lshlrev_b32 v90, 14, v90")
    e("v_and_b32 v91, 7, v0")
    e("v_lshl_add_u32 v90, v91, 4, v90")
    e("v_cmp_le_u32 vcc, 32, v0")
    e("v_cndmask_b32 v92, v90, v19, vcc")
    e("s_cmp_eq_u32 s41, 4\ns_cselect_b64 vcc, -1, 0")
    e("v_cndmask_b32 v91, v90, v92, vcc")
    e("s_cmp_eq_u32 s39, 4\ns_cselect_b64 vcc, -1, 0")
    e("v_cndmask_b32 v90, v90, v92, vcc")
    for (typ, beta, dst) in (("s38", "s39", "s96"), ("s40", "s41", "s97")):
        e(f"s_mov_b32 {dst}, {SP}")
        e(f"s_cmp_eq_u32 {typ}, 1")
        e(f"s_cselect_b32 {dst}, {GP}, {dst}")
        e(f"s_lshl_b32 s42, {beta}, 17")
        e(f"s_add_u32 {dst}, {dst}, s42")
        e("s_lshl_b32 s42, s37, 7")
        e(f"s_add_u32 {dst}, {dst}, s42")
    e("v_and_b32 v93, 3, v0")
    e("v_bfe_u32 v94, v0, 4, 1")
    e("v_lshl_add_u32 v93, v94, 2, v93")
    e("v_bfe_u32 v94, v0, 2, 2")
    e("v_lshrrev_b32 v95, 5, v0")
    e("v_lshlrev_b32 v96, 12, v95")
    e("v_lshl_add_u32 v96, v94, 9, v96")
    e("v_lshl_add_u32 v96, v93, 4, v96")
    e("v_lshlrev_b32 v97, 7, v95")
    e("v_lshl_add_u32 v97, v94, 4, v97")
    e("s_lshr_b32 s98, s35, 1")
    e("s_lshl_b32 s98, s98, 7")
    e("s_lshl_b32 s42, s34, 13")
    e("s_add_u32 s98, s98, s42")
    e(f"s_add_u32 s98, s98, {OP}")
    e("s_lshl_b32 s99, s34, 8")
    e(f"s_add_u32 s99, s99, {ML}")
    e("s_lshl_b32 s42, s3, 10")
    e(f"s_add_u32 s42, s42, {L_PRIV + 0x200}")
    e("v_lshlrev_b32 v98, 7, v95")
    e("v_lshl_add_u32 v98, v93, 4, v98")
    e("v_add_u32 v98, s42, v98")
    e("v_lshlrev_b32 v99, 7, v11")
    e("v_lshl_add_u32 v99, v10, 5, v99")
    e("v_add_u32 v99, s42, v99")
    e("s_cmp_ge_u32 s3, 2")
    e("s_cbranch_scc0 L_noh2")
    e("v_mul_u32_u24 v20, 144, v11")
    e("v_mad_u32_u24 v20, v10, 36, v20")
    e("s_lshl_b32 s42, s3, 10")
    e("v_add_u32 v20, s42, v20")
    for t in range(9):
        e(f"ds_read_b32 v{100+t}, v20 offset:{L_PRIV + 4*t}")
    e("s_waitcnt lgkmcnt(0)")
    A.label("L_noh2")
    e("v_and_b32 v110, 31, v0")
    e("v_lshlrev_b32 v110, 4, v110")
    e("v_lshl_add_u32 v111, v95, 9, v110")
    e("v_lshlrev_b32 v112, 3, v95")
    e("v_lshl_add_u32 v113, v95, 12, v110")
    e("v_lshlrev_b32 v114, 7, v95")
    e("s_lshl_b32 s60, s34, 13")
    e("s_lshl_b32 s43, s35, 9")
    e("s_add_u32 s60, s60, s43")
    e(f"s_add_u32 s60, s60, {OP}")
    e("s_lshl_b32 s61, s34, 8")
    e("s_lshl_b32 s43, s35, 4")
    e("s_add_u32 s61, s61, s43")
    e(f"s_add_u32 s61, s61, {ML}")
    e(f"s_mov_b32 s62, 0x{LOG2E:x}")
    if warm:
        e("s_cmp_eq_u32 s3, 1")
        e("s_cbranch_scc1 L_dry2")
        e("s_cmp_eq_u32 s3, 3")
        e("s_cbranch_scc0 L_nodry2")
        e("s_mov_b32 s100, 1\ns_mov_b32 s101, 1\ns_mov_b32 s50, 0")
        e("s_branch L_comb")
        A.label("L_dry2")
        e("s_mov_b32 s100, 1\ns_mov_b32 s101, 1\ns_mov_b32 s50, 0")
        e("s_branch L_btX")
        A.label("L_drydone2")
        e(f"s_mov_b32 s100, {SPIN}\ns_mov_b32 s101, 0\ns_mov_b32 s50, {WS_BYTES}")
        A.label("L_nodry2")
    if wmode == 'flagC': ldsspin(L_FC, 4)
    if wmode == 'flagB': ldsspin(L_FB, 4)
    stamp(8)
    e("s_mov_b32 s42, 0")
    for t in range(9):
        vo = 13 if t < 8 else 15
        e(f"buffer_load_dwordx4 a[{4*t}:{4*t+3}], v{vo}, s[52:55], s42 offen{NT}")
        e("s_add_u32 s42, s42, 1152") if t < 8 else None
    e("s_mov_b32 s42, 0")
    for t in range(9):
        vo = 14 if t < 8 else 16
        e(f"buffer_load_dwordx4 a[{36+4*t}:{36+4*t+3}], v{vo}, s[56:59], s42 offen{NT}")
        e("s_add_u32 s42, s42, 1152") if t < 8 else None
    if wmode == 'early': dispatcher()
    e("s_cmp_eq_u32 s3, 3")
    e("s_cbranch_scc0 L_nocomb")
    ldsspin(L_FB, 4, nosleep=True)
    stamp(9)
    A.label("L_comb")
    e(f"ds_read_b64 v[40:41], v112 offset:{L_MLW}")
    e(f"ds_read_b64 v[42:43], v112 offset:{L_MLW+16}")
    e(f"ds_read_b128 v[24:27], v111 offset:{L_OW}")
    e(f"ds_read_b128 v[28:31], v111 offset:{L_OW + 1024}")
    e("s_waitcnt lgkmcnt(2)")
    e("v_max_f32 v48, v40, v42")
    e("v_sub_f32 v40, v40, v48\nv_sub_f32 v42, v42, v48")
    e("v_mul_f32 v40, s62, v40\nv_mul_f32 v42, s62, v42")
    e("v_exp_f32 v40, v40\nv_exp_f32 v42, v42")
    e("v_mov_b32 v52, 0\nv_mov_b32 v53, 0")
    e("v_mul_f32 v49, v40, v41")
    e("v_fmac_f32 v49, v42, v43")
    e("s_waitcnt lgkmcnt(0)")
    for r in range(4):
        e(f"v_mul_f32 v{44+r}, v40, v{24+r}")
    for r in range(4):
        e(f"v_fmac_f32 v{44+r}, v42, v{28+r}")
    tagpack(54, 44)
    e("buffer_store_dwordx4 v[54:57], v113, s[48:51], s60 offen sc1")
    e(f"v_bfi_b32 v58, s44, v2, v48\nv_bfi_b32 v59, s44, v3, v49\nv_bfi_b32 v60, s44, v4, v52\nv_bfi_b32 v61, s44, v5, v53")
    e("s_mov_b32 exec_lo, 1\ns_mov_b32 exec_hi, 1")
    e("buffer_store_dwordx4 v[58:61], v114, s[48:51], s61 offen sc1")
    e("s_mov_b64 exec, -1")
    if warm:
        e("s_cmp_lg_u32 s101, 0")
        e("s_cbranch_scc1 L_drydone2")
    stamp(10)
    A.label("L_nocomb")

    def mchain(n, srcs, abase):
        def bb(t):
            B = 76 + 4 * (t & 1)
            for jj in range(4): e(f"v_and_b32 v{B+jj}, v{srcs[t]}, v{6+jj}")
        def mm(t):
            B = 76 + 4 * (t & 1)
            c = "0" if t == 0 else "v[70:73]"
            e(f"v_mfma_f32_16x16x32_bf16 v[70:73], a[{abase+4*t}:{abase+4*t+3}], v[{B}:{B+3}], {c}")
        bb(0); bb(1)
        for t in range(n):
            mm(t)
            if t + 2 < n: bb(t + 2)
    def blocktask(which, typ, abase, vst, sst):
        n = pollid[0]; pollid[0] += 1
        e(f"s_cmp_eq_u32 {typ}, 2")
        e(f"s_cbranch_scc1 L_bt_end{n}")
        e(f"s_cmp_eq_u32 {typ}, 1")
        e(f"s_cbranch_scc1 L_bt_w2{n}")
        def issue_o():
            e("buffer_load_dwordx4 v[24:27], v96, s[48:51], s98 offen sc1")
            e("buffer_load_dwordx4 v[36:39], v96, s[48:51], s98 offen offset:2048 sc1")
            e("buffer_load_dwordx4 v[28:31], v97, s[48:51], s99 offen sc1")
            e("buffer_load_dwordx4 v[40:43], v97, s[48:51], s99 offen offset:64 sc1")
        poll(issue_o, [24, 36, 28, 40], 32, nosleep=True)
        stamp(11)
        if not nomask:
            for r in (24, 25, 26, 27, 36, 37, 38, 39, 28, 29, 40, 41): e(f"v_and_b32 v{r}, s45, v{r}")
        e("v_max_f32 v30, v28, v40")
        e("v_max_f32_dpp v30, v30, v30 row_ror:4 row_mask:0xf bank_mask:0xf")
        e("v_max_f32_dpp v30, v30, v30 row_ror:8 row_mask:0xf bank_mask:0xf")
        e("v_sub_f32 v28, v28, v30\nv_sub_f32 v40, v40, v30")
        e("v_mul_f32 v28, s62, v28\nv_mul_f32 v40, s62, v40")
        e("v_exp_f32 v28, v28\nv_exp_f32 v40, v40")
        e("v_mul_f32 v29, v29, v28")
        for r in range(4): e(f"v_mul_f32 v{24+r}, v{24+r}, v28")
        e("v_fmac_f32 v29, v41, v40")
        for r in range(4): e(f"v_fmac_f32 v{24+r}, v{36+r}, v40")
        for r in (29, 24, 25, 26, 27):
            e(f"v_add_f32_dpp v{r}, v{r}, v{r} row_ror:4 row_mask:0xf bank_mask:0xf")
        for r in (29, 24, 25, 26, 27):
            e(f"v_add_f32_dpp v{r}, v{r}, v{r} row_ror:8 row_mask:0xf bank_mask:0xf")
        e("v_rcp_f32 v29, v29")
        for r in range(4): e(f"v_mul_f32 v{24+r}, v{24+r}, v29")
        for r in range(4): e(f"v_cvt_pk_bf16_f32 v{24+r}, v{24+r}, v{24+r}")
        e("ds_write_b128 v98, v[24:27]")
        e("s_waitcnt lgkmcnt(0)")
        e("ds_read_b128 v[24:27], v99")
        e("ds_read_b128 v[28:31], v99 offset:16")
        e("s_waitcnt lgkmcnt(0)")
        mchain(8, [24 + t for t in range(8)], abase)
        e(f"s_branch L_bt_pub{n}")
        A.label(f"L_bt_w2{n}")
        e(f"s_waitcnt vmcnt({0 if which == 'Y' else 9})") if False else e("s_waitcnt vmcnt(0)")
        mchain(9, [100 + t for t in range(9)], abase)
        A.label(f"L_bt_pub{n}")
        tagpack(74, 70)
        e(f"buffer_store_dwordx4 v[74:77], v{vst}, s[48:51], {sst} offen sc1")
        A.label(f"L_bt_end{n}")
    A.label("L_btX")
    blocktask("X", "s38", 0, 90, "s96")
    if warm:
        e("s_cmp_lg_u32 s101, 0")
        e("s_cbranch_scc1 L_drydone2")
    stamp(12)
    blocktask("Y", "s40", 36, 91, "s97")
    stamp(13)

    e("s_cmp_ge_u32 s2, 36")
    e("s_cbranch_scc1 L_auxend")
    A.label("L_red")
    e("s_lshr_b32 s36, s2, 3")
    e("s_and_b32 s37, s2, 7")
    e("s_lshl_b32 s38, s36, 7")
    e("s_lshr_b32 s39, s37, 1")
    e("s_lshl_b32 s39, s39, 5")
    e("s_add_u32 s38, s38, s39")
    e("s_and_b32 s39, s37, 1")
    e("s_mul_i32 s39, s39, 576")
    e("s_add_u32 s39, s39, s38")
    e("s_mov_b32 s60, s8\ns_and_b32 s61, s9, 0xffff\ns_mov_b32 s62, 2304\ns_mov_b32 s63, 0x20000")
    e("s_mov_b32 s56, s26\ns_and_b32 s57, s27, 0xffff\ns_mov_b32 s58, 1152\ns_mov_b32 s59, 0x20000")
    e("v_lshlrev_b32 v13, 1, v0")
    e("s_lshl_b32 s40, s39, 1")
    e("s_lshl_b32 s41, s38, 1")
    e("v_and_b32 v16, 3, v0")
    e("v_bfe_u32 v17, v0, 4, 1")
    e("v_lshl_add_u32 v16, v17, 2, v16")
    e("v_bfe_u32 v17, v0, 2, 2")
    e("v_lshrrev_b32 v18, 5, v0")
    e("v_lshl_add_u32 v17, v18, 2, v17")
    e("v_lshlrev_b32 v19, 4, v16")
    e("v_lshl_add_u32 v16, v17, 7, v19")
    e("v_lshl_add_u32 v17, v18, 7, v19")
    e("s_lshl_b32 s43, s3, 8")
    e("v_add_u32 v17, s43, v17")
    e("s_lshl_b32 s42, s2, 14")
    e("s_lshl_b32 s43, s3, 12")
    e("s_add_u32 s42, s42, s43")
    e(f"s_add_u32 s43, s42, {SP}")
    e(f"s_add_u32 s42, s42, {GP}")
    e("s_mov_b32 exec_lo, -1\ns_mov_b32 exec_hi, 0")
    e("buffer_load_ushort v14, v13, s[60:63], s40 offen")
    e("buffer_load_ushort v15, v13, s[56:59], s41 offen")
    e("s_mov_b64 exec, -1")
    e("s_mov_b32 s60, s28\ns_and_b32 s61, s29, 0xffff")
    def issue_r():
        for k in range(4):
            e(f"buffer_load_dwordx4 v[{20+4*k}:{23+4*k}], v16, s[48:51], s42 offen offset:{1024*k} sc1")
        for k in range(4):
            e(f"buffer_load_dwordx4 v[{36+4*k}:{39+4*k}], v16, s[48:51], s43 offen offset:{1024*k} sc1")
    poll(issue_r, [20 + 4 * k for k in range(8)], 52, nosleep=True)
    stamp(14)
    for base in (20, 36):
        for r in range(4):
            if not nomask:
                for k in range(4): e(f"v_and_b32 v{base+4*k+r}, s45, v{base+4*k+r}")
        for r in range(4): e(f"v_add_f32 v{base+r}, v{base+r}, v{base+4+r}")
        for r in range(4): e(f"v_add_f32 v{base+8+r}, v{base+8+r}, v{base+12+r}")
        for r in range(4): e(f"v_add_f32 v{base+r}, v{base+r}, v{base+8+r}")
    for sh in (4, 8):
        for base in (20, 36):
            for r in range(4):
                e(f"v_add_f32_dpp v{base+r}, v{base+r}, v{base+r} row_ror:{sh} row_mask:0xf bank_mask:0xf")
    e(f"ds_write_b128 v17, v[20:23] offset:{L_RED}")
    e(f"ds_write_b128 v17, v[36:39] offset:{L_RED + 1024}")
    e("v_and_b32 v17, 7, v0")
    e("v_lshlrev_b32 v17, 4, v17")
    e("v_bfe_u32 v18, v0, 3, 2")
    e("v_lshl_add_u32 v17, v18, 2, v17")
    e("s_waitcnt lgkmcnt(0)")
    if warm:
        e("s_cmp_lg_u32 s101, 0")
        e("s_cbranch_scc1 L_redfin")
    e("s_barrier")
    e("s_cmp_eq_u32 s3, 0")
    e("s_cbranch_scc0 L_auxend")
    A.label("L_redfin")
    for kind in range(2):
        for a in range(8):
            e(f"ds_read_b32 v{20+8*kind+a}, v17 offset:{L_RED + 1024*kind + 128*a}")
    e("v_lshlrev_b32 v14, 16, v14")
    e("v_lshlrev_b32 v15, 16, v15")
    e("s_waitcnt lgkmcnt(8)")
    def sum8(b):
        for k in (0, 2, 4, 6): e(f"v_add_f32 v{b+k}, v{b+k}, v{b+k+1}")
        e(f"v_add_f32 v{b}, v{b}, v{b+2}")
        e(f"v_add_f32 v{b+4}, v{b+4}, v{b+6}")
        e(f"v_add_f32 v{b}, v{b}, v{b+4}")
    def rnd(r):
        e(f"v_cvt_pk_bf16_f32 v{r}, v{r}, v{r}")
        e(f"v_and_b32 v{r}, 0xffff0000, v{r}")
    sum8(20)
    rnd(20)
    e("v_add_f32 v20, v20, v15")
    rnd(20)
    e(f"v_mul_f32 v21, 0x{(LOG2E ^ 0x80000000):x}, v20")
    e("v_exp_f32 v21, v21")
    e("s_waitcnt lgkmcnt(0)")
    sum8(28)
    e("v_add_f32 v21, 1.0, v21")
    e("v_rcp_f32 v21, v21")
    rnd(28)
    e("v_mul_f32 v20, v20, v21")
    rnd(20)
    e("v_mul_f32 v20, v28, v20")
    rnd(20)
    e("v_add_f32 v20, v14, v20")
    e("v_cvt_pk_bf16_f32 v20, v20, v20")
    if warm:
        e("s_cmp_lg_u32 s101, 0")
        e("s_cselect_b32 s62, 0, s62")
    e("s_mov_b32 exec_lo, -1\ns_mov_b32 exec_hi, 0")
    e("buffer_store_short v20, v13, s[60:63], s40 offen" + (" sc0 sc1" if outsc1 else ""))
    e("s_mov_b64 exec, -1")
    if warm:
        e("s_cmp_lg_u32 s101, 0")
        e("s_cbranch_scc1 L_drydone1")
    dbg(5)
    stamp(15)
    e("s_cmp_eq_u32 s2, 0")
    e("s_cbranch_scc0 L_auxend")
    e("s_mov_b64 exec, 1")
    e("v_mov_b32 v20, s46\nv_mov_b32 v21, s47\nv_mov_b32 v22, 0")
    e("buffer_store_dwordx2 v[20:21], v22, s[48:51], 0 offen sc1")
    e("s_mov_b64 exec, -1")
    A.label("L_auxend")
    stamp(15 + 1) if False else None
    dump_stamps(16)
    A.label("L_end")
    e("s_endpgm")
    st = A.items[MARK_STREAM0:MARK_STREAM1]
    A.items = A.items[:MARK_STREAM0] + A.items[MARK_STREAM1:] + st
    A.label("L_codeend")
    e("s_endpgm")
    A.raw('.section .rodata,"a"')
    A.raw(".p2align 6")
    A.raw(f".amdhsa_kernel {NAME}")
    acc = 40 + 16 * D
    acc = (acc + 3) // 4 * 4
    A.raw(f"  .amdhsa_next_free_vgpr {acc + max(16 * D, 88)}")
    A.raw("  .amdhsa_next_free_sgpr 102")
    A.raw(f"  .amdhsa_accum_offset {acc}")
    A.raw("  .amdhsa_group_segment_fixed_size 0")
    A.raw("  .amdhsa_kernarg_size 104")
    A.raw("  .amdhsa_user_sgpr_count 2")
    A.raw("  .amdhsa_user_sgpr_kernarg_segment_ptr 1")
    A.raw("  .amdhsa_system_sgpr_workgroup_id_x 1")
    A.raw("  .amdhsa_float_denorm_mode_32 3")
    A.raw(".end_amdhsa_kernel")
    n = A.fix_hazards()
    return A.text(), n

if __name__ == "__main__":
    cfg = json.loads(sys.argv[2]) if len(sys.argv) > 2 else {}
    t, n = gen(**cfg)
    hdr = open("cdna_kernels/" + NAME[:-7] + ".s.ref").read().split("; Override launch")[0]
    lines = t.split("\n")
    out = hdr + lines[0] + "\n" + "\n".join(lines[1:])
    open(sys.argv[1], "w").write(out)
    print("nops inserted:", n)
```

```python
import sys, json
from asmfw import Asm

NAME = "recurrent_scan__mha_block_cached__dense_activation_squared_relu__decode_kernel"

EP = 0
QP = 0x10000
HP = 0x60000
OP = 0xA0000
ML = 0xE0000
CNT = 0xF0000
SP = 0x100000
GP = 0x200000
TS = 0x300000
WS_BYTES = 0x500000
L_Q = 0x000
L_FC = 0x200
L_FB = 0x204
L_WANT = 0x208
L_FQ = 0x20c
L_MLW = 0x240
L_MB = 0x280
L_OW = 0x400
L_HT = 0xC00
L_PRIV = 0x1000
L_RED = 0x2000
LDS_BYTES = 0x2800

TAGB = 10
TAGM = (1 << TAGB) - 1
VALM = (~TAGM) & 0xffffffff
OOB = 0x40000000
LOG2E = 0x3fb8aa3b
SCALE = 0x3db504f3
SPIN = 1 << 17

def gen(D=6, A_=2, gss=((8, 4), (8, 2), (16, 1)), req_at=1, stamps=False, nt=True, sleep=1, bar0=True, tlog=False, noatom=False, ntk=None, tstep=False, static_tail=False, kpat=True, ahead2=True, prefetch=True, pstamps=False, fillq=None, latew1=True, wmode='flagC', rot=1, fast=True, ntk_end=None, diag='', split=None, nomask=True, warm=True, tlb=False, outsc1=False, dbgspan=False, halves=True):
    A = Asm()
    e = A
    NT = " nt" if nt else ""
    nstamp = [0]
    def stamp(k):
        if stamps and (not pstamps or k == 0):
            e(f"s_memrealtime s[{64+2*k}:{65+2*k}]")
    def pst(k):
        if stamps and pstamps:
            e(f"s_memrealtime s[{64+2*k}:{65+2*k}]")
    def dbg(idx, neg=False, r=126):
        if not dbgspan: return
        e("s_memrealtime s[6:7]")
        e("s_mov_b32 s92, s30\ns_and_b32 s93, s31, 0xffff\ns_mov_b32 s94, 256\ns_mov_b32 s95, 0x20000")
        e("s_waitcnt lgkmcnt(0)")
        if neg: e("s_not_b32 s6, s6")
        e("s_mov_b64 exec, 1")
        e(f"v_mov_b32 v{r}, s6")
        e(f"v_mov_b32 v{r+1}, {4*idx}")
        e(f"buffer_atomic_umax v{r}, v{r+1}, s[92:95], 0 offen sc1")
        e("s_mov_b64 exec, -1")
    def dump_stamps(nk):
        if not stamps: return
        e("s_waitcnt lgkmcnt(0)")
        e("s_lshl_b32 s6, s2, 3")
        e("s_add_u32 s6, s6, s5")
        e("s_lshl_b32 s6, s6, 7")
        e(f"s_add_u32 s6, s6, {TS}")
        e("s_mov_b64 exec, 1")
        e("v_mov_b32 v1, 0")
        e(f"s_mov_b32 s60, s32\ns_mov_b32 s61, s33\ns_mov_b32 s62, {WS_BYTES}\ns_mov_b32 s63, 0x20000")
        for k in range(nk):
            e(f"v_mov_b32 v2, s{64+2*k}")
            e(f"buffer_store_dword v2, v1, s[60:63], s6 offen offset:{4*k}")
        e("s_mov_b64 exec, -1")

    A.raw("; @launch grid=(256,1,1) block=(512,1,1) lds=%d" % LDS_BYTES)
    A.raw('.amdgcn_target "amdgcn-amd-amdhsa--gfx950"')
    A.raw(".text")
    A.raw(f".globl {NAME}")
    A.raw(".p2align 8")
    A.raw(f".type {NAME},@function")
    A.label(NAME)
    e("s_cmp_ge_u32 s2, 256")
    e("s_cbranch_scc1 L_end")
    e("s_load_dwordx16 s[8:23], s[0:1], 0")
    e("s_load_dwordx8 s[24:31], s[0:1], 64")
    e("s_load_dwordx2 s[32:33], s[0:1], 96")
    stamp(0)
    e("v_lshrrev_b32 v1, 6, v0")
    e("v_and_b32 v0, 63, v0")
    e("v_readfirstlane_b32 s3, v1")
    e("s_lshr_b32 s34, s2, 3")
    e("s_and_b32 s35, s2, 7")
    e("s_mov_b32 s5, s3")
    if prefetch:
        e("s_cmp_eq_u32 s3, 3")
        e("s_cbranch_scc0 L_nopf")
        e("s_getpc_b64 s[60:61]")
        A.label("L_pc")
        e(f"s_sub_u32 s60, s60, L_pc-{NAME}")
        e("s_subb_u32 s61, s61, 0")
        e("s_and_b32 s61, s61, 0xffff")
        e(f"s_mov_b32 s62, L_codeend-{NAME}")
        e("s_mov_b32 s63, 0x20000")
        e("s_and_b32 s36, s34, 3")
        e("s_mul_i32 s36, s36, 5120")
        e("v_lshlrev_b32 v13, 4, v0")
        for k in range(4):
            e(f"buffer_load_dwordx4 v[40:43], v13, s[60:63], s36 offen offset:{1024*k}")
        e("s_add_u32 s36, s36, 4096")
        e(f"buffer_load_dwordx4 v[40:43], v13, s[60:63], s36 offen")
        A.label("L_nopf")
    e("s_cmp_ge_u32 s3, 4")
    e("s_cbranch_scc1 L_stream")
    def masks(t1=1, t2=2):
        e(f"v_and_b32 v{t1}, 1, v0")
        e(f"v_lshlrev_b32 v{t1}, 4, v{t1}")
        e(f"v_mov_b32 v{t2}, 0xffff")
        e(f"v_lshlrev_b32 v{t1}, v{t1}, v{t2}")
        e(f"v_bfe_u32 v{t2}, v0, 1, 2")
        for j in range(4):
            e(f"v_cmp_eq_u32 vcc, {j}, v{t2}")
            e(f"v_cndmask_b32 v{6+j}, 0, v{t1}, vcc")
    MARK_STREAM0 = len(A.items)

    A.label("L_stream")
    e("s_sub_u32 s3, s3, 4")
    e("s_and_b32 s37, s3, 1")
    e("s_lshl_b32 s36, s37, 5")
    e("s_add_u32 s36, s36, s34")
    e("s_lshl_b32 s36, s36, 20")
    e("s_waitcnt lgkmcnt(0)")
    if dbgspan:
        e("s_or_b32 s6, s34, s3")
        e("s_cmp_eq_u32 s6, 0")
        e("s_cbranch_scc0 L_nd0")
        dbg(0, True, 34)
        dbg(1, False, 34)
        A.label("L_nd0")
    e("s_add_u32 s48, s10, s36\ns_addc_u32 s49, s11, 0\ns_and_b32 s49, s49, 0xffff\ns_mov_b32 s50, 0x100000\ns_mov_b32 s51, 0x20000")
    e("s_add_u32 s52, s12, s36\ns_addc_u32 s53, s13, 0\ns_and_b32 s53, s53, 0xffff\ns_mov_b32 s54, 0x100000\ns_mov_b32 s55, 0x20000")
    e("s_lshr_b32 s39, s3, 1")
    STRIDE = 16 if kpat else 2
    e(f"s_lshl_b32 s80, s35, {1 if kpat else 4}")
    e("s_add_u32 s80, s80, s39")
    e("v_lshlrev_b32 v1, 4, v0")
    def chunk_off():
        if rot and kpat:
            e("s_lshr_b32 s84, s80, 4")
            if rot != 1: e(f"s_mul_i32 s84, s84, {rot}")
            e("s_lshl_b32 s84, s84, 1")
            e("s_add_u32 s84, s84, s80")
            e("s_and_b32 s84, s84, 15")
            e("s_andn2_b32 s85, s80, 15")
            e("s_or_b32 s84, s84, s85")
            e("s_lshl_b32 s38, s84, 12")
        else:
            e("s_lshl_b32 s38, s80, 12")
    KR = lambda s, t: 40 + 16 * s + 4 * t
    VR = lambda s, t: 16 * s + 4 * t
    def loadK(s):
        for t in range(4):
            r = KR(s, t)
            e(f"buffer_load_dwordx4 v[{r}:{r+3}], v1, s[48:51], s38 offen offset:{1024*t}{NT}")
    def loadV(s):
        for t in range(4):
            r = VR(s, t)
            e(f"buffer_load_dwordx4 a[{r}:{r+3}], v1, s[52:55], s38 offen offset:{1024*t}{NT}")
    if tlog or tstep:
        e("s_mov_b32 s87, 0")
        e("v_mov_b32 v33, -1")
        e("v_mov_b32 v34, -1")
    if bar0: e("s_barrier")
    for c in range(D):
        if tlog:
            e("s_mov_b32 m0, s87")
            e("v_writelane_b32 v33, s80, m0")
            e("s_add_u32 s87, s87, 1")
        chunk_off()
        e(f"s_add_u32 s80, s80, {STRIDE}")
        if fillq is None:
            loadK(c); loadV(c)
        else:
            for half in range(2):
                if c * 8 + half * 4 + 4 > fillq:
                    e(f"s_waitcnt vmcnt({max(fillq - 4, 0)})")
                (loadK if half == 0 else loadV)(c)
    stamp(1)
    masks(20, 21)
    e(f"s_mov_b32 s81, {8 - D}")
    e("s_mov_b32 s82, 0")
    e("s_mov_b32 s83, 8")
    e("s_mov_b32 s62, 0")
    for k in range(D): e(f"s_mov_b32 s{56+k}, 0")
    e("s_mov_b32 s42, 0xf0f0f0f0\ns_mov_b32 s43, 0xf0f0f0f0")
    e("v_mov_b32 v35, 0xff800000")
    for r in range(4): e(f"v_mov_b32 v{10+r}, 0")
    e("v_mov_b32 v14, 0xff800000")
    e("v_mov_b32 v15, 0")
    e("v_and_b32 v16, 15, v0")
    e("v_lshlrev_b32 v16, 4, v16")
    e("s_lshl_b32 s40, s37, 8")
    e("v_add_u32 v16, s40, v16")
    e("s_mov_b32 s86, 0")
    e("s_mov_b32 s88, 0x400000")
    e(f"s_mov_b32 s40, 0x{SCALE:x}")
    e(f"s_mov_b32 s41, 0x{LOG2E:x}")
    e(f"v_mov_b32 v36, {L_WANT}")
    e(f"v_mov_b32 v20, {L_FQ}")
    A.label("L_qspin")
    e("ds_read_b32 v21, v20")
    e("s_waitcnt lgkmcnt(0)")
    e("v_readfirstlane_b32 s90, v21")
    e("s_cmp_lg_u32 s90, 0")
    e("s_cbranch_scc1 L_qgo")
    e("s_sleep 1")
    e("s_sub_u32 s88, s88, 1")
    e("s_cmp_lg_u32 s88, 0")
    e("s_cbranch_scc1 L_qspin")
    A.label("L_qgo")
    e(f"ds_read_b128 v[2:5], v16 offset:{L_Q}")
    e("s_waitcnt lgkmcnt(0)")
    stamp(2)
    NKV = 8 * (D - 1)
    NTK = 12 if ntk is None else ntk
    A.label("L_sloop")
    for s in range(D):
        e("s_cmp_eq_u32 s86, 0")
        e(f"s_cbranch_scc1 L_nw{s}")
        e("s_cmp_eq_u32 s89, 0")
        e("s_cbranch_scc1 L_sdone")
        e("s_sub_u32 s89, s89, 1")
        e("s_cmp_ge_u32 s89, 2")
        e(f"s_cbranch_scc1 L_dw{s}")
        e("s_cmp_eq_u32 s89, 1")
        e(f"s_cbranch_scc1 L_w8{s}")
        e("s_waitcnt vmcnt(0)")
        e(f"s_branch L_go{s}")
        A.label(f"L_w8{s}")
        e("s_waitcnt vmcnt(8)")
        e(f"s_branch L_go{s}")
        A.label(f"L_dw{s}")
        e("s_waitcnt vmcnt(16)")
        e(f"s_branch L_go{s}")
        A.label(f"L_nw{s}")
        e(f"s_waitcnt vmcnt({NKV})")
        A.label(f"L_go{s}")
        if tstep:
            e("s_memrealtime s[90:91]")
            e("s_waitcnt lgkmcnt(0)")
            e("s_mov_b32 m0, s87")
            e("v_writelane_b32 v33, s90, m0")
            e("s_add_u32 s87, s87, 1")
        if tlog:
            e("s_mov_b32 m0, s87")
            e(f"v_writelane_b32 v33, s{64+s}, m0") if False else None
        for jj in range(4):
            for t in range(4):
                k = KR(s, t) + jj
                if jj == 0: e(f"v_dot2_f32_bf16 v{16+t}, v{k}, v2, 0")
                else: e(f"v_dot2c_f32_bf16 v{16+t}, v{k}, v{2+jj}")
        e("v_add_f32_dpp v20, v16, v16 row_ror:8 row_mask:0xf bank_mask:0x3")
        e("v_add_f32_dpp v21, v18, v18 row_ror:8 row_mask:0xf bank_mask:0x3")
        e("v_add_f32_dpp v20, v17, v17 row_ror:8 row_mask:0xf bank_mask:0xc")
        e("v_add_f32_dpp v21, v19, v19 row_ror:8 row_mask:0xf bank_mask:0xc")
        e("v_add_f32_dpp v22, v20, v20 row_shl:4 row_mask:0xf bank_mask:0x5")
        e("v_add_f32_dpp v22, v21, v21 row_shr:4 row_mask:0xf bank_mask:0xa")
        e("v_add_f32_dpp v22, v22, v22 quad_perm:[1,0,3,2] row_mask:0xf bank_mask:0xf")
        e("v_add_f32_dpp v22, v22, v22 quad_perm:[2,3,0,1] row_mask:0xf bank_mask:0xf")
        e("v_cvt_pk_bf16_f32 v23, v22, v22")
        e("v_and_b32 v23, 0xffff0000, v23")
        e("v_mul_f32 v23, s40, v23")
        e("v_cvt_pk_bf16_f32 v23, v23, v23")
        e("v_and_b32 v23, 0xffff0000, v23")
        if halves:
            e(f"s_cmp_eq_u32 s{56+s}, 0")
            e(f"s_cbranch_scc1 L_nh{s}")
            e("v_cndmask_b32 v23, v23, v35, s[42:43]")
            A.label(f"L_nh{s}")
        if fast:
            e("v_cmp_lt_f32 vcc, v14, v23")
            e("s_cmp_lg_u64 vcc, 0")
            e(f"s_cbranch_scc0 L_nomax{s}")
            e("v_max_f32_dpp v24, v23, v23 row_ror:4 row_mask:0xf bank_mask:0xf")
            e("v_max_f32_dpp v24, v24, v24 row_ror:8 row_mask:0xf bank_mask:0xf")
            e("v_mov_b32 v25, v24")
            e("v_permlane16_swap_b32 v24, v25")
            e("v_max_f32 v24, v24, v25")
            e("v_mov_b32 v25, v24")
            e("v_permlane32_swap_b32 v24, v25")
            e("v_max3_f32 v24, v24, v25, v14")
            e("v_sub_f32 v25, v14, v24")
            e("v_mul_f32 v25, s41, v25")
            e("v_exp_f32 v25, v25")
            e("v_mov_b32 v14, v24")
            e("v_mul_f32 v15, v15, v25")
            for r in range(4): e(f"v_mul_f32 v{10+r}, v{10+r}, v25")
            A.label(f"L_nomax{s}")
            e("v_sub_f32 v26, v23, v14")
            e("v_mul_f32 v26, s41, v26")
            e("v_exp_f32 v26, v26")
            e("v_cvt_pk_bf16_f32 v27, v26, v26")
            e("v_add_f32 v15, v15, v26")
            bank_lane = [0, 8, 4, 12]
            def bb(t):
                B = 28 if (t & 1) == 0 else 16
                for jj in range(4):
                    e(f"v_and_b32_dpp v{B+jj}, v27, v{6+jj} row_newbcast:{bank_lane[t]} row_mask:0xf bank_mask:0xf")
            def mm(t):
                B = 28 if (t & 1) == 0 else 16
                r = VR(s, t)
                e(f"v_mfma_f32_16x16x32_bf16 v[10:13], a[{r}:{r+3}], v[{B}:{B+3}], v[10:13]")
            bb(0); bb(1); mm(0); bb(2); mm(1); bb(3); mm(2); mm(3)
        else:
            e("v_max_f32_dpp v24, v23, v23 row_ror:4 row_mask:0xf bank_mask:0xf")
            e("v_max_f32_dpp v24, v24, v24 row_ror:8 row_mask:0xf bank_mask:0xf")
            e("v_mov_b32 v25, v24")
            e("v_permlane16_swap_b32 v24, v25")
            e("v_max_f32 v24, v24, v25")
            e("v_mov_b32 v25, v24")
            e("v_permlane32_swap_b32 v24, v25")
            e("v_max3_f32 v24, v24, v25, v14")
            e("v_sub_f32 v25, v14, v24")
            e("v_sub_f32 v26, v23, v24")
            e("v_mul_f32 v25, s41, v25")
            e("v_mul_f32 v26, s41, v26")
            e("v_exp_f32 v25, v25")
            e("v_exp_f32 v26, v26")
            e("v_mov_b32 v14, v24")
            e("v_fma_f32 v15, v15, v25, v26")
            e("v_cvt_pk_bf16_f32 v27, v26, v26")
            for r in range(4): e(f"v_mul_f32 v{10+r}, v{10+r}, v25")
            bank_lane = [0, 8, 4, 12]
            for t in range(4):
                B = 28 if (t & 1) == 0 else 16
                for jj in range(4):
                    e(f"v_and_b32_dpp v{B+jj}, v27, v{6+jj} row_newbcast:{bank_lane[t]} row_mask:0xf bank_mask:0xf")
                r = VR(s, t)
                e(f"v_mfma_f32_16x16x32_bf16 v[10:13], a[{r}:{r+3}], v[{B}:{B+3}], v[10:13]")
        if tstep:
            e("s_memrealtime s[90:91]")
            e("s_waitcnt lgkmcnt(0)")
            e("v_writelane_b32 v34, s90, m0")
        e("s_cmp_lg_u32 s86, 0")
        e(f"s_cbranch_scc1 L_nx{s}")
        if ntk_end is not None:
            e("s_cmp_eq_u32 s83, 1")
            e(f"s_cbranch_scc1 L_ne{s}")
            e(f"s_waitcnt vmcnt({NTK})")
            A.label(f"L_ne{s}")
            e(f"s_waitcnt vmcnt({ntk_end})")
        else:
            e(f"s_waitcnt vmcnt({NTK})")
        e("s_cmp_lg_u32 s81, 0")
        e(f"s_cbranch_scc1 L_have{s}")
        if static_tail:
            e("s_cmp_lg_u32 s82, 0")
            e(f"s_cbranch_scc1 L_drain{s}")
            e(f"s_lshl_b32 s90, s35, {1 if kpat else 4}")
            e("s_add_u32 s90, s90, 128")
            e("s_or_b32 s90, s90, 0x80000")
        else:
            e("s_lshl_b32 s90, s82, 2")
            e(f"s_add_u32 s90, s90, {L_MB}")
            e("v_mov_b32 v20, s90")
            A.label(f"L_mb{s}")
            e("ds_read_b32 v21, v20")
            e("s_waitcnt lgkmcnt(0)")
            e("v_readfirstlane_b32 s90, v21")
            e("s_cmp_lg_u32 s90, -1")
            e(f"s_cbranch_scc1 L_got{s}")
            e("s_sub_u32 s88, s88, 1")
            e("s_cmp_lg_u32 s88, 0")
            e(f"s_cbranch_scc1 L_mb{s}")
            e("s_mov_b32 s90, 256")
            A.label(f"L_got{s}")
        e("s_add_u32 s82, s82, 1")
        e("s_and_b32 s80, s90, 0xffff")
        e("s_bfe_u32 s81, s90, 0x80010")
        e("s_lshr_b32 s62, s90, 24")
        e("s_mov_b32 s83, s81")
        e("s_cmp_lt_u32 s80, 256")
        e("s_addc_u32 s80, s80, 0") if False else None
        e(f"s_cbranch_scc1 L_ok{s}")
        A.label(f"L_drain{s}")
        e("s_mov_b32 s86, 1")
        e(f"s_mov_b32 s89, {D-1}")
        e("s_mov_b64 exec, 1")
        e(f"v_mov_b32 v20, {L_FC}")
        e("v_mov_b32 v21, 1")
        e("ds_add_u32 v20, v21")
        e("s_mov_b64 exec, -1")
        stamp(3)
        e(f"s_branch L_nx{s}")
        A.label(f"L_ok{s}")
        e("s_add_u32 s80, s80, s39")
        A.label(f"L_have{s}")
        chunk_off()
        if halves:
            e(f"s_mov_b32 s{56+s}, s62")
            e("s_cmp_eq_u32 s62, 0")
            e(f"s_cbranch_scc1 L_full{s}")
            e("s_lshr_b32 s63, s62, 1")
            e("s_lshl_b32 s63, s63, 11")
            e("s_add_u32 s38, s38, s63")
            e("s_add_u32 s50, s38, 2048")
            e("s_mov_b32 s54, s50")
            A.label(f"L_full{s}")
        e(f"s_add_u32 s80, s80, {STRIDE}")
        e("s_sub_u32 s81, s81, 1")
        if tlog:
            e("s_lshr_b32 s90, s38, 12")
            e("s_mov_b32 m0, s87")
            e("v_writelane_b32 v33, s90, m0")
            e("s_add_u32 s87, s87, 1")
        loadK(s)
        if not static_tail:
            e(f"s_cmp_le_u32 s81, {req_at}")
            e(f"s_cbranch_scc0 L_nr{s}")
            e("s_add_u32 s90, s82, 1")
            if ahead2:
                e("s_cmp_eq_u32 s83, 1")
                e("s_addc_u32 s90, s90, 0")
            e("s_mov_b64 exec, 1")
            e("v_mov_b32 v21, s90")
            e("ds_max_u32 v36, v21")
            e("s_mov_b64 exec, -1")
            A.label(f"L_nr{s}")
        if split is not None: e(f"s_waitcnt vmcnt({split})")
        loadV(s)
        A.label(f"L_nx{s}")
        if s == D - 1:
            e("s_branch L_sloop")
    A.label("L_sdone")
    if dbgspan:
        e("s_and_b32 s6, s34, 7")
        e("s_or_b32 s6, s6, s3")
        e("s_cmp_eq_u32 s6, 0")
        e("s_cbranch_scc0 L_nd3")
        dbg(3, False, 34)
        A.label("L_nd3")
    stamp(4)
    e("v_add_f32_dpp v15, v15, v15 row_ror:4 row_mask:0xf bank_mask:0xf")
    e("v_add_f32_dpp v15, v15, v15 row_ror:8 row_mask:0xf bank_mask:0xf")
    e("v_mov_b32 v25, v15")
    e("v_permlane16_swap_b32 v15, v25")
    e("v_add_f32 v15, v15, v25")
    e("v_mov_b32 v25, v15")
    e("v_permlane32_swap_b32 v15, v25")
    e("v_add_f32 v15, v15, v25")
    e("v_lshrrev_b32 v16, 4, v0")
    e("v_lshlrev_b32 v16, 7, v16")
    e("v_and_b32 v17, 7, v0")
    e("v_lshl_add_u32 v16, v17, 2, v16")
    e("s_lshl_b32 s37, s3, 9")
    e("v_add_u32 v16, s37, v16")
    for r in range(4):
        e(f"ds_write_b32 v16, v{10+r} offset:{L_OW + 32*r}")
    e("s_lshl_b32 s37, s3, 3")
    e("v_mov_b32 v17, s37")
    e(f"ds_write_b64 v17, v[14:15] offset:{L_MLW}")
    e("s_waitcnt lgkmcnt(0)")
    e("s_mov_b64 exec, 1")
    e(f"v_mov_b32 v28, {L_FB}")
    e("v_mov_b32 v29, 1")
    e("ds_add_u32 v28, v29")
    e("s_mov_b64 exec, -1")
    stamp(5)
    if tlog or tstep:
        e("s_lshl_b32 s6, s2, 3\ns_add_u32 s6, s6, s5\ns_lshl_b32 s6, s6, 8")
        e(f"s_add_u32 s6, s6, {TS + 0x80000}")
        e(f"s_mov_b32 s60, s32\ns_mov_b32 s61, s33\ns_mov_b32 s62, {WS_BYTES}\ns_mov_b32 s63, 0x20000")
        e("v_lshlrev_b32 v1, 2, v0")
        e("buffer_store_dword v33, v1, s[60:63], s6 offen")
        e(f"s_add_u32 s6, s6, 0x80000")
        e("buffer_store_dword v34, v1, s[60:63], s6 offen")
    dump_stamps(6)
    e("s_endpgm")

    MARK_STREAM1 = len(A.items)
    A.label("L_aux")
    e("s_setprio 3")
    e(f"s_mov_b32 s100, {1 if 'nopoll' in diag else SPIN}")
    e("s_mov_b32 s101, 0")
    if 'noaux' in diag:
        e("s_cmp_ge_u32 s3, 2")
        e("s_cbranch_scc1 L_aux23")
        e("s_barrier")
        e("s_endpgm")
    e("v_lshrrev_b32 v10, 4, v0")
    e("v_bfe_u32 v11, v0, 3, 1")
    e("v_and_b32 v12, 15, v0")
    e("s_cmp_ge_u32 s3, 2")
    e("s_cbranch_scc1 L_aux23")
    e("s_cmp_eq_u32 s3, 1")
    e("s_cbranch_scc1 L_p1")
    e("s_mul_i32 s36, s35, 72")
    e("s_mov_b32 s37, 18")
    e("s_mov_b32 s38, 8192")
    e("s_lshl_b32 s39, s34, 8")
    e("s_mul_i32 s40, s36, 8192")
    e("s_add_u32 s39, s39, s40")
    e("s_sub_u32 s54, 4718592, s39")
    e("s_mov_b32 s41, 99")
    e("s_mov_b32 s42, 1")
    e("s_mov_b32 s43, 14")
    e("s_branch L_p2")
    A.label("L_p1")
    e("s_mul_hi_u32 s43, s2, 0x71c71c8")
    e("s_mul_i32 s44, s43, 36")
    e("s_sub_u32 s44, s2, s44")
    e("s_mul_i32 s36, s43, 82")
    e("s_cmp_eq_u32 s43, 0")
    e("s_cselect_b32 s40, 0, 2")
    e("s_cselect_b32 s41, 99, 3")
    e("s_add_u32 s36, s36, s40")
    e("s_mov_b32 s37, 22")
    e("s_mov_b32 s38, 9216")
    e("s_lshl_b32 s39, s44, 8")
    e("s_mul_i32 s40, s36, 9216")
    e("s_add_u32 s39, s39, s40")
    e("s_sub_u32 s54, 5308416, s39")
    e("s_mov_b32 s42, 0")
    e("s_cmp_ge_u32 s2, 252")
    e("s_cselect_b32 s54, 0, s54")
    A.label("L_p2")
    e("v_lshrrev_b32 v13, 5, v0")
    e("v_mul_u32_u24 v13, 1152, v13")
    e("v_and_b32 v14, 31, v0")
    e("v_mad_u32_u24 v13, v14, 36, v13")
    e("v_mul_lo_u32 v14, v10, s37")
    e("v_add_u32 v15, s36, v14")
    e("v_lshlrev_b32 v15, 1, v15")
    e("v_mul_u32_u24 v16, 1152, v11")
    e("v_add_u32 v15, v15, v16")
    e("v_mul_lo_u32 v16, v14, s38")
    e("v_lshl_add_u32 v16, v12, 4, v16")
    e(f"v_mov_b32 v19, {OOB}")
    e("v_cmp_eq_u32 vcc, s41, v10")
    e("v_cndmask_b32 v17, v16, v19, vcc")
    e("v_cmp_eq_u32 vcc, 3, v10")
    e("v_cndmask_b32 v18, v16, v19, vcc")
    e("s_cmp_eq_u32 s42, 1")
    e("s_cselect_b64 vcc, -1, 0")
    e("v_cndmask_b32 v18, v18, v19, vcc")
    if 'now1' in diag: e("s_mov_b32 s54, 0")
    e("s_mov_b32 s62, 2304\ns_mov_b32 s63, 0x20000\ns_mov_b32 s55, 0x20000")
    pst(1)
    e("s_waitcnt lgkmcnt(0)")
    pst(2)
    e("s_mov_b32 s60, s8\ns_and_b32 s61, s9, 0xffff")
    e("buffer_load_dwordx4 v[20:23], v13, s[60:63], 0 offen")
    e("buffer_load_dwordx4 v[24:27], v13, s[60:63], 0 offen offset:16")
    e("buffer_load_dword v28, v13, s[60:63], 0 offen offset:32")
    e("buffer_load_dwordx4 v[30:33], v15, s[60:63], 0 offen")
    e("buffer_load_dwordx4 v[34:37], v15, s[60:63], 0 offen offset:16")
    e("buffer_load_dwordx3 v[38:40], v15, s[60:63], 0 offen offset:32")
    e("s_cmp_eq_u32 s3, 1")
    e("s_cselect_b32 s52, s20, s14")
    e("s_cselect_b32 s53, s21, s15")
    e("s_add_u32 s52, s52, s39\ns_addc_u32 s53, s53, 0\ns_and_b32 s53, s53, 0xffff")
    def wloads():
        e("s_mov_b32 s45, 0")
        for t in range(22):
            vo = 16 if t < 16 else (17 if t < 18 else 18)
            e(f"buffer_load_dwordx4 a[{4*t}:{4*t+3}], v{vo}, s[52:55], s45 offen{NT}")
            if t < 21: e("s_add_u32 s45, s45, s38")
    if latew1:
        e("s_cmp_eq_u32 s3, 1")
        e("s_cbranch_scc1 L_now")
    wloads()
    if latew1: A.label("L_now")
    pst(3)
    if bar0: e("s_barrier")
    pst(4)
    stamp(1)
    e("s_load_dwordx2 s[46:47], s[32:33], 0")
    e(f"s_mov_b32 s48, s32\ns_and_b32 s49, s33, 0xffff\ns_mov_b32 s50, {WS_BYTES}\ns_mov_b32 s51, 0x20000")
    masks()
    e("v_lshlrev_b32 v41, 2, v0")
    e("v_mov_b32 v42, 0")
    e("s_lshl_b32 s40, s34, 8")
    e(f"s_add_u32 s40, s40, {CNT}")
    e("s_add_u32 s56, s32, s40\ns_addc_u32 s57, s33, 0\ns_and_b32 s57, s57, 0xffff\ns_mov_b32 s59, 0x20000")
    e("s_or_b32 s40, s35, s3")
    e("s_cmp_eq_u32 s40, 0")
    e("s_cselect_b32 s58, 4, 0")
    e("buffer_store_dword v42, v41, s[56:59], 0 offen sc1")
    pst(5)
    if latew1:
        e("s_cmp_eq_u32 s3, 1")
        e("s_cbranch_scc0 L_xw0")
        e("s_waitcnt vmcnt(0)")
        A.label("L_xw0")
    e("s_waitcnt vmcnt(25)")
    pst(6)
    F = 44
    for k in range(9):
        e(f"v_lshlrev_b32 v{F+2*k}, 16, v{20+k}")
        e(f"v_and_b32 v{F+2*k+1}, 0xffff0000, v{20+k}")
    e(f"v_pk_add_f32 v[62:63], v[{F}:{F+1}], v[{F+2}:{F+3}]")
    for k in range(2, 9):
        e(f"v_pk_add_f32 v[62:63], v[62:63], v[{F+2*k}:{F+2*k+1}]")
    e("v_add_f32 v62, v62, v63")
    def red32(r, tmp):
        for sh in (8, 4, 2, 1):
            e(f"v_add_f32_dpp v{r}, v{r}, v{r} row_ror:{sh} row_mask:0xf bank_mask:0xf")
        e(f"v_mov_b32 v{tmp}, v{r}")
        e(f"v_permlane16_swap_b32 v{r}, v{tmp}")
        e(f"v_add_f32 v{r}, v{r}, v{tmp}")
    red32(62, 63)
    e("v_mul_f32 v62, 0x3ae38e39, v62")
    e("v_mov_b32 v63, v62")
    for k in range(9):
        e(f"v_pk_add_f32 v[{F+2*k}:{F+2*k+1}], v[{F+2*k}:{F+2*k+1}], v[62:63] neg_lo:[0,1] neg_hi:[0,1]")
    e(f"v_pk_mul_f32 v[64:65], v[{F}:{F+1}], v[{F}:{F+1}]")
    for k in range(1, 9):
        e(f"v_pk_fma_f32 v[64:65], v[{F+2*k}:{F+2*k+1}], v[{F+2*k}:{F+2*k+1}], v[64:65]")
    e("v_add_f32 v64, v64, v65")
    red32(64, 65)
    e("v_mul_f32 v64, 0x3ae38e39, v64")
    e("v_cvt_pk_bf16_f32 v62, v62, v62")
    e("v_and_b32 v62, 0xffff0000, v62")
    e("v_cvt_pk_bf16_f32 v64, v64, v64")
    e("v_and_b32 v64, 0xffff0000, v64")
    e("v_add_f32 v64, 0x3727c5ac, v64")
    e("v_cvt_pk_bf16_f32 v64, v64, v64")
    e("v_and_b32 v64, 0xffff0000, v64")
    e("v_sqrt_f32 v64, v64")
    e("v_cvt_pk_bf16_f32 v64, v64, v64")
    e("v_and_b32 v64, 0xffff0000, v64")
    e("v_rcp_f32 v64, v64")
    e("v_readlane_b32 s56, v62, 0")
    e("v_readlane_b32 s57, v62, 32")
    e("v_readlane_b32 s58, v64, 0")
    e("v_readlane_b32 s59, v64, 32")
    e("v_cmp_eq_u32 vcc, 1, v11")
    e("v_mov_b32 v62, s56")
    e("v_mov_b32 v63, s57")
    e("v_cndmask_b32 v62, v62, v63, vcc")
    e("v_mov_b32 v64, s58")
    e("v_mov_b32 v65, s59")
    e("v_cndmask_b32 v64, v64, v65, vcc")
    e("v_mov_b32 v63, v62")
    e("v_mov_b32 v65, v64")
    pst(7)
    e("s_waitcnt vmcnt(22)")
    pst(8)
    for k in range(11):
        x = 30 + k
        e(f"v_lshlrev_b32 v66, 16, v{x}")
        e(f"v_and_b32 v67, 0xffff0000, v{x}")
        e("v_pk_add_f32 v[66:67], v[66:67], v[62:63] neg_lo:[0,1] neg_hi:[0,1]")
        e("v_cvt_pk_bf16_f32 v68, v66, v67")
        e("v_lshlrev_b32 v66, 16, v68")
        e("v_and_b32 v67, 0xffff0000, v68")
        e("v_pk_mul_f32 v[66:67], v[66:67], v[64:65]")
        e(f"v_cvt_pk_bf16_f32 v{x}, v66, v67")
    stamp(2)
    pst(9)
    if latew1:
        e("s_cmp_eq_u32 s3, 1")
        e("s_cbranch_scc0 L_now2")
        wloads()
        A.label("L_now2")
    e("s_mov_b32 s56, 0x01000100")
    e("s_mov_b32 s57, 0x03020302")
    for r in range(4): e(f"v_mov_b32 v{70+r}, 0")
    for t in range(22):
        B = 76 + 4 * (t & 1)
        e(f"v_perm_b32 v74, v{30 + t//2}, v{30 + t//2}, s{56 + (t & 1)}")
        for jj in range(4):
            e(f"v_and_b32 v{B+jj}, v74, v{6+jj}")
        e(f"s_waitcnt vmcnt({21 - t})")
        e(f"v_mfma_f32_16x16x32_bf16 v[70:73], a[{4*t}:{4*t+3}], v[{B}:{B+3}], v[70:73]")
    stamp(3)
    pst(10)
    def make_tags():
        e("s_waitcnt lgkmcnt(0)")
        e("s_add_u32 s46, s46, 0x7f4a7c15\ns_addc_u32 s47, s47, 0x9e3779b9")
        e(f"s_and_b32 s44, s46, {TAGM}")
        e("v_mov_b32 v2, s44")
        e(f"s_bfe_u32 s44, s46, 0x{(TAGB<<16)|TAGB:x}")
        e("v_mov_b32 v3, s44")
        e(f"s_bfe_u32 s44, s46, 0x{(TAGB<<16)|(2*TAGB):x}")
        e("v_mov_b32 v4, s44")
        e("s_lshr_b64 s[56:57], s[46:47], 30")
        e(f"s_and_b32 s44, s56, {TAGM}")
        e("v_mov_b32 v5, s44")
        e(f"s_mov_b32 s44, {TAGM}")
        e(f"s_mov_b32 s45, 0x{VALM:x}")
    def tagpack(dst, src):
        for r in range(4):
            e(f"v_bfi_b32 v{dst+r}, s44, v{2+r}, v{src+r}")
    def tagcheck(regs, tmp):
        first = True
        for base in regs:
            for r in range(4):
                if first:
                    e(f"v_xor_b32 v{tmp}, v{base+r}, v{2+r}"); first = False
                else:
                    e(f"v_bitop3_b32 v{tmp}, v{base+r}, v{2+r}, v{tmp} bitop3:0xbe")
        e(f"v_and_b32 v{tmp}, s44, v{tmp}")
        e(f"v_cmp_eq_u32 vcc, 0, v{tmp}")
    pollid = [0]
    def poll(issue, regs, tmp, cnt="s4", nosleep=False):
        n = pollid[0]; pollid[0] += 1
        e(f"s_mov_b32 {cnt}, s100")
        A.label(f"L_poll{n}")
        issue()
        e("s_waitcnt vmcnt(0)")
        tagcheck(regs, tmp)
        e("s_cmp_eq_u64 vcc, exec")
        e(f"s_cbranch_scc1 L_pdone{n}")
        if sleep and not nosleep: e(f"s_sleep {sleep}")
        e(f"s_sub_u32 {cnt}, {cnt}, 1")
        e(f"s_cmp_lg_u32 {cnt}, 0")
        e(f"s_cbranch_scc1 L_poll{n}")
        A.label(f"L_pdone{n}")
    def ldsspin(addr, target, nosleep=False):
        n = pollid[0]; pollid[0] += 1
        e(f"s_mov_b32 s4, {SPIN}")
        e(f"v_mov_b32 v20, {addr}")
        A.label(f"L_poll{n}")
        e("ds_read_b32 v21, v20")
        e("s_waitcnt lgkmcnt(0)")
        e("v_readfirstlane_b32 s6, v21")
        e(f"s_cmp_ge_u32 s6, {target}")
        e(f"s_cbranch_scc1 L_pdone{n}")
        if sleep and not nosleep: e(f"s_sleep {sleep}")
        e("s_sub_u32 s4, s4, 1")
        e("s_cmp_lg_u32 s4, 0")
        e(f"s_cbranch_scc1 L_poll{n}")
        A.label(f"L_pdone{n}")

    def dispatcher():
        if static_tail: return
        e("s_cmp_eq_u32 s3, 0")
        e("s_cbranch_scc0 L_nodisp")
        e("s_lshl_b32 s94, s34, 8")
        e(f"s_add_u32 s94, s94, {CNT}")
        e("s_add_u32 s56, s32, s94\ns_addc_u32 s57, s33, 0\ns_and_b32 s57, s57, 0xffff\ns_mov_b32 s58, 4\ns_mov_b32 s59, 0x20000")
        e("v_mov_b32 v13, 0")
        e(f"v_mov_b32 v14, {L_WANT}")
        e("s_mov_b32 s90, 0")
        e(f"s_mov_b32 s4, {SPIN * 8}")
        e("s_mov_b64 exec, 1")
        A.label("L_dloop")
        e("ds_read_b32 v15, v14")
        e("s_waitcnt lgkmcnt(0)")
        e("v_readfirstlane_b32 s91, v15")
        e("s_cmp_gt_u32 s91, s90")
        e("s_cbranch_scc1 L_dget")
        e("s_sleep 1")
        e("s_sub_u32 s4, s4, 1")
        e("s_cmp_lg_u32 s4, 0")
        e("s_cbranch_scc1 L_dloop")
        e("s_mov_b32 s92, 256")
        e("s_branch L_dput")
        A.label("L_dget")
        e("v_mov_b32 v15, 1")
        e("buffer_atomic_add v15, v13, s[56:59], 0 offen sc0 sc1")
        e("s_waitcnt vmcnt(0)")
        e("v_readfirstlane_b32 s91, v15")
        e("s_mov_b32 s92, 256")
        k0, st0 = 0, 128
        for gi, ph in enumerate(gss):
            cnt, nper = ph[0], ph[1]
            half = len(ph) > 2 and ph[2]
            e(f"s_sub_u32 s93, s91, {k0}")
            if half:
                assert cnt % 16 == 0 and nper == 1
                e("s_and_b32 s94, s93, 7")
                e("s_lshl_b32 s94, s94, 1")
                e("s_lshr_b32 s95, s93, 4")
                e("s_lshl_b32 s95, s95, 4")
                e("s_add_u32 s94, s94, s95")
                e("s_bfe_u32 s95, s93, 0x10003")
                e("s_lshl_b32 s95, s95, 25")
                e("s_add_u32 s94, s94, s95")
                e(f"s_add_u32 s94, s94, {st0 + (1 << 16) + (1 << 24)}")
                covered = cnt
            else:
                assert cnt % 8 == 0
                e("s_and_b32 s94, s93, 7")
                e("s_lshl_b32 s94, s94, 1")
                e("s_lshr_b32 s95, s93, 3")
                e(f"s_mul_i32 s95, s95, {16*nper}")
                e("s_add_u32 s94, s94, s95")
                e(f"s_add_u32 s94, s94, {st0 + (nper << 16)}")
                covered = cnt * 2 * nper
            e(f"s_cmp_lt_u32 s93, {cnt}")
            e("s_cselect_b32 s92, s94, s92")
            k0 += cnt; st0 += covered
        assert st0 == 256, st0
        assert k0 + 3 <= 64
        A.label("L_dput")
        e("s_lshl_b32 s93, s90, 2")
        e(f"s_add_u32 s93, s93, {L_MB}")
        e("v_mov_b32 v15, s93")
        e("v_mov_b32 v16, s92")
        e("ds_write_b32 v15, v16")
        e("s_add_u32 s90, s90, 1")
        e("s_cmp_eq_u32 s92, 256")
        e("s_cbranch_scc0 L_dloop")
        e("s_waitcnt lgkmcnt(0)")
        e("s_mov_b64 exec, -1")
        A.label("L_nodisp")

    make_tags()
    e("s_cmp_eq_u32 s3, 1")
    e("s_cbranch_scc1 L_hpub")
    e("s_waitcnt vmcnt(0)")
    tagpack(74, 70)
    e("v_lshlrev_b32 v13, 4, v0")
    e("s_lshl_b32 s36, s2, 10")
    e(f"s_add_u32 s36, s36, {QP}")
    e("buffer_store_dwordx4 v[74:77], v13, s[48:51], s36 offen sc1")
    stamp(4)
    pst(11)
    e("v_lshlrev_b32 v13, 4, v0")
    e("s_lshl_b32 s36, s34, 13")
    e(f"s_add_u32 s36, s36, {QP}")
    e("s_add_u32 s37, s36, 4096")
    def issue_q():
        for k in range(8):
            e(f"buffer_load_dwordx4 v[{20+4*k}:{23+4*k}], v13, s[48:51], s{36 + k//4} offen offset:{1024*(k%4)} sc1")
    poll(issue_q, [20 + 4 * k for k in range(8)], 52)
    pst(12)
    for r in range(4):
        for k in range(8): e(f"v_and_b32 v{20+4*k+r}, s45, v{20+4*k+r}")
        for k in (0, 2, 4, 6): e(f"v_add_f32 v{20+4*k+r}, v{20+4*k+r}, v{24+4*k+r}")
        e(f"v_add_f32 v{20+r}, v{20+r}, v{28+r}")
        e(f"v_add_f32 v{36+r}, v{36+r}, v{44+r}")
        e(f"v_add_f32 v{20+r}, v{20+r}, v{36+r}")
    e("v_cvt_pk_bf16_f32 v24, v20, v21")
    e("v_cvt_pk_bf16_f32 v25, v22, v23")
    e("v_lshlrev_b32 v13, 8, v11")
    e("v_lshl_add_u32 v13, v10, 6, v13")
    e("v_and_b32 v14, 7, v0")
    e("v_lshl_add_u32 v13, v14, 1, v13")
    e(f"ds_write_b16 v13, v24 offset:{L_Q}")
    e(f"ds_write_b16_d16_hi v13, v24 offset:{L_Q+16}")
    e(f"ds_write_b16 v13, v25 offset:{L_Q+32}")
    e(f"ds_write_b16_d16_hi v13, v25 offset:{L_Q+48}")
    e("s_waitcnt lgkmcnt(0)")
    e(f"v_mov_b32 v13, {L_FQ}")
    e("v_mov_b32 v14, 1")
    e("ds_write_b32 v13, v14")
    stamp(5)
    pst(13)
    e("s_branch L_barA")
    A.label("L_hpub")
    e("s_cmp_ge_u32 s2, 252")
    e("s_cbranch_scc1 L_barA")
    e("v_lshlrev_b32 v13, 9, v11")
    e("v_lshl_add_u32 v13, v10, 7, v13")
    e("v_and_b32 v14, 7, v0")
    e("v_lshl_add_u32 v13, v14, 2, v13")
    for r in range(4):
        e(f"ds_write_b32 v13, v{70+r} offset:{L_HT + 32*r}")
    e("v_lshlrev_b32 v14, 4, v0")
    e("s_waitcnt lgkmcnt(0)")
    e(f"ds_read_b128 v[70:73], v14 offset:{L_HT}")
    e("v_lshrrev_b32 v13, 5, v0")
    e("v_mul_u32_u24 v13, 18432, v13")
    e("v_and_b32 v14, 31, v0")
    e("v_lshl_add_u32 v13, v14, 4, v13")
    e("s_mul_hi_u32 s43, s2, 0x71c71c8")
    e("s_mul_i32 s36, s43, 36")
    e("s_sub_u32 s36, s2, s36")
    e("s_lshl_b32 s36, s36, 9")
    e("s_mul_i32 s37, s43, 36864")
    e("s_add_u32 s36, s36, s37")
    e(f"s_add_u32 s36, s36, {HP}")
    e("s_waitcnt lgkmcnt(0)")
    tagpack(74, 70)
    e("buffer_store_dwordx4 v[74:77], v13, s[48:51], s36 offen sc1")
    stamp(4)
    e("s_branch L_barA")
    A.label("L_aux23")
    e("s_mov_b64 exec, 1")
    e(f"v_mov_b32 v13, {L_FC}")
    e("v_mov_b32 v14, 0")
    e("v_mov_b32 v15, 0")
    e("ds_write_b64 v13, v[14:15]")
    if 'noq' in diag: e("v_mov_b32 v15, 1")
    e("ds_write_b64 v13, v[14:15] offset:8")
    e("s_mov_b64 exec, -1")
    e("v_lshlrev_b32 v13, 2, v0")
    e("v_mov_b32 v14, -1")
    e(f"ds_write_b32 v13, v14 offset:{L_MB}")
    e("s_waitcnt lgkmcnt(0)")
    e("s_load_dwordx2 s[46:47], s[32:33], 0")
    e(f"s_mov_b32 s48, s32\ns_and_b32 s49, s33, 0xffff\ns_mov_b32 s50, {WS_BYTES}\ns_mov_b32 s51, 0x20000")
    if tlb:
        e("s_cmp_eq_u32 s3, 2")
        e("s_cbranch_scc0 L_notlb")
        e("v_lshlrev_b32 v13, 16, v0")
        e("s_cmp_lt_u32 s2, 16")
        e(f"s_cselect_b32 s50, 0x300000, 0")
        e("buffer_load_dword v120, v13, s[48:51], 0 offen")
        e(f"s_mov_b32 s50, {WS_BYTES}")
        e("s_lshr_b32 s36, s2, 1")
        e("v_lshlrev_b32 v14, 15, v0")
        e("s_mul_i32 s37, s36, 36864")
        e("s_add_u32 s60, s16, s37\ns_addc_u32 s61, s17, 0\ns_and_b32 s61, s61, 0xffff\ns_mov_b32 s62, 36864\ns_mov_b32 s63, 0x20000")
        e("buffer_load_dword v121, v14, s[60:63], 0 offen")
        e("s_mul_i32 s37, s36, 41472")
        e("s_add_u32 s60, s24, s37\ns_addc_u32 s61, s25, 0\ns_and_b32 s61, s61, 0xffff\ns_mov_b32 s62, 41472")
        e("buffer_load_dword v122, v14, s[60:63], 0 offen")
        e("s_mov_b32 s60, s28\ns_and_b32 s61, s29, 0xffff\ns_mov_b32 s62, 4")
        e("buffer_load_dword v123, v14, s[60:63], 0 offen")
        e("s_mov_b32 s60, s26\ns_and_b32 s61, s27, 0xffff")
        e("buffer_load_dword v124, v14, s[60:63], 0 offen")
        e("s_mov_b32 s60, s22\ns_and_b32 s61, s23, 0xffff")
        e("buffer_load_dword v125, v14, s[60:63], 0 offen")
        A.label("L_notlb")
    if bar0: e("s_barrier")
    if 'noaux' in diag: e("s_endpgm")
    masks()
    make_tags()
    A.label("L_barA")
    stamp(6)
    if wmode != 'early': dispatcher()
    if warm:
        e("s_cmp_eq_u32 s3, 1")
        e("s_cbranch_scc0 L_nodry1")
        e("s_cmp_lt_u32 s2, 36")
        e("s_cbranch_scc0 L_nodry1")
        e("s_mov_b32 s100, 1\ns_mov_b32 s101, 1\ns_mov_b32 s50, 0")
        e("s_branch L_red")
        A.label("L_drydone1")
        e(f"s_mov_b32 s100, {SPIN}\ns_mov_b32 s101, 0\ns_mov_b32 s50, {WS_BYTES}")
        A.label("L_nodry1")
    e("s_and_b32 s36, s35, 1")
    e("s_lshr_b32 s37, s2, 1")
    e("s_mov_b32 s40, 2\ns_mov_b32 s41, 0")
    e("s_cmp_ge_u32 s3, 2")
    e("s_cbranch_scc1 L_t23")
    e("s_mov_b32 s38, 0")
    e("s_lshl_b32 s39, s36, 1")
    e("s_add_u32 s39, s39, s3")
    e("s_branch L_tdone")
    A.label("L_t23")
    e("s_mov_b32 s38, 1")
    e("s_lshl_b32 s39, s36, 1")
    e("s_sub_u32 s39, s3, s39")
    e("s_cmp_eq_u32 s3, 2")
    e("s_cbranch_scc0 L_th2")
    e("s_mov_b32 s41, 4")
    e("s_xor_b32 s40, s36, 1")
    A.label("L_th2")
    e("s_mov_b64 exec, 0x3ffff")
    e("v_cmp_le_u32 vcc, 9, v0")
    e("v_cndmask_b32 v13, 0, 1, vcc")
    e("v_mul_u32_u24 v14, 9, v13")
    e("v_sub_u32 v14, v0, v14")
    e("v_mul_u32_u24 v15, 18432, v13")
    e("v_lshl_add_u32 v15, v14, 4, v15")
    e("s_mul_i32 s42, s37, 144")
    e(f"s_add_u32 s42, s42, {HP}")
    e("s_mov_b32 s60, s22\ns_and_b32 s61, s23, 0xffff\ns_mov_b32 s62, 9216\ns_mov_b32 s63, 0x20000")
    e("s_mul_i32 s43, s37, 72")
    e("v_lshlrev_b32 v16, 3, v14")
    e("buffer_load_dwordx2 v[18:19], v16, s[60:63], s43 offen")
    def issue_h():
        e("s_mov_b32 s43, s42")
        for k in range(7):
            e(f"buffer_load_dwordx4 v[{20+4*k}:{23+4*k}], v15, s[48:51], s43 offen sc1")
            if k < 6: e("s_add_u32 s43, s43, 36864")
    poll(issue_h, [20 + 4 * k for k in range(7)], 48)
    for r in range(4):
        for k in range(7): e(f"v_and_b32 v{20+4*k+r}, s45, v{20+4*k+r}")
        for k in range(1, 7): e(f"v_add_f32 v{20+r}, v{20+r}, v{20+4*k+r}")
    e("v_lshlrev_b32 v24, 16, v18\nv_and_b32 v25, 0xffff0000, v18\nv_lshlrev_b32 v26, 16, v19\nv_and_b32 v27, 0xffff0000, v19")
    for r in range(4):
        e(f"v_cvt_pk_bf16_f32 v{20+r}, v{20+r}, v{20+r}")
        e(f"v_and_b32 v{20+r}, 0xffff0000, v{20+r}")
        e(f"v_add_f32 v{20+r}, v{20+r}, v{24+r}")
        e(f"v_cvt_pk_bf16_f32 v{20+r}, v{20+r}, v{20+r}")
        e(f"v_and_b32 v{20+r}, 0xffff0000, v{20+r}")
        e(f"v_max_f32 v{20+r}, 0, v{20+r}")
        e(f"v_mul_f32 v{20+r}, v{20+r}, v{20+r}")
        e(f"v_cvt_pk_bf16_f32 v{20+r}, v{20+r}, v{20+r}")
    e("v_mul_u32_u24 v16, 144, v13")
    e("v_lshl_add_u32 v16, v14, 4, v16")
    e("s_lshl_b32 s43, s3, 10")
    e("v_add_u32 v16, s43, v16")
    e(f"ds_write_b128 v16, v[20:23] offset:{L_PRIV}")
    e("s_mov_b64 exec, -1")
    e("s_waitcnt lgkmcnt(0)")
    A.label("L_tdone")
    stamp(7)
    def task_srd(srd, typ, beta, voff):
        n = pollid[0]; pollid[0] += 1
        e(f"s_cmp_eq_u32 {typ}, 1")
        e(f"s_cbranch_scc1 L_sw2_{n}")
        e("s_mul_i32 s42, s37, 36864")
        e(f"s_lshl_b32 s43, {beta}, 8")
        e("s_add_u32 s42, s42, s43")
        e(f"s_add_u32 s{srd}, s16, s42\ns_addc_u32 s{srd+1}, s17, 0")
        e(f"s_sub_u32 s{srd+2}, 4718592, s42")
        e("s_mov_b32 s43, 9216")
        e(f"s_branch L_sd_{n}")
        A.label(f"L_sw2_{n}")
        e("s_mul_i32 s42, s37, 41472")
        e(f"s_lshl_b32 s43, {beta}, 8")
        e("s_add_u32 s42, s42, s43")
        e(f"s_add_u32 s{srd}, s24, s42\ns_addc_u32 s{srd+1}, s25, 0")
        e(f"s_sub_u32 s{srd+2}, 5308416, s42")
        e("s_mov_b32 s43, 10368")
        A.label(f"L_sd_{n}")
        e(f"s_and_b32 s{srd+1}, s{srd+1}, 0xffff\ns_mov_b32 s{srd+3}, 0x20000")
        e(f"s_cmp_eq_u32 {typ}, 2")
        e(f"s_cselect_b32 s{srd+2}, 0, s{srd+2}")
        e(f"v_mul_lo_u32 v{voff}, v10, s43")
        e(f"v_lshl_add_u32 v{voff}, v12, 4, v{voff}")
        e(f"v_mov_b32 v19, {OOB}")
        e("v_cmp_le_u32 vcc, 8, v12")
        e(f"v_cndmask_b32 v18, v{voff}, v19, vcc")
        e(f"s_cmp_eq_u32 {beta}, 4")
        e(f"s_cbranch_scc0 L_se_{n}")
        e(f"v_mov_b32 v{voff}, v18")
        A.label(f"L_se_{n}")
    task_srd(52, "s38", "s39", 13)
    task_srd(56, "s40", "s41", 14)
    if 'nowo' in diag:
        e("s_mov_b32 s54, 0\ns_mov_b32 s58, 0")
    e(f"v_mov_b32 v19, {OOB}")
    e("s_cmp_eq_u32 s38, 0\ns_cselect_b64 vcc, -1, 0")
    e("v_cndmask_b32 v15, v13, v19, vcc")
    e("s_cmp_eq_u32 s40, 0\ns_cselect_b64 vcc, -1, 0")
    e("v_cndmask_b32 v16, v14, v19, vcc")
    e("v_lshrrev_b32 v90, 3, v0")
    e("v_lshlrev_b32 v90, 14, v90")
    e("v_and_b32 v91, 7, v0")
    e("v_lshl_add_u32 v90, v91, 4, v90")
    e("v_cmp_le_u32 vcc, 32, v0")
    e("v_cndmask_b32 v92, v90, v19, vcc")
    e("s_cmp_eq_u32 s41, 4\ns_cselect_b64 vcc, -1, 0")
    e("v_cndmask_b32 v91, v90, v92, vcc")
    e("s_cmp_eq_u32 s39, 4\ns_cselect_b64 vcc, -1, 0")
    e("v_cndmask_b32 v90, v90, v92, vcc")
    for (typ, beta, dst) in (("s38", "s39", "s96"), ("s40", "s41", "s97")):
        e(f"s_mov_b32 {dst}, {SP}")
        e(f"s_cmp_eq_u32 {typ}, 1")
        e(f"s_cselect_b32 {dst}, {GP}, {dst}")
        e(f"s_lshl_b32 s42, {beta}, 17")
        e(f"s_add_u32 {dst}, {dst}, s42")
        e("s_lshl_b32 s42, s37, 7")
        e(f"s_add_u32 {dst}, {dst}, s42")
    e("v_and_b32 v93, 3, v0")
    e("v_bfe_u32 v94, v0, 4, 1")
    e("v_lshl_add_u32 v93, v94, 2, v93")
    e("v_bfe_u32 v94, v0, 2, 2")
    e("v_lshrrev_b32 v95, 5, v0")
    e("v_lshlrev_b32 v96, 12, v95")
    e("v_lshl_add_u32 v96, v94, 9, v96")
    e("v_lshl_add_u32 v96, v93, 4, v96")
    e("v_lshlrev_b32 v97, 7, v95")
    e("v_lshl_add_u32 v97, v94, 4, v97")
    e("s_lshr_b32 s98, s35, 1")
    e("s_lshl_b32 s98, s98, 7")
    e("s_lshl_b32 s42, s34, 13")
    e("s_add_u32 s98, s98, s42")
    e(f"s_add_u32 s98, s98, {OP}")
    e("s_lshl_b32 s99, s34, 8")
    e(f"s_add_u32 s99, s99, {ML}")
    e("s_lshl_b32 s42, s3, 10")
    e(f"s_add_u32 s42, s42, {L_PRIV + 0x200}")
    e("v_lshlrev_b32 v98, 7, v95")
    e("v_lshl_add_u32 v98, v93, 4, v98")
    e("v_add_u32 v98, s42, v98")
    e("v_lshlrev_b32 v99, 7, v11")
    e("v_lshl_add_u32 v99, v10, 5, v99")
    e("v_add_u32 v99, s42, v99")
    e("s_cmp_ge_u32 s3, 2")
    e("s_cbranch_scc0 L_noh2")
    e("v_mul_u32_u24 v20, 144, v11")
    e("v_mad_u32_u24 v20, v10, 36, v20")
    e("s_lshl_b32 s42, s3, 10")
    e("v_add_u32 v20, s42, v20")
    for t in range(9):
        e(f"ds_read_b32 v{100+t}, v20 offset:{L_PRIV + 4*t}")
    e("s_waitcnt lgkmcnt(0)")
    A.label("L_noh2")
    e("v_and_b32 v110, 31, v0")
    e("v_lshlrev_b32 v110, 4, v110")
    e("v_lshl_add_u32 v111, v95, 9, v110")
    e("v_lshlrev_b32 v112, 3, v95")
    e("v_lshl_add_u32 v113, v95, 12, v110")
    e("v_lshlrev_b32 v114, 7, v95")
    e("s_lshl_b32 s60, s34, 13")
    e("s_lshl_b32 s43, s35, 9")
    e("s_add_u32 s60, s60, s43")
    e(f"s_add_u32 s60, s60, {OP}")
    e("s_lshl_b32 s61, s34, 8")
    e("s_lshl_b32 s43, s35, 4")
    e("s_add_u32 s61, s61, s43")
    e(f"s_add_u32 s61, s61, {ML}")
    e(f"s_mov_b32 s62, 0x{LOG2E:x}")
    if warm:
        e("s_cmp_eq_u32 s3, 1")
        e("s_cbranch_scc1 L_dry2")
        e("s_cmp_eq_u32 s3, 3")
        e("s_cbranch_scc0 L_nodry2")
        e("s_mov_b32 s100, 1\ns_mov_b32 s101, 1\ns_mov_b32 s50, 0")
        e("s_branch L_comb")
        A.label("L_dry2")
        e("s_mov_b32 s100, 1\ns_mov_b32 s101, 1\ns_mov_b32 s50, 0")
        e("s_branch L_btX")
        A.label("L_drydone2")
        e(f"s_mov_b32 s100, {SPIN}\ns_mov_b32 s101, 0\ns_mov_b32 s50, {WS_BYTES}")
        A.label("L_nodry2")
    if wmode == 'flagC': ldsspin(L_FC, 4)
    if wmode == 'flagB': ldsspin(L_FB, 4)
    stamp(8)
    e("s_mov_b32 s42, 0")
    for t in range(9):
        vo = 13 if t < 8 else 15
        e(f"buffer_load_dwordx4 a[{4*t}:{4*t+3}], v{vo}, s[52:55], s42 offen{NT}")
        e("s_add_u32 s42, s42, 1152") if t < 8 else None
    e("s_mov_b32 s42, 0")
    for t in range(9):
        vo = 14 if t < 8 else 16
        e(f"buffer_load_dwordx4 a[{36+4*t}:{36+4*t+3}], v{vo}, s[56:59], s42 offen{NT}")
        e("s_add_u32 s42, s42, 1152") if t < 8 else None
    if wmode == 'early': dispatcher()
    e("s_cmp_eq_u32 s3, 3")
    e("s_cbranch_scc0 L_nocomb")
    ldsspin(L_FB, 4, nosleep=True)
    stamp(9)
    A.label("L_comb")
    e(f"ds_read_b64 v[40:41], v112 offset:{L_MLW}")
    e(f"ds_read_b64 v[42:43], v112 offset:{L_MLW+16}")
    e(f"ds_read_b128 v[24:27], v111 offset:{L_OW}")
    e(f"ds_read_b128 v[28:31], v111 offset:{L_OW + 1024}")
    e("s_waitcnt lgkmcnt(2)")
    e("v_max_f32 v48, v40, v42")
    e("v_sub_f32 v40, v40, v48\nv_sub_f32 v42, v42, v48")
    e("v_mul_f32 v40, s62, v40\nv_mul_f32 v42, s62, v42")
    e("v_exp_f32 v40, v40\nv_exp_f32 v42, v42")
    e("v_mov_b32 v52, 0\nv_mov_b32 v53, 0")
    e("v_mul_f32 v49, v40, v41")
    e("v_fmac_f32 v49, v42, v43")
    e("s_waitcnt lgkmcnt(0)")
    for r in range(4):
        e(f"v_mul_f32 v{44+r}, v40, v{24+r}")
    for r in range(4):
        e(f"v_fmac_f32 v{44+r}, v42, v{28+r}")
    tagpack(54, 44)
    e("buffer_store_dwordx4 v[54:57], v113, s[48:51], s60 offen sc1")
    e(f"v_bfi_b32 v58, s44, v2, v48\nv_bfi_b32 v59, s44, v3, v49\nv_bfi_b32 v60, s44, v4, v52\nv_bfi_b32 v61, s44, v5, v53")
    e("s_mov_b32 exec_lo, 1\ns_mov_b32 exec_hi, 1")
    e("buffer_store_dwordx4 v[58:61], v114, s[48:51], s61 offen sc1")
    e("s_mov_b64 exec, -1")
    if warm:
        e("s_cmp_lg_u32 s101, 0")
        e("s_cbranch_scc1 L_drydone2")
    stamp(10)
    A.label("L_nocomb")

    def mchain(n, srcs, abase):
        def bb(t):
            B = 76 + 4 * (t & 1)
            for jj in range(4): e(f"v_and_b32 v{B+jj}, v{srcs[t]}, v{6+jj}")
        def mm(t):
            B = 76 + 4 * (t & 1)
            c = "0" if t == 0 else "v[70:73]"
            e(f"v_mfma_f32_16x16x32_bf16 v[70:73], a[{abase+4*t}:{abase+4*t+3}], v[{B}:{B+3}], {c}")
        bb(0); bb(1)
        for t in range(n):
            mm(t)
            if t + 2 < n: bb(t + 2)
    def blocktask(which, typ, abase, vst, sst):
        n = pollid[0]; pollid[0] += 1
        e(f"s_cmp_eq_u32 {typ}, 2")
        e(f"s_cbranch_scc1 L_bt_end{n}")
        e(f"s_cmp_eq_u32 {typ}, 1")
        e(f"s_cbranch_scc1 L_bt_w2{n}")
        def issue_o():
            e("buffer_load_dwordx4 v[24:27], v96, s[48:51], s98 offen sc1")
            e("buffer_load_dwordx4 v[36:39], v96, s[48:51], s98 offen offset:2048 sc1")
            e("buffer_load_dwordx4 v[28:31], v97, s[48:51], s99 offen sc1")
            e("buffer_load_dwordx4 v[40:43], v97, s[48:51], s99 offen offset:64 sc1")
        poll(issue_o, [24, 36, 28, 40], 32, nosleep=True)
        stamp(11)
        if not nomask:
            for r in (24, 25, 26, 27, 36, 37, 38, 39, 28, 29, 40, 41): e(f"v_and_b32 v{r}, s45, v{r}")
        e("v_max_f32 v30, v28, v40")
        e("v_max_f32_dpp v30, v30, v30 row_ror:4 row_mask:0xf bank_mask:0xf")
        e("v_max_f32_dpp v30, v30, v30 row_ror:8 row_mask:0xf bank_mask:0xf")
        e("v_sub_f32 v28, v28, v30\nv_sub_f32 v40, v40, v30")
        e("v_mul_f32 v28, s62, v28\nv_mul_f32 v40, s62, v40")
        e("v_exp_f32 v28, v28\nv_exp_f32 v40, v40")
        e("v_mul_f32 v29, v29, v28")
        for r in range(4): e(f"v_mul_f32 v{24+r}, v{24+r}, v28")
        e("v_fmac_f32 v29, v41, v40")
        for r in range(4): e(f"v_fmac_f32 v{24+r}, v{36+r}, v40")
        for r in (29, 24, 25, 26, 27):
            e(f"v_add_f32_dpp v{r}, v{r}, v{r} row_ror:4 row_mask:0xf bank_mask:0xf")
        for r in (29, 24, 25, 26, 27):
            e(f"v_add_f32_dpp v{r}, v{r}, v{r} row_ror:8 row_mask:0xf bank_mask:0xf")
        e("v_rcp_f32 v29, v29")
        for r in range(4): e(f"v_mul_f32 v{24+r}, v{24+r}, v29")
        for r in range(4): e(f"v_cvt_pk_bf16_f32 v{24+r}, v{24+r}, v{24+r}")
        e("ds_write_b128 v98, v[24:27]")
        e("s_waitcnt lgkmcnt(0)")
        e("ds_read_b128 v[24:27], v99")
        e("ds_read_b128 v[28:31], v99 offset:16")
        e("s_waitcnt lgkmcnt(0)")
        mchain(8, [24 + t for t in range(8)], abase)
        e(f"s_branch L_bt_pub{n}")
        A.label(f"L_bt_w2{n}")
        e(f"s_waitcnt vmcnt({0 if which == 'Y' else 9})") if False else e("s_waitcnt vmcnt(0)")
        mchain(9, [100 + t for t in range(9)], abase)
        A.label(f"L_bt_pub{n}")
        tagpack(74, 70)
        e(f"buffer_store_dwordx4 v[74:77], v{vst}, s[48:51], {sst} offen sc1")
        A.label(f"L_bt_end{n}")
    A.label("L_btX")
    blocktask("X", "s38", 0, 90, "s96")
    if warm:
        e("s_cmp_lg_u32 s101, 0")
        e("s_cbranch_scc1 L_drydone2")
    stamp(12)
    blocktask("Y", "s40", 36, 91, "s97")
    stamp(13)

    e("s_cmp_ge_u32 s2, 36")
    e("s_cbranch_scc1 L_auxend")
    A.label("L_red")
    e("s_lshr_b32 s36, s2, 3")
    e("s_and_b32 s37, s2, 7")
    e("s_lshl_b32 s38, s36, 7")
    e("s_lshr_b32 s39, s37, 1")
    e("s_lshl_b32 s39, s39, 5")
    e("s_add_u32 s38, s38, s39")
    e("s_and_b32 s39, s37, 1")
    e("s_mul_i32 s39, s39, 576")
    e("s_add_u32 s39, s39, s38")
    e("s_mov_b32 s60, s8\ns_and_b32 s61, s9, 0xffff\ns_mov_b32 s62, 2304\ns_mov_b32 s63, 0x20000")
    e("s_mov_b32 s56, s26\ns_and_b32 s57, s27, 0xffff\ns_mov_b32 s58, 1152\ns_mov_b32 s59, 0x20000")
    e("v_lshlrev_b32 v13, 1, v0")
    e("s_lshl_b32 s40, s39, 1")
    e("s_lshl_b32 s41, s38, 1")
    e("v_and_b32 v16, 3, v0")
    e("v_bfe_u32 v17, v0, 4, 1")
    e("v_lshl_add_u32 v16, v17, 2, v16")
    e("v_bfe_u32 v17, v0, 2, 2")
    e("v_lshrrev_b32 v18, 5, v0")
    e("v_lshl_add_u32 v17, v18, 2, v17")
    e("v_lshlrev_b32 v19, 4, v16")
    e("v_lshl_add_u32 v16, v17, 7, v19")
    e("v_lshl_add_u32 v17, v18, 7, v19")
    e("s_lshl_b32 s43, s3, 8")
    e("v_add_u32 v17, s43, v17")
    e("s_lshl_b32 s42, s2, 14")
    e("s_lshl_b32 s43, s3, 12")
    e("s_add_u32 s42, s42, s43")
    e(f"s_add_u32 s43, s42, {SP}")
    e(f"s_add_u32 s42, s42, {GP}")
    e("s_mov_b32 exec_lo, -1\ns_mov_b32 exec_hi, 0")
    e("buffer_load_ushort v14, v13, s[60:63], s40 offen")
    e("buffer_load_ushort v15, v13, s[56:59], s41 offen")
    e("s_mov_b64 exec, -1")
    e("s_mov_b32 s60, s28\ns_and_b32 s61, s29, 0xffff")
    def issue_r():
        for k in range(4):
            e(f"buffer_load_dwordx4 v[{20+4*k}:{23+4*k}], v16, s[48:51], s42 offen offset:{1024*k} sc1")
        for k in range(4):
            e(f"buffer_load_dwordx4 v[{36+4*k}:{39+4*k}], v16, s[48:51], s43 offen offset:{1024*k} sc1")
    poll(issue_r, [20 + 4 * k for k in range(8)], 52, nosleep=True)
    stamp(14)
    for base in (20, 36):
        for r in range(4):
            if not nomask:
                for k in range(4): e(f"v_and_b32 v{base+4*k+r}, s45, v{base+4*k+r}")
        for r in range(4): e(f"v_add_f32 v{base+r}, v{base+r}, v{base+4+r}")
        for r in range(4): e(f"v_add_f32 v{base+8+r}, v{base+8+r}, v{base+12+r}")
        for r in range(4): e(f"v_add_f32 v{base+r}, v{base+r}, v{base+8+r}")
    for sh in (4, 8):
        for base in (20, 36):
            for r in range(4):
                e(f"v_add_f32_dpp v{base+r}, v{base+r}, v{base+r} row_ror:{sh} row_mask:0xf bank_mask:0xf")
    e(f"ds_write_b128 v17, v[20:23] offset:{L_RED}")
    e(f"ds_write_b128 v17, v[36:39] offset:{L_RED + 1024}")
    e("v_and_b32 v17, 7, v0")
    e("v_lshlrev_b32 v17, 4, v17")
    e("v_bfe_u32 v18, v0, 3, 2")
    e("v_lshl_add_u32 v17, v18, 2, v17")
    e("s_waitcnt lgkmcnt(0)")
    if warm:
        e("s_cmp_lg_u32 s101, 0")
        e("s_cbranch_scc1 L_redfin")
    e("s_barrier")
    e("s_cmp_eq_u32 s3, 0")
    e("s_cbranch_scc0 L_auxend")
    A.label("L_redfin")
    for kind in range(2):
        for a in range(8):
            e(f"ds_read_b32 v{20+8*kind+a}, v17 offset:{L_RED + 1024*kind + 128*a}")
    e("v_lshlrev_b32 v14, 16, v14")
    e("v_lshlrev_b32 v15, 16, v15")
    e("s_waitcnt lgkmcnt(8)")
    def sum8(b):
        for k in (0, 2, 4, 6): e(f"v_add_f32 v{b+k}, v{b+k}, v{b+k+1}")
        e(f"v_add_f32 v{b}, v{b}, v{b+2}")
        e(f"v_add_f32 v{b+4}, v{b+4}, v{b+6}")
        e(f"v_add_f32 v{b}, v{b}, v{b+4}")
    def rnd(r):
        e(f"v_cvt_pk_bf16_f32 v{r}, v{r}, v{r}")
        e(f"v_and_b32 v{r}, 0xffff0000, v{r}")
    sum8(20)
    rnd(20)
    e("v_add_f32 v20, v20, v15")
    rnd(20)
    e(f"v_mul_f32 v21, 0x{(LOG2E ^ 0x80000000):x}, v20")
    e("v_exp_f32 v21, v21")
    e("s_waitcnt lgkmcnt(0)")
    sum8(28)
    e("v_add_f32 v21, 1.0, v21")
    e("v_rcp_f32 v21, v21")
    rnd(28)
    e("v_mul_f32 v20, v20, v21")
    rnd(20)
    e("v_mul_f32 v20, v28, v20")
    rnd(20)
    e("v_add_f32 v20, v14, v20")
    e("v_cvt_pk_bf16_f32 v20, v20, v20")
    if warm:
        e("s_cmp_lg_u32 s101, 0")
        e("s_cselect_b32 s62, 0, s62")
    e("s_mov_b32 exec_lo, -1\ns_mov_b32 exec_hi, 0")
    e("buffer_store_short v20, v13, s[60:63], s40 offen" + (" sc0 sc1" if outsc1 else ""))
    e("s_mov_b64 exec, -1")
    if warm:
        e("s_cmp_lg_u32 s101, 0")
        e("s_cbranch_scc1 L_drydone1")
    dbg(5)
    stamp(15)
    e("s_cmp_eq_u32 s2, 0")
    e("s_cbranch_scc0 L_auxend")
    e("s_mov_b64 exec, 1")
    e("v_mov_b32 v20, s46\nv_mov_b32 v21, s47\nv_mov_b32 v22, 0")
    e("buffer_store_dwordx2 v[20:21], v22, s[48:51], 0 offen sc1")
    e("s_mov_b64 exec, -1")
    A.label("L_auxend")
    stamp(15 + 1) if False else None
    dump_stamps(16)
    A.label("L_end")
    e("s_endpgm")
    st = A.items[MARK_STREAM0:MARK_STREAM1]
    A.items = A.items[:MARK_STREAM0] + A.items[MARK_STREAM1:] + st
    A.label("L_codeend")
    e("s_endpgm")
    A.raw('.section .rodata,"a"')
    A.raw(".p2align 6")
    A.raw(f".amdhsa_kernel {NAME}")
    acc = 40 + 16 * D
    acc = (acc + 3) // 4 * 4
    A.raw(f"  .amdhsa_next_free_vgpr {acc + max(16 * D, 88)}")
    A.raw("  .amdhsa_next_free_sgpr 102")
    A.raw(f"  .amdhsa_accum_offset {acc}")
    A.raw("  .amdhsa_group_segment_fixed_size 0")
    A.raw("  .amdhsa_kernarg_size 104")
    A.raw("  .amdhsa_user_sgpr_count 2")
    A.raw("  .amdhsa_user_sgpr_kernarg_segment_ptr 1")
    A.raw("  .amdhsa_system_sgpr_workgroup_id_x 1")
    A.raw("  .amdhsa_float_denorm_mode_32 3")
    A.raw(".end_amdhsa_kernel")
    n = A.fix_hazards()
    return A.text(), n

if __name__ == "__main__":
    cfg = json.loads(sys.argv[2]) if len(sys.argv) > 2 else {}
    t, n = gen(**cfg)
    hdr = open("cdna_kernels/" + NAME[:-7] + ".s.ref").read().split("; Override launch")[0]
    lines = t.split("\n")
    out = hdr + lines[0] + "\n" + "\n".join(lines[1:])
    open(sys.argv[1], "w").write(out)
    print("nops inserted:", n)
```

```python
import sys, json
from asmfw import Asm

NAME = "recurrent_scan__mha_block_cached__dense_activation_squared_relu__decode_kernel"

EP = 0
QP = 0x10000
HP = 0x60000
OP = 0xA0000
ML = 0xE0000
CNT = 0xF0000
SP = 0x100000
OPW = 0x1A0000
GP = 0x240000
TS = 0x300000
WS_BYTES = 0x500000
L_Q = 0x000
L_FC = 0x200
L_FB = 0x204
L_WANT = 0x208
L_FQ = 0x20c
L_MLW = 0x240
L_MB = 0x280
L_OW = 0x400
L_HT = 0xC00
L_PRIV = 0x1000
L_RED = 0x2000
LDS_BYTES = 0x2800

TAGB = 10
TAGM = (1 << TAGB) - 1
VALM = (~TAGM) & 0xffffffff
OOB = 0x40000000
LOG2E = 0x3fb8aa3b
SCALE = 0x3db504f3
SPIN = 1 << 17

def gen(D=6, A_=2, gss=((8, 4), (8, 2), (16, 1)), req_at=1, stamps=False, nt=True, sleep=1, bar0=True, tlog=False, noatom=False, ntk=None, tstep=False, static_tail=False, kpat=True, ahead2=True, prefetch=True, pstamps=False, fillq=None, latew1=True, wmode='flagC', rot=1, fast=True, ntk_end=None, diag='', split=None, nomask=True, warm=True, tlb=False, outsc1=False, dbgspan=False, halves=True, direct=True, lateh=True):
    A = Asm()
    e = A
    NT = " nt" if nt else ""
    nstamp = [0]
    def stamp(k):
        if stamps and (not pstamps or k == 0):
            e(f"s_memrealtime s[{64+2*k}:{65+2*k}]")
    def pst(k):
        if stamps and pstamps:
            e(f"s_memrealtime s[{64+2*k}:{65+2*k}]")
    def dbg(idx, neg=False, r=126):
        if not dbgspan: return
        e("s_memrealtime s[6:7]")
        e("s_mov_b32 s92, s30\ns_and_b32 s93, s31, 0xffff\ns_mov_b32 s94, 256\ns_mov_b32 s95, 0x20000")
        e("s_waitcnt lgkmcnt(0)")
        if neg: e("s_not_b32 s6, s6")
        e("s_mov_b64 exec, 1")
        e(f"v_mov_b32 v{r}, s6")
        e(f"v_mov_b32 v{r+1}, {4*idx}")
        e(f"buffer_atomic_umax v{r}, v{r+1}, s[92:95], 0 offen sc1")
        e("s_mov_b64 exec, -1")
    def dump_stamps(nk):
        if not stamps: return
        e("s_waitcnt lgkmcnt(0)")
        e("s_lshl_b32 s6, s2, 3")
        e("s_add_u32 s6, s6, s5")
        e("s_lshl_b32 s6, s6, 7")
        e(f"s_add_u32 s6, s6, {TS}")
        e("s_mov_b64 exec, 1")
        e("v_mov_b32 v1, 0")
        e(f"s_mov_b32 s60, s32\ns_mov_b32 s61, s33\ns_mov_b32 s62, {WS_BYTES}\ns_mov_b32 s63, 0x20000")
        for k in range(nk):
            e(f"v_mov_b32 v2, s{64+2*k}")
            e(f"buffer_store_dword v2, v1, s[60:63], s6 offen offset:{4*k}")
        e("s_mov_b64 exec, -1")

    A.raw("; @launch grid=(256,1,1) block=(512,1,1) lds=%d" % LDS_BYTES)
    A.raw('.amdgcn_target "amdgcn-amd-amdhsa--gfx950"')
    A.raw(".text")
    A.raw(f".globl {NAME}")
    A.raw(".p2align 8")
    A.raw(f".type {NAME},@function")
    A.label(NAME)
    e("s_cmp_ge_u32 s2, 256")
    e("s_cbranch_scc1 L_end")
    e("s_load_dwordx16 s[8:23], s[0:1], 0")
    e("s_load_dwordx8 s[24:31], s[0:1], 64")
    e("s_load_dwordx2 s[32:33], s[0:1], 96")
    stamp(0)
    e("v_lshrrev_b32 v1, 6, v0")
    e("v_and_b32 v0, 63, v0")
    e("v_readfirstlane_b32 s3, v1")
    e("s_lshr_b32 s34, s2, 3")
    e("s_and_b32 s35, s2, 7")
    e("s_mov_b32 s5, s3")
    if prefetch:
        e("s_cmp_eq_u32 s3, 3")
        e("s_cbranch_scc0 L_nopf")
        e("s_getpc_b64 s[60:61]")
        A.label("L_pc")
        e(f"s_sub_u32 s60, s60, L_pc-{NAME}")
        e("s_subb_u32 s61, s61, 0")
        e("s_and_b32 s61, s61, 0xffff")
        e(f"s_mov_b32 s62, L_codeend-{NAME}")
        e("s_mov_b32 s63, 0x20000")
        e("s_and_b32 s36, s34, 3")
        e("s_mul_i32 s36, s36, 5120")
        e("v_lshlrev_b32 v13, 4, v0")
        for k in range(4):
            e(f"buffer_load_dwordx4 v[40:43], v13, s[60:63], s36 offen offset:{1024*k}")
        e("s_add_u32 s36, s36, 4096")
        e(f"buffer_load_dwordx4 v[40:43], v13, s[60:63], s36 offen")
        A.label("L_nopf")
    e("s_cmp_ge_u32 s3, 4")
    e("s_cbranch_scc1 L_stream")
    def masks(t1=1, t2=2):
        e(f"v_and_b32 v{t1}, 1, v0")
        e(f"v_lshlrev_b32 v{t1}, 4, v{t1}")
        e(f"v_mov_b32 v{t2}, 0xffff")
        e(f"v_lshlrev_b32 v{t1}, v{t1}, v{t2}")
        e(f"v_bfe_u32 v{t2}, v0, 1, 2")
        for j in range(4):
            e(f"v_cmp_eq_u32 vcc, {j}, v{t2}")
            e(f"v_cndmask_b32 v{6+j}, 0, v{t1}, vcc")
    MARK_STREAM0 = len(A.items)

    A.label("L_stream")
    e("s_sub_u32 s3, s3, 4")
    e("s_and_b32 s37, s3, 1")
    e("s_lshl_b32 s36, s37, 5")
    e("s_add_u32 s36, s36, s34")
    e("s_lshl_b32 s36, s36, 20")
    e("s_waitcnt lgkmcnt(0)")
    if dbgspan:
        e("s_or_b32 s6, s34, s3")
        e("s_cmp_eq_u32 s6, 0")
        e("s_cbranch_scc0 L_nd0")
        dbg(0, True, 34)
        dbg(1, False, 34)
        A.label("L_nd0")
    e("s_add_u32 s48, s10, s36\ns_addc_u32 s49, s11, 0\ns_and_b32 s49, s49, 0xffff\ns_mov_b32 s50, 0x100000\ns_mov_b32 s51, 0x20000")
    e("s_add_u32 s52, s12, s36\ns_addc_u32 s53, s13, 0\ns_and_b32 s53, s53, 0xffff\ns_mov_b32 s54, 0x100000\ns_mov_b32 s55, 0x20000")
    if direct:
        e("s_load_dwordx2 s[92:93], s[32:33], 0")
        e(f"s_mov_b32 s44, s32\ns_and_b32 s45, s33, 0xffff\ns_mov_b32 s46, {WS_BYTES}\ns_mov_b32 s47, 0x20000")
    e("s_lshr_b32 s39, s3, 1")
    STRIDE = 16 if kpat else 2
    e(f"s_lshl_b32 s80, s35, {1 if kpat else 4}")
    e("s_add_u32 s80, s80, s39")
    e("v_lshlrev_b32 v1, 4, v0")
    def chunk_off():
        if rot and kpat:
            e("s_lshr_b32 s84, s80, 4")
            if rot != 1: e(f"s_mul_i32 s84, s84, {rot}")
            e("s_lshl_b32 s84, s84, 1")
            e("s_add_u32 s84, s84, s80")
            e("s_and_b32 s84, s84, 15")
            e("s_andn2_b32 s85, s80, 15")
            e("s_or_b32 s84, s84, s85")
            e("s_lshl_b32 s38, s84, 12")
        else:
            e("s_lshl_b32 s38, s80, 12")
    KR = lambda s, t: 40 + 16 * s + 4 * t
    VR = lambda s, t: 16 * s + 4 * t
    def loadK(s):
        for t in range(4):
            r = KR(s, t)
            e(f"buffer_load_dwordx4 v[{r}:{r+3}], v1, s[48:51], s38 offen offset:{1024*t}{NT}")
    def loadV(s):
        for t in range(4):
            r = VR(s, t)
            e(f"buffer_load_dwordx4 a[{r}:{r+3}], v1, s[52:55], s38 offen offset:{1024*t}{NT}")
    if tlog or tstep:
        e("s_mov_b32 s87, 0")
        e("v_mov_b32 v33, -1")
        e("v_mov_b32 v34, -1")
    if bar0: e("s_barrier")
    for c in range(D):
        if tlog:
            e("s_mov_b32 m0, s87")
            e("v_writelane_b32 v33, s80, m0")
            e("s_add_u32 s87, s87, 1")
        chunk_off()
        e(f"s_add_u32 s80, s80, {STRIDE}")
        if fillq is None:
            loadK(c); loadV(c)
        else:
            for half in range(2):
                if c * 8 + half * 4 + 4 > fillq:
                    e(f"s_waitcnt vmcnt({max(fillq - 4, 0)})")
                (loadK if half == 0 else loadV)(c)
    stamp(1)
    masks(20, 21)
    e(f"s_mov_b32 s81, {8 - D}")
    e("s_mov_b32 s82, 0")
    e("s_mov_b32 s83, 8")
    e("s_mov_b32 s62, 0")
    for k in range(D): e(f"s_mov_b32 s{56+k}, 0")
    e("s_mov_b32 s42, 0xf0f0f0f0\ns_mov_b32 s43, 0xf0f0f0f0")
    e("v_mov_b32 v35, 0xff800000")
    for r in range(4): e(f"v_mov_b32 v{10+r}, 0")
    e("v_mov_b32 v14, 0xff800000")
    e("v_mov_b32 v15, 0")
    e("v_and_b32 v16, 15, v0")
    e("v_lshlrev_b32 v16, 4, v16")
    e("s_lshl_b32 s40, s37, 8")
    e("v_add_u32 v16, s40, v16")
    if direct:
        e("s_waitcnt lgkmcnt(0)")
        e("s_add_u32 s92, s92, 0x7f4a7c15\ns_addc_u32 s93, s93, 0x9e3779b9")
        e(f"s_and_b32 s90, s92, {TAGM}")
        e("v_mov_b32 v32, s90")
        e(f"s_bfe_u32 s90, s92, 0x{(TAGB<<16)|TAGB:x}")
        e("v_mov_b32 v37, s90")
        e(f"s_bfe_u32 s90, s92, 0x{(TAGB<<16)|(2*TAGB):x}")
        e("v_mov_b32 v38, s90")
        e("s_lshr_b64 s[90:91], s[92:93], 30")
        e(f"s_and_b32 s90, s90, {TAGM}")
        e("v_mov_b32 v39, s90")
        e("s_lshl_b32 s90, s34, 1")
        e("s_add_u32 s90, s90, s37")
        e("s_lshl_b32 s90, s90, 4")
        e("s_lshl_b32 s91, s35, 1")
        e("s_add_u32 s90, s90, s91")
        e("s_add_u32 s90, s90, s39")
        e("s_lshl_b32 s92, s90, 9")
        e(f"s_add_u32 s92, s92, {OPW}")
        e("s_lshl_b32 s93, s90, 4")
        e(f"s_add_u32 s93, s93, {ML}")
        e(f"s_mov_b32 s94, {TAGM}")
    e("s_mov_b32 s86, 0")
    e("s_mov_b32 s88, 0x400000")
    e(f"s_mov_b32 s40, 0x{SCALE:x}")
    e(f"s_mov_b32 s41, 0x{LOG2E:x}")
    e(f"v_mov_b32 v36, {L_WANT}")
    e(f"v_mov_b32 v20, {L_FQ}")
    A.label("L_qspin")
    e("ds_read_b32 v21, v20")
    e("s_waitcnt lgkmcnt(0)")
    e("v_readfirstlane_b32 s90, v21")
    e("s_cmp_lg_u32 s90, 0")
    e("s_cbranch_scc1 L_qgo")
    e("s_sleep 1")
    e("s_sub_u32 s88, s88, 1")
    e("s_cmp_lg_u32 s88, 0")
    e("s_cbranch_scc1 L_qspin")
    A.label("L_qgo")
    e(f"ds_read_b128 v[2:5], v16 offset:{L_Q}")
    e("s_waitcnt lgkmcnt(0)")
    stamp(2)
    NKV = 8 * (D - 1)
    NTK = 12 if ntk is None else ntk
    A.label("L_sloop")
    for s in range(D):
        e("s_cmp_eq_u32 s86, 0")
        e(f"s_cbranch_scc1 L_nw{s}")
        e("s_cmp_eq_u32 s89, 0")
        e("s_cbranch_scc1 L_sdone")
        e("s_sub_u32 s89, s89, 1")
        e("s_cmp_ge_u32 s89, 2")
        e(f"s_cbranch_scc1 L_dw{s}")
        e("s_cmp_eq_u32 s89, 1")
        e(f"s_cbranch_scc1 L_w8{s}")
        e("s_waitcnt vmcnt(0)")
        e(f"s_branch L_go{s}")
        A.label(f"L_w8{s}")
        e("s_waitcnt vmcnt(8)")
        e(f"s_branch L_go{s}")
        A.label(f"L_dw{s}")
        e("s_waitcnt vmcnt(16)")
        e(f"s_branch L_go{s}")
        A.label(f"L_nw{s}")
        e(f"s_waitcnt vmcnt({NKV})")
        A.label(f"L_go{s}")
        if tstep:
            e("s_memrealtime s[90:91]")
            e("s_waitcnt lgkmcnt(0)")
            e("s_mov_b32 m0, s87")
            e("v_writelane_b32 v33, s90, m0")
            e("s_add_u32 s87, s87, 1")
        if tlog:
            e("s_mov_b32 m0, s87")
            e(f"v_writelane_b32 v33, s{64+s}, m0") if False else None
        for jj in range(4):
            for t in range(4):
                k = KR(s, t) + jj
                if jj == 0: e(f"v_dot2_f32_bf16 v{16+t}, v{k}, v2, 0")
                else: e(f"v_dot2c_f32_bf16 v{16+t}, v{k}, v{2+jj}")
        e("v_add_f32_dpp v20, v16, v16 row_ror:8 row_mask:0xf bank_mask:0x3")
        e("v_add_f32_dpp v21, v18, v18 row_ror:8 row_mask:0xf bank_mask:0x3")
        e("v_add_f32_dpp v20, v17, v17 row_ror:8 row_mask:0xf bank_mask:0xc")
        e("v_add_f32_dpp v21, v19, v19 row_ror:8 row_mask:0xf bank_mask:0xc")
        e("v_add_f32_dpp v22, v20, v20 row_shl:4 row_mask:0xf bank_mask:0x5")
        e("v_add_f32_dpp v22, v21, v21 row_shr:4 row_mask:0xf bank_mask:0xa")
        e("v_add_f32_dpp v22, v22, v22 quad_perm:[1,0,3,2] row_mask:0xf bank_mask:0xf")
        e("v_add_f32_dpp v22, v22, v22 quad_perm:[2,3,0,1] row_mask:0xf bank_mask:0xf")
        e("v_cvt_pk_bf16_f32 v23, v22, v22")
        e("v_and_b32 v23, 0xffff0000, v23")
        e("v_mul_f32 v23, s40, v23")
        e("v_cvt_pk_bf16_f32 v23, v23, v23")
        e("v_and_b32 v23, 0xffff0000, v23")
        if halves:
            e(f"s_cmp_eq_u32 s{56+s}, 0")
            e(f"s_cbranch_scc1 L_nh{s}")
            e("v_cndmask_b32 v23, v23, v35, s[42:43]")
            A.label(f"L_nh{s}")
        if fast:
            e("v_cmp_lt_f32 vcc, v14, v23")
            e("s_cmp_lg_u64 vcc, 0")
            e(f"s_cbranch_scc0 L_nomax{s}")
            e("v_max_f32_dpp v24, v23, v23 row_ror:4 row_mask:0xf bank_mask:0xf")
            e("v_max_f32_dpp v24, v24, v24 row_ror:8 row_mask:0xf bank_mask:0xf")
            e("v_mov_b32 v25, v24")
            e("v_permlane16_swap_b32 v24, v25")
            e("v_max_f32 v24, v24, v25")
            e("v_mov_b32 v25, v24")
            e("v_permlane32_swap_b32 v24, v25")
            e("v_max3_f32 v24, v24, v25, v14")
            e("v_sub_f32 v25, v14, v24")
            e("v_mul_f32 v25, s41, v25")
            e("v_exp_f32 v25, v25")
            e("v_mov_b32 v14, v24")
            e("v_mul_f32 v15, v15, v25")
            for r in range(4): e(f"v_mul_f32 v{10+r}, v{10+r}, v25")
            A.label(f"L_nomax{s}")
            e("v_sub_f32 v26, v23, v14")
            e("v_mul_f32 v26, s41, v26")
            e("v_exp_f32 v26, v26")
            e("v_cvt_pk_bf16_f32 v27, v26, v26")
            e("v_add_f32 v15, v15, v26")
            bank_lane = [0, 8, 4, 12]
            def bb(t):
                B = 28 if (t & 1) == 0 else 16
                for jj in range(4):
                    e(f"v_and_b32_dpp v{B+jj}, v27, v{6+jj} row_newbcast:{bank_lane[t]} row_mask:0xf bank_mask:0xf")
            def mm(t):
                B = 28 if (t & 1) == 0 else 16
                r = VR(s, t)
                e(f"v_mfma_f32_16x16x32_bf16 v[10:13], a[{r}:{r+3}], v[{B}:{B+3}], v[10:13]")
            bb(0); bb(1); mm(0); bb(2); mm(1); bb(3); mm(2); mm(3)
        else:
            e("v_max_f32_dpp v24, v23, v23 row_ror:4 row_mask:0xf bank_mask:0xf")
            e("v_max_f32_dpp v24, v24, v24 row_ror:8 row_mask:0xf bank_mask:0xf")
            e("v_mov_b32 v25, v24")
            e("v_permlane16_swap_b32 v24, v25")
            e("v_max_f32 v24, v24, v25")
            e("v_mov_b32 v25, v24")
            e("v_permlane32_swap_b32 v24, v25")
            e("v_max3_f32 v24, v24, v25, v14")
            e("v_sub_f32 v25, v14, v24")
            e("v_sub_f32 v26, v23, v24")
            e("v_mul_f32 v25, s41, v25")
            e("v_mul_f32 v26, s41, v26")
            e("v_exp_f32 v25, v25")
            e("v_exp_f32 v26, v26")
            e("v_mov_b32 v14, v24")
            e("v_fma_f32 v15, v15, v25, v26")
            e("v_cvt_pk_bf16_f32 v27, v26, v26")
            for r in range(4): e(f"v_mul_f32 v{10+r}, v{10+r}, v25")
            bank_lane = [0, 8, 4, 12]
            for t in range(4):
                B = 28 if (t & 1) == 0 else 16
                for jj in range(4):
                    e(f"v_and_b32_dpp v{B+jj}, v27, v{6+jj} row_newbcast:{bank_lane[t]} row_mask:0xf bank_mask:0xf")
                r = VR(s, t)
                e(f"v_mfma_f32_16x16x32_bf16 v[10:13], a[{r}:{r+3}], v[{B}:{B+3}], v[10:13]")
        if tstep:
            e("s_memrealtime s[90:91]")
            e("s_waitcnt lgkmcnt(0)")
            e("v_writelane_b32 v34, s90, m0")
        e("s_cmp_lg_u32 s86, 0")
        e(f"s_cbranch_scc1 L_nx{s}")
        if ntk_end is not None:
            e("s_cmp_eq_u32 s83, 1")
            e(f"s_cbranch_scc1 L_ne{s}")
            e(f"s_waitcnt vmcnt({NTK})")
            A.label(f"L_ne{s}")
            e(f"s_waitcnt vmcnt({ntk_end})")
        else:
            e(f"s_waitcnt vmcnt({NTK})")
        e("s_cmp_lg_u32 s81, 0")
        e(f"s_cbranch_scc1 L_have{s}")
        if static_tail:
            e("s_cmp_lg_u32 s82, 0")
            e(f"s_cbranch_scc1 L_drain{s}")
            e(f"s_lshl_b32 s90, s35, {1 if kpat else 4}")
            e("s_add_u32 s90, s90, 128")
            e("s_or_b32 s90, s90, 0x80000")
        else:
            e("s_lshl_b32 s90, s82, 2")
            e(f"s_add_u32 s90, s90, {L_MB}")
            e("v_mov_b32 v20, s90")
            A.label(f"L_mb{s}")
            e("ds_read_b32 v21, v20")
            e("s_waitcnt lgkmcnt(0)")
            e("v_readfirstlane_b32 s90, v21")
            e("s_cmp_lg_u32 s90, -1")
            e(f"s_cbranch_scc1 L_got{s}")
            e("s_sub_u32 s88, s88, 1")
            e("s_cmp_lg_u32 s88, 0")
            e(f"s_cbranch_scc1 L_mb{s}")
            e("s_mov_b32 s90, 256")
            A.label(f"L_got{s}")
        e("s_add_u32 s82, s82, 1")
        e("s_and_b32 s80, s90, 0xffff")
        e("s_bfe_u32 s81, s90, 0x80010")
        e("s_lshr_b32 s62, s90, 24")
        e("s_mov_b32 s83, s81")
        e("s_cmp_lt_u32 s80, 256")
        e("s_addc_u32 s80, s80, 0") if False else None
        e(f"s_cbranch_scc1 L_ok{s}")
        A.label(f"L_drain{s}")
        e("s_mov_b32 s86, 1")
        e(f"s_mov_b32 s89, {D-1}")
        e("s_mov_b64 exec, 1")
        e(f"v_mov_b32 v20, {L_FC}")
        e("v_mov_b32 v21, 1")
        e("ds_add_u32 v20, v21")
        e("s_mov_b64 exec, -1")
        stamp(3)
        e(f"s_branch L_nx{s}")
        A.label(f"L_ok{s}")
        e("s_add_u32 s80, s80, s39")
        A.label(f"L_have{s}")
        chunk_off()
        if halves:
            e(f"s_mov_b32 s{56+s}, s62")
            e("s_cmp_eq_u32 s62, 0")
            e(f"s_cbranch_scc1 L_full{s}")
            e("s_lshr_b32 s63, s62, 1")
            e("s_lshl_b32 s63, s63, 11")
            e("s_add_u32 s38, s38, s63")
            e("s_add_u32 s50, s38, 2048")
            e("s_mov_b32 s54, s50")
            A.label(f"L_full{s}")
        e(f"s_add_u32 s80, s80, {STRIDE}")
        e("s_sub_u32 s81, s81, 1")
        if tlog:
            e("s_lshr_b32 s90, s38, 12")
            e("s_mov_b32 m0, s87")
            e("v_writelane_b32 v33, s90, m0")
            e("s_add_u32 s87, s87, 1")
        loadK(s)
        if not static_tail:
            e(f"s_cmp_le_u32 s81, {req_at}")
            e(f"s_cbranch_scc0 L_nr{s}")
            e("s_add_u32 s90, s82, 1")
            if ahead2:
                e("s_cmp_eq_u32 s83, 1")
                e("s_addc_u32 s90, s90, 0")
            e("s_mov_b64 exec, 1")
            e("v_mov_b32 v21, s90")
            e("ds_max_u32 v36, v21")
            e("s_mov_b64 exec, -1")
            A.label(f"L_nr{s}")
        if split is not None: e(f"s_waitcnt vmcnt({split})")
        loadV(s)
        A.label(f"L_nx{s}")
        if s == D - 1:
            e("s_branch L_sloop")
    A.label("L_sdone")
    if dbgspan:
        e("s_and_b32 s6, s34, 7")
        e("s_or_b32 s6, s6, s3")
        e("s_cmp_eq_u32 s6, 0")
        e("s_cbranch_scc0 L_nd3")
        dbg(3, False, 34)
        A.label("L_nd3")
    stamp(4)
    e("v_add_f32_dpp v15, v15, v15 row_ror:4 row_mask:0xf bank_mask:0xf")
    e("v_add_f32_dpp v15, v15, v15 row_ror:8 row_mask:0xf bank_mask:0xf")
    e("v_mov_b32 v25, v15")
    e("v_permlane16_swap_b32 v15, v25")
    e("v_add_f32 v15, v15, v25")
    e("v_mov_b32 v25, v15")
    e("v_permlane32_swap_b32 v15, v25")
    e("v_add_f32 v15, v15, v25")
    if direct:
        e("v_lshrrev_b32 v16, 4, v0")
        e("v_lshlrev_b32 v16, 7, v16")
        e("v_and_b32 v17, 7, v0")
        e("v_lshl_add_u32 v16, v17, 4, v16")
        for r, tg in enumerate((32, 37, 38, 39)):
            e(f"v_bfi_b32 v{28+r}, s94, v{tg}, v{10+r}")
        e("s_mov_b32 exec_lo, 0x00ff00ff\ns_mov_b32 exec_hi, 0x00ff00ff")
        e("buffer_store_dwordx4 v[28:31], v16, s[44:47], s92 offen sc1")
        e("s_mov_b64 exec, 1")
        e("v_mov_b32 v24, 0")
        e("v_bfi_b32 v20, s94, v32, v14")
        e("v_bfi_b32 v21, s94, v37, v15")
        e("v_bfi_b32 v22, s94, v38, v24")
        e("v_bfi_b32 v23, s94, v39, v24")
        e("buffer_store_dwordx4 v[20:23], v24, s[44:47], s93 offen sc1")
        e("s_mov_b64 exec, -1")
    else:
        e("v_lshrrev_b32 v16, 4, v0")
        e("v_lshlrev_b32 v16, 7, v16")
        e("v_and_b32 v17, 7, v0")
        e("v_lshl_add_u32 v16, v17, 2, v16")
        e("s_lshl_b32 s37, s3, 9")
        e("v_add_u32 v16, s37, v16")
        for r in range(4):
            e(f"ds_write_b32 v16, v{10+r} offset:{L_OW + 32*r}")
        e("s_lshl_b32 s37, s3, 3")
        e("v_mov_b32 v17, s37")
        e(f"ds_write_b64 v17, v[14:15] offset:{L_MLW}")
        e("s_waitcnt lgkmcnt(0)")
        e("s_mov_b64 exec, 1")
        e(f"v_mov_b32 v28, {L_FB}")
        e("v_mov_b32 v29, 1")
        e("ds_add_u32 v28, v29")
        e("s_mov_b64 exec, -1")
    stamp(5)
    if tlog or tstep:
        e("s_lshl_b32 s6, s2, 3\ns_add_u32 s6, s6, s5\ns_lshl_b32 s6, s6, 8")
        e(f"s_add_u32 s6, s6, {TS + 0x80000}")
        e(f"s_mov_b32 s60, s32\ns_mov_b32 s61, s33\ns_mov_b32 s62, {WS_BYTES}\ns_mov_b32 s63, 0x20000")
        e("v_lshlrev_b32 v1, 2, v0")
        e("buffer_store_dword v33, v1, s[60:63], s6 offen")
        e(f"s_add_u32 s6, s6, 0x80000")
        e("buffer_store_dword v34, v1, s[60:63], s6 offen")
    dump_stamps(6)
    e("s_endpgm")

    MARK_STREAM1 = len(A.items)
    A.label("L_aux")
    e("s_setprio 3")
    e(f"s_mov_b32 s100, {1 if 'nopoll' in diag else SPIN}")
    e("s_mov_b32 s101, 0")
    if 'noaux' in diag:
        e("s_cmp_ge_u32 s3, 2")
        e("s_cbranch_scc1 L_aux23")
        e("s_barrier")
        e("s_endpgm")
    e("v_lshrrev_b32 v10, 4, v0")
    e("v_bfe_u32 v11, v0, 3, 1")
    e("v_and_b32 v12, 15, v0")
    e("s_cmp_ge_u32 s3, 2")
    e("s_cbranch_scc1 L_aux23")
    e("s_cmp_eq_u32 s3, 1")
    e("s_cbranch_scc1 L_p1")
    e("s_mul_i32 s36, s35, 72")
    e("s_mov_b32 s37, 18")
    e("s_mov_b32 s38, 8192")
    e("s_lshl_b32 s39, s34, 8")
    e("s_mul_i32 s40, s36, 8192")
    e("s_add_u32 s39, s39, s40")
    e("s_sub_u32 s54, 4718592, s39")
    e("s_mov_b32 s41, 99")
    e("s_mov_b32 s42, 1")
    e("s_mov_b32 s43, 14")
    e("s_branch L_p2")
    A.label("L_p1")
    e("s_mul_hi_u32 s43, s2, 0x71c71c8")
    e("s_mul_i32 s44, s43, 36")
    e("s_sub_u32 s44, s2, s44")
    e("s_mul_i32 s36, s43, 82")
    e("s_cmp_eq_u32 s43, 0")
    e("s_cselect_b32 s40, 0, 2")
    e("s_cselect_b32 s41, 99, 3")
    e("s_add_u32 s36, s36, s40")
    e("s_mov_b32 s37, 22")
    e("s_mov_b32 s38, 9216")
    e("s_lshl_b32 s39, s44, 8")
    e("s_mul_i32 s40, s36, 9216")
    e("s_add_u32 s39, s39, s40")
    e("s_sub_u32 s54, 5308416, s39")
    e("s_mov_b32 s42, 0")
    e("s_cmp_ge_u32 s2, 252")
    e("s_cselect_b32 s54, 0, s54")
    A.label("L_p2")
    e("v_lshrrev_b32 v13, 5, v0")
    e("v_mul_u32_u24 v13, 1152, v13")
    e("v_and_b32 v14, 31, v0")
    e("v_mad_u32_u24 v13, v14, 36, v13")
    e("v_mul_lo_u32 v14, v10, s37")
    e("v_add_u32 v15, s36, v14")
    e("v_lshlrev_b32 v15, 1, v15")
    e("v_mul_u32_u24 v16, 1152, v11")
    e("v_add_u32 v15, v15, v16")
    e("v_mul_lo_u32 v16, v14, s38")
    e("v_lshl_add_u32 v16, v12, 4, v16")
    e(f"v_mov_b32 v19, {OOB}")
    e("v_cmp_eq_u32 vcc, s41, v10")
    e("v_cndmask_b32 v17, v16, v19, vcc")
    e("v_cmp_eq_u32 vcc, 3, v10")
    e("v_cndmask_b32 v18, v16, v19, vcc")
    e("s_cmp_eq_u32 s42, 1")
    e("s_cselect_b64 vcc, -1, 0")
    e("v_cndmask_b32 v18, v18, v19, vcc")
    if 'now1' in diag: e("s_mov_b32 s54, 0")
    e("s_mov_b32 s62, 2304\ns_mov_b32 s63, 0x20000\ns_mov_b32 s55, 0x20000")
    pst(1)
    e("s_waitcnt lgkmcnt(0)")
    pst(2)
    e("s_mov_b32 s60, s8\ns_and_b32 s61, s9, 0xffff")
    e("buffer_load_dwordx4 v[20:23], v13, s[60:63], 0 offen")
    e("buffer_load_dwordx4 v[24:27], v13, s[60:63], 0 offen offset:16")
    e("buffer_load_dword v28, v13, s[60:63], 0 offen offset:32")
    e("buffer_load_dwordx4 v[30:33], v15, s[60:63], 0 offen")
    e("buffer_load_dwordx4 v[34:37], v15, s[60:63], 0 offen offset:16")
    e("buffer_load_dwordx3 v[38:40], v15, s[60:63], 0 offen offset:32")
    e("s_cmp_eq_u32 s3, 1")
    e("s_cselect_b32 s52, s20, s14")
    e("s_cselect_b32 s53, s21, s15")
    e("s_add_u32 s52, s52, s39\ns_addc_u32 s53, s53, 0\ns_and_b32 s53, s53, 0xffff")
    def wloads():
        e("s_mov_b32 s45, 0")
        for t in range(22):
            vo = 16 if t < 16 else (17 if t < 18 else 18)
            e(f"buffer_load_dwordx4 a[{4*t}:{4*t+3}], v{vo}, s[52:55], s45 offen{NT}")
            if t < 21: e("s_add_u32 s45, s45, s38")
    if latew1:
        e("s_cmp_eq_u32 s3, 1")
        e("s_cbranch_scc1 L_now")
    wloads()
    if latew1: A.label("L_now")
    pst(3)
    if bar0: e("s_barrier")
    pst(4)
    stamp(1)
    e("s_load_dwordx2 s[46:47], s[32:33], 0")
    e(f"s_mov_b32 s48, s32\ns_and_b32 s49, s33, 0xffff\ns_mov_b32 s50, {WS_BYTES}\ns_mov_b32 s51, 0x20000")
    masks()
    e("v_lshlrev_b32 v41, 2, v0")
    e("v_mov_b32 v42, 0")
    e("s_lshl_b32 s40, s34, 8")
    e(f"s_add_u32 s40, s40, {CNT}")
    e("s_add_u32 s56, s32, s40\ns_addc_u32 s57, s33, 0\ns_and_b32 s57, s57, 0xffff\ns_mov_b32 s59, 0x20000")
    e("s_or_b32 s40, s35, s3")
    e("s_cmp_eq_u32 s40, 0")
    e("s_cselect_b32 s58, 4, 0")
    e("buffer_store_dword v42, v41, s[56:59], 0 offen sc1")
    pst(5)
    if latew1:
        e("s_cmp_eq_u32 s3, 1")
        e("s_cbranch_scc0 L_xw0")
        e("s_waitcnt vmcnt(0)")
        A.label("L_xw0")
    e("s_waitcnt vmcnt(25)")
    pst(6)
    F = 44
    for k in range(9):
        e(f"v_lshlrev_b32 v{F+2*k}, 16, v{20+k}")
        e(f"v_and_b32 v{F+2*k+1}, 0xffff0000, v{20+k}")
    e(f"v_pk_add_f32 v[62:63], v[{F}:{F+1}], v[{F+2}:{F+3}]")
    for k in range(2, 9):
        e(f"v_pk_add_f32 v[62:63], v[62:63], v[{F+2*k}:{F+2*k+1}]")
    e("v_add_f32 v62, v62, v63")
    def red32(r, tmp):
        for sh in (8, 4, 2, 1):
            e(f"v_add_f32_dpp v{r}, v{r}, v{r} row_ror:{sh} row_mask:0xf bank_mask:0xf")
        e(f"v_mov_b32 v{tmp}, v{r}")
        e(f"v_permlane16_swap_b32 v{r}, v{tmp}")
        e(f"v_add_f32 v{r}, v{r}, v{tmp}")
    red32(62, 63)
    e("v_mul_f32 v62, 0x3ae38e39, v62")
    e("v_mov_b32 v63, v62")
    for k in range(9):
        e(f"v_pk_add_f32 v[{F+2*k}:{F+2*k+1}], v[{F+2*k}:{F+2*k+1}], v[62:63] neg_lo:[0,1] neg_hi:[0,1]")
    e(f"v_pk_mul_f32 v[64:65], v[{F}:{F+1}], v[{F}:{F+1}]")
    for k in range(1, 9):
        e(f"v_pk_fma_f32 v[64:65], v[{F+2*k}:{F+2*k+1}], v[{F+2*k}:{F+2*k+1}], v[64:65]")
    e("v_add_f32 v64, v64, v65")
    red32(64, 65)
    e("v_mul_f32 v64, 0x3ae38e39, v64")
    e("v_cvt_pk_bf16_f32 v62, v62, v62")
    e("v_and_b32 v62, 0xffff0000, v62")
    e("v_cvt_pk_bf16_f32 v64, v64, v64")
    e("v_and_b32 v64, 0xffff0000, v64")
    e("v_add_f32 v64, 0x3727c5ac, v64")
    e("v_cvt_pk_bf16_f32 v64, v64, v64")
    e("v_and_b32 v64, 0xffff0000, v64")
    e("v_sqrt_f32 v64, v64")
    e("v_cvt_pk_bf16_f32 v64, v64, v64")
    e("v_and_b32 v64, 0xffff0000, v64")
    e("v_rcp_f32 v64, v64")
    e("v_readlane_b32 s56, v62, 0")
    e("v_readlane_b32 s57, v62, 32")
    e("v_readlane_b32 s58, v64, 0")
    e("v_readlane_b32 s59, v64, 32")
    e("v_cmp_eq_u32 vcc, 1, v11")
    e("v_mov_b32 v62, s56")
    e("v_mov_b32 v63, s57")
    e("v_cndmask_b32 v62, v62, v63, vcc")
    e("v_mov_b32 v64, s58")
    e("v_mov_b32 v65, s59")
    e("v_cndmask_b32 v64, v64, v65, vcc")
    e("v_mov_b32 v63, v62")
    e("v_mov_b32 v65, v64")
    pst(7)
    e("s_waitcnt vmcnt(22)")
    pst(8)
    for k in range(11):
        x = 30 + k
        e(f"v_lshlrev_b32 v66, 16, v{x}")
        e(f"v_and_b32 v67, 0xffff0000, v{x}")
        e("v_pk_add_f32 v[66:67], v[66:67], v[62:63] neg_lo:[0,1] neg_hi:[0,1]")
        e("v_cvt_pk_bf16_f32 v68, v66, v67")
        e("v_lshlrev_b32 v66, 16, v68")
        e("v_and_b32 v67, 0xffff0000, v68")
        e("v_pk_mul_f32 v[66:67], v[66:67], v[64:65]")
        e(f"v_cvt_pk_bf16_f32 v{x}, v66, v67")
    stamp(2)
    pst(9)
    if latew1:
        e("s_cmp_eq_u32 s3, 1")
        e("s_cbranch_scc0 L_now2")
        wloads()
        A.label("L_now2")
    e("s_mov_b32 s56, 0x01000100")
    e("s_mov_b32 s57, 0x03020302")
    for r in range(4): e(f"v_mov_b32 v{70+r}, 0")
    for t in range(22):
        B = 76 + 4 * (t & 1)
        e(f"v_perm_b32 v74, v{30 + t//2}, v{30 + t//2}, s{56 + (t & 1)}")
        for jj in range(4):
            e(f"v_and_b32 v{B+jj}, v74, v{6+jj}")
        e(f"s_waitcnt vmcnt({21 - t})")
        e(f"v_mfma_f32_16x16x32_bf16 v[70:73], a[{4*t}:{4*t+3}], v[{B}:{B+3}], v[70:73]")
    stamp(3)
    pst(10)
    def make_tags():
        e("s_waitcnt lgkmcnt(0)")
        e("s_add_u32 s46, s46, 0x7f4a7c15\ns_addc_u32 s47, s47, 0x9e3779b9")
        e(f"s_and_b32 s44, s46, {TAGM}")
        e("v_mov_b32 v2, s44")
        e(f"s_bfe_u32 s44, s46, 0x{(TAGB<<16)|TAGB:x}")
        e("v_mov_b32 v3, s44")
        e(f"s_bfe_u32 s44, s46, 0x{(TAGB<<16)|(2*TAGB):x}")
        e("v_mov_b32 v4, s44")
        e("s_lshr_b64 s[56:57], s[46:47], 30")
        e(f"s_and_b32 s44, s56, {TAGM}")
        e("v_mov_b32 v5, s44")
        e(f"s_mov_b32 s44, {TAGM}")
        e(f"s_mov_b32 s45, 0x{VALM:x}")
    def tagpack(dst, src):
        for r in range(4):
            e(f"v_bfi_b32 v{dst+r}, s44, v{2+r}, v{src+r}")
    def tagcheck(regs, tmp):
        first = True
        for base in regs:
            for r in range(4):
                if first:
                    e(f"v_xor_b32 v{tmp}, v{base+r}, v{2+r}"); first = False
                else:
                    e(f"v_bitop3_b32 v{tmp}, v{base+r}, v{2+r}, v{tmp} bitop3:0xbe")
        e(f"v_and_b32 v{tmp}, s44, v{tmp}")
        e(f"v_cmp_eq_u32 vcc, 0, v{tmp}")
    pollid = [0]
    def poll(issue, regs, tmp, cnt="s4", nosleep=False):
        n = pollid[0]; pollid[0] += 1
        e(f"s_mov_b32 {cnt}, s100")
        A.label(f"L_poll{n}")
        issue()
        e("s_waitcnt vmcnt(0)")
        tagcheck(regs, tmp)
        e("s_cmp_eq_u64 vcc, exec")
        e(f"s_cbranch_scc1 L_pdone{n}")
        if sleep and not nosleep: e(f"s_sleep {sleep}")
        e(f"s_sub_u32 {cnt}, {cnt}, 1")
        e(f"s_cmp_lg_u32 {cnt}, 0")
        e(f"s_cbranch_scc1 L_poll{n}")
        A.label(f"L_pdone{n}")
    def ldsspin(addr, target, nosleep=False):
        n = pollid[0]; pollid[0] += 1
        e(f"s_mov_b32 s4, {SPIN}")
        e(f"v_mov_b32 v20, {addr}")
        A.label(f"L_poll{n}")
        e("ds_read_b32 v21, v20")
        e("s_waitcnt lgkmcnt(0)")
        e("v_readfirstlane_b32 s6, v21")
        e(f"s_cmp_ge_u32 s6, {target}")
        e(f"s_cbranch_scc1 L_pdone{n}")
        if sleep and not nosleep: e(f"s_sleep {sleep}")
        e("s_sub_u32 s4, s4, 1")
        e("s_cmp_lg_u32 s4, 0")
        e(f"s_cbranch_scc1 L_poll{n}")
        A.label(f"L_pdone{n}")

    def dispatcher():
        if static_tail: return
        e("s_cmp_eq_u32 s3, 0")
        e("s_cbranch_scc0 L_nodisp")
        e("s_lshl_b32 s94, s34, 8")
        e(f"s_add_u32 s94, s94, {CNT}")
        e("s_add_u32 s56, s32, s94\ns_addc_u32 s57, s33, 0\ns_and_b32 s57, s57, 0xffff\ns_mov_b32 s58, 4\ns_mov_b32 s59, 0x20000")
        e("v_mov_b32 v13, 0")
        e(f"v_mov_b32 v14, {L_WANT}")
        e("s_mov_b32 s90, 0")
        e(f"s_mov_b32 s4, {SPIN * 8}")
        e("s_mov_b64 exec, 1")
        A.label("L_dloop")
        e("ds_read_b32 v15, v14")
        e("s_waitcnt lgkmcnt(0)")
        e("v_readfirstlane_b32 s91, v15")
        e("s_cmp_gt_u32 s91, s90")
        e("s_cbranch_scc1 L_dget")
        e("s_sleep 1")
        e("s_sub_u32 s4, s4, 1")
        e("s_cmp_lg_u32 s4, 0")
        e("s_cbranch_scc1 L_dloop")
        e("s_mov_b32 s92, 256")
        e("s_branch L_dput")
        A.label("L_dget")
        e("v_mov_b32 v15, 1")
        e("buffer_atomic_add v15, v13, s[56:59], 0 offen sc0 sc1")
        e("s_waitcnt vmcnt(0)")
        e("v_readfirstlane_b32 s91, v15")
        e("s_mov_b32 s92, 256")
        k0, st0 = 0, 128
        for gi, ph in enumerate(gss):
            cnt, nper = ph[0], ph[1]
            half = len(ph) > 2 and ph[2]
            e(f"s_sub_u32 s93, s91, {k0}")
            if half:
                assert cnt % 16 == 0 and nper == 1
                e("s_and_b32 s94, s93, 7")
                e("s_lshl_b32 s94, s94, 1")
                e("s_lshr_b32 s95, s93, 4")
                e("s_lshl_b32 s95, s95, 4")
                e("s_add_u32 s94, s94, s95")
                e("s_bfe_u32 s95, s93, 0x10003")
                e("s_lshl_b32 s95, s95, 25")
                e("s_add_u32 s94, s94, s95")
                e(f"s_add_u32 s94, s94, {st0 + (1 << 16) + (1 << 24)}")
                covered = cnt
            else:
                assert cnt % 8 == 0
                e("s_and_b32 s94, s93, 7")
                e("s_lshl_b32 s94, s94, 1")
                e("s_lshr_b32 s95, s93, 3")
                e(f"s_mul_i32 s95, s95, {16*nper}")
                e("s_add_u32 s94, s94, s95")
                e(f"s_add_u32 s94, s94, {st0 + (nper << 16)}")
                covered = cnt * 2 * nper
            e(f"s_cmp_lt_u32 s93, {cnt}")
            e("s_cselect_b32 s92, s94, s92")
            k0 += cnt; st0 += covered
        assert st0 == 256, st0
        assert k0 + 3 <= 64
        A.label("L_dput")
        e("s_lshl_b32 s93, s90, 2")
        e(f"s_add_u32 s93, s93, {L_MB}")
        e("v_mov_b32 v15, s93")
        e("v_mov_b32 v16, s92")
        e("ds_write_b32 v15, v16")
        e("s_add_u32 s90, s90, 1")
        e("s_cmp_eq_u32 s92, 256")
        e("s_cbranch_scc0 L_dloop")
        e("s_waitcnt lgkmcnt(0)")
        e("s_mov_b64 exec, -1")
        A.label("L_nodisp")

    make_tags()
    e("s_cmp_eq_u32 s3, 1")
    e("s_cbranch_scc1 L_hpub")
    e("s_waitcnt vmcnt(0)")
    tagpack(74, 70)
    e("v_lshlrev_b32 v13, 4, v0")
    e("s_lshl_b32 s36, s2, 10")
    e(f"s_add_u32 s36, s36, {QP}")
    e("buffer_store_dwordx4 v[74:77], v13, s[48:51], s36 offen sc1")
    stamp(4)
    pst(11)
    e("v_lshlrev_b32 v13, 4, v0")
    e("s_lshl_b32 s36, s34, 13")
    e(f"s_add_u32 s36, s36, {QP}")
    e("s_add_u32 s37, s36, 4096")
    def issue_q():
        for k in range(8):
            e(f"buffer_load_dwordx4 v[{20+4*k}:{23+4*k}], v13, s[48:51], s{36 + k//4} offen offset:{1024*(k%4)} sc1")
    poll(issue_q, [20 + 4 * k for k in range(8)], 52)
    pst(12)
    for r in range(4):
        for k in range(8): e(f"v_and_b32 v{20+4*k+r}, s45, v{20+4*k+r}")
        for k in (0, 2, 4, 6): e(f"v_add_f32 v{20+4*k+r}, v{20+4*k+r}, v{24+4*k+r}")
        e(f"v_add_f32 v{20+r}, v{20+r}, v{28+r}")
        e(f"v_add_f32 v{36+r}, v{36+r}, v{44+r}")
        e(f"v_add_f32 v{20+r}, v{20+r}, v{36+r}")
    e("v_cvt_pk_bf16_f32 v24, v20, v21")
    e("v_cvt_pk_bf16_f32 v25, v22, v23")
    e("v_lshlrev_b32 v13, 8, v11")
    e("v_lshl_add_u32 v13, v10, 6, v13")
    e("v_and_b32 v14, 7, v0")
    e("v_lshl_add_u32 v13, v14, 1, v13")
    e(f"ds_write_b16 v13, v24 offset:{L_Q}")
    e(f"ds_write_b16_d16_hi v13, v24 offset:{L_Q+16}")
    e(f"ds_write_b16 v13, v25 offset:{L_Q+32}")
    e(f"ds_write_b16_d16_hi v13, v25 offset:{L_Q+48}")
    e("s_waitcnt lgkmcnt(0)")
    e(f"v_mov_b32 v13, {L_FQ}")
    e("v_mov_b32 v14, 1")
    e("ds_write_b32 v13, v14")
    stamp(5)
    pst(13)
    e("s_branch L_barA")
    A.label("L_hpub")
    e("s_cmp_ge_u32 s2, 252")
    e("s_cbranch_scc1 L_barA")
    e("v_lshlrev_b32 v13, 9, v11")
    e("v_lshl_add_u32 v13, v10, 7, v13")
    e("v_and_b32 v14, 7, v0")
    e("v_lshl_add_u32 v13, v14, 2, v13")
    for r in range(4):
        e(f"ds_write_b32 v13, v{70+r} offset:{L_HT + 32*r}")
    e("v_lshlrev_b32 v14, 4, v0")
    e("s_waitcnt lgkmcnt(0)")
    e(f"ds_read_b128 v[70:73], v14 offset:{L_HT}")
    e("v_lshrrev_b32 v13, 5, v0")
    e("v_mul_u32_u24 v13, 18432, v13")
    e("v_and_b32 v14, 31, v0")
    e("v_lshl_add_u32 v13, v14, 4, v13")
    e("s_mul_hi_u32 s43, s2, 0x71c71c8")
    e("s_mul_i32 s36, s43, 36")
    e("s_sub_u32 s36, s2, s36")
    e("s_lshl_b32 s36, s36, 9")
    e("s_mul_i32 s37, s43, 36864")
    e("s_add_u32 s36, s36, s37")
    e(f"s_add_u32 s36, s36, {HP}")
    e("s_waitcnt lgkmcnt(0)")
    tagpack(74, 70)
    e("buffer_store_dwordx4 v[74:77], v13, s[48:51], s36 offen sc1")
    stamp(4)
    e("s_branch L_barA")
    A.label("L_aux23")
    e("s_mov_b64 exec, 1")
    e(f"v_mov_b32 v13, {L_FC}")
    e("v_mov_b32 v14, 0")
    e("v_mov_b32 v15, 0")
    e("ds_write_b64 v13, v[14:15]")
    if 'noq' in diag: e("v_mov_b32 v15, 1")
    e("ds_write_b64 v13, v[14:15] offset:8")
    e("s_mov_b64 exec, -1")
    e("v_lshlrev_b32 v13, 2, v0")
    e("v_mov_b32 v14, -1")
    e(f"ds_write_b32 v13, v14 offset:{L_MB}")
    e("s_waitcnt lgkmcnt(0)")
    e("s_load_dwordx2 s[46:47], s[32:33], 0")
    e(f"s_mov_b32 s48, s32\ns_and_b32 s49, s33, 0xffff\ns_mov_b32 s50, {WS_BYTES}\ns_mov_b32 s51, 0x20000")
    if tlb:
        e("s_cmp_eq_u32 s3, 2")
        e("s_cbranch_scc0 L_notlb")
        e("v_lshlrev_b32 v13, 16, v0")
        e("s_cmp_lt_u32 s2, 16")
        e(f"s_cselect_b32 s50, 0x300000, 0")
        e("buffer_load_dword v120, v13, s[48:51], 0 offen")
        e(f"s_mov_b32 s50, {WS_BYTES}")
        e("s_lshr_b32 s36, s2, 1")
        e("v_lshlrev_b32 v14, 15, v0")
        e("s_mul_i32 s37, s36, 36864")
        e("s_add_u32 s60, s16, s37\ns_addc_u32 s61, s17, 0\ns_and_b32 s61, s61, 0xffff\ns_mov_b32 s62, 36864\ns_mov_b32 s63, 0x20000")
        e("buffer_load_dword v121, v14, s[60:63], 0 offen")
        e("s_mul_i32 s37, s36, 41472")
        e("s_add_u32 s60, s24, s37\ns_addc_u32 s61, s25, 0\ns_and_b32 s61, s61, 0xffff\ns_mov_b32 s62, 41472")
        e("buffer_load_dword v122, v14, s[60:63], 0 offen")
        e("s_mov_b32 s60, s28\ns_and_b32 s61, s29, 0xffff\ns_mov_b32 s62, 4")
        e("buffer_load_dword v123, v14, s[60:63], 0 offen")
        e("s_mov_b32 s60, s26\ns_and_b32 s61, s27, 0xffff")
        e("buffer_load_dword v124, v14, s[60:63], 0 offen")
        e("s_mov_b32 s60, s22\ns_and_b32 s61, s23, 0xffff")
        e("buffer_load_dword v125, v14, s[60:63], 0 offen")
        A.label("L_notlb")
    if bar0: e("s_barrier")
    if 'noaux' in diag: e("s_endpgm")
    masks()
    make_tags()
    A.label("L_barA")
    stamp(6)
    if wmode != 'early': dispatcher()
    if warm:
        e("s_cmp_eq_u32 s3, 1")
        e("s_cbranch_scc0 L_nodry1")
        e("s_cmp_lt_u32 s2, 36")
        e("s_cbranch_scc0 L_nodry1")
        e("s_mov_b32 s100, 1\ns_mov_b32 s101, 1\ns_mov_b32 s50, 0")
        e("s_branch L_red")
        A.label("L_drydone1")
        e(f"s_mov_b32 s100, {SPIN}\ns_mov_b32 s101, 0\ns_mov_b32 s50, {WS_BYTES}")
        A.label("L_nodry1")
    e("s_and_b32 s36, s35, 1")
    e("s_lshr_b32 s37, s2, 1")
    e("s_mov_b32 s40, 2\ns_mov_b32 s41, 0")
    e("s_cmp_ge_u32 s3, 2")
    e("s_cbranch_scc1 L_t23")
    e("s_mov_b32 s38, 0")
    e("s_lshl_b32 s39, s36, 1")
    e("s_add_u32 s39, s39, s3")
    e("s_branch L_tdone")
    A.label("L_t23")
    e("s_mov_b32 s38, 1")
    e("s_lshl_b32 s39, s36, 1")
    e("s_sub_u32 s39, s3, s39")
    e("s_cmp_eq_u32 s3, 2")
    e("s_cbranch_scc0 L_th2")
    e("s_mov_b32 s41, 4")
    e("s_xor_b32 s40, s36, 1")
    A.label("L_th2")
    e("s_mov_b64 exec, 0x3ffff")
    e("v_cmp_le_u32 vcc, 9, v0")
    e("v_cndmask_b32 v13, 0, 1, vcc")
    e("v_mul_u32_u24 v14, 9, v13")
    e("v_sub_u32 v14, v0, v14")
    e("v_mul_u32_u24 v15, 18432, v13")
    e("v_lshl_add_u32 v15, v14, 4, v15")
    e("s_mul_i32 s42, s37, 144")
    e(f"s_add_u32 s42, s42, {HP}")
    e("s_mov_b32 s60, s22\ns_and_b32 s61, s23, 0xffff\ns_mov_b32 s62, 9216\ns_mov_b32 s63, 0x20000")
    e("s_mul_i32 s43, s37, 72")
    e("v_lshlrev_b32 v16, 3, v14")
    e("buffer_load_dwordx2 v[18:19], v16, s[60:63], s43 offen")
    if lateh and not static_tail:
        e("s_mov_b64 exec, -1")
        ldsspin(L_WANT, 1)
        e("s_mov_b64 exec, 0x3ffff")
    def issue_h():
        e("s_mov_b32 s43, s42")
        for k in range(7):
            e(f"buffer_load_dwordx4 v[{20+4*k}:{23+4*k}], v15, s[48:51], s43 offen sc1")
            if k < 6: e("s_add_u32 s43, s43, 36864")
    poll(issue_h, [20 + 4 * k for k in range(7)], 48)
    for r in range(4):
        for k in range(7): e(f"v_and_b32 v{20+4*k+r}, s45, v{20+4*k+r}")
        for k in range(1, 7): e(f"v_add_f32 v{20+r}, v{20+r}, v{20+4*k+r}")
    e("v_lshlrev_b32 v24, 16, v18\nv_and_b32 v25, 0xffff0000, v18\nv_lshlrev_b32 v26, 16, v19\nv_and_b32 v27, 0xffff0000, v19")
    for r in range(4):
        e(f"v_cvt_pk_bf16_f32 v{20+r}, v{20+r}, v{20+r}")
        e(f"v_and_b32 v{20+r}, 0xffff0000, v{20+r}")
        e(f"v_add_f32 v{20+r}, v{20+r}, v{24+r}")
        e(f"v_cvt_pk_bf16_f32 v{20+r}, v{20+r}, v{20+r}")
        e(f"v_and_b32 v{20+r}, 0xffff0000, v{20+r}")
        e(f"v_max_f32 v{20+r}, 0, v{20+r}")
        e(f"v_mul_f32 v{20+r}, v{20+r}, v{20+r}")
        e(f"v_cvt_pk_bf16_f32 v{20+r}, v{20+r}, v{20+r}")
    e("v_mul_u32_u24 v16, 144, v13")
    e("v_lshl_add_u32 v16, v14, 4, v16")
    e("s_lshl_b32 s43, s3, 10")
    e("v_add_u32 v16, s43, v16")
    e(f"ds_write_b128 v16, v[20:23] offset:{L_PRIV}")
    e("s_mov_b64 exec, -1")
    e("s_waitcnt lgkmcnt(0)")
    A.label("L_tdone")
    stamp(7)
    def task_srd(srd, typ, beta, voff):
        n = pollid[0]; pollid[0] += 1
        e(f"s_cmp_eq_u32 {typ}, 1")
        e(f"s_cbranch_scc1 L_sw2_{n}")
        e("s_mul_i32 s42, s37, 36864")
        e(f"s_lshl_b32 s43, {beta}, 8")
        e("s_add_u32 s42, s42, s43")
        e(f"s_add_u32 s{srd}, s16, s42\ns_addc_u32 s{srd+1}, s17, 0")
        e(f"s_sub_u32 s{srd+2}, 4718592, s42")
        e("s_mov_b32 s43, 9216")
        e(f"s_branch L_sd_{n}")
        A.label(f"L_sw2_{n}")
        e("s_mul_i32 s42, s37, 41472")
        e(f"s_lshl_b32 s43, {beta}, 8")
        e("s_add_u32 s42, s42, s43")
        e(f"s_add_u32 s{srd}, s24, s42\ns_addc_u32 s{srd+1}, s25, 0")
        e(f"s_sub_u32 s{srd+2}, 5308416, s42")
        e("s_mov_b32 s43, 10368")
        A.label(f"L_sd_{n}")
        e(f"s_and_b32 s{srd+1}, s{srd+1}, 0xffff\ns_mov_b32 s{srd+3}, 0x20000")
        e(f"s_cmp_eq_u32 {typ}, 2")
        e(f"s_cselect_b32 s{srd+2}, 0, s{srd+2}")
        e(f"v_mul_lo_u32 v{voff}, v10, s43")
        e(f"v_lshl_add_u32 v{voff}, v12, 4, v{voff}")
        e(f"v_mov_b32 v19, {OOB}")
        e("v_cmp_le_u32 vcc, 8, v12")
        e(f"v_cndmask_b32 v18, v{voff}, v19, vcc")
        e(f"s_cmp_eq_u32 {beta}, 4")
        e(f"s_cbranch_scc0 L_se_{n}")
        e(f"v_mov_b32 v{voff}, v18")
        A.label(f"L_se_{n}")
    task_srd(52, "s38", "s39", 13)
    task_srd(56, "s40", "s41", 14)
    if 'nowo' in diag:
        e("s_mov_b32 s54, 0\ns_mov_b32 s58, 0")
    e(f"v_mov_b32 v19, {OOB}")
    e("s_cmp_eq_u32 s38, 0\ns_cselect_b64 vcc, -1, 0")
    e("v_cndmask_b32 v15, v13, v19, vcc")
    e("s_cmp_eq_u32 s40, 0\ns_cselect_b64 vcc, -1, 0")
    e("v_cndmask_b32 v16, v14, v19, vcc")
    e("v_lshrrev_b32 v90, 3, v0")
    e("v_lshlrev_b32 v90, 14, v90")
    e("v_and_b32 v91, 7, v0")
    e("v_lshl_add_u32 v90, v91, 4, v90")
    e("v_cmp_le_u32 vcc, 32, v0")
    e("v_cndmask_b32 v92, v90, v19, vcc")
    e("s_cmp_eq_u32 s41, 4\ns_cselect_b64 vcc, -1, 0")
    e("v_cndmask_b32 v91, v90, v92, vcc")
    e("s_cmp_eq_u32 s39, 4\ns_cselect_b64 vcc, -1, 0")
    e("v_cndmask_b32 v90, v90, v92, vcc")
    for (typ, beta, dst) in (("s38", "s39", "s96"), ("s40", "s41", "s97")):
        e(f"s_mov_b32 {dst}, {SP}")
        e(f"s_cmp_eq_u32 {typ}, 1")
        e(f"s_cselect_b32 {dst}, {GP}, {dst}")
        e(f"s_lshl_b32 s42, {beta}, 17")
        e(f"s_add_u32 {dst}, {dst}, s42")
        e("s_lshl_b32 s42, s37, 7")
        e(f"s_add_u32 {dst}, {dst}, s42")
    e("v_and_b32 v93, 3, v0")
    e("v_bfe_u32 v94, v0, 4, 1")
    e("v_lshl_add_u32 v93, v94, 2, v93")
    e("v_bfe_u32 v94, v0, 2, 2")
    e("v_lshrrev_b32 v95, 5, v0")
    if direct:
        e("v_lshlrev_b32 v96, 13, v95")
        e("v_lshl_add_u32 v96, v94, 9, v96")
        e("v_lshl_add_u32 v96, v93, 4, v96")
        e("v_lshlrev_b32 v97, 8, v95")
        e("v_lshl_add_u32 v97, v94, 4, v97")
        e("s_lshr_b32 s98, s35, 1")
        e("s_lshl_b32 s98, s98, 7")
        e("s_lshl_b32 s42, s34, 14")
        e("s_add_u32 s98, s98, s42")
        e(f"s_add_u32 s98, s98, {OPW}")
        e("s_add_u32 s63, s98, 4096")
        e("s_lshl_b32 s99, s34, 9")
        e(f"s_add_u32 s99, s99, {ML}")
        e("s_lshl_b32 s42, s3, 10")
        e(f"s_add_u32 s42, s42, {L_PRIV + 0x200}")
        e("v_lshlrev_b32 v98, 7, v95")
        e("v_lshl_add_u32 v98, v93, 2, v98")
        e("v_add_u32 v98, s42, v98")
    else:
        e("v_lshlrev_b32 v96, 12, v95")
        e("v_lshl_add_u32 v96, v94, 9, v96")
        e("v_lshl_add_u32 v96, v93, 4, v96")
        e("v_lshlrev_b32 v97, 7, v95")
        e("v_lshl_add_u32 v97, v94, 4, v97")
        e("s_lshr_b32 s98, s35, 1")
        e("s_lshl_b32 s98, s98, 7")
        e("s_lshl_b32 s42, s34, 13")
        e("s_add_u32 s98, s98, s42")
        e(f"s_add_u32 s98, s98, {OP}")
        e("s_lshl_b32 s99, s34, 8")
        e(f"s_add_u32 s99, s99, {ML}")
        e("s_lshl_b32 s42, s3, 10")
        e(f"s_add_u32 s42, s42, {L_PRIV + 0x200}")
        e("v_lshlrev_b32 v98, 7, v95")
        e("v_lshl_add_u32 v98, v93, 4, v98")
        e("v_add_u32 v98, s42, v98")
    e("v_lshlrev_b32 v99, 7, v11")
    e("v_lshl_add_u32 v99, v10, 5, v99")
    e("v_add_u32 v99, s42, v99")
    e("s_cmp_ge_u32 s3, 2")
    e("s_cbranch_scc0 L_noh2")
    e("v_mul_u32_u24 v20, 144, v11")
    e("v_mad_u32_u24 v20, v10, 36, v20")
    e("s_lshl_b32 s42, s3, 10")
    e("v_add_u32 v20, s42, v20")
    for t in range(9):
        e(f"ds_read_b32 v{100+t}, v20 offset:{L_PRIV + 4*t}")
    e("s_waitcnt lgkmcnt(0)")
    A.label("L_noh2")
    e("v_and_b32 v110, 31, v0")
    e("v_lshlrev_b32 v110, 4, v110")
    e("v_lshl_add_u32 v111, v95, 9, v110")
    e("v_lshlrev_b32 v112, 3, v95")
    e("v_lshl_add_u32 v113, v95, 12, v110")
    e("v_lshlrev_b32 v114, 7, v95")
    e("s_lshl_b32 s60, s34, 13")
    e("s_lshl_b32 s43, s35, 9")
    e("s_add_u32 s60, s60, s43")
    e(f"s_add_u32 s60, s60, {OP}")
    e("s_lshl_b32 s61, s34, 8")
    e("s_lshl_b32 s43, s35, 4")
    e("s_add_u32 s61, s61, s43")
    e(f"s_add_u32 s61, s61, {ML}")
    e(f"s_mov_b32 s62, 0x{LOG2E:x}")
    if warm:
        e("s_cmp_eq_u32 s3, 1")
        e("s_cbranch_scc1 L_dry2")
        if direct:
            e("s_branch L_nodry2")
        else:
            e("s_cmp_eq_u32 s3, 3")
            e("s_cbranch_scc0 L_nodry2")
            e("s_mov_b32 s100, 1\ns_mov_b32 s101, 1\ns_mov_b32 s50, 0")
            e("s_branch L_comb")
        A.label("L_dry2")
        e("s_mov_b32 s100, 1\ns_mov_b32 s101, 1\ns_mov_b32 s50, 0")
        e("s_branch L_btX")
        A.label("L_drydone2")
        e(f"s_mov_b32 s100, {SPIN}\ns_mov_b32 s101, 0\ns_mov_b32 s50, {WS_BYTES}")
        A.label("L_nodry2")
    if wmode == 'flagC': ldsspin(L_FC, 4)
    if wmode == 'flagB': ldsspin(L_FB, 4)
    stamp(8)
    e("s_mov_b32 s42, 0")
    for t in range(9):
        vo = 13 if t < 8 else 15
        e(f"buffer_load_dwordx4 a[{4*t}:{4*t+3}], v{vo}, s[52:55], s42 offen{NT}")
        e("s_add_u32 s42, s42, 1152") if t < 8 else None
    e("s_mov_b32 s42, 0")
    for t in range(9):
        vo = 14 if t < 8 else 16
        e(f"buffer_load_dwordx4 a[{36+4*t}:{36+4*t+3}], v{vo}, s[56:59], s42 offen{NT}")
        e("s_add_u32 s42, s42, 1152") if t < 8 else None
    if wmode == 'early': dispatcher()
    if not direct:
        e("s_cmp_eq_u32 s3, 3")
        e("s_cbranch_scc0 L_nocomb")
        ldsspin(L_FB, 4, nosleep=True)
        stamp(9)
        A.label("L_comb")
        e(f"ds_read_b64 v[40:41], v112 offset:{L_MLW}")
        e(f"ds_read_b64 v[42:43], v112 offset:{L_MLW+16}")
        e(f"ds_read_b128 v[24:27], v111 offset:{L_OW}")
        e(f"ds_read_b128 v[28:31], v111 offset:{L_OW + 1024}")
        e("s_waitcnt lgkmcnt(2)")
        e("v_max_f32 v48, v40, v42")
        e("v_sub_f32 v40, v40, v48\nv_sub_f32 v42, v42, v48")
        e("v_mul_f32 v40, s62, v40\nv_mul_f32 v42, s62, v42")
        e("v_exp_f32 v40, v40\nv_exp_f32 v42, v42")
        e("v_mov_b32 v52, 0\nv_mov_b32 v53, 0")
        e("v_mul_f32 v49, v40, v41")
        e("v_fmac_f32 v49, v42, v43")
        e("s_waitcnt lgkmcnt(0)")
        for r in range(4):
            e(f"v_mul_f32 v{44+r}, v40, v{24+r}")
        for r in range(4):
            e(f"v_fmac_f32 v{44+r}, v42, v{28+r}")
        tagpack(54, 44)
        e("buffer_store_dwordx4 v[54:57], v113, s[48:51], s60 offen sc1")
        e(f"v_bfi_b32 v58, s44, v2, v48\nv_bfi_b32 v59, s44, v3, v49\nv_bfi_b32 v60, s44, v4, v52\nv_bfi_b32 v61, s44, v5, v53")
        e("s_mov_b32 exec_lo, 1\ns_mov_b32 exec_hi, 1")
        e("buffer_store_dwordx4 v[58:61], v114, s[48:51], s61 offen sc1")
        e("s_mov_b64 exec, -1")
        if warm:
            e("s_cmp_lg_u32 s101, 0")
            e("s_cbranch_scc1 L_drydone2")
        stamp(10)
        A.label("L_nocomb")

    def mchain(n, srcs, abase):
        def bb(t):
            B = 76 + 4 * (t & 1)
            for jj in range(4): e(f"v_and_b32 v{B+jj}, v{srcs[t]}, v{6+jj}")
        def mm(t):
            B = 76 + 4 * (t & 1)
            c = "0" if t == 0 else "v[70:73]"
            e(f"v_mfma_f32_16x16x32_bf16 v[70:73], a[{abase+4*t}:{abase+4*t+3}], v[{B}:{B+3}], {c}")
        bb(0); bb(1)
        for t in range(n):
            mm(t)
            if t + 2 < n: bb(t + 2)
    def blocktask(which, typ, abase, vst, sst):
        n = pollid[0]; pollid[0] += 1
        e(f"s_cmp_eq_u32 {typ}, 2")
        e(f"s_cbranch_scc1 L_bt_end{n}")
        e(f"s_cmp_eq_u32 {typ}, 1")
        e(f"s_cbranch_scc1 L_bt_w2{n}")
        if direct:
            OR = [24, 36, 44, 48]; MR = [28, 40, 52, 56]
            def issue_o():
                for k in range(4):
                    so = "s98" if k < 2 else "s63"
                    e(f"buffer_load_dwordx4 v[{OR[k]}:{OR[k]+3}], v96, s[48:51], {so} offen offset:{2048*(k&1)} sc1")
                for k in range(4):
                    e(f"buffer_load_dwordx4 v[{MR[k]}:{MR[k]+3}], v97, s[48:51], s99 offen offset:{64*k} sc1")
            poll(issue_o, OR + MR, 32, nosleep=True)
            stamp(11)
            e("v_max3_f32 v30, v28, v40, v52")
            e("v_max_f32 v30, v30, v56")
            e("v_max_f32_dpp v30, v30, v30 row_ror:4 row_mask:0xf bank_mask:0xf")
            e("v_max_f32_dpp v30, v30, v30 row_ror:8 row_mask:0xf bank_mask:0xf")
            for k in range(4): e(f"v_sub_f32 v{MR[k]}, v{MR[k]}, v30")
            for k in range(4): e(f"v_mul_f32 v{MR[k]}, s62, v{MR[k]}")
            for k in range(4): e(f"v_exp_f32 v{MR[k]}, v{MR[k]}")
            e("v_mul_f32 v29, v29, v28")
            for r in range(4): e(f"v_mul_f32 v{24+r}, v{24+r}, v28")
            for k in range(1, 4):
                e(f"v_fmac_f32 v29, v{MR[k]+1}, v{MR[k]}")
                for r in range(4): e(f"v_fmac_f32 v{24+r}, v{OR[k]+r}, v{MR[k]}")
            for r in (29, 24, 25, 26, 27):
                e(f"v_add_f32_dpp v{r}, v{r}, v{r} row_ror:4 row_mask:0xf bank_mask:0xf")
            for r in (29, 24, 25, 26, 27):
                e(f"v_add_f32_dpp v{r}, v{r}, v{r} row_ror:8 row_mask:0xf bank_mask:0xf")
            e("v_rcp_f32 v29, v29")
            for r in range(4): e(f"v_mul_f32 v{24+r}, v{24+r}, v29")
            for r in range(4): e(f"v_cvt_pk_bf16_f32 v{24+r}, v{24+r}, v{24+r}")
            for r in range(4): e(f"ds_write_b32 v98, v{24+r} offset:{32*r}")
            e("s_waitcnt lgkmcnt(0)")
        else:
            def issue_o():
                e("buffer_load_dwordx4 v[24:27], v96, s[48:51], s98 offen sc1")
                e("buffer_load_dwordx4 v[36:39], v96, s[48:51], s98 offen offset:2048 sc1")
                e("buffer_load_dwordx4 v[28:31], v97, s[48:51], s99 offen sc1")
                e("buffer_load_dwordx4 v[40:43], v97, s[48:51], s99 offen offset:64 sc1")
            poll(issue_o, [24, 36, 28, 40], 32, nosleep=True)
            stamp(11)
            if not nomask:
                for r in (24, 25, 26, 27, 36, 37, 38, 39, 28, 29, 40, 41): e(f"v_and_b32 v{r}, s45, v{r}")
            e("v_max_f32 v30, v28, v40")
            e("v_max_f32_dpp v30, v30, v30 row_ror:4 row_mask:0xf bank_mask:0xf")
            e("v_max_f32_dpp v30, v30, v30 row_ror:8 row_mask:0xf bank_mask:0xf")
            e("v_sub_f32 v28, v28, v30\nv_sub_f32 v40, v40, v30")
            e("v_mul_f32 v28, s62, v28\nv_mul_f32 v40, s62, v40")
            e("v_exp_f32 v28, v28\nv_exp_f32 v40, v40")
            e("v_mul_f32 v29, v29, v28")
            for r in range(4): e(f"v_mul_f32 v{24+r}, v{24+r}, v28")
            e("v_fmac_f32 v29, v41, v40")
            for r in range(4): e(f"v_fmac_f32 v{24+r}, v{36+r}, v40")
            for r in (29, 24, 25, 26, 27):
                e(f"v_add_f32_dpp v{r}, v{r}, v{r} row_ror:4 row_mask:0xf bank_mask:0xf")
            for r in (29, 24, 25, 26, 27):
                e(f"v_add_f32_dpp v{r}, v{r}, v{r} row_ror:8 row_mask:0xf bank_mask:0xf")
            e("v_rcp_f32 v29, v29")
            for r in range(4): e(f"v_mul_f32 v{24+r}, v{24+r}, v29")
            for r in range(4): e(f"v_cvt_pk_bf16_f32 v{24+r}, v{24+r}, v{24+r}")
            e("ds_write_b128 v98, v[24:27]")
            e("s_waitcnt lgkmcnt(0)")
        e("ds_read_b128 v[24:27], v99")
        e("ds_read_b128 v[28:31], v99 offset:16")
        e("s_waitcnt lgkmcnt(0)")
        mchain(8, [24 + t for t in range(8)], abase)
        e(f"s_branch L_bt_pub{n}")
        A.label(f"L_bt_w2{n}")
        e(f"s_waitcnt vmcnt({0 if which == 'Y' else 9})") if False else e("s_waitcnt vmcnt(0)")
        mchain(9, [100 + t for t in range(9)], abase)
        A.label(f"L_bt_pub{n}")
        tagpack(74, 70)
        e(f"buffer_store_dwordx4 v[74:77], v{vst}, s[48:51], {sst} offen sc1")
        A.label(f"L_bt_end{n}")
    A.label("L_btX")
    blocktask("X", "s38", 0, 90, "s96")
    if warm:
        e("s_cmp_lg_u32 s101, 0")
        e("s_cbranch_scc1 L_drydone2")
    stamp(12)
    blocktask("Y", "s40", 36, 91, "s97")
    stamp(13)

    e("s_cmp_ge_u32 s2, 36")
    e("s_cbranch_scc1 L_auxend")
    A.label("L_red")
    e("s_lshr_b32 s36, s2, 3")
    e("s_and_b32 s37, s2, 7")
    e("s_lshl_b32 s38, s36, 7")
    e("s_lshr_b32 s39, s37, 1")
    e("s_lshl_b32 s39, s39, 5")
    e("s_add_u32 s38, s38, s39")
    e("s_and_b32 s39, s37, 1")
    e("s_mul_i32 s39, s39, 576")
    e("s_add_u32 s39, s39, s38")
    e("s_mov_b32 s60, s8\ns_and_b32 s61, s9, 0xffff\ns_mov_b32 s62, 2304\ns_mov_b32 s63, 0x20000")
    e("s_mov_b32 s56, s26\ns_and_b32 s57, s27, 0xffff\ns_mov_b32 s58, 1152\ns_mov_b32 s59, 0x20000")
    e("v_lshlrev_b32 v13, 1, v0")
    e("s_lshl_b32 s40, s39, 1")
    e("s_lshl_b32 s41, s38, 1")
    e("v_and_b32 v16, 3, v0")
    e("v_bfe_u32 v17, v0, 4, 1")
    e("v_lshl_add_u32 v16, v17, 2, v16")
    e("v_bfe_u32 v17, v0, 2, 2")
    e("v_lshrrev_b32 v18, 5, v0")
    e("v_lshl_add_u32 v17, v18, 2, v17")
    e("v_lshlrev_b32 v19, 4, v16")
    e("v_lshl_add_u32 v16, v17, 7, v19")
    e("v_lshl_add_u32 v17, v18, 7, v19")
    e("s_lshl_b32 s43, s3, 8")
    e("v_add_u32 v17, s43, v17")
    e("s_lshl_b32 s42, s2, 14")
    e("s_lshl_b32 s43, s3, 12")
    e("s_add_u32 s42, s42, s43")
    e(f"s_add_u32 s43, s42, {SP}")
    e(f"s_add_u32 s42, s42, {GP}")
    e("s_mov_b32 exec_lo, -1\ns_mov_b32 exec_hi, 0")
    e("buffer_load_ushort v14, v13, s[60:63], s40 offen")
    e("buffer_load_ushort v15, v13, s[56:59], s41 offen")
    e("s_mov_b64 exec, -1")
    e("s_mov_b32 s60, s28\ns_and_b32 s61, s29, 0xffff")
    def issue_r():
        for k in range(4):
            e(f"buffer_load_dwordx4 v[{20+4*k}:{23+4*k}], v16, s[48:51], s42 offen offset:{1024*k} sc1")
        for k in range(4):
            e(f"buffer_load_dwordx4 v[{36+4*k}:{39+4*k}], v16, s[48:51], s43 offen offset:{1024*k} sc1")
    poll(issue_r, [20 + 4 * k for k in range(8)], 52, nosleep=True)
    stamp(14)
    for base in (20, 36):
        for r in range(4):
            if not nomask:
                for k in range(4): e(f"v_and_b32 v{base+4*k+r}, s45, v{base+4*k+r}")
        for r in range(4): e(f"v_add_f32 v{base+r}, v{base+r}, v{base+4+r}")
        for r in range(4): e(f"v_add_f32 v{base+8+r}, v{base+8+r}, v{base+12+r}")
        for r in range(4): e(f"v_add_f32 v{base+r}, v{base+r}, v{base+8+r}")
    for sh in (4, 8):
        for base in (20, 36):
            for r in range(4):
                e(f"v_add_f32_dpp v{base+r}, v{base+r}, v{base+r} row_ror:{sh} row_mask:0xf bank_mask:0xf")
    e(f"ds_write_b128 v17, v[20:23] offset:{L_RED}")
    e(f"ds_write_b128 v17, v[36:39] offset:{L_RED + 1024}")
    e("v_and_b32 v17, 7, v0")
    e("v_lshlrev_b32 v17, 4, v17")
    e("v_bfe_u32 v18, v0, 3, 2")
    e("v_lshl_add_u32 v17, v18, 2, v17")
    e("s_waitcnt lgkmcnt(0)")
    if warm:
        e("s_cmp_lg_u32 s101, 0")
        e("s_cbranch_scc1 L_redfin")
    e("s_barrier")
    e("s_cmp_eq_u32 s3, 0")
    e("s_cbranch_scc0 L_auxend")
    A.label("L_redfin")
    for kind in range(2):
        for a in range(8):
            e(f"ds_read_b32 v{20+8*kind+a}, v17 offset:{L_RED + 1024*kind + 128*a}")
    e("v_lshlrev_b32 v14, 16, v14")
    e("v_lshlrev_b32 v15, 16, v15")
    e("s_waitcnt lgkmcnt(8)")
    def sum8(b):
        for k in (0, 2, 4, 6): e(f"v_add_f32 v{b+k}, v{b+k}, v{b+k+1}")
        e(f"v_add_f32 v{b}, v{b}, v{b+2}")
        e(f"v_add_f32 v{b+4}, v{b+4}, v{b+6}")
        e(f"v_add_f32 v{b}, v{b}, v{b+4}")
    def rnd(r):
        e(f"v_cvt_pk_bf16_f32 v{r}, v{r}, v{r}")
        e(f"v_and_b32 v{r}, 0xffff0000, v{r}")
    sum8(20)
    rnd(20)
    e("v_add_f32 v20, v20, v15")
    rnd(20)
    e(f"v_mul_f32 v21, 0x{(LOG2E ^ 0x80000000):x}, v20")
    e("v_exp_f32 v21, v21")
    e("s_waitcnt lgkmcnt(0)")
    sum8(28)
    e("v_add_f32 v21, 1.0, v21")
    e("v_rcp_f32 v21, v21")
    rnd(28)
    e("v_mul_f32 v20, v20, v21")
    rnd(20)
    e("v_mul_f32 v20, v28, v20")
    rnd(20)
    e("v_add_f32 v20, v14, v20")
    e("v_cvt_pk_bf16_f32 v20, v20, v20")
    if warm:
        e("s_cmp_lg_u32 s101, 0")
        e("s_cselect_b32 s62, 0, s62")
    e("s_mov_b32 exec_lo, -1\ns_mov_b32 exec_hi, 0")
    e("buffer_store_short v20, v13, s[60:63], s40 offen" + (" sc0 sc1" if outsc1 else ""))
    e("s_mov_b64 exec, -1")
    if warm:
        e("s_cmp_lg_u32 s101, 0")
        e("s_cbranch_scc1 L_drydone1")
    dbg(5)
    stamp(15)
    e("s_cmp_eq_u32 s2, 0")
    e("s_cbranch_scc0 L_auxend")
    e("s_mov_b64 exec, 1")
    e("v_mov_b32 v20, s46\nv_mov_b32 v21, s47\nv_mov_b32 v22, 0")
    e("buffer_store_dwordx2 v[20:21], v22, s[48:51], 0 offen sc1")
    e("s_mov_b64 exec, -1")
    A.label("L_auxend")
    stamp(15 + 1) if False else None
    dump_stamps(16)
    A.label("L_end")
    e("s_endpgm")
    st = A.items[MARK_STREAM0:MARK_STREAM1]
    A.items = A.items[:MARK_STREAM0] + A.items[MARK_STREAM1:] + st
    A.label("L_codeend")
    e("s_endpgm")
    A.raw('.section .rodata,"a"')
    A.raw(".p2align 6")
    A.raw(f".amdhsa_kernel {NAME}")
    acc = 40 + 16 * D
    acc = (acc + 3) // 4 * 4
    A.raw(f"  .amdhsa_next_free_vgpr {acc + max(16 * D, 88)}")
    A.raw("  .amdhsa_next_free_sgpr 102")
    A.raw(f"  .amdhsa_accum_offset {acc}")
    A.raw("  .amdhsa_group_segment_fixed_size 0")
    A.raw("  .amdhsa_kernarg_size 104")
    A.raw("  .amdhsa_user_sgpr_count 2")
    A.raw("  .amdhsa_user_sgpr_kernarg_segment_ptr 1")
    A.raw("  .amdhsa_system_sgpr_workgroup_id_x 1")
    A.raw("  .amdhsa_float_denorm_mode_32 3")
    A.raw(".end_amdhsa_kernel")
    n = A.fix_hazards()
    return A.text(), n

if __name__ == "__main__":
    cfg = json.loads(sys.argv[2]) if len(sys.argv) > 2 else {}
    t, n = gen(**cfg)
    hdr = open("cdna_kernels/" + NAME[:-7] + ".s.ref").read().split("; Override launch")[0]
    lines = t.split("\n")
    out = hdr + lines[0] + "\n" + "\n".join(lines[1:])
    open(sys.argv[1], "w").write(out)
    print("nops inserted:", n)
```

```python
import sys, json
from asmfw import Asm

NAME = "recurrent_scan__mha_block_cached__dense_activation_squared_relu__decode_kernel"

EP = 0
QP = 0x10000
HP = 0x60000
OP = 0xA0000
ML = 0xE0000
CNT = 0xF0000
SP = 0x100000
OPW = 0x1A0000
GP = 0x240000
TS = 0x300000
WS_BYTES = 0x500000
L_Q = 0x000
L_FC = 0x200
L_FB = 0x204
L_WANT = 0x208
L_FQ = 0x20c
L_MLW = 0x240
L_MB = 0x280
L_OW = 0x400
L_HT = 0xC00
L_PRIV = 0x1000
L_RED = 0x2000
LDS_BYTES = 0x2800

TAGB = 10
TAGM = (1 << TAGB) - 1
VALM = (~TAGM) & 0xffffffff
OOB = 0x40000000
LOG2E = 0x3fb8aa3b
SCALE = 0x3db504f3
SPIN = 1 << 17

def gen(D=6, A_=2, gss=((8, 4), (8, 2), (32, 1, 1)), req_at=1, stamps=False, nt=True, sleep=1, bar0=True, tlog=False, noatom=False, ntk=8, tstep=False, static_tail=False, kpat=True, ahead2=True, prefetch=True, pstamps=False, fillq=16, latew1=False, wmode='flagC', rot=1, fast=True, ntk_end=None, diag='', split=8, nomask=True, warm=True, tlb=False, outsc1=False, dbgspan=False, halves=True, direct=False, lateh=True, trig=None, dtrig=None, w2late=False):
    A = Asm()
    e = A
    NT = " nt" if nt else ""
    nstamp = [0]
    def stamp(k):
        if stamps and (not pstamps or k == 0):
            e(f"s_memrealtime s[{64+2*k}:{65+2*k}]")
    def pst(k):
        if stamps and pstamps:
            e(f"s_memrealtime s[{64+2*k}:{65+2*k}]")
    def dbg(idx, neg=False, r=126):
        if not dbgspan: return
        e("s_memrealtime s[6:7]")
        e("s_mov_b32 s92, s30\ns_and_b32 s93, s31, 0xffff\ns_mov_b32 s94, 256\ns_mov_b32 s95, 0x20000")
        e("s_waitcnt lgkmcnt(0)")
        if neg: e("s_not_b32 s6, s6")
        e("s_mov_b64 exec, 1")
        e(f"v_mov_b32 v{r}, s6")
        e(f"v_mov_b32 v{r+1}, {4*idx}")
        e(f"buffer_atomic_umax v{r}, v{r+1}, s[92:95], 0 offen sc1")
        e("s_mov_b64 exec, -1")
    def dump_stamps(nk):
        if not stamps: return
        e("s_waitcnt lgkmcnt(0)")
        e("s_lshl_b32 s6, s2, 3")
        e("s_add_u32 s6, s6, s5")
        e("s_lshl_b32 s6, s6, 7")
        e(f"s_add_u32 s6, s6, {TS}")
        e("s_mov_b64 exec, 1")
        e("v_mov_b32 v1, 0")
        e(f"s_mov_b32 s60, s32\ns_mov_b32 s61, s33\ns_mov_b32 s62, {WS_BYTES}\ns_mov_b32 s63, 0x20000")
        for k in range(nk):
            e(f"v_mov_b32 v2, s{64+2*k}")
            e(f"buffer_store_dword v2, v1, s[60:63], s6 offen offset:{4*k}")
        e("s_mov_b64 exec, -1")

    A.raw("; @launch grid=(256,1,1) block=(512,1,1) lds=%d" % LDS_BYTES)
    A.raw('.amdgcn_target "amdgcn-amd-amdhsa--gfx950"')
    A.raw(".text")
    A.raw(f".globl {NAME}")
    A.raw(".p2align 8")
    A.raw(f".type {NAME},@function")
    A.label(NAME)
    e("s_cmp_ge_u32 s2, 256")
    e("s_cbranch_scc1 L_end")
    e("s_load_dwordx16 s[8:23], s[0:1], 0")
    e("s_load_dwordx8 s[24:31], s[0:1], 64")
    e("s_load_dwordx2 s[32:33], s[0:1], 96")
    stamp(0)
    e("v_lshrrev_b32 v1, 6, v0")
    e("v_and_b32 v0, 63, v0")
    e("v_readfirstlane_b32 s3, v1")
    e("s_lshr_b32 s34, s2, 3")
    e("s_and_b32 s35, s2, 7")
    e("s_mov_b32 s5, s3")
    if prefetch:
        e("s_cmp_eq_u32 s3, 3")
        e("s_cbranch_scc0 L_nopf")
        e("s_getpc_b64 s[60:61]")
        A.label("L_pc")
        e(f"s_sub_u32 s60, s60, L_pc-{NAME}")
        e("s_subb_u32 s61, s61, 0")
        e("s_and_b32 s61, s61, 0xffff")
        e(f"s_mov_b32 s62, L_codeend-{NAME}")
        e("s_mov_b32 s63, 0x20000")
        e("s_and_b32 s36, s34, 3")
        e("s_mul_i32 s36, s36, 5120")
        e("v_lshlrev_b32 v13, 4, v0")
        for k in range(4):
            e(f"buffer_load_dwordx4 v[40:43], v13, s[60:63], s36 offen offset:{1024*k}")
        e("s_add_u32 s36, s36, 4096")
        e(f"buffer_load_dwordx4 v[40:43], v13, s[60:63], s36 offen")
        A.label("L_nopf")
    e("s_cmp_ge_u32 s3, 4")
    e("s_cbranch_scc1 L_stream")
    def masks(t1=1, t2=2):
        e(f"v_and_b32 v{t1}, 1, v0")
        e(f"v_lshlrev_b32 v{t1}, 4, v{t1}")
        e(f"v_mov_b32 v{t2}, 0xffff")
        e(f"v_lshlrev_b32 v{t1}, v{t1}, v{t2}")
        e(f"v_bfe_u32 v{t2}, v0, 1, 2")
        for j in range(4):
            e(f"v_cmp_eq_u32 vcc, {j}, v{t2}")
            e(f"v_cndmask_b32 v{6+j}, 0, v{t1}, vcc")
    MARK_STREAM0 = len(A.items)

    A.label("L_stream")
    e("s_sub_u32 s3, s3, 4")
    e("s_and_b32 s37, s3, 1")
    e("s_lshl_b32 s36, s37, 5")
    e("s_add_u32 s36, s36, s34")
    e("s_lshl_b32 s36, s36, 20")
    e("s_waitcnt lgkmcnt(0)")
    if dbgspan:
        e("s_or_b32 s6, s34, s3")
        e("s_cmp_eq_u32 s6, 0")
        e("s_cbranch_scc0 L_nd0")
        dbg(0, True, 34)
        dbg(1, False, 34)
        A.label("L_nd0")
    e("s_add_u32 s48, s10, s36\ns_addc_u32 s49, s11, 0\ns_and_b32 s49, s49, 0xffff\ns_mov_b32 s50, 0x100000\ns_mov_b32 s51, 0x20000")
    e("s_add_u32 s52, s12, s36\ns_addc_u32 s53, s13, 0\ns_and_b32 s53, s53, 0xffff\ns_mov_b32 s54, 0x100000\ns_mov_b32 s55, 0x20000")
    if direct:
        e("s_load_dwordx2 s[92:93], s[32:33], 0")
        e(f"s_mov_b32 s44, s32\ns_and_b32 s45, s33, 0xffff\ns_mov_b32 s46, {WS_BYTES}\ns_mov_b32 s47, 0x20000")
    e("s_lshr_b32 s39, s3, 1")
    STRIDE = 16 if kpat else 2
    e(f"s_lshl_b32 s80, s35, {1 if kpat else 4}")
    e("s_add_u32 s80, s80, s39")
    e("v_lshlrev_b32 v1, 4, v0")
    def chunk_off():
        if rot and kpat:
            e("s_lshr_b32 s84, s80, 4")
            if rot != 1: e(f"s_mul_i32 s84, s84, {rot}")
            e("s_lshl_b32 s84, s84, 1")
            e("s_add_u32 s84, s84, s80")
            e("s_and_b32 s84, s84, 15")
            e("s_andn2_b32 s85, s80, 15")
            e("s_or_b32 s84, s84, s85")
            e("s_lshl_b32 s38, s84, 12")
        else:
            e("s_lshl_b32 s38, s80, 12")
    KR = lambda s, t: 40 + 16 * s + 4 * t
    VR = lambda s, t: 16 * s + 4 * t
    def loadK(s):
        for t in range(4):
            r = KR(s, t)
            e(f"buffer_load_dwordx4 v[{r}:{r+3}], v1, s[48:51], s38 offen offset:{1024*t}{NT}")
    def loadV(s):
        for t in range(4):
            r = VR(s, t)
            e(f"buffer_load_dwordx4 a[{r}:{r+3}], v1, s[52:55], s38 offen offset:{1024*t}{NT}")
    if tlog or tstep:
        e("s_mov_b32 s87, 0")
        e("v_mov_b32 v33, -1")
        e("v_mov_b32 v34, -1")
    if bar0: e("s_barrier")
    for c in range(D):
        if tlog:
            e("s_mov_b32 m0, s87")
            e("v_writelane_b32 v33, s80, m0")
            e("s_add_u32 s87, s87, 1")
        chunk_off()
        e(f"s_add_u32 s80, s80, {STRIDE}")
        if fillq is None:
            loadK(c); loadV(c)
        else:
            for half in range(2):
                if c * 8 + half * 4 + 4 > fillq:
                    e(f"s_waitcnt vmcnt({max(fillq - 4, 0)})")
                (loadK if half == 0 else loadV)(c)
    stamp(1)
    masks(20, 21)
    e(f"s_mov_b32 s81, {8 - D}")
    e("s_mov_b32 s82, 0")
    e("s_mov_b32 s83, 8")
    e("s_mov_b32 s62, 0")
    for k in range(D): e(f"s_mov_b32 s{56+k}, 0")
    e("s_mov_b32 s42, 0xf0f0f0f0\ns_mov_b32 s43, 0xf0f0f0f0")
    e("v_mov_b32 v35, 0xff800000")
    for r in range(4): e(f"v_mov_b32 v{10+r}, 0")
    e("v_mov_b32 v14, 0xff800000")
    e("v_mov_b32 v15, 0")
    e("v_and_b32 v16, 15, v0")
    e("v_lshlrev_b32 v16, 4, v16")
    e("s_lshl_b32 s40, s37, 8")
    e("v_add_u32 v16, s40, v16")
    if direct:
        e("s_waitcnt lgkmcnt(0)")
        e("s_add_u32 s92, s92, 0x7f4a7c15\ns_addc_u32 s93, s93, 0x9e3779b9")
        e(f"s_and_b32 s90, s92, {TAGM}")
        e("v_mov_b32 v32, s90")
        e(f"s_bfe_u32 s90, s92, 0x{(TAGB<<16)|TAGB:x}")
        e("v_mov_b32 v37, s90")
        e(f"s_bfe_u32 s90, s92, 0x{(TAGB<<16)|(2*TAGB):x}")
        e("v_mov_b32 v38, s90")
        e("s_lshr_b64 s[90:91], s[92:93], 30")
        e(f"s_and_b32 s90, s90, {TAGM}")
        e("v_mov_b32 v39, s90")
        e("s_lshl_b32 s90, s34, 1")
        e("s_add_u32 s90, s90, s37")
        e("s_lshl_b32 s90, s90, 4")
        e("s_lshl_b32 s91, s35, 1")
        e("s_add_u32 s90, s90, s91")
        e("s_add_u32 s90, s90, s39")
        e("s_lshl_b32 s92, s90, 9")
        e(f"s_add_u32 s92, s92, {OPW}")
        e("s_lshl_b32 s93, s90, 4")
        e(f"s_add_u32 s93, s93, {ML}")
        e(f"s_mov_b32 s94, {TAGM}")
    e("s_mov_b32 s86, 0")
    e("s_mov_b32 s88, 0x400000")
    e(f"s_mov_b32 s40, 0x{SCALE:x}")
    e(f"s_mov_b32 s41, 0x{LOG2E:x}")
    e(f"v_mov_b32 v36, {L_WANT}")
    e(f"v_mov_b32 v20, {L_FQ}")
    A.label("L_qspin")
    e("ds_read_b32 v21, v20")
    e("s_waitcnt lgkmcnt(0)")
    e("v_readfirstlane_b32 s90, v21")
    e("s_cmp_lg_u32 s90, 0")
    e("s_cbranch_scc1 L_qgo")
    e("s_sleep 1")
    e("s_sub_u32 s88, s88, 1")
    e("s_cmp_lg_u32 s88, 0")
    e("s_cbranch_scc1 L_qspin")
    A.label("L_qgo")
    e(f"ds_read_b128 v[2:5], v16 offset:{L_Q}")
    e("s_waitcnt lgkmcnt(0)")
    stamp(2)
    NKV = 8 * (D - 1)
    NTK = 12 if ntk is None else ntk
    A.label("L_sloop")
    for s in range(D):
        e("s_cmp_eq_u32 s86, 0")
        e(f"s_cbranch_scc1 L_nw{s}")
        e("s_cmp_eq_u32 s89, 0")
        e("s_cbranch_scc1 L_sdone")
        e("s_sub_u32 s89, s89, 1")
        if trig is not None:
            e(f"s_cmp_eq_u32 s89, {trig}")
            e(f"s_cbranch_scc0 L_nt{s}")
            e("s_mov_b64 exec, 1")
            e(f"v_mov_b32 v20, {L_FC}")
            e("v_mov_b32 v21, 1")
            e("ds_add_u32 v20, v21")
            e("s_mov_b64 exec, -1")
            A.label(f"L_nt{s}")
        e("s_cmp_ge_u32 s89, 2")
        e(f"s_cbranch_scc1 L_dw{s}")
        e("s_cmp_eq_u32 s89, 1")
        e(f"s_cbranch_scc1 L_w8{s}")
        e("s_waitcnt vmcnt(0)")
        e(f"s_branch L_go{s}")
        A.label(f"L_w8{s}")
        e("s_waitcnt vmcnt(8)")
        e(f"s_branch L_go{s}")
        A.label(f"L_dw{s}")
        e("s_waitcnt vmcnt(16)")
        e(f"s_branch L_go{s}")
        A.label(f"L_nw{s}")
        e(f"s_waitcnt vmcnt({NKV})")
        A.label(f"L_go{s}")
        if tstep:
            e("s_memrealtime s[90:91]")
            e("s_waitcnt lgkmcnt(0)")
            e("s_mov_b32 m0, s87")
            e("v_writelane_b32 v33, s90, m0")
            e("s_add_u32 s87, s87, 1")
        if tlog:
            e("s_mov_b32 m0, s87")
            e(f"v_writelane_b32 v33, s{64+s}, m0") if False else None
        for jj in range(4):
            for t in range(4):
                k = KR(s, t) + jj
                if jj == 0: e(f"v_dot2_f32_bf16 v{16+t}, v{k}, v2, 0")
                else: e(f"v_dot2c_f32_bf16 v{16+t}, v{k}, v{2+jj}")
        e("v_add_f32_dpp v20, v16, v16 row_ror:8 row_mask:0xf bank_mask:0x3")
        e("v_add_f32_dpp v21, v18, v18 row_ror:8 row_mask:0xf bank_mask:0x3")
        e("v_add_f32_dpp v20, v17, v17 row_ror:8 row_mask:0xf bank_mask:0xc")
        e("v_add_f32_dpp v21, v19, v19 row_ror:8 row_mask:0xf bank_mask:0xc")
        e("v_add_f32_dpp v22, v20, v20 row_shl:4 row_mask:0xf bank_mask:0x5")
        e("v_add_f32_dpp v22, v21, v21 row_shr:4 row_mask:0xf bank_mask:0xa")
        e("v_add_f32_dpp v22, v22, v22 quad_perm:[1,0,3,2] row_mask:0xf bank_mask:0xf")
        e("v_add_f32_dpp v22, v22, v22 quad_perm:[2,3,0,1] row_mask:0xf bank_mask:0xf")
        e("v_cvt_pk_bf16_f32 v23, v22, v22")
        e("v_and_b32 v23, 0xffff0000, v23")
        e("v_mul_f32 v23, s40, v23")
        e("v_cvt_pk_bf16_f32 v23, v23, v23")
        e("v_and_b32 v23, 0xffff0000, v23")
        if halves:
            e(f"s_cmp_eq_u32 s{56+s}, 0")
            e(f"s_cbranch_scc1 L_nh{s}")
            e("v_cndmask_b32 v23, v23, v35, s[42:43]")
            A.label(f"L_nh{s}")
        if fast:
            e("v_cmp_lt_f32 vcc, v14, v23")
            e("s_cmp_lg_u64 vcc, 0")
            e(f"s_cbranch_scc0 L_nomax{s}")
            e("v_max_f32_dpp v24, v23, v23 row_ror:4 row_mask:0xf bank_mask:0xf")
            e("v_max_f32_dpp v24, v24, v24 row_ror:8 row_mask:0xf bank_mask:0xf")
            e("v_mov_b32 v25, v24")
            e("v_permlane16_swap_b32 v24, v25")
            e("v_max_f32 v24, v24, v25")
            e("v_mov_b32 v25, v24")
            e("v_permlane32_swap_b32 v24, v25")
            e("v_max3_f32 v24, v24, v25, v14")
            e("v_sub_f32 v25, v14, v24")
            e("v_mul_f32 v25, s41, v25")
            e("v_exp_f32 v25, v25")
            e("v_mov_b32 v14, v24")
            e("v_mul_f32 v15, v15, v25")
            for r in range(4): e(f"v_mul_f32 v{10+r}, v{10+r}, v25")
            A.label(f"L_nomax{s}")
            e("v_sub_f32 v26, v23, v14")
            e("v_mul_f32 v26, s41, v26")
            e("v_exp_f32 v26, v26")
            e("v_cvt_pk_bf16_f32 v27, v26, v26")
            e("v_add_f32 v15, v15, v26")
            bank_lane = [0, 8, 4, 12]
            def bb(t):
                B = 28 if (t & 1) == 0 else 16
                for jj in range(4):
                    e(f"v_and_b32_dpp v{B+jj}, v27, v{6+jj} row_newbcast:{bank_lane[t]} row_mask:0xf bank_mask:0xf")
            def mm(t):
                B = 28 if (t & 1) == 0 else 16
                r = VR(s, t)
                e(f"v_mfma_f32_16x16x32_bf16 v[10:13], a[{r}:{r+3}], v[{B}:{B+3}], v[10:13]")
            bb(0); bb(1); mm(0); bb(2); mm(1); bb(3); mm(2); mm(3)
        else:
            e("v_max_f32_dpp v24, v23, v23 row_ror:4 row_mask:0xf bank_mask:0xf")
            e("v_max_f32_dpp v24, v24, v24 row_ror:8 row_mask:0xf bank_mask:0xf")
            e("v_mov_b32 v25, v24")
            e("v_permlane16_swap_b32 v24, v25")
            e("v_max_f32 v24, v24, v25")
            e("v_mov_b32 v25, v24")
            e("v_permlane32_swap_b32 v24, v25")
            e("v_max3_f32 v24, v24, v25, v14")
            e("v_sub_f32 v25, v14, v24")
            e("v_sub_f32 v26, v23, v24")
            e("v_mul_f32 v25, s41, v25")
            e("v_mul_f32 v26, s41, v26")
            e("v_exp_f32 v25, v25")
            e("v_exp_f32 v26, v26")
            e("v_mov_b32 v14, v24")
            e("v_fma_f32 v15, v15, v25, v26")
            e("v_cvt_pk_bf16_f32 v27, v26, v26")
            for r in range(4): e(f"v_mul_f32 v{10+r}, v{10+r}, v25")
            bank_lane = [0, 8, 4, 12]
            for t in range(4):
                B = 28 if (t & 1) == 0 else 16
                for jj in range(4):
                    e(f"v_and_b32_dpp v{B+jj}, v27, v{6+jj} row_newbcast:{bank_lane[t]} row_mask:0xf bank_mask:0xf")
                r = VR(s, t)
                e(f"v_mfma_f32_16x16x32_bf16 v[10:13], a[{r}:{r+3}], v[{B}:{B+3}], v[10:13]")
        if tstep:
            e("s_memrealtime s[90:91]")
            e("s_waitcnt lgkmcnt(0)")
            e("v_writelane_b32 v34, s90, m0")
        e("s_cmp_lg_u32 s86, 0")
        e(f"s_cbranch_scc1 L_nx{s}")
        if ntk_end is not None:
            e("s_cmp_eq_u32 s83, 1")
            e(f"s_cbranch_scc1 L_ne{s}")
            e(f"s_waitcnt vmcnt({NTK})")
            A.label(f"L_ne{s}")
            e(f"s_waitcnt vmcnt({ntk_end})")
        else:
            e(f"s_waitcnt vmcnt({NTK})")
        e("s_cmp_lg_u32 s81, 0")
        e(f"s_cbranch_scc1 L_have{s}")
        if static_tail:
            e("s_cmp_lg_u32 s82, 0")
            e(f"s_cbranch_scc1 L_drain{s}")
            e(f"s_lshl_b32 s90, s35, {1 if kpat else 4}")
            e("s_add_u32 s90, s90, 128")
            e("s_or_b32 s90, s90, 0x80000")
        else:
            e("s_lshl_b32 s90, s82, 2")
            e(f"s_add_u32 s90, s90, {L_MB}")
            e("v_mov_b32 v20, s90")
            A.label(f"L_mb{s}")
            e("ds_read_b32 v21, v20")
            e("s_waitcnt lgkmcnt(0)")
            e("v_readfirstlane_b32 s90, v21")
            e("s_cmp_lg_u32 s90, -1")
            e(f"s_cbranch_scc1 L_got{s}")
            e("s_sub_u32 s88, s88, 1")
            e("s_cmp_lg_u32 s88, 0")
            e(f"s_cbranch_scc1 L_mb{s}")
            e("s_mov_b32 s90, 256")
            A.label(f"L_got{s}")
        e("s_add_u32 s82, s82, 1")
        e("s_and_b32 s80, s90, 0xffff")
        e("s_bfe_u32 s81, s90, 0x80010")
        e("s_lshr_b32 s62, s90, 24")
        e("s_mov_b32 s83, s81")
        e("s_cmp_lt_u32 s80, 256")
        e("s_addc_u32 s80, s80, 0") if False else None
        e(f"s_cbranch_scc1 L_ok{s}")
        A.label(f"L_drain{s}")
        e("s_mov_b32 s86, 1")
        e(f"s_mov_b32 s89, {D-1}")
        if trig is None:
            e("s_mov_b64 exec, 1")
            e(f"v_mov_b32 v20, {L_FC}")
            e("v_mov_b32 v21, 1")
            e("ds_add_u32 v20, v21")
            e("s_mov_b64 exec, -1")
        stamp(3)
        e(f"s_branch L_nx{s}")
        A.label(f"L_ok{s}")
        e("s_add_u32 s80, s80, s39")
        A.label(f"L_have{s}")
        chunk_off()
        if halves:
            e(f"s_mov_b32 s{56+s}, s62")
            e("s_cmp_eq_u32 s62, 0")
            e(f"s_cbranch_scc1 L_full{s}")
            e("s_lshr_b32 s63, s62, 1")
            e("s_lshl_b32 s63, s63, 11")
            e("s_add_u32 s38, s38, s63")
            e("s_add_u32 s50, s38, 2048")
            e("s_mov_b32 s54, s50")
            A.label(f"L_full{s}")
        e(f"s_add_u32 s80, s80, {STRIDE}")
        e("s_sub_u32 s81, s81, 1")
        if tlog:
            e("s_lshr_b32 s90, s38, 12")
            e("s_mov_b32 m0, s87")
            e("v_writelane_b32 v33, s90, m0")
            e("s_add_u32 s87, s87, 1")
        loadK(s)
        if not static_tail:
            e(f"s_cmp_le_u32 s81, {req_at}")
            e(f"s_cbranch_scc0 L_nr{s}")
            e("s_add_u32 s90, s82, 1")
            if ahead2:
                e("s_cmp_eq_u32 s83, 1")
                e("s_addc_u32 s90, s90, 0")
            e("s_mov_b64 exec, 1")
            e("v_mov_b32 v21, s90")
            e("ds_max_u32 v36, v21")
            e("s_mov_b64 exec, -1")
            A.label(f"L_nr{s}")
        if split is not None: e(f"s_waitcnt vmcnt({split})")
        loadV(s)
        A.label(f"L_nx{s}")
        if s == D - 1:
            e("s_branch L_sloop")
    A.label("L_sdone")
    if dbgspan:
        e("s_and_b32 s6, s34, 7")
        e("s_or_b32 s6, s6, s3")
        e("s_cmp_eq_u32 s6, 0")
        e("s_cbranch_scc0 L_nd3")
        dbg(3, False, 34)
        A.label("L_nd3")
    stamp(4)
    e("v_add_f32_dpp v15, v15, v15 row_ror:4 row_mask:0xf bank_mask:0xf")
    e("v_add_f32_dpp v15, v15, v15 row_ror:8 row_mask:0xf bank_mask:0xf")
    e("v_mov_b32 v25, v15")
    e("v_permlane16_swap_b32 v15, v25")
    e("v_add_f32 v15, v15, v25")
    e("v_mov_b32 v25, v15")
    e("v_permlane32_swap_b32 v15, v25")
    e("v_add_f32 v15, v15, v25")
    if direct:
        e("v_lshrrev_b32 v16, 4, v0")
        e("v_lshlrev_b32 v16, 7, v16")
        e("v_and_b32 v17, 7, v0")
        e("v_lshl_add_u32 v16, v17, 4, v16")
        for r, tg in enumerate((32, 37, 38, 39)):
            e(f"v_bfi_b32 v{28+r}, s94, v{tg}, v{10+r}")
        e("s_mov_b32 exec_lo, 0x00ff00ff\ns_mov_b32 exec_hi, 0x00ff00ff")
        e("buffer_store_dwordx4 v[28:31], v16, s[44:47], s92 offen sc1")
        e("s_mov_b64 exec, 1")
        e("v_mov_b32 v24, 0")
        e("v_bfi_b32 v20, s94, v32, v14")
        e("v_bfi_b32 v21, s94, v37, v15")
        e("v_bfi_b32 v22, s94, v38, v24")
        e("v_bfi_b32 v23, s94, v39, v24")
        e("buffer_store_dwordx4 v[20:23], v24, s[44:47], s93 offen sc1")
        e("s_mov_b64 exec, -1")
    else:
        e("v_lshrrev_b32 v16, 4, v0")
        e("v_lshlrev_b32 v16, 7, v16")
        e("v_and_b32 v17, 7, v0")
        e("v_lshl_add_u32 v16, v17, 2, v16")
        e("s_lshl_b32 s37, s3, 9")
        e("v_add_u32 v16, s37, v16")
        for r in range(4):
            e(f"ds_write_b32 v16, v{10+r} offset:{L_OW + 32*r}")
        e("s_lshl_b32 s37, s3, 3")
        e("v_mov_b32 v17, s37")
        e(f"ds_write_b64 v17, v[14:15] offset:{L_MLW}")
        e("s_waitcnt lgkmcnt(0)")
        e("s_mov_b64 exec, 1")
        e(f"v_mov_b32 v28, {L_FB}")
        e("v_mov_b32 v29, 1")
        e("ds_add_u32 v28, v29")
        e("s_mov_b64 exec, -1")
    stamp(5)
    if tlog or tstep:
        e("s_lshl_b32 s6, s2, 3\ns_add_u32 s6, s6, s5\ns_lshl_b32 s6, s6, 8")
        e(f"s_add_u32 s6, s6, {TS + 0x80000}")
        e(f"s_mov_b32 s60, s32\ns_mov_b32 s61, s33\ns_mov_b32 s62, {WS_BYTES}\ns_mov_b32 s63, 0x20000")
        e("v_lshlrev_b32 v1, 2, v0")
        e("buffer_store_dword v33, v1, s[60:63], s6 offen")
        e(f"s_add_u32 s6, s6, 0x80000")
        e("buffer_store_dword v34, v1, s[60:63], s6 offen")
    dump_stamps(6)
    e("s_endpgm")

    MARK_STREAM1 = len(A.items)
    A.label("L_aux")
    e("s_setprio 3")
    e(f"s_mov_b32 s100, {1 if 'nopoll' in diag else SPIN}")
    e("s_mov_b32 s101, 0")
    if 'noaux' in diag:
        e("s_cmp_ge_u32 s3, 2")
        e("s_cbranch_scc1 L_aux23")
        e("s_barrier")
        e("s_endpgm")
    e("v_lshrrev_b32 v10, 4, v0")
    e("v_bfe_u32 v11, v0, 3, 1")
    e("v_and_b32 v12, 15, v0")
    e("s_cmp_ge_u32 s3, 2")
    e("s_cbranch_scc1 L_aux23")
    e("s_cmp_eq_u32 s3, 1")
    e("s_cbranch_scc1 L_p1")
    e("s_mul_i32 s36, s35, 72")
    e("s_mov_b32 s37, 18")
    e("s_mov_b32 s38, 8192")
    e("s_lshl_b32 s39, s34, 8")
    e("s_mul_i32 s40, s36, 8192")
    e("s_add_u32 s39, s39, s40")
    e("s_sub_u32 s54, 4718592, s39")
    e("s_mov_b32 s41, 99")
    e("s_mov_b32 s42, 1")
    e("s_mov_b32 s43, 14")
    e("s_branch L_p2")
    A.label("L_p1")
    e("s_mul_hi_u32 s43, s2, 0x71c71c8")
    e("s_mul_i32 s44, s43, 36")
    e("s_sub_u32 s44, s2, s44")
    e("s_mul_i32 s36, s43, 82")
    e("s_cmp_eq_u32 s43, 0")
    e("s_cselect_b32 s40, 0, 2")
    e("s_cselect_b32 s41, 99, 3")
    e("s_add_u32 s36, s36, s40")
    e("s_mov_b32 s37, 22")
    e("s_mov_b32 s38, 9216")
    e("s_lshl_b32 s39, s44, 8")
    e("s_mul_i32 s40, s36, 9216")
    e("s_add_u32 s39, s39, s40")
    e("s_sub_u32 s54, 5308416, s39")
    e("s_mov_b32 s42, 0")
    e("s_cmp_ge_u32 s2, 252")
    e("s_cselect_b32 s54, 0, s54")
    A.label("L_p2")
    e("v_lshrrev_b32 v13, 5, v0")
    e("v_mul_u32_u24 v13, 1152, v13")
    e("v_and_b32 v14, 31, v0")
    e("v_mad_u32_u24 v13, v14, 36, v13")
    e("v_mul_lo_u32 v14, v10, s37")
    e("v_add_u32 v15, s36, v14")
    e("v_lshlrev_b32 v15, 1, v15")
    e("v_mul_u32_u24 v16, 1152, v11")
    e("v_add_u32 v15, v15, v16")
    e("v_mul_lo_u32 v16, v14, s38")
    e("v_lshl_add_u32 v16, v12, 4, v16")
    e(f"v_mov_b32 v19, {OOB}")
    e("v_cmp_eq_u32 vcc, s41, v10")
    e("v_cndmask_b32 v17, v16, v19, vcc")
    e("v_cmp_eq_u32 vcc, 3, v10")
    e("v_cndmask_b32 v18, v16, v19, vcc")
    e("s_cmp_eq_u32 s42, 1")
    e("s_cselect_b64 vcc, -1, 0")
    e("v_cndmask_b32 v18, v18, v19, vcc")
    if 'now1' in diag: e("s_mov_b32 s54, 0")
    e("s_mov_b32 s62, 2304\ns_mov_b32 s63, 0x20000\ns_mov_b32 s55, 0x20000")
    pst(1)
    e("s_waitcnt lgkmcnt(0)")
    pst(2)
    e("s_mov_b32 s60, s8\ns_and_b32 s61, s9, 0xffff")
    e("buffer_load_dwordx4 v[20:23], v13, s[60:63], 0 offen")
    e("buffer_load_dwordx4 v[24:27], v13, s[60:63], 0 offen offset:16")
    e("buffer_load_dword v28, v13, s[60:63], 0 offen offset:32")
    e("buffer_load_dwordx4 v[30:33], v15, s[60:63], 0 offen")
    e("buffer_load_dwordx4 v[34:37], v15, s[60:63], 0 offen offset:16")
    e("buffer_load_dwordx3 v[38:40], v15, s[60:63], 0 offen offset:32")
    e("s_cmp_eq_u32 s3, 1")
    e("s_cselect_b32 s52, s20, s14")
    e("s_cselect_b32 s53, s21, s15")
    e("s_add_u32 s52, s52, s39\ns_addc_u32 s53, s53, 0\ns_and_b32 s53, s53, 0xffff")
    def wloads():
        e("s_mov_b32 s45, 0")
        for t in range(22):
            vo = 16 if t < 16 else (17 if t < 18 else 18)
            e(f"buffer_load_dwordx4 a[{4*t}:{4*t+3}], v{vo}, s[52:55], s45 offen{NT}")
            if t < 21: e("s_add_u32 s45, s45, s38")
    if latew1:
        e("s_cmp_eq_u32 s3, 1")
        e("s_cbranch_scc1 L_now")
    wloads()
    if latew1: A.label("L_now")
    pst(3)
    if bar0: e("s_barrier")
    pst(4)
    stamp(1)
    e("s_load_dwordx2 s[46:47], s[32:33], 0")
    e(f"s_mov_b32 s48, s32\ns_and_b32 s49, s33, 0xffff\ns_mov_b32 s50, {WS_BYTES}\ns_mov_b32 s51, 0x20000")
    masks()
    e("v_lshlrev_b32 v41, 2, v0")
    e("v_mov_b32 v42, 0")
    e("s_lshl_b32 s40, s34, 8")
    e(f"s_add_u32 s40, s40, {CNT}")
    e("s_add_u32 s56, s32, s40\ns_addc_u32 s57, s33, 0\ns_and_b32 s57, s57, 0xffff\ns_mov_b32 s59, 0x20000")
    e("s_or_b32 s40, s35, s3")
    e("s_cmp_eq_u32 s40, 0")
    e("s_cselect_b32 s58, 4, 0")
    e("buffer_store_dword v42, v41, s[56:59], 0 offen sc1")
    pst(5)
    if latew1:
        e("s_cmp_eq_u32 s3, 1")
        e("s_cbranch_scc0 L_xw0")
        e("s_waitcnt vmcnt(0)")
        A.label("L_xw0")
    e("s_waitcnt vmcnt(25)")
    pst(6)
    F = 44
    for k in range(9):
        e(f"v_lshlrev_b32 v{F+2*k}, 16, v{20+k}")
        e(f"v_and_b32 v{F+2*k+1}, 0xffff0000, v{20+k}")
    e(f"v_pk_add_f32 v[62:63], v[{F}:{F+1}], v[{F+2}:{F+3}]")
    for k in range(2, 9):
        e(f"v_pk_add_f32 v[62:63], v[62:63], v[{F+2*k}:{F+2*k+1}]")
    e("v_add_f32 v62, v62, v63")
    def red32(r, tmp):
        for sh in (8, 4, 2, 1):
            e(f"v_add_f32_dpp v{r}, v{r}, v{r} row_ror:{sh} row_mask:0xf bank_mask:0xf")
        e(f"v_mov_b32 v{tmp}, v{r}")
        e(f"v_permlane16_swap_b32 v{r}, v{tmp}")
        e(f"v_add_f32 v{r}, v{r}, v{tmp}")
    red32(62, 63)
    e("v_mul_f32 v62, 0x3ae38e39, v62")
    e("v_mov_b32 v63, v62")
    for k in range(9):
        e(f"v_pk_add_f32 v[{F+2*k}:{F+2*k+1}], v[{F+2*k}:{F+2*k+1}], v[62:63] neg_lo:[0,1] neg_hi:[0,1]")
    e(f"v_pk_mul_f32 v[64:65], v[{F}:{F+1}], v[{F}:{F+1}]")
    for k in range(1, 9):
        e(f"v_pk_fma_f32 v[64:65], v[{F+2*k}:{F+2*k+1}], v[{F+2*k}:{F+2*k+1}], v[64:65]")
    e("v_add_f32 v64, v64, v65")
    red32(64, 65)
    e("v_mul_f32 v64, 0x3ae38e39, v64")
    e("v_cvt_pk_bf16_f32 v62, v62, v62")
    e("v_and_b32 v62, 0xffff0000, v62")
    e("v_cvt_pk_bf16_f32 v64, v64, v64")
    e("v_and_b32 v64, 0xffff0000, v64")
    e("v_add_f32 v64, 0x3727c5ac, v64")
    e("v_cvt_pk_bf16_f32 v64, v64, v64")
    e("v_and_b32 v64, 0xffff0000, v64")
    e("v_sqrt_f32 v64, v64")
    e("v_cvt_pk_bf16_f32 v64, v64, v64")
    e("v_and_b32 v64, 0xffff0000, v64")
    e("v_rcp_f32 v64, v64")
    e("v_readlane_b32 s56, v62, 0")
    e("v_readlane_b32 s57, v62, 32")
    e("v_readlane_b32 s58, v64, 0")
    e("v_readlane_b32 s59, v64, 32")
    e("v_cmp_eq_u32 vcc, 1, v11")
    e("v_mov_b32 v62, s56")
    e("v_mov_b32 v63, s57")
    e("v_cndmask_b32 v62, v62, v63, vcc")
    e("v_mov_b32 v64, s58")
    e("v_mov_b32 v65, s59")
    e("v_cndmask_b32 v64, v64, v65, vcc")
    e("v_mov_b32 v63, v62")
    e("v_mov_b32 v65, v64")
    pst(7)
    e("s_waitcnt vmcnt(22)")
    pst(8)
    for k in range(11):
        x = 30 + k
        e(f"v_lshlrev_b32 v66, 16, v{x}")
        e(f"v_and_b32 v67, 0xffff0000, v{x}")
        e("v_pk_add_f32 v[66:67], v[66:67], v[62:63] neg_lo:[0,1] neg_hi:[0,1]")
        e("v_cvt_pk_bf16_f32 v68, v66, v67")
        e("v_lshlrev_b32 v66, 16, v68")
        e("v_and_b32 v67, 0xffff0000, v68")
        e("v_pk_mul_f32 v[66:67], v[66:67], v[64:65]")
        e(f"v_cvt_pk_bf16_f32 v{x}, v66, v67")
    stamp(2)
    pst(9)
    if latew1:
        e("s_cmp_eq_u32 s3, 1")
        e("s_cbranch_scc0 L_now2")
        wloads()
        A.label("L_now2")
    e("s_mov_b32 s56, 0x01000100")
    e("s_mov_b32 s57, 0x03020302")
    for r in range(4): e(f"v_mov_b32 v{70+r}, 0")
    for t in range(22):
        B = 76 + 4 * (t & 1)
        e(f"v_perm_b32 v74, v{30 + t//2}, v{30 + t//2}, s{56 + (t & 1)}")
        for jj in range(4):
            e(f"v_and_b32 v{B+jj}, v74, v{6+jj}")
        e(f"s_waitcnt vmcnt({21 - t})")
        e(f"v_mfma_f32_16x16x32_bf16 v[70:73], a[{4*t}:{4*t+3}], v[{B}:{B+3}], v[70:73]")
    stamp(3)
    pst(10)
    def make_tags():
        e("s_waitcnt lgkmcnt(0)")
        e("s_add_u32 s46, s46, 0x7f4a7c15\ns_addc_u32 s47, s47, 0x9e3779b9")
        e(f"s_and_b32 s44, s46, {TAGM}")
        e("v_mov_b32 v2, s44")
        e(f"s_bfe_u32 s44, s46, 0x{(TAGB<<16)|TAGB:x}")
        e("v_mov_b32 v3, s44")
        e(f"s_bfe_u32 s44, s46, 0x{(TAGB<<16)|(2*TAGB):x}")
        e("v_mov_b32 v4, s44")
        e("s_lshr_b64 s[56:57], s[46:47], 30")
        e(f"s_and_b32 s44, s56, {TAGM}")
        e("v_mov_b32 v5, s44")
        e(f"s_mov_b32 s44, {TAGM}")
        e(f"s_mov_b32 s45, 0x{VALM:x}")
    def tagpack(dst, src, rn=False):
        if rn:
            for r in range(4):
                e(f"v_add_u32 v{dst+r}, {1 << (TAGB - 1)}, v{src+r}")
            src = dst
        for r in range(4):
            e(f"v_bfi_b32 v{dst+r}, s44, v{2+r}, v{src+r}")
    def tagcheck(regs, tmp):
        first = True
        for base in regs:
            for r in range(4):
                if first:
                    e(f"v_xor_b32 v{tmp}, v{base+r}, v{2+r}"); first = False
                else:
                    e(f"v_bitop3_b32 v{tmp}, v{base+r}, v{2+r}, v{tmp} bitop3:0xbe")
        e(f"v_and_b32 v{tmp}, s44, v{tmp}")
        e(f"v_cmp_eq_u32 vcc, 0, v{tmp}")
    pollid = [0]
    def poll(issue, regs, tmp, cnt="s4", nosleep=False):
        n = pollid[0]; pollid[0] += 1
        e(f"s_mov_b32 {cnt}, s100")
        A.label(f"L_poll{n}")
        issue()
        e("s_waitcnt vmcnt(0)")
        tagcheck(regs, tmp)
        e("s_cmp_eq_u64 vcc, exec")
        e(f"s_cbranch_scc1 L_pdone{n}")
        if sleep and not nosleep: e(f"s_sleep {sleep}")
        e(f"s_sub_u32 {cnt}, {cnt}, 1")
        e(f"s_cmp_lg_u32 {cnt}, 0")
        e(f"s_cbranch_scc1 L_poll{n}")
        A.label(f"L_pdone{n}")
    def ldsspin(addr, target, nosleep=False):
        n = pollid[0]; pollid[0] += 1
        e(f"s_mov_b32 s4, {SPIN}")
        e(f"v_mov_b32 v20, {addr}")
        A.label(f"L_poll{n}")
        e("ds_read_b32 v21, v20")
        e("s_waitcnt lgkmcnt(0)")
        e("v_readfirstlane_b32 s6, v21")
        e(f"s_cmp_ge_u32 s6, {target}")
        e(f"s_cbranch_scc1 L_pdone{n}")
        if sleep and not nosleep: e(f"s_sleep {sleep}")
        e("s_sub_u32 s4, s4, 1")
        e("s_cmp_lg_u32 s4, 0")
        e(f"s_cbranch_scc1 L_poll{n}")
        A.label(f"L_pdone{n}")

    def dispatcher():
        if static_tail: return
        e("s_cmp_eq_u32 s3, 0")
        e("s_cbranch_scc0 L_nodisp")
        e("s_lshl_b32 s94, s34, 8")
        e(f"s_add_u32 s94, s94, {CNT}")
        e("s_add_u32 s56, s32, s94\ns_addc_u32 s57, s33, 0\ns_and_b32 s57, s57, 0xffff\ns_mov_b32 s58, 4\ns_mov_b32 s59, 0x20000")
        e("v_mov_b32 v13, 0")
        e(f"v_mov_b32 v14, {L_WANT}")
        e("s_mov_b32 s90, 0")
        e(f"s_mov_b32 s4, {SPIN * 8}")
        e("s_mov_b64 exec, 1")
        A.label("L_dloop")
        e("ds_read_b32 v15, v14")
        e("s_waitcnt lgkmcnt(0)")
        e("v_readfirstlane_b32 s91, v15")
        e("s_cmp_gt_u32 s91, s90")
        e("s_cbranch_scc1 L_dget")
        e("s_sleep 1")
        e("s_sub_u32 s4, s4, 1")
        e("s_cmp_lg_u32 s4, 0")
        e("s_cbranch_scc1 L_dloop")
        e("s_mov_b32 s92, 256")
        e("s_branch L_dput")
        A.label("L_dget")
        e("v_mov_b32 v15, 1")
        e("buffer_atomic_add v15, v13, s[56:59], 0 offen sc0 sc1")
        e("s_waitcnt vmcnt(0)")
        e("v_readfirstlane_b32 s91, v15")
        e("s_mov_b32 s92, 256")
        k0, st0 = 0, 128
        for gi, ph in enumerate(gss):
            cnt, nper = ph[0], ph[1]
            half = len(ph) > 2 and ph[2]
            e(f"s_sub_u32 s93, s91, {k0}")
            if half:
                assert cnt % 16 == 0 and nper == 1
                e("s_and_b32 s94, s93, 7")
                e("s_lshl_b32 s94, s94, 1")
                e("s_lshr_b32 s95, s93, 4")
                e("s_lshl_b32 s95, s95, 4")
                e("s_add_u32 s94, s94, s95")
                e("s_bfe_u32 s95, s93, 0x10003")
                e("s_lshl_b32 s95, s95, 25")
                e("s_add_u32 s94, s94, s95")
                e(f"s_add_u32 s94, s94, {st0 + (1 << 16) + (1 << 24)}")
                covered = cnt
            else:
                assert cnt % 8 == 0
                e("s_and_b32 s94, s93, 7")
                e("s_lshl_b32 s94, s94, 1")
                e("s_lshr_b32 s95, s93, 3")
                e(f"s_mul_i32 s95, s95, {16*nper}")
                e("s_add_u32 s94, s94, s95")
                e(f"s_add_u32 s94, s94, {st0 + (nper << 16)}")
                covered = cnt * 2 * nper
            e(f"s_cmp_lt_u32 s93, {cnt}")
            e("s_cselect_b32 s92, s94, s92")
            k0 += cnt; st0 += covered
        assert st0 == 256, st0
        assert k0 + 3 <= 64
        if dtrig is not None:
            e(f"s_cmp_ge_u32 s91, {dtrig}")
            e("s_cbranch_scc0 L_dnt")
            e(f"v_mov_b32 v15, {L_FC}")
            e("v_mov_b32 v16, 4")
            e("ds_write_b32 v15, v16")
            A.label("L_dnt")
        A.label("L_dput")
        e("s_lshl_b32 s93, s90, 2")
        e(f"s_add_u32 s93, s93, {L_MB}")
        e("v_mov_b32 v15, s93")
        e("v_mov_b32 v16, s92")
        e("ds_write_b32 v15, v16")
        e("s_add_u32 s90, s90, 1")
        e("s_cmp_eq_u32 s92, 256")
        e("s_cbranch_scc0 L_dloop")
        e("s_waitcnt lgkmcnt(0)")
        e("s_mov_b64 exec, -1")
        A.label("L_nodisp")

    make_tags()
    e("s_cmp_eq_u32 s3, 1")
    e("s_cbranch_scc1 L_hpub")
    e("s_waitcnt vmcnt(0)")
    tagpack(74, 70, rn=True)
    e("v_lshlrev_b32 v13, 4, v0")
    e("s_lshl_b32 s36, s2, 10")
    e(f"s_add_u32 s36, s36, {QP}")
    e("buffer_store_dwordx4 v[74:77], v13, s[48:51], s36 offen sc1")
    stamp(4)
    pst(11)
    e("v_lshlrev_b32 v13, 4, v0")
    e("s_lshl_b32 s36, s34, 13")
    e(f"s_add_u32 s36, s36, {QP}")
    e("s_add_u32 s37, s36, 4096")
    def issue_q():
        for k in range(8):
            e(f"buffer_load_dwordx4 v[{20+4*k}:{23+4*k}], v13, s[48:51], s{36 + k//4} offen offset:{1024*(k%4)} sc1")
    poll(issue_q, [20 + 4 * k for k in range(8)], 52)
    pst(12)
    for r in range(4):
        for k in range(8): e(f"v_and_b32 v{20+4*k+r}, s45, v{20+4*k+r}")
        for k in (0, 2, 4, 6): e(f"v_add_f32 v{20+4*k+r}, v{20+4*k+r}, v{24+4*k+r}")
        e(f"v_add_f32 v{20+r}, v{20+r}, v{28+r}")
        e(f"v_add_f32 v{36+r}, v{36+r}, v{44+r}")
        e(f"v_add_f32 v{20+r}, v{20+r}, v{36+r}")
    e("v_cvt_pk_bf16_f32 v24, v20, v21")
    e("v_cvt_pk_bf16_f32 v25, v22, v23")
    e("v_lshlrev_b32 v13, 8, v11")
    e("v_lshl_add_u32 v13, v10, 6, v13")
    e("v_and_b32 v14, 7, v0")
    e("v_lshl_add_u32 v13, v14, 1, v13")
    e(f"ds_write_b16 v13, v24 offset:{L_Q}")
    e(f"ds_write_b16_d16_hi v13, v24 offset:{L_Q+16}")
    e(f"ds_write_b16 v13, v25 offset:{L_Q+32}")
    e(f"ds_write_b16_d16_hi v13, v25 offset:{L_Q+48}")
    e("s_waitcnt lgkmcnt(0)")
    e(f"v_mov_b32 v13, {L_FQ}")
    e("v_mov_b32 v14, 1")
    e("ds_write_b32 v13, v14")
    stamp(5)
    pst(13)
    e("s_branch L_barA")
    A.label("L_hpub")
    e("s_cmp_ge_u32 s2, 252")
    e("s_cbranch_scc1 L_barA")
    e("v_lshlrev_b32 v13, 9, v11")
    e("v_lshl_add_u32 v13, v10, 7, v13")
    e("v_and_b32 v14, 7, v0")
    e("v_lshl_add_u32 v13, v14, 2, v13")
    for r in range(4):
        e(f"ds_write_b32 v13, v{70+r} offset:{L_HT + 32*r}")
    e("v_lshlrev_b32 v14, 4, v0")
    e("s_waitcnt lgkmcnt(0)")
    e(f"ds_read_b128 v[70:73], v14 offset:{L_HT}")
    e("v_lshrrev_b32 v13, 5, v0")
    e("v_mul_u32_u24 v13, 18432, v13")
    e("v_and_b32 v14, 31, v0")
    e("v_lshl_add_u32 v13, v14, 4, v13")
    e("s_mul_hi_u32 s43, s2, 0x71c71c8")
    e("s_mul_i32 s36, s43, 36")
    e("s_sub_u32 s36, s2, s36")
    e("s_lshl_b32 s36, s36, 9")
    e("s_mul_i32 s37, s43, 36864")
    e("s_add_u32 s36, s36, s37")
    e(f"s_add_u32 s36, s36, {HP}")
    e("s_waitcnt lgkmcnt(0)")
    tagpack(74, 70, rn=True)
    e("buffer_store_dwordx4 v[74:77], v13, s[48:51], s36 offen sc1")
    stamp(4)
    e("s_branch L_barA")
    A.label("L_aux23")
    e("s_mov_b64 exec, 1")
    e(f"v_mov_b32 v13, {L_FC}")
    e("v_mov_b32 v14, 0")
    e("v_mov_b32 v15, 0")
    e("ds_write_b64 v13, v[14:15]")
    if 'noq' in diag: e("v_mov_b32 v15, 1")
    e("ds_write_b64 v13, v[14:15] offset:8")
    e("s_mov_b64 exec, -1")
    e("v_lshlrev_b32 v13, 2, v0")
    e("v_mov_b32 v14, -1")
    e(f"ds_write_b32 v13, v14 offset:{L_MB}")
    e("s_waitcnt lgkmcnt(0)")
    e("s_load_dwordx2 s[46:47], s[32:33], 0")
    e(f"s_mov_b32 s48, s32\ns_and_b32 s49, s33, 0xffff\ns_mov_b32 s50, {WS_BYTES}\ns_mov_b32 s51, 0x20000")
    if tlb:
        e("s_cmp_eq_u32 s3, 2")
        e("s_cbranch_scc0 L_notlb")
        e("v_lshlrev_b32 v13, 16, v0")
        e("s_cmp_lt_u32 s2, 16")
        e(f"s_cselect_b32 s50, 0x300000, 0")
        e("buffer_load_dword v120, v13, s[48:51], 0 offen")
        e(f"s_mov_b32 s50, {WS_BYTES}")
        e("s_lshr_b32 s36, s2, 1")
        e("v_lshlrev_b32 v14, 15, v0")
        e("s_mul_i32 s37, s36, 36864")
        e("s_add_u32 s60, s16, s37\ns_addc_u32 s61, s17, 0\ns_and_b32 s61, s61, 0xffff\ns_mov_b32 s62, 36864\ns_mov_b32 s63, 0x20000")
        e("buffer_load_dword v121, v14, s[60:63], 0 offen")
        e("s_mul_i32 s37, s36, 41472")
        e("s_add_u32 s60, s24, s37\ns_addc_u32 s61, s25, 0\ns_and_b32 s61, s61, 0xffff\ns_mov_b32 s62, 41472")
        e("buffer_load_dword v122, v14, s[60:63], 0 offen")
        e("s_mov_b32 s60, s28\ns_and_b32 s61, s29, 0xffff\ns_mov_b32 s62, 4")
        e("buffer_load_dword v123, v14, s[60:63], 0 offen")
        e("s_mov_b32 s60, s26\ns_and_b32 s61, s27, 0xffff")
        e("buffer_load_dword v124, v14, s[60:63], 0 offen")
        e("s_mov_b32 s60, s22\ns_and_b32 s61, s23, 0xffff")
        e("buffer_load_dword v125, v14, s[60:63], 0 offen")
        A.label("L_notlb")
    if bar0: e("s_barrier")
    if 'noaux' in diag: e("s_endpgm")
    masks()
    make_tags()
    A.label("L_barA")
    stamp(6)
    if wmode != 'early': dispatcher()
    if warm:
        e("s_cmp_eq_u32 s3, 1")
        e("s_cbranch_scc0 L_nodry1")
        e("s_cmp_lt_u32 s2, 36")
        e("s_cbranch_scc0 L_nodry1")
        e("s_mov_b32 s100, 1\ns_mov_b32 s101, 1\ns_mov_b32 s50, 0")
        e("s_branch L_red")
        A.label("L_drydone1")
        e(f"s_mov_b32 s100, {SPIN}\ns_mov_b32 s101, 0\ns_mov_b32 s50, {WS_BYTES}")
        A.label("L_nodry1")
    e("s_and_b32 s36, s35, 1")
    e("s_lshr_b32 s37, s2, 1")
    e("s_mov_b32 s40, 2\ns_mov_b32 s41, 0")
    e("s_cmp_ge_u32 s3, 2")
    e("s_cbranch_scc1 L_t23")
    e("s_mov_b32 s38, 0")
    e("s_lshl_b32 s39, s36, 1")
    e("s_add_u32 s39, s39, s3")
    e("s_branch L_tdone")
    A.label("L_t23")
    e("s_mov_b32 s38, 1")
    e("s_lshl_b32 s39, s36, 1")
    e("s_sub_u32 s39, s3, s39")
    e("s_cmp_eq_u32 s3, 2")
    e("s_cbranch_scc0 L_th2")
    e("s_mov_b32 s41, 4")
    e("s_xor_b32 s40, s36, 1")
    if w2late:
        e("s_cmp_eq_u32 s36, 1")
        e("s_cbranch_scc0 L_th2")
        e("s_mov_b32 s38, 0\ns_mov_b32 s39, 4\ns_mov_b32 s40, 1\ns_mov_b32 s41, 0")
    A.label("L_th2")
    e("s_mov_b64 exec, 0x3ffff")
    e("v_cmp_le_u32 vcc, 9, v0")
    e("v_cndmask_b32 v13, 0, 1, vcc")
    e("v_mul_u32_u24 v14, 9, v13")
    e("v_sub_u32 v14, v0, v14")
    e("v_mul_u32_u24 v15, 18432, v13")
    e("v_lshl_add_u32 v15, v14, 4, v15")
    e("s_mul_i32 s42, s37, 144")
    e(f"s_add_u32 s42, s42, {HP}")
    e("s_mov_b32 s60, s22\ns_and_b32 s61, s23, 0xffff\ns_mov_b32 s62, 9216\ns_mov_b32 s63, 0x20000")
    e("s_mul_i32 s43, s37, 72")
    e("v_lshlrev_b32 v16, 3, v14")
    e("buffer_load_dwordx2 v[18:19], v16, s[60:63], s43 offen")
    if lateh and not static_tail:
        e("s_mov_b64 exec, -1")
        ldsspin(L_WANT, 1)
        e("s_mov_b64 exec, 0x3ffff")
    def issue_h():
        e("s_mov_b32 s43, s42")
        for k in range(7):
            e(f"buffer_load_dwordx4 v[{20+4*k}:{23+4*k}], v15, s[48:51], s43 offen sc1")
            if k < 6: e("s_add_u32 s43, s43, 36864")
    poll(issue_h, [20 + 4 * k for k in range(7)], 48)
    for r in range(4):
        for k in range(7): e(f"v_and_b32 v{20+4*k+r}, s45, v{20+4*k+r}")
        for k in range(1, 7): e(f"v_add_f32 v{20+r}, v{20+r}, v{20+4*k+r}")
    e("v_lshlrev_b32 v24, 16, v18\nv_and_b32 v25, 0xffff0000, v18\nv_lshlrev_b32 v26, 16, v19\nv_and_b32 v27, 0xffff0000, v19")
    for r in range(4):
        e(f"v_cvt_pk_bf16_f32 v{20+r}, v{20+r}, v{20+r}")
        e(f"v_and_b32 v{20+r}, 0xffff0000, v{20+r}")
        e(f"v_add_f32 v{20+r}, v{20+r}, v{24+r}")
        e(f"v_cvt_pk_bf16_f32 v{20+r}, v{20+r}, v{20+r}")
        e(f"v_and_b32 v{20+r}, 0xffff0000, v{20+r}")
        e(f"v_max_f32 v{20+r}, 0, v{20+r}")
        e(f"v_mul_f32 v{20+r}, v{20+r}, v{20+r}")
        e(f"v_cvt_pk_bf16_f32 v{20+r}, v{20+r}, v{20+r}")
    e("v_mul_u32_u24 v16, 144, v13")
    e("v_lshl_add_u32 v16, v14, 4, v16")
    e("s_lshl_b32 s43, s3, 10")
    e("v_add_u32 v16, s43, v16")
    e(f"ds_write_b128 v16, v[20:23] offset:{L_PRIV}")
    e("s_mov_b64 exec, -1")
    e("s_waitcnt lgkmcnt(0)")
    A.label("L_tdone")
    stamp(7)
    def task_srd(srd, typ, beta, voff):
        n = pollid[0]; pollid[0] += 1
        e(f"s_cmp_eq_u32 {typ}, 1")
        e(f"s_cbranch_scc1 L_sw2_{n}")
        e("s_mul_i32 s42, s37, 36864")
        e(f"s_lshl_b32 s43, {beta}, 8")
        e("s_add_u32 s42, s42, s43")
        e(f"s_add_u32 s{srd}, s16, s42\ns_addc_u32 s{srd+1}, s17, 0")
        e(f"s_sub_u32 s{srd+2}, 4718592, s42")
        e("s_mov_b32 s43, 9216")
        e(f"s_branch L_sd_{n}")
        A.label(f"L_sw2_{n}")
        e("s_mul_i32 s42, s37, 41472")
        e(f"s_lshl_b32 s43, {beta}, 8")
        e("s_add_u32 s42, s42, s43")
        e(f"s_add_u32 s{srd}, s24, s42\ns_addc_u32 s{srd+1}, s25, 0")
        e(f"s_sub_u32 s{srd+2}, 5308416, s42")
        e("s_mov_b32 s43, 10368")
        A.label(f"L_sd_{n}")
        e(f"s_and_b32 s{srd+1}, s{srd+1}, 0xffff\ns_mov_b32 s{srd+3}, 0x20000")
        e(f"s_cmp_eq_u32 {typ}, 2")
        e(f"s_cselect_b32 s{srd+2}, 0, s{srd+2}")
        e(f"v_mul_lo_u32 v{voff}, v10, s43")
        e(f"v_lshl_add_u32 v{voff}, v12, 4, v{voff}")
        e(f"v_mov_b32 v19, {OOB}")
        e("v_cmp_le_u32 vcc, 8, v12")
        e(f"v_cndmask_b32 v18, v{voff}, v19, vcc")
        e(f"s_cmp_eq_u32 {beta}, 4")
        e(f"s_cbranch_scc0 L_se_{n}")
        e(f"v_mov_b32 v{voff}, v18")
        A.label(f"L_se_{n}")
    task_srd(52, "s38", "s39", 13)
    task_srd(56, "s40", "s41", 14)
    if 'nowo' in diag:
        e("s_mov_b32 s54, 0\ns_mov_b32 s58, 0")
    e(f"v_mov_b32 v19, {OOB}")
    e("s_cmp_eq_u32 s38, 0\ns_cselect_b64 vcc, -1, 0")
    e("v_cndmask_b32 v15, v13, v19, vcc")
    e("s_cmp_eq_u32 s40, 0\ns_cselect_b64 vcc, -1, 0")
    e("v_cndmask_b32 v16, v14, v19, vcc")
    e("v_lshrrev_b32 v90, 3, v0")
    e("v_lshlrev_b32 v90, 14, v90")
    e("v_and_b32 v91, 7, v0")
    e("v_lshl_add_u32 v90, v91, 4, v90")
    e("v_cmp_le_u32 vcc, 32, v0")
    e("v_cndmask_b32 v92, v90, v19, vcc")
    e("s_cmp_eq_u32 s41, 4\ns_cselect_b64 vcc, -1, 0")
    e("v_cndmask_b32 v91, v90, v92, vcc")
    e("s_cmp_eq_u32 s39, 4\ns_cselect_b64 vcc, -1, 0")
    e("v_cndmask_b32 v90, v90, v92, vcc")
    for (typ, beta, dst) in (("s38", "s39", "s96"), ("s40", "s41", "s97")):
        e(f"s_mov_b32 {dst}, {SP}")
        e(f"s_cmp_eq_u32 {typ}, 1")
        e(f"s_cselect_b32 {dst}, {GP}, {dst}")
        e(f"s_lshl_b32 s42, {beta}, 17")
        e(f"s_add_u32 {dst}, {dst}, s42")
        e("s_lshl_b32 s42, s37, 7")
        e(f"s_add_u32 {dst}, {dst}, s42")
    e("v_and_b32 v93, 3, v0")
    e("v_bfe_u32 v94, v0, 4, 1")
    e("v_lshl_add_u32 v93, v94, 2, v93")
    e("v_bfe_u32 v94, v0, 2, 2")
    e("v_lshrrev_b32 v95, 5, v0")
    if direct:
        e("v_lshlrev_b32 v96, 13, v95")
        e("v_lshl_add_u32 v96, v94, 9, v96")
        e("v_lshl_add_u32 v96, v93, 4, v96")
        e("v_lshlrev_b32 v97, 8, v95")
        e("v_lshl_add_u32 v97, v94, 4, v97")
        e("s_lshr_b32 s98, s35, 1")
        e("s_lshl_b32 s98, s98, 7")
        e("s_lshl_b32 s42, s34, 14")
        e("s_add_u32 s98, s98, s42")
        e(f"s_add_u32 s98, s98, {OPW}")
        e("s_add_u32 s63, s98, 4096")
        e("s_lshl_b32 s99, s34, 9")
        e(f"s_add_u32 s99, s99, {ML}")
        e("s_lshl_b32 s42, s3, 10")
        e(f"s_add_u32 s42, s42, {L_PRIV + 0x200}")
        e("v_lshlrev_b32 v98, 7, v95")
        e("v_lshl_add_u32 v98, v93, 2, v98")
        e("v_add_u32 v98, s42, v98")
    else:
        e("v_lshlrev_b32 v96, 12, v95")
        e("v_lshl_add_u32 v96, v94, 9, v96")
        e("v_lshl_add_u32 v96, v93, 4, v96")
        e("v_lshlrev_b32 v97, 7, v95")
        e("v_lshl_add_u32 v97, v94, 4, v97")
        e("s_lshr_b32 s98, s35, 1")
        e("s_lshl_b32 s98, s98, 7")
        e("s_lshl_b32 s42, s34, 13")
        e("s_add_u32 s98, s98, s42")
        e(f"s_add_u32 s98, s98, {OP}")
        e("s_lshl_b32 s99, s34, 8")
        e(f"s_add_u32 s99, s99, {ML}")
        e("s_lshl_b32 s42, s3, 10")
        e(f"s_add_u32 s42, s42, {L_PRIV + 0x200}")
        e("v_lshlrev_b32 v98, 7, v95")
        e("v_lshl_add_u32 v98, v93, 4, v98")
        e("v_add_u32 v98, s42, v98")
    e("v_lshlrev_b32 v99, 7, v11")
    e("v_lshl_add_u32 v99, v10, 5, v99")
    e("v_add_u32 v99, s42, v99")
    e("s_cmp_ge_u32 s3, 2")
    e("s_cbranch_scc0 L_noh2")
    e("v_mul_u32_u24 v20, 144, v11")
    e("v_mad_u32_u24 v20, v10, 36, v20")
    e("s_lshl_b32 s42, s3, 10")
    e("v_add_u32 v20, s42, v20")
    for t in range(9):
        e(f"ds_read_b32 v{100+t}, v20 offset:{L_PRIV + 4*t}")
    e("s_waitcnt lgkmcnt(0)")
    A.label("L_noh2")
    e("v_and_b32 v110, 31, v0")
    e("v_lshlrev_b32 v110, 4, v110")
    e("v_lshl_add_u32 v111, v95, 9, v110")
    e("v_lshlrev_b32 v112, 3, v95")
    e("v_lshl_add_u32 v113, v95, 12, v110")
    e("v_lshlrev_b32 v114, 7, v95")
    e("s_lshl_b32 s60, s34, 13")
    e("s_lshl_b32 s43, s35, 9")
    e("s_add_u32 s60, s60, s43")
    e(f"s_add_u32 s60, s60, {OP}")
    e("s_lshl_b32 s61, s34, 8")
    e("s_lshl_b32 s43, s35, 4")
    e("s_add_u32 s61, s61, s43")
    e(f"s_add_u32 s61, s61, {ML}")
    e(f"s_mov_b32 s62, 0x{LOG2E:x}")
    if warm:
        e("s_cmp_eq_u32 s3, 1")
        e("s_cbranch_scc1 L_dry2")
        if direct:
            e("s_branch L_nodry2")
        else:
            e("s_cmp_eq_u32 s3, 3")
            e("s_cbranch_scc0 L_nodry2")
            e("s_mov_b32 s100, 1\ns_mov_b32 s101, 1\ns_mov_b32 s50, 0")
            e("s_branch L_comb")
        A.label("L_dry2")
        e("s_mov_b32 s100, 1\ns_mov_b32 s101, 1\ns_mov_b32 s50, 0")
        e("s_branch L_btX")
        A.label("L_drydone2")
        e(f"s_mov_b32 s100, {SPIN}\ns_mov_b32 s101, 0\ns_mov_b32 s50, {WS_BYTES}")
        A.label("L_nodry2")
    if wmode == 'flagC': ldsspin(L_FC, 4)
    if wmode == 'flagB': ldsspin(L_FB, 4)
    stamp(8)
    def xloads():
        e("s_mov_b32 s42, 0")
        for t in range(9):
            vo = 13 if t < 8 else 15
            e(f"buffer_load_dwordx4 a[{4*t}:{4*t+3}], v{vo}, s[52:55], s42 offen{NT}")
            e("s_add_u32 s42, s42, 1152") if t < 8 else None
    def yloads():
        e("s_mov_b32 s42, 0")
        for t in range(9):
            vo = 14 if t < 8 else 16
            e(f"buffer_load_dwordx4 a[{36+4*t}:{36+4*t+3}], v{vo}, s[56:59], s42 offen{NT}")
            e("s_add_u32 s42, s42, 1152") if t < 8 else None
    if not w2late:
        xloads(); yloads()
    else:
        e("s_cmp_eq_u32 s38, 0")
        e("s_cbranch_scc0 L_xl1")
        xloads()
        A.label("L_xl1")
        e("s_cmp_eq_u32 s40, 0")
        e("s_cbranch_scc0 L_yl1")
        yloads()
        A.label("L_yl1")
        e("s_cmp_eq_u32 s3, 2")
        e("s_cbranch_scc0 L_xl2")
        ldsspin(L_FB, 4)
        e("s_cmp_eq_u32 s38, 1")
        e("s_cbranch_scc0 L_xl3")
        xloads()
        A.label("L_xl3")
        e("s_cmp_eq_u32 s40, 1")
        e("s_cbranch_scc0 L_xl2")
        yloads()
        A.label("L_xl2")
    if wmode == 'early': dispatcher()
    if not direct:
        e("s_cmp_eq_u32 s3, 3")
        e("s_cbranch_scc0 L_nocomb")
        ldsspin(L_FB, 4, nosleep=True)
        stamp(9)
        A.label("L_comb")
        e(f"ds_read_b64 v[40:41], v112 offset:{L_MLW}")
        e(f"ds_read_b64 v[42:43], v112 offset:{L_MLW+16}")
        e(f"ds_read_b128 v[24:27], v111 offset:{L_OW}")
        e(f"ds_read_b128 v[28:31], v111 offset:{L_OW + 1024}")
        e("s_waitcnt lgkmcnt(2)")
        e("v_max_f32 v48, v40, v42")
        e("v_sub_f32 v40, v40, v48\nv_sub_f32 v42, v42, v48")
        e("v_mul_f32 v40, s62, v40\nv_mul_f32 v42, s62, v42")
        e("v_exp_f32 v40, v40\nv_exp_f32 v42, v42")
        e("v_mov_b32 v52, 0\nv_mov_b32 v53, 0")
        e("v_mul_f32 v49, v40, v41")
        e("v_fmac_f32 v49, v42, v43")
        e("s_waitcnt lgkmcnt(0)")
        for r in range(4):
            e(f"v_mul_f32 v{44+r}, v40, v{24+r}")
        for r in range(4):
            e(f"v_fmac_f32 v{44+r}, v42, v{28+r}")
        tagpack(54, 44)
        e("buffer_store_dwordx4 v[54:57], v113, s[48:51], s60 offen sc1")
        e(f"v_bfi_b32 v58, s44, v2, v48\nv_bfi_b32 v59, s44, v3, v49\nv_bfi_b32 v60, s44, v4, v52\nv_bfi_b32 v61, s44, v5, v53")
        e("s_mov_b32 exec_lo, 1\ns_mov_b32 exec_hi, 1")
        e("buffer_store_dwordx4 v[58:61], v114, s[48:51], s61 offen sc1")
        e("s_mov_b64 exec, -1")
        if warm:
            e("s_cmp_lg_u32 s101, 0")
            e("s_cbranch_scc1 L_drydone2")
        stamp(10)
        if w2late: xloads()
        A.label("L_nocomb")

    def mchain(n, srcs, abase):
        def bb(t):
            B = 76 + 4 * (t & 1)
            for jj in range(4): e(f"v_and_b32 v{B+jj}, v{srcs[t]}, v{6+jj}")
        def mm(t):
            B = 76 + 4 * (t & 1)
            c = "0" if t == 0 else "v[70:73]"
            e(f"v_mfma_f32_16x16x32_bf16 v[70:73], a[{abase+4*t}:{abase+4*t+3}], v[{B}:{B+3}], {c}")
        bb(0); bb(1)
        for t in range(n):
            mm(t)
            if t + 2 < n: bb(t + 2)
    def blocktask(which, typ, abase, vst, sst):
        n = pollid[0]; pollid[0] += 1
        e(f"s_cmp_eq_u32 {typ}, 2")
        e(f"s_cbranch_scc1 L_bt_end{n}")
        e(f"s_cmp_eq_u32 {typ}, 1")
        e(f"s_cbranch_scc1 L_bt_w2{n}")
        if direct:
            OR = [24, 36, 44, 48]; MR = [28, 40, 52, 56]
            def issue_o():
                for k in range(4):
                    so = "s98" if k < 2 else "s63"
                    e(f"buffer_load_dwordx4 v[{OR[k]}:{OR[k]+3}], v96, s[48:51], {so} offen offset:{2048*(k&1)} sc1")
                for k in range(4):
                    e(f"buffer_load_dwordx4 v[{MR[k]}:{MR[k]+3}], v97, s[48:51], s99 offen offset:{64*k} sc1")
            poll(issue_o, OR + MR, 32, nosleep=True)
            stamp(11)
            e("v_max3_f32 v30, v28, v40, v52")
            e("v_max_f32 v30, v30, v56")
            e("v_max_f32_dpp v30, v30, v30 row_ror:4 row_mask:0xf bank_mask:0xf")
            e("v_max_f32_dpp v30, v30, v30 row_ror:8 row_mask:0xf bank_mask:0xf")
            for k in range(4): e(f"v_sub_f32 v{MR[k]}, v{MR[k]}, v30")
            for k in range(4): e(f"v_mul_f32 v{MR[k]}, s62, v{MR[k]}")
            for k in range(4): e(f"v_exp_f32 v{MR[k]}, v{MR[k]}")
            e("v_mul_f32 v29, v29, v28")
            for r in range(4): e(f"v_mul_f32 v{24+r}, v{24+r}, v28")
            for k in range(1, 4):
                e(f"v_fmac_f32 v29, v{MR[k]+1}, v{MR[k]}")
                for r in range(4): e(f"v_fmac_f32 v{24+r}, v{OR[k]+r}, v{MR[k]}")
            for r in (29, 24, 25, 26, 27):
                e(f"v_add_f32_dpp v{r}, v{r}, v{r} row_ror:4 row_mask:0xf bank_mask:0xf")
            for r in (29, 24, 25, 26, 27):
                e(f"v_add_f32_dpp v{r}, v{r}, v{r} row_ror:8 row_mask:0xf bank_mask:0xf")
            e("v_rcp_f32 v29, v29")
            for r in range(4): e(f"v_mul_f32 v{24+r}, v{24+r}, v29")
            for r in range(4): e(f"v_cvt_pk_bf16_f32 v{24+r}, v{24+r}, v{24+r}")
            for r in range(4): e(f"ds_write_b32 v98, v{24+r} offset:{32*r}")
            e("s_waitcnt lgkmcnt(0)")
        else:
            def issue_o():
                e("buffer_load_dwordx4 v[24:27], v96, s[48:51], s98 offen sc1")
                e("buffer_load_dwordx4 v[36:39], v96, s[48:51], s98 offen offset:2048 sc1")
                e("buffer_load_dwordx4 v[28:31], v97, s[48:51], s99 offen sc1")
                e("buffer_load_dwordx4 v[40:43], v97, s[48:51], s99 offen offset:64 sc1")
            poll(issue_o, [24, 36, 28, 40], 32, nosleep=True)
            stamp(11)
            if not nomask:
                for r in (24, 25, 26, 27, 36, 37, 38, 39, 28, 29, 40, 41): e(f"v_and_b32 v{r}, s45, v{r}")
            e("v_max_f32 v30, v28, v40")
            e("v_max_f32_dpp v30, v30, v30 row_ror:4 row_mask:0xf bank_mask:0xf")
            e("v_max_f32_dpp v30, v30, v30 row_ror:8 row_mask:0xf bank_mask:0xf")
            e("v_sub_f32 v28, v28, v30\nv_sub_f32 v40, v40, v30")
            e("v_mul_f32 v28, s62, v28\nv_mul_f32 v40, s62, v40")
            e("v_exp_f32 v28, v28\nv_exp_f32 v40, v40")
            e("v_mul_f32 v29, v29, v28")
            for r in range(4): e(f"v_mul_f32 v{24+r}, v{24+r}, v28")
            e("v_fmac_f32 v29, v41, v40")
            for r in range(4): e(f"v_fmac_f32 v{24+r}, v{36+r}, v40")
            for r in (29, 24, 25, 26, 27):
                e(f"v_add_f32_dpp v{r}, v{r}, v{r} row_ror:4 row_mask:0xf bank_mask:0xf")
            for r in (29, 24, 25, 26, 27):
                e(f"v_add_f32_dpp v{r}, v{r}, v{r} row_ror:8 row_mask:0xf bank_mask:0xf")
            e("v_rcp_f32 v29, v29")
            for r in range(4): e(f"v_mul_f32 v{24+r}, v{24+r}, v29")
            for r in range(4): e(f"v_cvt_pk_bf16_f32 v{24+r}, v{24+r}, v{24+r}")
            e("ds_write_b128 v98, v[24:27]")
            e("s_waitcnt lgkmcnt(0)")
        e("ds_read_b128 v[24:27], v99")
        e("ds_read_b128 v[28:31], v99 offset:16")
        e("s_waitcnt lgkmcnt(0)")
        mchain(8, [24 + t for t in range(8)], abase)
        e(f"s_branch L_bt_pub{n}")
        A.label(f"L_bt_w2{n}")
        e(f"s_waitcnt vmcnt({0 if which == 'Y' else 9})") if False else e("s_waitcnt vmcnt(0)")
        mchain(9, [100 + t for t in range(9)], abase)
        A.label(f"L_bt_pub{n}")
        tagpack(74, 70)
        e(f"buffer_store_dwordx4 v[74:77], v{vst}, s[48:51], {sst} offen sc1")
        A.label(f"L_bt_end{n}")
    A.label("L_btX")
    blocktask("X", "s38", 0, 90, "s96")
    if warm:
        e("s_cmp_lg_u32 s101, 0")
        e("s_cbranch_scc1 L_drydone2")
    stamp(12)
    blocktask("Y", "s40", 36, 91, "s97")
    stamp(13)

    e("s_cmp_ge_u32 s2, 36")
    e("s_cbranch_scc1 L_auxend")
    A.label("L_red")
    e("s_lshr_b32 s36, s2, 3")
    e("s_and_b32 s37, s2, 7")
    e("s_lshl_b32 s38, s36, 7")
    e("s_lshr_b32 s39, s37, 1")
    e("s_lshl_b32 s39, s39, 5")
    e("s_add_u32 s38, s38, s39")
    e("s_and_b32 s39, s37, 1")
    e("s_mul_i32 s39, s39, 576")
    e("s_add_u32 s39, s39, s38")
    e("s_mov_b32 s60, s8\ns_and_b32 s61, s9, 0xffff\ns_mov_b32 s62, 2304\ns_mov_b32 s63, 0x20000")
    e("s_mov_b32 s56, s26\ns_and_b32 s57, s27, 0xffff\ns_mov_b32 s58, 1152\ns_mov_b32 s59, 0x20000")
    e("v_lshlrev_b32 v13, 1, v0")
    e("s_lshl_b32 s40, s39, 1")
    e("s_lshl_b32 s41, s38, 1")
    e("v_and_b32 v16, 3, v0")
    e("v_bfe_u32 v17, v0, 4, 1")
    e("v_lshl_add_u32 v16, v17, 2, v16")
    e("v_bfe_u32 v17, v0, 2, 2")
    e("v_lshrrev_b32 v18, 5, v0")
    e("v_lshl_add_u32 v17, v18, 2, v17")
    e("v_lshlrev_b32 v19, 4, v16")
    e("v_lshl_add_u32 v16, v17, 7, v19")
    e("v_lshl_add_u32 v17, v18, 7, v19")
    e("s_lshl_b32 s43, s3, 8")
    e("v_add_u32 v17, s43, v17")
    e("s_lshl_b32 s42, s2, 14")
    e("s_lshl_b32 s43, s3, 12")
    e("s_add_u32 s42, s42, s43")
    e(f"s_add_u32 s43, s42, {SP}")
    e(f"s_add_u32 s42, s42, {GP}")
    e("s_mov_b32 exec_lo, -1\ns_mov_b32 exec_hi, 0")
    e("buffer_load_ushort v14, v13, s[60:63], s40 offen")
    e("buffer_load_ushort v15, v13, s[56:59], s41 offen")
    e("s_mov_b64 exec, -1")
    e("s_mov_b32 s60, s28\ns_and_b32 s61, s29, 0xffff")
    def issue_r():
        for k in range(4):
            e(f"buffer_load_dwordx4 v[{20+4*k}:{23+4*k}], v16, s[48:51], s42 offen offset:{1024*k} sc1")
        for k in range(4):
            e(f"buffer_load_dwordx4 v[{36+4*k}:{39+4*k}], v16, s[48:51], s43 offen offset:{1024*k} sc1")
    poll(issue_r, [20 + 4 * k for k in range(8)], 52, nosleep=True)
    stamp(14)
    for base in (20, 36):
        for r in range(4):
            if not nomask:
                for k in range(4): e(f"v_and_b32 v{base+4*k+r}, s45, v{base+4*k+r}")
        for r in range(4): e(f"v_add_f32 v{base+r}, v{base+r}, v{base+4+r}")
        for r in range(4): e(f"v_add_f32 v{base+8+r}, v{base+8+r}, v{base+12+r}")
        for r in range(4): e(f"v_add_f32 v{base+r}, v{base+r}, v{base+8+r}")
    for sh in (4, 8):
        for base in (20, 36):
            for r in range(4):
                e(f"v_add_f32_dpp v{base+r}, v{base+r}, v{base+r} row_ror:{sh} row_mask:0xf bank_mask:0xf")
    e(f"ds_write_b128 v17, v[20:23] offset:{L_RED}")
    e(f"ds_write_b128 v17, v[36:39] offset:{L_RED + 1024}")
    e("v_and_b32 v17, 7, v0")
    e("v_lshlrev_b32 v17, 4, v17")
    e("v_bfe_u32 v18, v0, 3, 2")
    e("v_lshl_add_u32 v17, v18, 2, v17")
    e("s_waitcnt lgkmcnt(0)")
    if warm:
        e("s_cmp_lg_u32 s101, 0")
        e("s_cbranch_scc1 L_redfin")
    e("s_barrier")
    e("s_cmp_eq_u32 s3, 0")
    e("s_cbranch_scc0 L_auxend")
    A.label("L_redfin")
    for kind in range(2):
        for a in range(8):
            e(f"ds_read_b32 v{20+8*kind+a}, v17 offset:{L_RED + 1024*kind + 128*a}")
    e("v_lshlrev_b32 v14, 16, v14")
    e("v_lshlrev_b32 v15, 16, v15")
    e("s_waitcnt lgkmcnt(8)")
    def sum8(b):
        for k in (0, 2, 4, 6): e(f"v_add_f32 v{b+k}, v{b+k}, v{b+k+1}")
        e(f"v_add_f32 v{b}, v{b}, v{b+2}")
        e(f"v_add_f32 v{b+4}, v{b+4}, v{b+6}")
        e(f"v_add_f32 v{b}, v{b}, v{b+4}")
    def rnd(r):
        e(f"v_cvt_pk_bf16_f32 v{r}, v{r}, v{r}")
        e(f"v_and_b32 v{r}, 0xffff0000, v{r}")
    sum8(20)
    rnd(20)
    e("v_add_f32 v20, v20, v15")
    rnd(20)
    e(f"v_mul_f32 v21, 0x{(LOG2E ^ 0x80000000):x}, v20")
    e("v_exp_f32 v21, v21")
    e("s_waitcnt lgkmcnt(0)")
    sum8(28)
    e("v_add_f32 v21, 1.0, v21")
    e("v_rcp_f32 v21, v21")
    rnd(28)
    e("v_mul_f32 v20, v20, v21")
    rnd(20)
    e("v_mul_f32 v20, v28, v20")
    rnd(20)
    e("v_add_f32 v20, v14, v20")
    e("v_cvt_pk_bf16_f32 v20, v20, v20")
    if warm:
        e("s_cmp_lg_u32 s101, 0")
        e("s_cselect_b32 s62, 0, s62")
    e("s_mov_b32 exec_lo, -1\ns_mov_b32 exec_hi, 0")
    e("buffer_store_short v20, v13, s[60:63], s40 offen" + (" sc0 sc1" if outsc1 else ""))
    e("s_mov_b64 exec, -1")
    if warm:
        e("s_cmp_lg_u32 s101, 0")
        e("s_cbranch_scc1 L_drydone1")
    dbg(5)
    stamp(15)
    e("s_cmp_eq_u32 s2, 0")
    e("s_cbranch_scc0 L_auxend")
    e("s_mov_b64 exec, 1")
    e("v_mov_b32 v20, s46\nv_mov_b32 v21, s47\nv_mov_b32 v22, 0")
    e("buffer_store_dwordx2 v[20:21], v22, s[48:51], 0 offen sc1")
    e("s_mov_b64 exec, -1")
    A.label("L_auxend")
    stamp(15 + 1) if False else None
    dump_stamps(16)
    A.label("L_end")
    e("s_endpgm")
    st = A.items[MARK_STREAM0:MARK_STREAM1]
    A.items = A.items[:MARK_STREAM0] + A.items[MARK_STREAM1:] + st
    A.label("L_codeend")
    e("s_endpgm")
    A.raw('.section .rodata,"a"')
    A.raw(".p2align 6")
    A.raw(f".amdhsa_kernel {NAME}")
    acc = max(40 + 16 * D, 116)
    acc = (acc + 3) // 4 * 4
    A.raw(f"  .amdhsa_next_free_vgpr {acc + max(16 * D, 88)}")
    A.raw("  .amdhsa_next_free_sgpr 102")
    A.raw(f"  .amdhsa_accum_offset {acc}")
    A.raw("  .amdhsa_group_segment_fixed_size 0")
    A.raw("  .amdhsa_kernarg_size 104")
    A.raw("  .amdhsa_user_sgpr_count 2")
    A.raw("  .amdhsa_user_sgpr_kernarg_segment_ptr 1")
    A.raw("  .amdhsa_system_sgpr_workgroup_id_x 1")
    A.raw("  .amdhsa_float_denorm_mode_32 3")
    A.raw(".end_amdhsa_kernel")
    n = A.fix_hazards()
    return A.text(), n

if __name__ == "__main__":
    cfg = json.loads(sys.argv[2]) if len(sys.argv) > 2 else {}
    t, n = gen(**cfg)
    hdr = open("cdna_kernels/" + NAME[:-7] + ".s.ref").read().split("; Override launch")[0]
    lines = t.split("\n")
    out = hdr + lines[0] + "\n" + "\n".join(lines[1:])
    open(sys.argv[1], "w").write(out)
    print("nops inserted:", n)
```

```python
import sys, json
from asmfw import Asm

NAME = "recurrent_scan__mha_block_cached__dense_activation_squared_relu__decode_kernel"

EP = 0
QP = 0x10000
HP = 0x60000
OP = 0xA0000
ML = 0xE0000
CNT = 0xF0000
SP = 0x100000
OPW = 0x1A0000
GP = 0x240000
TS = 0x300000
WS_BYTES = 0x500000
L_Q = 0x000
L_FC = 0x200
L_FB = 0x204
L_WANT = 0x208
L_FQ = 0x20c
L_FP = 0x210
L_MLW = 0x240
L_MB = 0x280
L_OW = 0x400
L_HT = 0xC00
L_PRIV = 0x1000
L_RED = 0x2000
LDS_BYTES = 0x2800

TAGB = 10
TAGM = (1 << TAGB) - 1
VALM = (~TAGM) & 0xffffffff
OOB = 0x40000000
LOG2E = 0x3fb8aa3b
SCALE = 0x3db504f3
SPIN = 1 << 17

def gen(D=6, A_=2, gss=((8, 4), (8, 2), (32, 1, 1)), req_at=1, stamps=False, nt=True, sleep=1, bar0=True, tlog=False, noatom=False, ntk=8, tstep=False, static_tail=False, kpat=True, ahead2=True, prefetch=True, pstamps=False, fillq=16, latew1=False, wmode='flagC', rot=1, fast=True, ntk_end=None, diag='', split=8, nomask=True, warm=True, tlb=False, outsc1=False, dbgspan=False, halves=True, direct=False, lateh=True, trig=None, dtrig=None, w2late=False, qdelay=None):
    A = Asm()
    e = A
    NT = " nt" if nt else ""
    nstamp = [0]
    def stamp(k):
        if stamps and (not pstamps or k == 0):
            e(f"s_memrealtime s[{64+2*k}:{65+2*k}]")
    def pst(k):
        if stamps and pstamps:
            e(f"s_memrealtime s[{64+2*k}:{65+2*k}]")
    def dbg(idx, neg=False, r=126):
        if not dbgspan: return
        e("s_memrealtime s[6:7]")
        e("s_mov_b32 s92, s30\ns_and_b32 s93, s31, 0xffff\ns_mov_b32 s94, 256\ns_mov_b32 s95, 0x20000")
        e("s_waitcnt lgkmcnt(0)")
        if neg: e("s_not_b32 s6, s6")
        e("s_mov_b64 exec, 1")
        e(f"v_mov_b32 v{r}, s6")
        e(f"v_mov_b32 v{r+1}, {4*idx}")
        e(f"buffer_atomic_umax v{r}, v{r+1}, s[92:95], 0 offen sc1")
        e("s_mov_b64 exec, -1")
    def dump_stamps(nk):
        if not stamps: return
        e("s_waitcnt lgkmcnt(0)")
        e("s_lshl_b32 s6, s2, 3")
        e("s_add_u32 s6, s6, s5")
        e("s_lshl_b32 s6, s6, 7")
        e(f"s_add_u32 s6, s6, {TS}")
        e("s_mov_b64 exec, 1")
        e("v_mov_b32 v1, 0")
        e(f"s_mov_b32 s60, s32\ns_mov_b32 s61, s33\ns_mov_b32 s62, {WS_BYTES}\ns_mov_b32 s63, 0x20000")
        for k in range(nk):
            e(f"v_mov_b32 v2, s{64+2*k}")
            e(f"buffer_store_dword v2, v1, s[60:63], s6 offen offset:{4*k}")
        e("s_mov_b64 exec, -1")

    A.raw("; @launch grid=(256,1,1) block=(512,1,1) lds=%d" % LDS_BYTES)
    A.raw('.amdgcn_target "amdgcn-amd-amdhsa--gfx950"')
    A.raw(".text")
    A.raw(f".globl {NAME}")
    A.raw(".p2align 8")
    A.raw(f".type {NAME},@function")
    A.label(NAME)
    e("s_cmp_ge_u32 s2, 256")
    e("s_cbranch_scc1 L_end")
    e("s_load_dwordx16 s[8:23], s[0:1], 0")
    e("s_load_dwordx8 s[24:31], s[0:1], 64")
    e("s_load_dwordx2 s[32:33], s[0:1], 96")
    stamp(0)
    e("v_lshrrev_b32 v1, 6, v0")
    e("v_and_b32 v0, 63, v0")
    e("v_readfirstlane_b32 s3, v1")
    e("s_lshr_b32 s34, s2, 3")
    e("s_and_b32 s35, s2, 7")
    e("s_mov_b32 s5, s3")
    if prefetch:
        e("s_cmp_eq_u32 s3, 3")
        e("s_cbranch_scc0 L_nopf")
        e("s_getpc_b64 s[60:61]")
        A.label("L_pc")
        e(f"s_sub_u32 s60, s60, L_pc-{NAME}")
        e("s_subb_u32 s61, s61, 0")
        e("s_and_b32 s61, s61, 0xffff")
        e(f"s_mov_b32 s62, L_codeend-{NAME}")
        e("s_mov_b32 s63, 0x20000")
        e("s_and_b32 s36, s34, 3")
        e("s_mul_i32 s36, s36, 5120")
        e("v_lshlrev_b32 v13, 4, v0")
        for k in range(4):
            e(f"buffer_load_dwordx4 v[40:43], v13, s[60:63], s36 offen offset:{1024*k}")
        e("s_add_u32 s36, s36, 4096")
        e(f"buffer_load_dwordx4 v[40:43], v13, s[60:63], s36 offen")
        A.label("L_nopf")
    e("s_cmp_ge_u32 s3, 4")
    e("s_cbranch_scc1 L_stream")
    def masks(t1=1, t2=2):
        e(f"v_and_b32 v{t1}, 1, v0")
        e(f"v_lshlrev_b32 v{t1}, 4, v{t1}")
        e(f"v_mov_b32 v{t2}, 0xffff")
        e(f"v_lshlrev_b32 v{t1}, v{t1}, v{t2}")
        e(f"v_bfe_u32 v{t2}, v0, 1, 2")
        for j in range(4):
            e(f"v_cmp_eq_u32 vcc, {j}, v{t2}")
            e(f"v_cndmask_b32 v{6+j}, 0, v{t1}, vcc")
    MARK_STREAM0 = len(A.items)

    A.label("L_stream")
    e("s_sub_u32 s3, s3, 4")
    e("s_and_b32 s37, s3, 1")
    e("s_lshl_b32 s36, s37, 5")
    e("s_add_u32 s36, s36, s34")
    e("s_lshl_b32 s36, s36, 20")
    e("s_waitcnt lgkmcnt(0)")
    if dbgspan:
        e("s_or_b32 s6, s34, s3")
        e("s_cmp_eq_u32 s6, 0")
        e("s_cbranch_scc0 L_nd0")
        dbg(0, True, 34)
        dbg(1, False, 34)
        A.label("L_nd0")
    e("s_add_u32 s48, s10, s36\ns_addc_u32 s49, s11, 0\ns_and_b32 s49, s49, 0xffff\ns_mov_b32 s50, 0x100000\ns_mov_b32 s51, 0x20000")
    e("s_add_u32 s52, s12, s36\ns_addc_u32 s53, s13, 0\ns_and_b32 s53, s53, 0xffff\ns_mov_b32 s54, 0x100000\ns_mov_b32 s55, 0x20000")
    if direct:
        e("s_load_dwordx2 s[92:93], s[32:33], 0")
        e(f"s_mov_b32 s44, s32\ns_and_b32 s45, s33, 0xffff\ns_mov_b32 s46, {WS_BYTES}\ns_mov_b32 s47, 0x20000")
    e("s_lshr_b32 s39, s3, 1")
    STRIDE = 16 if kpat else 2
    e(f"s_lshl_b32 s80, s35, {1 if kpat else 4}")
    e("s_add_u32 s80, s80, s39")
    e("v_lshlrev_b32 v1, 4, v0")
    def chunk_off():
        if rot and kpat:
            e("s_lshr_b32 s84, s80, 4")
            if rot != 1: e(f"s_mul_i32 s84, s84, {rot}")
            e("s_lshl_b32 s84, s84, 1")
            e("s_add_u32 s84, s84, s80")
            e("s_and_b32 s84, s84, 15")
            e("s_andn2_b32 s85, s80, 15")
            e("s_or_b32 s84, s84, s85")
            e("s_lshl_b32 s38, s84, 12")
        else:
            e("s_lshl_b32 s38, s80, 12")
    KR = lambda s, t: 40 + 16 * s + 4 * t
    VR = lambda s, t: 16 * s + 4 * t
    def loadK(s):
        for t in range(4):
            r = KR(s, t)
            e(f"buffer_load_dwordx4 v[{r}:{r+3}], v1, s[48:51], s38 offen offset:{1024*t}{NT}")
    def loadV(s):
        for t in range(4):
            r = VR(s, t)
            e(f"buffer_load_dwordx4 a[{r}:{r+3}], v1, s[52:55], s38 offen offset:{1024*t}{NT}")
    if tlog or tstep:
        e("s_mov_b32 s87, 0")
        e("v_mov_b32 v33, -1")
        e("v_mov_b32 v34, -1")
    if bar0: e("s_barrier")
    for c in range(D):
        if tlog:
            e("s_mov_b32 m0, s87")
            e("v_writelane_b32 v33, s80, m0")
            e("s_add_u32 s87, s87, 1")
        chunk_off()
        e(f"s_add_u32 s80, s80, {STRIDE}")
        if fillq is None:
            loadK(c); loadV(c)
        else:
            for half in range(2):
                if c * 8 + half * 4 + 4 > fillq:
                    e(f"s_waitcnt vmcnt({max(fillq - 4, 0)})")
                (loadK if half == 0 else loadV)(c)
        if qdelay is not None and c == qdelay:
            e("s_mov_b64 exec, 1")
            e(f"v_mov_b32 v20, {L_FP}")
            e("v_mov_b32 v21, 1")
            e("ds_add_u32 v20, v21")
            e("s_mov_b64 exec, -1")
    stamp(1)
    masks(20, 21)
    e(f"s_mov_b32 s81, {8 - D}")
    e("s_mov_b32 s82, 0")
    e("s_mov_b32 s83, 8")
    e("s_mov_b32 s62, 0")
    for k in range(D): e(f"s_mov_b32 s{56+k}, 0")
    e("s_mov_b32 s42, 0xf0f0f0f0\ns_mov_b32 s43, 0xf0f0f0f0")
    e("v_mov_b32 v35, 0xff800000")
    for r in range(4): e(f"v_mov_b32 v{10+r}, 0")
    e("v_mov_b32 v14, 0xff800000")
    e("v_mov_b32 v15, 0")
    e("v_and_b32 v16, 15, v0")
    e("v_lshlrev_b32 v16, 4, v16")
    e("s_lshl_b32 s40, s37, 8")
    e("v_add_u32 v16, s40, v16")
    if direct:
        e("s_waitcnt lgkmcnt(0)")
        e("s_add_u32 s92, s92, 0x7f4a7c15\ns_addc_u32 s93, s93, 0x9e3779b9")
        e(f"s_and_b32 s90, s92, {TAGM}")
        e("v_mov_b32 v32, s90")
        e(f"s_bfe_u32 s90, s92, 0x{(TAGB<<16)|TAGB:x}")
        e("v_mov_b32 v37, s90")
        e(f"s_bfe_u32 s90, s92, 0x{(TAGB<<16)|(2*TAGB):x}")
        e("v_mov_b32 v38, s90")
        e("s_lshr_b64 s[90:91], s[92:93], 30")
        e(f"s_and_b32 s90, s90, {TAGM}")
        e("v_mov_b32 v39, s90")
        e("s_lshl_b32 s90, s34, 1")
        e("s_add_u32 s90, s90, s37")
        e("s_lshl_b32 s90, s90, 4")
        e("s_lshl_b32 s91, s35, 1")
        e("s_add_u32 s90, s90, s91")
        e("s_add_u32 s90, s90, s39")
        e("s_lshl_b32 s92, s90, 9")
        e(f"s_add_u32 s92, s92, {OPW}")
        e("s_lshl_b32 s93, s90, 4")
        e(f"s_add_u32 s93, s93, {ML}")
        e(f"s_mov_b32 s94, {TAGM}")
    e("s_mov_b32 s86, 0")
    e("s_mov_b32 s88, 0x400000")
    e(f"s_mov_b32 s40, 0x{SCALE:x}")
    e(f"s_mov_b32 s41, 0x{LOG2E:x}")
    e(f"v_mov_b32 v36, {L_WANT}")
    e(f"v_mov_b32 v20, {L_FQ}")
    A.label("L_qspin")
    e("ds_read_b32 v21, v20")
    e("s_waitcnt lgkmcnt(0)")
    e("v_readfirstlane_b32 s90, v21")
    e("s_cmp_lg_u32 s90, 0")
    e("s_cbranch_scc1 L_qgo")
    e("s_sleep 1")
    e("s_sub_u32 s88, s88, 1")
    e("s_cmp_lg_u32 s88, 0")
    e("s_cbranch_scc1 L_qspin")
    A.label("L_qgo")
    e(f"ds_read_b128 v[2:5], v16 offset:{L_Q}")
    e("s_waitcnt lgkmcnt(0)")
    stamp(2)
    NKV = 8 * (D - 1)
    NTK = 12 if ntk is None else ntk
    A.label("L_sloop")
    for s in range(D):
        e("s_cmp_eq_u32 s86, 0")
        e(f"s_cbranch_scc1 L_nw{s}")
        e("s_cmp_eq_u32 s89, 0")
        e("s_cbranch_scc1 L_sdone")
        e("s_sub_u32 s89, s89, 1")
        if trig is not None:
            e(f"s_cmp_eq_u32 s89, {trig}")
            e(f"s_cbranch_scc0 L_nt{s}")
            e("s_mov_b64 exec, 1")
            e(f"v_mov_b32 v20, {L_FC}")
            e("v_mov_b32 v21, 1")
            e("ds_add_u32 v20, v21")
            e("s_mov_b64 exec, -1")
            A.label(f"L_nt{s}")
        e("s_cmp_ge_u32 s89, 2")
        e(f"s_cbranch_scc1 L_dw{s}")
        e("s_cmp_eq_u32 s89, 1")
        e(f"s_cbranch_scc1 L_w8{s}")
        e("s_waitcnt vmcnt(0)")
        e(f"s_branch L_go{s}")
        A.label(f"L_w8{s}")
        e("s_waitcnt vmcnt(8)")
        e(f"s_branch L_go{s}")
        A.label(f"L_dw{s}")
        e("s_waitcnt vmcnt(16)")
        e(f"s_branch L_go{s}")
        A.label(f"L_nw{s}")
        e(f"s_waitcnt vmcnt({NKV})")
        A.label(f"L_go{s}")
        if tstep:
            e("s_memrealtime s[90:91]")
            e("s_waitcnt lgkmcnt(0)")
            e("s_mov_b32 m0, s87")
            e("v_writelane_b32 v33, s90, m0")
            e("s_add_u32 s87, s87, 1")
        if tlog:
            e("s_mov_b32 m0, s87")
            e(f"v_writelane_b32 v33, s{64+s}, m0") if False else None
        for jj in range(4):
            for t in range(4):
                k = KR(s, t) + jj
                if jj == 0: e(f"v_dot2_f32_bf16 v{16+t}, v{k}, v2, 0")
                else: e(f"v_dot2c_f32_bf16 v{16+t}, v{k}, v{2+jj}")
        e("v_add_f32_dpp v20, v16, v16 row_ror:8 row_mask:0xf bank_mask:0x3")
        e("v_add_f32_dpp v21, v18, v18 row_ror:8 row_mask:0xf bank_mask:0x3")
        e("v_add_f32_dpp v20, v17, v17 row_ror:8 row_mask:0xf bank_mask:0xc")
        e("v_add_f32_dpp v21, v19, v19 row_ror:8 row_mask:0xf bank_mask:0xc")
        e("v_add_f32_dpp v22, v20, v20 row_shl:4 row_mask:0xf bank_mask:0x5")
        e("v_add_f32_dpp v22, v21, v21 row_shr:4 row_mask:0xf bank_mask:0xa")
        e("v_add_f32_dpp v22, v22, v22 quad_perm:[1,0,3,2] row_mask:0xf bank_mask:0xf")
        e("v_add_f32_dpp v22, v22, v22 quad_perm:[2,3,0,1] row_mask:0xf bank_mask:0xf")
        e("v_cvt_pk_bf16_f32 v23, v22, v22")
        e("v_and_b32 v23, 0xffff0000, v23")
        e("v_mul_f32 v23, s40, v23")
        e("v_cvt_pk_bf16_f32 v23, v23, v23")
        e("v_and_b32 v23, 0xffff0000, v23")
        if halves:
            e(f"s_cmp_eq_u32 s{56+s}, 0")
            e(f"s_cbranch_scc1 L_nh{s}")
            e("v_cndmask_b32 v23, v23, v35, s[42:43]")
            A.label(f"L_nh{s}")
        if fast:
            e("v_cmp_lt_f32 vcc, v14, v23")
            e("s_cmp_lg_u64 vcc, 0")
            e(f"s_cbranch_scc0 L_nomax{s}")
            e("v_max_f32_dpp v24, v23, v23 row_ror:4 row_mask:0xf bank_mask:0xf")
            e("v_max_f32_dpp v24, v24, v24 row_ror:8 row_mask:0xf bank_mask:0xf")
            e("v_mov_b32 v25, v24")
            e("v_permlane16_swap_b32 v24, v25")
            e("v_max_f32 v24, v24, v25")
            e("v_mov_b32 v25, v24")
            e("v_permlane32_swap_b32 v24, v25")
            e("v_max3_f32 v24, v24, v25, v14")
            e("v_sub_f32 v25, v14, v24")
            e("v_mul_f32 v25, s41, v25")
            e("v_exp_f32 v25, v25")
            e("v_mov_b32 v14, v24")
            e("v_mul_f32 v15, v15, v25")
            for r in range(4): e(f"v_mul_f32 v{10+r}, v{10+r}, v25")
            A.label(f"L_nomax{s}")
            e("v_sub_f32 v26, v23, v14")
            e("v_mul_f32 v26, s41, v26")
            e("v_exp_f32 v26, v26")
            e("v_cvt_pk_bf16_f32 v27, v26, v26")
            e("v_add_f32 v15, v15, v26")
            bank_lane = [0, 8, 4, 12]
            def bb(t):
                B = 28 if (t & 1) == 0 else 16
                for jj in range(4):
                    e(f"v_and_b32_dpp v{B+jj}, v27, v{6+jj} row_newbcast:{bank_lane[t]} row_mask:0xf bank_mask:0xf")
            def mm(t):
                B = 28 if (t & 1) == 0 else 16
                r = VR(s, t)
                e(f"v_mfma_f32_16x16x32_bf16 v[10:13], a[{r}:{r+3}], v[{B}:{B+3}], v[10:13]")
            bb(0); bb(1); mm(0); bb(2); mm(1); bb(3); mm(2); mm(3)
        else:
            e("v_max_f32_dpp v24, v23, v23 row_ror:4 row_mask:0xf bank_mask:0xf")
            e("v_max_f32_dpp v24, v24, v24 row_ror:8 row_mask:0xf bank_mask:0xf")
            e("v_mov_b32 v25, v24")
            e("v_permlane16_swap_b32 v24, v25")
            e("v_max_f32 v24, v24, v25")
            e("v_mov_b32 v25, v24")
            e("v_permlane32_swap_b32 v24, v25")
            e("v_max3_f32 v24, v24, v25, v14")
            e("v_sub_f32 v25, v14, v24")
            e("v_sub_f32 v26, v23, v24")
            e("v_mul_f32 v25, s41, v25")
            e("v_mul_f32 v26, s41, v26")
            e("v_exp_f32 v25, v25")
            e("v_exp_f32 v26, v26")
            e("v_mov_b32 v14, v24")
            e("v_fma_f32 v15, v15, v25, v26")
            e("v_cvt_pk_bf16_f32 v27, v26, v26")
            for r in range(4): e(f"v_mul_f32 v{10+r}, v{10+r}, v25")
            bank_lane = [0, 8, 4, 12]
            for t in range(4):
                B = 28 if (t & 1) == 0 else 16
                for jj in range(4):
                    e(f"v_and_b32_dpp v{B+jj}, v27, v{6+jj} row_newbcast:{bank_lane[t]} row_mask:0xf bank_mask:0xf")
                r = VR(s, t)
                e(f"v_mfma_f32_16x16x32_bf16 v[10:13], a[{r}:{r+3}], v[{B}:{B+3}], v[10:13]")
        if tstep:
            e("s_memrealtime s[90:91]")
            e("s_waitcnt lgkmcnt(0)")
            e("v_writelane_b32 v34, s90, m0")
        e("s_cmp_lg_u32 s86, 0")
        e(f"s_cbranch_scc1 L_nx{s}")
        if ntk_end is not None:
            e("s_cmp_eq_u32 s83, 1")
            e(f"s_cbranch_scc1 L_ne{s}")
            e(f"s_waitcnt vmcnt({NTK})")
            A.label(f"L_ne{s}")
            e(f"s_waitcnt vmcnt({ntk_end})")
        else:
            e(f"s_waitcnt vmcnt({NTK})")
        e("s_cmp_lg_u32 s81, 0")
        e(f"s_cbranch_scc1 L_have{s}")
        if static_tail:
            e("s_cmp_lg_u32 s82, 0")
            e(f"s_cbranch_scc1 L_drain{s}")
            e(f"s_lshl_b32 s90, s35, {1 if kpat else 4}")
            e("s_add_u32 s90, s90, 128")
            e("s_or_b32 s90, s90, 0x80000")
        else:
            e("s_lshl_b32 s90, s82, 2")
            e(f"s_add_u32 s90, s90, {L_MB}")
            e("v_mov_b32 v20, s90")
            A.label(f"L_mb{s}")
            e("ds_read_b32 v21, v20")
            e("s_waitcnt lgkmcnt(0)")
            e("v_readfirstlane_b32 s90, v21")
            e("s_cmp_lg_u32 s90, -1")
            e(f"s_cbranch_scc1 L_got{s}")
            e("s_sub_u32 s88, s88, 1")
            e("s_cmp_lg_u32 s88, 0")
            e(f"s_cbranch_scc1 L_mb{s}")
            e("s_mov_b32 s90, 256")
            A.label(f"L_got{s}")
        e("s_add_u32 s82, s82, 1")
        e("s_and_b32 s80, s90, 0xffff")
        e("s_bfe_u32 s81, s90, 0x80010")
        e("s_lshr_b32 s62, s90, 24")
        e("s_mov_b32 s83, s81")
        e("s_cmp_lt_u32 s80, 256")
        e("s_addc_u32 s80, s80, 0") if False else None
        e(f"s_cbranch_scc1 L_ok{s}")
        A.label(f"L_drain{s}")
        e("s_mov_b32 s86, 1")
        e(f"s_mov_b32 s89, {D-1}")
        if trig is None:
            e("s_mov_b64 exec, 1")
            e(f"v_mov_b32 v20, {L_FC}")
            e("v_mov_b32 v21, 1")
            e("ds_add_u32 v20, v21")
            e("s_mov_b64 exec, -1")
        stamp(3)
        e(f"s_branch L_nx{s}")
        A.label(f"L_ok{s}")
        e("s_add_u32 s80, s80, s39")
        A.label(f"L_have{s}")
        chunk_off()
        if halves:
            e(f"s_mov_b32 s{56+s}, s62")
            e("s_cmp_eq_u32 s62, 0")
            e(f"s_cbranch_scc1 L_full{s}")
            e("s_lshr_b32 s63, s62, 1")
            e("s_lshl_b32 s63, s63, 11")
            e("s_add_u32 s38, s38, s63")
            e("s_add_u32 s50, s38, 2048")
            e("s_mov_b32 s54, s50")
            A.label(f"L_full{s}")
        e(f"s_add_u32 s80, s80, {STRIDE}")
        e("s_sub_u32 s81, s81, 1")
        if tlog:
            e("s_lshr_b32 s90, s38, 12")
            e("s_mov_b32 m0, s87")
            e("v_writelane_b32 v33, s90, m0")
            e("s_add_u32 s87, s87, 1")
        loadK(s)
        if not static_tail:
            e(f"s_cmp_le_u32 s81, {req_at}")
            e(f"s_cbranch_scc0 L_nr{s}")
            e("s_add_u32 s90, s82, 1")
            if ahead2:
                e("s_cmp_eq_u32 s83, 1")
                e("s_addc_u32 s90, s90, 0")
            e("s_mov_b64 exec, 1")
            e("v_mov_b32 v21, s90")
            e("ds_max_u32 v36, v21")
            e("s_mov_b64 exec, -1")
            A.label(f"L_nr{s}")
        if split is not None: e(f"s_waitcnt vmcnt({split})")
        loadV(s)
        A.label(f"L_nx{s}")
        if s == D - 1:
            e("s_branch L_sloop")
    A.label("L_sdone")
    if dbgspan:
        e("s_and_b32 s6, s34, 7")
        e("s_or_b32 s6, s6, s3")
        e("s_cmp_eq_u32 s6, 0")
        e("s_cbranch_scc0 L_nd3")
        dbg(3, False, 34)
        A.label("L_nd3")
    stamp(4)
    e("v_add_f32_dpp v15, v15, v15 row_ror:4 row_mask:0xf bank_mask:0xf")
    e("v_add_f32_dpp v15, v15, v15 row_ror:8 row_mask:0xf bank_mask:0xf")
    e("v_mov_b32 v25, v15")
    e("v_permlane16_swap_b32 v15, v25")
    e("v_add_f32 v15, v15, v25")
    e("v_mov_b32 v25, v15")
    e("v_permlane32_swap_b32 v15, v25")
    e("v_add_f32 v15, v15, v25")
    if direct:
        e("v_lshrrev_b32 v16, 4, v0")
        e("v_lshlrev_b32 v16, 7, v16")
        e("v_and_b32 v17, 7, v0")
        e("v_lshl_add_u32 v16, v17, 4, v16")
        for r, tg in enumerate((32, 37, 38, 39)):
            e(f"v_bfi_b32 v{28+r}, s94, v{tg}, v{10+r}")
        e("s_mov_b32 exec_lo, 0x00ff00ff\ns_mov_b32 exec_hi, 0x00ff00ff")
        e("buffer_store_dwordx4 v[28:31], v16, s[44:47], s92 offen sc1")
        e("s_mov_b64 exec, 1")
        e("v_mov_b32 v24, 0")
        e("v_bfi_b32 v20, s94, v32, v14")
        e("v_bfi_b32 v21, s94, v37, v15")
        e("v_bfi_b32 v22, s94, v38, v24")
        e("v_bfi_b32 v23, s94, v39, v24")
        e("buffer_store_dwordx4 v[20:23], v24, s[44:47], s93 offen sc1")
        e("s_mov_b64 exec, -1")
    else:
        e("v_lshrrev_b32 v16, 4, v0")
        e("v_lshlrev_b32 v16, 7, v16")
        e("v_and_b32 v17, 7, v0")
        e("v_lshl_add_u32 v16, v17, 2, v16")
        e("s_lshl_b32 s37, s3, 9")
        e("v_add_u32 v16, s37, v16")
        for r in range(4):
            e(f"ds_write_b32 v16, v{10+r} offset:{L_OW + 32*r}")
        e("s_lshl_b32 s37, s3, 3")
        e("v_mov_b32 v17, s37")
        e(f"ds_write_b64 v17, v[14:15] offset:{L_MLW}")
        e("s_waitcnt lgkmcnt(0)")
        e("s_mov_b64 exec, 1")
        e(f"v_mov_b32 v28, {L_FB}")
        e("v_mov_b32 v29, 1")
        e("ds_add_u32 v28, v29")
        e("s_mov_b64 exec, -1")
    stamp(5)
    if tlog or tstep:
        e("s_lshl_b32 s6, s2, 3\ns_add_u32 s6, s6, s5\ns_lshl_b32 s6, s6, 8")
        e(f"s_add_u32 s6, s6, {TS + 0x80000}")
        e(f"s_mov_b32 s60, s32\ns_mov_b32 s61, s33\ns_mov_b32 s62, {WS_BYTES}\ns_mov_b32 s63, 0x20000")
        e("v_lshlrev_b32 v1, 2, v0")
        e("buffer_store_dword v33, v1, s[60:63], s6 offen")
        e(f"s_add_u32 s6, s6, 0x80000")
        e("buffer_store_dword v34, v1, s[60:63], s6 offen")
    dump_stamps(6)
    e("s_endpgm")

    MARK_STREAM1 = len(A.items)
    A.label("L_aux")
    e("s_setprio 3")
    e(f"s_mov_b32 s100, {1 if 'nopoll' in diag else SPIN}")
    e("s_mov_b32 s101, 0")
    if 'noaux' in diag:
        e("s_cmp_ge_u32 s3, 2")
        e("s_cbranch_scc1 L_aux23")
        e("s_barrier")
        e("s_endpgm")
    e("v_lshrrev_b32 v10, 4, v0")
    e("v_bfe_u32 v11, v0, 3, 1")
    e("v_and_b32 v12, 15, v0")
    e("s_cmp_ge_u32 s3, 2")
    e("s_cbranch_scc1 L_aux23")
    e("s_cmp_eq_u32 s3, 1")
    e("s_cbranch_scc1 L_p1")
    e("s_mul_i32 s36, s35, 72")
    e("s_mov_b32 s37, 18")
    e("s_mov_b32 s38, 8192")
    e("s_lshl_b32 s39, s34, 8")
    e("s_mul_i32 s40, s36, 8192")
    e("s_add_u32 s39, s39, s40")
    e("s_sub_u32 s54, 4718592, s39")
    e("s_mov_b32 s41, 99")
    e("s_mov_b32 s42, 1")
    e("s_mov_b32 s43, 14")
    e("s_branch L_p2")
    A.label("L_p1")
    e("s_mul_hi_u32 s43, s2, 0x71c71c8")
    e("s_mul_i32 s44, s43, 36")
    e("s_sub_u32 s44, s2, s44")
    e("s_mul_i32 s36, s43, 82")
    e("s_cmp_eq_u32 s43, 0")
    e("s_cselect_b32 s40, 0, 2")
    e("s_cselect_b32 s41, 99, 3")
    e("s_add_u32 s36, s36, s40")
    e("s_mov_b32 s37, 22")
    e("s_mov_b32 s38, 9216")
    e("s_lshl_b32 s39, s44, 8")
    e("s_mul_i32 s40, s36, 9216")
    e("s_add_u32 s39, s39, s40")
    e("s_sub_u32 s54, 5308416, s39")
    e("s_mov_b32 s42, 0")
    e("s_cmp_ge_u32 s2, 252")
    e("s_cselect_b32 s54, 0, s54")
    A.label("L_p2")
    e("v_lshrrev_b32 v13, 5, v0")
    e("v_mul_u32_u24 v13, 1152, v13")
    e("v_and_b32 v14, 31, v0")
    e("v_mad_u32_u24 v13, v14, 36, v13")
    e("v_mul_lo_u32 v14, v10, s37")
    e("v_add_u32 v15, s36, v14")
    e("v_lshlrev_b32 v15, 1, v15")
    e("v_mul_u32_u24 v16, 1152, v11")
    e("v_add_u32 v15, v15, v16")
    e("v_mul_lo_u32 v16, v14, s38")
    e("v_lshl_add_u32 v16, v12, 4, v16")
    e(f"v_mov_b32 v19, {OOB}")
    e("v_cmp_eq_u32 vcc, s41, v10")
    e("v_cndmask_b32 v17, v16, v19, vcc")
    e("v_cmp_eq_u32 vcc, 3, v10")
    e("v_cndmask_b32 v18, v16, v19, vcc")
    e("s_cmp_eq_u32 s42, 1")
    e("s_cselect_b64 vcc, -1, 0")
    e("v_cndmask_b32 v18, v18, v19, vcc")
    if 'now1' in diag: e("s_mov_b32 s54, 0")
    e("s_mov_b32 s62, 2304\ns_mov_b32 s63, 0x20000\ns_mov_b32 s55, 0x20000")
    pst(1)
    e("s_waitcnt lgkmcnt(0)")
    pst(2)
    e("s_mov_b32 s60, s8\ns_and_b32 s61, s9, 0xffff")
    e("buffer_load_dwordx4 v[20:23], v13, s[60:63], 0 offen")
    e("buffer_load_dwordx4 v[24:27], v13, s[60:63], 0 offen offset:16")
    e("buffer_load_dword v28, v13, s[60:63], 0 offen offset:32")
    e("buffer_load_dwordx4 v[30:33], v15, s[60:63], 0 offen")
    e("buffer_load_dwordx4 v[34:37], v15, s[60:63], 0 offen offset:16")
    e("buffer_load_dwordx3 v[38:40], v15, s[60:63], 0 offen offset:32")
    e("s_cmp_eq_u32 s3, 1")
    e("s_cselect_b32 s52, s20, s14")
    e("s_cselect_b32 s53, s21, s15")
    e("s_add_u32 s52, s52, s39\ns_addc_u32 s53, s53, 0\ns_and_b32 s53, s53, 0xffff")
    def wloads():
        e("s_mov_b32 s45, 0")
        for t in range(22):
            vo = 16 if t < 16 else (17 if t < 18 else 18)
            e(f"buffer_load_dwordx4 a[{4*t}:{4*t+3}], v{vo}, s[52:55], s45 offen{NT}")
            if t < 21: e("s_add_u32 s45, s45, s38")
    if latew1:
        e("s_cmp_eq_u32 s3, 1")
        e("s_cbranch_scc1 L_now")
    wloads()
    if latew1: A.label("L_now")
    pst(3)
    if bar0: e("s_barrier")
    pst(4)
    stamp(1)
    e("s_load_dwordx2 s[46:47], s[32:33], 0")
    e(f"s_mov_b32 s48, s32\ns_and_b32 s49, s33, 0xffff\ns_mov_b32 s50, {WS_BYTES}\ns_mov_b32 s51, 0x20000")
    masks()
    e("v_lshlrev_b32 v41, 2, v0")
    e("v_mov_b32 v42, 0")
    e("s_lshl_b32 s40, s34, 8")
    e(f"s_add_u32 s40, s40, {CNT}")
    e("s_add_u32 s56, s32, s40\ns_addc_u32 s57, s33, 0\ns_and_b32 s57, s57, 0xffff\ns_mov_b32 s59, 0x20000")
    e("s_or_b32 s40, s35, s3")
    e("s_cmp_eq_u32 s40, 0")
    e("s_cselect_b32 s58, 4, 0")
    e("buffer_store_dword v42, v41, s[56:59], 0 offen sc1")
    pst(5)
    if latew1:
        e("s_cmp_eq_u32 s3, 1")
        e("s_cbranch_scc0 L_xw0")
        e("s_waitcnt vmcnt(0)")
        A.label("L_xw0")
    e("s_waitcnt vmcnt(25)")
    pst(6)
    F = 44
    for k in range(9):
        e(f"v_lshlrev_b32 v{F+2*k}, 16, v{20+k}")
        e(f"v_and_b32 v{F+2*k+1}, 0xffff0000, v{20+k}")
    e(f"v_pk_add_f32 v[62:63], v[{F}:{F+1}], v[{F+2}:{F+3}]")
    for k in range(2, 9):
        e(f"v_pk_add_f32 v[62:63], v[62:63], v[{F+2*k}:{F+2*k+1}]")
    e("v_add_f32 v62, v62, v63")
    def red32(r, tmp):
        for sh in (8, 4, 2, 1):
            e(f"v_add_f32_dpp v{r}, v{r}, v{r} row_ror:{sh} row_mask:0xf bank_mask:0xf")
        e(f"v_mov_b32 v{tmp}, v{r}")
        e(f"v_permlane16_swap_b32 v{r}, v{tmp}")
        e(f"v_add_f32 v{r}, v{r}, v{tmp}")
    red32(62, 63)
    e("v_mul_f32 v62, 0x3ae38e39, v62")
    e("v_mov_b32 v63, v62")
    for k in range(9):
        e(f"v_pk_add_f32 v[{F+2*k}:{F+2*k+1}], v[{F+2*k}:{F+2*k+1}], v[62:63] neg_lo:[0,1] neg_hi:[0,1]")
    e(f"v_pk_mul_f32 v[64:65], v[{F}:{F+1}], v[{F}:{F+1}]")
    for k in range(1, 9):
        e(f"v_pk_fma_f32 v[64:65], v[{F+2*k}:{F+2*k+1}], v[{F+2*k}:{F+2*k+1}], v[64:65]")
    e("v_add_f32 v64, v64, v65")
    red32(64, 65)
    e("v_mul_f32 v64, 0x3ae38e39, v64")
    e("v_cvt_pk_bf16_f32 v62, v62, v62")
    e("v_and_b32 v62, 0xffff0000, v62")
    e("v_cvt_pk_bf16_f32 v64, v64, v64")
    e("v_and_b32 v64, 0xffff0000, v64")
    e("v_add_f32 v64, 0x3727c5ac, v64")
    e("v_cvt_pk_bf16_f32 v64, v64, v64")
    e("v_and_b32 v64, 0xffff0000, v64")
    e("v_sqrt_f32 v64, v64")
    e("v_cvt_pk_bf16_f32 v64, v64, v64")
    e("v_and_b32 v64, 0xffff0000, v64")
    e("v_rcp_f32 v64, v64")
    e("v_readlane_b32 s56, v62, 0")
    e("v_readlane_b32 s57, v62, 32")
    e("v_readlane_b32 s58, v64, 0")
    e("v_readlane_b32 s59, v64, 32")
    e("v_cmp_eq_u32 vcc, 1, v11")
    e("v_mov_b32 v62, s56")
    e("v_mov_b32 v63, s57")
    e("v_cndmask_b32 v62, v62, v63, vcc")
    e("v_mov_b32 v64, s58")
    e("v_mov_b32 v65, s59")
    e("v_cndmask_b32 v64, v64, v65, vcc")
    e("v_mov_b32 v63, v62")
    e("v_mov_b32 v65, v64")
    pst(7)
    e("s_waitcnt vmcnt(22)")
    pst(8)
    for k in range(11):
        x = 30 + k
        e(f"v_lshlrev_b32 v66, 16, v{x}")
        e(f"v_and_b32 v67, 0xffff0000, v{x}")
        e("v_pk_add_f32 v[66:67], v[66:67], v[62:63] neg_lo:[0,1] neg_hi:[0,1]")
        e("v_cvt_pk_bf16_f32 v68, v66, v67")
        e("v_lshlrev_b32 v66, 16, v68")
        e("v_and_b32 v67, 0xffff0000, v68")
        e("v_pk_mul_f32 v[66:67], v[66:67], v[64:65]")
        e(f"v_cvt_pk_bf16_f32 v{x}, v66, v67")
    stamp(2)
    pst(9)
    if latew1:
        e("s_cmp_eq_u32 s3, 1")
        e("s_cbranch_scc0 L_now2")
        wloads()
        A.label("L_now2")
    e("s_mov_b32 s56, 0x01000100")
    e("s_mov_b32 s57, 0x03020302")
    for r in range(4): e(f"v_mov_b32 v{70+r}, 0")
    for t in range(22):
        B = 76 + 4 * (t & 1)
        e(f"v_perm_b32 v74, v{30 + t//2}, v{30 + t//2}, s{56 + (t & 1)}")
        for jj in range(4):
            e(f"v_and_b32 v{B+jj}, v74, v{6+jj}")
        e(f"s_waitcnt vmcnt({21 - t})")
        e(f"v_mfma_f32_16x16x32_bf16 v[70:73], a[{4*t}:{4*t+3}], v[{B}:{B+3}], v[70:73]")
    stamp(3)
    pst(10)
    def make_tags():
        e("s_waitcnt lgkmcnt(0)")
        e("s_add_u32 s46, s46, 0x7f4a7c15\ns_addc_u32 s47, s47, 0x9e3779b9")
        e(f"s_and_b32 s44, s46, {TAGM}")
        e("v_mov_b32 v2, s44")
        e(f"s_bfe_u32 s44, s46, 0x{(TAGB<<16)|TAGB:x}")
        e("v_mov_b32 v3, s44")
        e(f"s_bfe_u32 s44, s46, 0x{(TAGB<<16)|(2*TAGB):x}")
        e("v_mov_b32 v4, s44")
        e("s_lshr_b64 s[56:57], s[46:47], 30")
        e(f"s_and_b32 s44, s56, {TAGM}")
        e("v_mov_b32 v5, s44")
        e(f"s_mov_b32 s44, {TAGM}")
        e(f"s_mov_b32 s45, 0x{VALM:x}")
    def tagpack(dst, src, rn=False):
        if rn:
            for r in range(4):
                e(f"v_add_u32 v{dst+r}, {1 << (TAGB - 1)}, v{src+r}")
            src = dst
        for r in range(4):
            e(f"v_bfi_b32 v{dst+r}, s44, v{2+r}, v{src+r}")
    def tagcheck(regs, tmp):
        first = True
        for base in regs:
            for r in range(4):
                if first:
                    e(f"v_xor_b32 v{tmp}, v{base+r}, v{2+r}"); first = False
                else:
                    e(f"v_bitop3_b32 v{tmp}, v{base+r}, v{2+r}, v{tmp} bitop3:0xbe")
        e(f"v_and_b32 v{tmp}, s44, v{tmp}")
        e(f"v_cmp_eq_u32 vcc, 0, v{tmp}")
    pollid = [0]
    def poll(issue, regs, tmp, cnt="s4", nosleep=False):
        n = pollid[0]; pollid[0] += 1
        e(f"s_mov_b32 {cnt}, s100")
        A.label(f"L_poll{n}")
        issue()
        e("s_waitcnt vmcnt(0)")
        tagcheck(regs, tmp)
        e("s_cmp_eq_u64 vcc, exec")
        e(f"s_cbranch_scc1 L_pdone{n}")
        if sleep and not nosleep: e(f"s_sleep {sleep}")
        e(f"s_sub_u32 {cnt}, {cnt}, 1")
        e(f"s_cmp_lg_u32 {cnt}, 0")
        e(f"s_cbranch_scc1 L_poll{n}")
        A.label(f"L_pdone{n}")
    def ldsspin(addr, target, nosleep=False):
        n = pollid[0]; pollid[0] += 1
        e(f"s_mov_b32 s4, {SPIN}")
        e(f"v_mov_b32 v20, {addr}")
        A.label(f"L_poll{n}")
        e("ds_read_b32 v21, v20")
        e("s_waitcnt lgkmcnt(0)")
        e("v_readfirstlane_b32 s6, v21")
        e(f"s_cmp_ge_u32 s6, {target}")
        e(f"s_cbranch_scc1 L_pdone{n}")
        if sleep and not nosleep: e(f"s_sleep {sleep}")
        e("s_sub_u32 s4, s4, 1")
        e("s_cmp_lg_u32 s4, 0")
        e(f"s_cbranch_scc1 L_poll{n}")
        A.label(f"L_pdone{n}")

    def dispatcher():
        if static_tail: return
        e("s_cmp_eq_u32 s3, 0")
        e("s_cbranch_scc0 L_nodisp")
        e("s_lshl_b32 s94, s34, 8")
        e(f"s_add_u32 s94, s94, {CNT}")
        e("s_add_u32 s56, s32, s94\ns_addc_u32 s57, s33, 0\ns_and_b32 s57, s57, 0xffff\ns_mov_b32 s58, 4\ns_mov_b32 s59, 0x20000")
        e("v_mov_b32 v13, 0")
        e(f"v_mov_b32 v14, {L_WANT}")
        e("s_mov_b32 s90, 0")
        e(f"s_mov_b32 s4, {SPIN * 8}")
        e("s_mov_b64 exec, 1")
        A.label("L_dloop")
        e("ds_read_b32 v15, v14")
        e("s_waitcnt lgkmcnt(0)")
        e("v_readfirstlane_b32 s91, v15")
        e("s_cmp_gt_u32 s91, s90")
        e("s_cbranch_scc1 L_dget")
        e("s_sleep 1")
        e("s_sub_u32 s4, s4, 1")
        e("s_cmp_lg_u32 s4, 0")
        e("s_cbranch_scc1 L_dloop")
        e("s_mov_b32 s92, 256")
        e("s_branch L_dput")
        A.label("L_dget")
        e("v_mov_b32 v15, 1")
        e("buffer_atomic_add v15, v13, s[56:59], 0 offen sc0 sc1")
        e("s_waitcnt vmcnt(0)")
        e("v_readfirstlane_b32 s91, v15")
        e("s_mov_b32 s92, 256")
        k0, st0 = 0, 128
        for gi, ph in enumerate(gss):
            cnt, nper = ph[0], ph[1]
            half = len(ph) > 2 and ph[2]
            e(f"s_sub_u32 s93, s91, {k0}")
            if half:
                assert cnt % 16 == 0 and nper == 1
                e("s_and_b32 s94, s93, 7")
                e("s_lshl_b32 s94, s94, 1")
                e("s_lshr_b32 s95, s93, 4")
                e("s_lshl_b32 s95, s95, 4")
                e("s_add_u32 s94, s94, s95")
                e("s_bfe_u32 s95, s93, 0x10003")
                e("s_lshl_b32 s95, s95, 25")
                e("s_add_u32 s94, s94, s95")
                e(f"s_add_u32 s94, s94, {st0 + (1 << 16) + (1 << 24)}")
                covered = cnt
            else:
                assert cnt % 8 == 0
                e("s_and_b32 s94, s93, 7")
                e("s_lshl_b32 s94, s94, 1")
                e("s_lshr_b32 s95, s93, 3")
                e(f"s_mul_i32 s95, s95, {16*nper}")
                e("s_add_u32 s94, s94, s95")
                e(f"s_add_u32 s94, s94, {st0 + (nper << 16)}")
                covered = cnt * 2 * nper
            e(f"s_cmp_lt_u32 s93, {cnt}")
            e("s_cselect_b32 s92, s94, s92")
            k0 += cnt; st0 += covered
        assert st0 == 256, st0
        assert k0 + 3 <= 64
        if dtrig is not None:
            e(f"s_cmp_ge_u32 s91, {dtrig}")
            e("s_cbranch_scc0 L_dnt")
            e(f"v_mov_b32 v15, {L_FC}")
            e("v_mov_b32 v16, 4")
            e("ds_write_b32 v15, v16")
            A.label("L_dnt")
        A.label("L_dput")
        e("s_lshl_b32 s93, s90, 2")
        e(f"s_add_u32 s93, s93, {L_MB}")
        e("v_mov_b32 v15, s93")
        e("v_mov_b32 v16, s92")
        e("ds_write_b32 v15, v16")
        e("s_add_u32 s90, s90, 1")
        e("s_cmp_eq_u32 s92, 256")
        e("s_cbranch_scc0 L_dloop")
        e("s_waitcnt lgkmcnt(0)")
        e("s_mov_b64 exec, -1")
        A.label("L_nodisp")

    make_tags()
    e("s_cmp_eq_u32 s3, 1")
    e("s_cbranch_scc1 L_hpub")
    e("s_waitcnt vmcnt(0)")
    tagpack(74, 70, rn=True)
    e("v_lshlrev_b32 v13, 4, v0")
    e("s_lshl_b32 s36, s2, 10")
    e(f"s_add_u32 s36, s36, {QP}")
    e("buffer_store_dwordx4 v[74:77], v13, s[48:51], s36 offen sc1")
    stamp(4)
    pst(11)
    e("v_lshlrev_b32 v13, 4, v0")
    e("s_lshl_b32 s36, s34, 13")
    e(f"s_add_u32 s36, s36, {QP}")
    e("s_add_u32 s37, s36, 4096")
    if qdelay is not None: ldsspin(L_FP, 1)
    def issue_q():
        for k in range(8):
            e(f"buffer_load_dwordx4 v[{20+4*k}:{23+4*k}], v13, s[48:51], s{36 + k//4} offen offset:{1024*(k%4)} sc1")
    poll(issue_q, [20 + 4 * k for k in range(8)], 52)
    pst(12)
    for r in range(4):
        for k in range(8): e(f"v_and_b32 v{20+4*k+r}, s45, v{20+4*k+r}")
        for k in (0, 2, 4, 6): e(f"v_add_f32 v{20+4*k+r}, v{20+4*k+r}, v{24+4*k+r}")
        e(f"v_add_f32 v{20+r}, v{20+r}, v{28+r}")
        e(f"v_add_f32 v{36+r}, v{36+r}, v{44+r}")
        e(f"v_add_f32 v{20+r}, v{20+r}, v{36+r}")
    e("v_cvt_pk_bf16_f32 v24, v20, v21")
    e("v_cvt_pk_bf16_f32 v25, v22, v23")
    e("v_lshlrev_b32 v13, 8, v11")
    e("v_lshl_add_u32 v13, v10, 6, v13")
    e("v_and_b32 v14, 7, v0")
    e("v_lshl_add_u32 v13, v14, 1, v13")
    e(f"ds_write_b16 v13, v24 offset:{L_Q}")
    e(f"ds_write_b16_d16_hi v13, v24 offset:{L_Q+16}")
    e(f"ds_write_b16 v13, v25 offset:{L_Q+32}")
    e(f"ds_write_b16_d16_hi v13, v25 offset:{L_Q+48}")
    e("s_waitcnt lgkmcnt(0)")
    e(f"v_mov_b32 v13, {L_FQ}")
    e("v_mov_b32 v14, 1")
    e("ds_write_b32 v13, v14")
    stamp(5)
    pst(13)
    e("s_branch L_barA")
    A.label("L_hpub")
    e("s_cmp_ge_u32 s2, 252")
    e("s_cbranch_scc1 L_barA")
    e("v_lshlrev_b32 v13, 9, v11")
    e("v_lshl_add_u32 v13, v10, 7, v13")
    e("v_and_b32 v14, 7, v0")
    e("v_lshl_add_u32 v13, v14, 2, v13")
    for r in range(4):
        e(f"ds_write_b32 v13, v{70+r} offset:{L_HT + 32*r}")
    e("v_lshlrev_b32 v14, 4, v0")
    e("s_waitcnt lgkmcnt(0)")
    e(f"ds_read_b128 v[70:73], v14 offset:{L_HT}")
    e("v_lshrrev_b32 v13, 5, v0")
    e("v_mul_u32_u24 v13, 18432, v13")
    e("v_and_b32 v14, 31, v0")
    e("v_lshl_add_u32 v13, v14, 4, v13")
    e("s_mul_hi_u32 s43, s2, 0x71c71c8")
    e("s_mul_i32 s36, s43, 36")
    e("s_sub_u32 s36, s2, s36")
    e("s_lshl_b32 s36, s36, 9")
    e("s_mul_i32 s37, s43, 36864")
    e("s_add_u32 s36, s36, s37")
    e(f"s_add_u32 s36, s36, {HP}")
    e("s_waitcnt lgkmcnt(0)")
    tagpack(74, 70, rn=True)
    e("buffer_store_dwordx4 v[74:77], v13, s[48:51], s36 offen sc1")
    stamp(4)
    e("s_branch L_barA")
    A.label("L_aux23")
    e("s_mov_b64 exec, 1")
    e(f"v_mov_b32 v13, {L_FC}")
    e("v_mov_b32 v14, 0")
    e("v_mov_b32 v15, 0")
    e("ds_write_b64 v13, v[14:15]")
    if 'noq' in diag: e("v_mov_b32 v15, 1")
    e("ds_write_b64 v13, v[14:15] offset:8")
    e("ds_write_b32 v13, v14 offset:16")
    e("s_mov_b64 exec, -1")
    e("v_lshlrev_b32 v13, 2, v0")
    e("v_mov_b32 v14, -1")
    e(f"ds_write_b32 v13, v14 offset:{L_MB}")
    e("s_waitcnt lgkmcnt(0)")
    e("s_load_dwordx2 s[46:47], s[32:33], 0")
    e(f"s_mov_b32 s48, s32\ns_and_b32 s49, s33, 0xffff\ns_mov_b32 s50, {WS_BYTES}\ns_mov_b32 s51, 0x20000")
    if tlb:
        e("s_cmp_eq_u32 s3, 2")
        e("s_cbranch_scc0 L_notlb")
        e("v_lshlrev_b32 v13, 16, v0")
        e("s_cmp_lt_u32 s2, 16")
        e(f"s_cselect_b32 s50, 0x300000, 0")
        e("buffer_load_dword v120, v13, s[48:51], 0 offen")
        e(f"s_mov_b32 s50, {WS_BYTES}")
        e("s_lshr_b32 s36, s2, 1")
        e("v_lshlrev_b32 v14, 15, v0")
        e("s_mul_i32 s37, s36, 36864")
        e("s_add_u32 s60, s16, s37\ns_addc_u32 s61, s17, 0\ns_and_b32 s61, s61, 0xffff\ns_mov_b32 s62, 36864\ns_mov_b32 s63, 0x20000")
        e("buffer_load_dword v121, v14, s[60:63], 0 offen")
        e("s_mul_i32 s37, s36, 41472")
        e("s_add_u32 s60, s24, s37\ns_addc_u32 s61, s25, 0\ns_and_b32 s61, s61, 0xffff\ns_mov_b32 s62, 41472")
        e("buffer_load_dword v122, v14, s[60:63], 0 offen")
        e("s_mov_b32 s60, s28\ns_and_b32 s61, s29, 0xffff\ns_mov_b32 s62, 4")
        e("buffer_load_dword v123, v14, s[60:63], 0 offen")
        e("s_mov_b32 s60, s26\ns_and_b32 s61, s27, 0xffff")
        e("buffer_load_dword v124, v14, s[60:63], 0 offen")
        e("s_mov_b32 s60, s22\ns_and_b32 s61, s23, 0xffff")
        e("buffer_load_dword v125, v14, s[60:63], 0 offen")
        A.label("L_notlb")
    if bar0: e("s_barrier")
    if 'noaux' in diag: e("s_endpgm")
    masks()
    make_tags()
    A.label("L_barA")
    stamp(6)
    if wmode != 'early': dispatcher()
    if warm:
        e("s_cmp_eq_u32 s3, 1")
        e("s_cbranch_scc0 L_nodry1")
        e("s_cmp_lt_u32 s2, 36")
        e("s_cbranch_scc0 L_nodry1")
        e("s_mov_b32 s100, 1\ns_mov_b32 s101, 1\ns_mov_b32 s50, 0")
        e("s_branch L_red")
        A.label("L_drydone1")
        e(f"s_mov_b32 s100, {SPIN}\ns_mov_b32 s101, 0\ns_mov_b32 s50, {WS_BYTES}")
        A.label("L_nodry1")
    e("s_and_b32 s36, s35, 1")
    e("s_lshr_b32 s37, s2, 1")
    e("s_mov_b32 s40, 2\ns_mov_b32 s41, 0")
    e("s_cmp_ge_u32 s3, 2")
    e("s_cbranch_scc1 L_t23")
    e("s_mov_b32 s38, 0")
    e("s_lshl_b32 s39, s36, 1")
    e("s_add_u32 s39, s39, s3")
    e("s_branch L_tdone")
    A.label("L_t23")
    e("s_mov_b32 s38, 1")
    e("s_lshl_b32 s39, s36, 1")
    e("s_sub_u32 s39, s3, s39")
    e("s_cmp_eq_u32 s3, 2")
    e("s_cbranch_scc0 L_th2")
    e("s_mov_b32 s41, 4")
    e("s_xor_b32 s40, s36, 1")
    if w2late:
        e("s_cmp_eq_u32 s36, 1")
        e("s_cbranch_scc0 L_th2")
        e("s_mov_b32 s38, 0\ns_mov_b32 s39, 4\ns_mov_b32 s40, 1\ns_mov_b32 s41, 0")
    A.label("L_th2")
    e("s_mov_b64 exec, 0x3ffff")
    e("v_cmp_le_u32 vcc, 9, v0")
    e("v_cndmask_b32 v13, 0, 1, vcc")
    e("v_mul_u32_u24 v14, 9, v13")
    e("v_sub_u32 v14, v0, v14")
    e("v_mul_u32_u24 v15, 18432, v13")
    e("v_lshl_add_u32 v15, v14, 4, v15")
    e("s_mul_i32 s42, s37, 144")
    e(f"s_add_u32 s42, s42, {HP}")
    e("s_mov_b32 s60, s22\ns_and_b32 s61, s23, 0xffff\ns_mov_b32 s62, 9216\ns_mov_b32 s63, 0x20000")
    e("s_mul_i32 s43, s37, 72")
    e("v_lshlrev_b32 v16, 3, v14")
    e("buffer_load_dwordx2 v[18:19], v16, s[60:63], s43 offen")
    if lateh and not static_tail:
        e("s_mov_b64 exec, -1")
        ldsspin(L_WANT, 1)
        e("s_mov_b64 exec, 0x3ffff")
    def issue_h():
        e("s_mov_b32 s43, s42")
        for k in range(7):
            e(f"buffer_load_dwordx4 v[{20+4*k}:{23+4*k}], v15, s[48:51], s43 offen sc1")
            if k < 6: e("s_add_u32 s43, s43, 36864")
    poll(issue_h, [20 + 4 * k for k in range(7)], 48)
    for r in range(4):
        for k in range(7): e(f"v_and_b32 v{20+4*k+r}, s45, v{20+4*k+r}")
        for k in range(1, 7): e(f"v_add_f32 v{20+r}, v{20+r}, v{20+4*k+r}")
    e("v_lshlrev_b32 v24, 16, v18\nv_and_b32 v25, 0xffff0000, v18\nv_lshlrev_b32 v26, 16, v19\nv_and_b32 v27, 0xffff0000, v19")
    for r in range(4):
        e(f"v_cvt_pk_bf16_f32 v{20+r}, v{20+r}, v{20+r}")
        e(f"v_and_b32 v{20+r}, 0xffff0000, v{20+r}")
        e(f"v_add_f32 v{20+r}, v{20+r}, v{24+r}")
        e(f"v_cvt_pk_bf16_f32 v{20+r}, v{20+r}, v{20+r}")
        e(f"v_and_b32 v{20+r}, 0xffff0000, v{20+r}")
        e(f"v_max_f32 v{20+r}, 0, v{20+r}")
        e(f"v_mul_f32 v{20+r}, v{20+r}, v{20+r}")
        e(f"v_cvt_pk_bf16_f32 v{20+r}, v{20+r}, v{20+r}")
    e("v_mul_u32_u24 v16, 144, v13")
    e("v_lshl_add_u32 v16, v14, 4, v16")
    e("s_lshl_b32 s43, s3, 10")
    e("v_add_u32 v16, s43, v16")
    e(f"ds_write_b128 v16, v[20:23] offset:{L_PRIV}")
    e("s_mov_b64 exec, -1")
    e("s_waitcnt lgkmcnt(0)")
    A.label("L_tdone")
    stamp(7)
    def task_srd(srd, typ, beta, voff):
        n = pollid[0]; pollid[0] += 1
        e(f"s_cmp_eq_u32 {typ}, 1")
        e(f"s_cbranch_scc1 L_sw2_{n}")
        e("s_mul_i32 s42, s37, 36864")
        e(f"s_lshl_b32 s43, {beta}, 8")
        e("s_add_u32 s42, s42, s43")
        e(f"s_add_u32 s{srd}, s16, s42\ns_addc_u32 s{srd+1}, s17, 0")
        e(f"s_sub_u32 s{srd+2}, 4718592, s42")
        e("s_mov_b32 s43, 9216")
        e(f"s_branch L_sd_{n}")
        A.label(f"L_sw2_{n}")
        e("s_mul_i32 s42, s37, 41472")
        e(f"s_lshl_b32 s43, {beta}, 8")
        e("s_add_u32 s42, s42, s43")
        e(f"s_add_u32 s{srd}, s24, s42\ns_addc_u32 s{srd+1}, s25, 0")
        e(f"s_sub_u32 s{srd+2}, 5308416, s42")
        e("s_mov_b32 s43, 10368")
        A.label(f"L_sd_{n}")
        e(f"s_and_b32 s{srd+1}, s{srd+1}, 0xffff\ns_mov_b32 s{srd+3}, 0x20000")
        e(f"s_cmp_eq_u32 {typ}, 2")
        e(f"s_cselect_b32 s{srd+2}, 0, s{srd+2}")
        e(f"v_mul_lo_u32 v{voff}, v10, s43")
        e(f"v_lshl_add_u32 v{voff}, v12, 4, v{voff}")
        e(f"v_mov_b32 v19, {OOB}")
        e("v_cmp_le_u32 vcc, 8, v12")
        e(f"v_cndmask_b32 v18, v{voff}, v19, vcc")
        e(f"s_cmp_eq_u32 {beta}, 4")
        e(f"s_cbranch_scc0 L_se_{n}")
        e(f"v_mov_b32 v{voff}, v18")
        A.label(f"L_se_{n}")
    task_srd(52, "s38", "s39", 13)
    task_srd(56, "s40", "s41", 14)
    if 'nowo' in diag:
        e("s_mov_b32 s54, 0\ns_mov_b32 s58, 0")
    e(f"v_mov_b32 v19, {OOB}")
    e("s_cmp_eq_u32 s38, 0\ns_cselect_b64 vcc, -1, 0")
    e("v_cndmask_b32 v15, v13, v19, vcc")
    e("s_cmp_eq_u32 s40, 0\ns_cselect_b64 vcc, -1, 0")
    e("v_cndmask_b32 v16, v14, v19, vcc")
    e("v_lshrrev_b32 v90, 3, v0")
    e("v_lshlrev_b32 v90, 14, v90")
    e("v_and_b32 v91, 7, v0")
    e("v_lshl_add_u32 v90, v91, 4, v90")
    e("v_cmp_le_u32 vcc, 32, v0")
    e("v_cndmask_b32 v92, v90, v19, vcc")
    e("s_cmp_eq_u32 s41, 4\ns_cselect_b64 vcc, -1, 0")
    e("v_cndmask_b32 v91, v90, v92, vcc")
    e("s_cmp_eq_u32 s39, 4\ns_cselect_b64 vcc, -1, 0")
    e("v_cndmask_b32 v90, v90, v92, vcc")
    for (typ, beta, dst) in (("s38", "s39", "s96"), ("s40", "s41", "s97")):
        e(f"s_mov_b32 {dst}, {SP}")
        e(f"s_cmp_eq_u32 {typ}, 1")
        e(f"s_cselect_b32 {dst}, {GP}, {dst}")
        e(f"s_lshl_b32 s42, {beta}, 17")
        e(f"s_add_u32 {dst}, {dst}, s42")
        e("s_lshl_b32 s42, s37, 7")
        e(f"s_add_u32 {dst}, {dst}, s42")
    e("v_and_b32 v93, 3, v0")
    e("v_bfe_u32 v94, v0, 4, 1")
    e("v_lshl_add_u32 v93, v94, 2, v93")
    e("v_bfe_u32 v94, v0, 2, 2")
    e("v_lshrrev_b32 v95, 5, v0")
    if direct:
        e("v_lshlrev_b32 v96, 13, v95")
        e("v_lshl_add_u32 v96, v94, 9, v96")
        e("v_lshl_add_u32 v96, v93, 4, v96")
        e("v_lshlrev_b32 v97, 8, v95")
        e("v_lshl_add_u32 v97, v94, 4, v97")
        e("s_lshr_b32 s98, s35, 1")
        e("s_lshl_b32 s98, s98, 7")
        e("s_lshl_b32 s42, s34, 14")
        e("s_add_u32 s98, s98, s42")
        e(f"s_add_u32 s98, s98, {OPW}")
        e("s_add_u32 s63, s98, 4096")
        e("s_lshl_b32 s99, s34, 9")
        e(f"s_add_u32 s99, s99, {ML}")
        e("s_lshl_b32 s42, s3, 10")
        e(f"s_add_u32 s42, s42, {L_PRIV + 0x200}")
        e("v_lshlrev_b32 v98, 7, v95")
        e("v_lshl_add_u32 v98, v93, 2, v98")
        e("v_add_u32 v98, s42, v98")
    else:
        e("v_lshlrev_b32 v96, 12, v95")
        e("v_lshl_add_u32 v96, v94, 9, v96")
        e("v_lshl_add_u32 v96, v93, 4, v96")
        e("v_lshlrev_b32 v97, 7, v95")
        e("v_lshl_add_u32 v97, v94, 4, v97")
        e("s_lshr_b32 s98, s35, 1")
        e("s_lshl_b32 s98, s98, 7")
        e("s_lshl_b32 s42, s34, 13")
        e("s_add_u32 s98, s98, s42")
        e(f"s_add_u32 s98, s98, {OP}")
        e("s_lshl_b32 s99, s34, 8")
        e(f"s_add_u32 s99, s99, {ML}")
        e("s_lshl_b32 s42, s3, 10")
        e(f"s_add_u32 s42, s42, {L_PRIV + 0x200}")
        e("v_lshlrev_b32 v98, 7, v95")
        e("v_lshl_add_u32 v98, v93, 4, v98")
        e("v_add_u32 v98, s42, v98")
    e("v_lshlrev_b32 v99, 7, v11")
    e("v_lshl_add_u32 v99, v10, 5, v99")
    e("v_add_u32 v99, s42, v99")
    e("s_cmp_ge_u32 s3, 2")
    e("s_cbranch_scc0 L_noh2")
    e("v_mul_u32_u24 v20, 144, v11")
    e("v_mad_u32_u24 v20, v10, 36, v20")
    e("s_lshl_b32 s42, s3, 10")
    e("v_add_u32 v20, s42, v20")
    for t in range(9):
        e(f"ds_read_b32 v{100+t}, v20 offset:{L_PRIV + 4*t}")
    e("s_waitcnt lgkmcnt(0)")
    A.label("L_noh2")
    e("v_and_b32 v110, 31, v0")
    e("v_lshlrev_b32 v110, 4, v110")
    e("v_lshl_add_u32 v111, v95, 9, v110")
    e("v_lshlrev_b32 v112, 3, v95")
    e("v_lshl_add_u32 v113, v95, 12, v110")
    e("v_lshlrev_b32 v114, 7, v95")
    e("s_lshl_b32 s60, s34, 13")
    e("s_lshl_b32 s43, s35, 9")
    e("s_add_u32 s60, s60, s43")
    e(f"s_add_u32 s60, s60, {OP}")
    e("s_lshl_b32 s61, s34, 8")
    e("s_lshl_b32 s43, s35, 4")
    e("s_add_u32 s61, s61, s43")
    e(f"s_add_u32 s61, s61, {ML}")
    e(f"s_mov_b32 s62, 0x{LOG2E:x}")
    if warm:
        e("s_cmp_eq_u32 s3, 1")
        e("s_cbranch_scc1 L_dry2")
        if direct:
            e("s_branch L_nodry2")
        else:
            e("s_cmp_eq_u32 s3, 3")
            e("s_cbranch_scc0 L_nodry2")
            e("s_mov_b32 s100, 1\ns_mov_b32 s101, 1\ns_mov_b32 s50, 0")
            e("s_branch L_comb")
        A.label("L_dry2")
        e("s_mov_b32 s100, 1\ns_mov_b32 s101, 1\ns_mov_b32 s50, 0")
        e("s_branch L_btX")
        A.label("L_drydone2")
        e(f"s_mov_b32 s100, {SPIN}\ns_mov_b32 s101, 0\ns_mov_b32 s50, {WS_BYTES}")
        A.label("L_nodry2")
    if wmode == 'flagC': ldsspin(L_FC, 4)
    if wmode == 'flagB': ldsspin(L_FB, 4)
    stamp(8)
    def xloads():
        e("s_mov_b32 s42, 0")
        for t in range(9):
            vo = 13 if t < 8 else 15
            e(f"buffer_load_dwordx4 a[{4*t}:{4*t+3}], v{vo}, s[52:55], s42 offen{NT}")
            e("s_add_u32 s42, s42, 1152") if t < 8 else None
    def yloads():
        e("s_mov_b32 s42, 0")
        for t in range(9):
            vo = 14 if t < 8 else 16
            e(f"buffer_load_dwordx4 a[{36+4*t}:{36+4*t+3}], v{vo}, s[56:59], s42 offen{NT}")
            e("s_add_u32 s42, s42, 1152") if t < 8 else None
    if not w2late:
        xloads(); yloads()
    else:
        e("s_cmp_eq_u32 s38, 0")
        e("s_cbranch_scc0 L_xl1")
        xloads()
        A.label("L_xl1")
        e("s_cmp_eq_u32 s40, 0")
        e("s_cbranch_scc0 L_yl1")
        yloads()
        A.label("L_yl1")
        e("s_cmp_eq_u32 s3, 2")
        e("s_cbranch_scc0 L_xl2")
        ldsspin(L_FB, 4)
        e("s_cmp_eq_u32 s38, 1")
        e("s_cbranch_scc0 L_xl3")
        xloads()
        A.label("L_xl3")
        e("s_cmp_eq_u32 s40, 1")
        e("s_cbranch_scc0 L_xl2")
        yloads()
        A.label("L_xl2")
    if wmode == 'early': dispatcher()
    if not direct:
        e("s_cmp_eq_u32 s3, 3")
        e("s_cbranch_scc0 L_nocomb")
        ldsspin(L_FB, 4, nosleep=True)
        stamp(9)
        A.label("L_comb")
        e(f"ds_read_b64 v[40:41], v112 offset:{L_MLW}")
        e(f"ds_read_b64 v[42:43], v112 offset:{L_MLW+16}")
        e(f"ds_read_b128 v[24:27], v111 offset:{L_OW}")
        e(f"ds_read_b128 v[28:31], v111 offset:{L_OW + 1024}")
        e("s_waitcnt lgkmcnt(2)")
        e("v_max_f32 v48, v40, v42")
        e("v_sub_f32 v40, v40, v48\nv_sub_f32 v42, v42, v48")
        e("v_mul_f32 v40, s62, v40\nv_mul_f32 v42, s62, v42")
        e("v_exp_f32 v40, v40\nv_exp_f32 v42, v42")
        e("v_mov_b32 v52, 0\nv_mov_b32 v53, 0")
        e("v_mul_f32 v49, v40, v41")
        e("v_fmac_f32 v49, v42, v43")
        e("s_waitcnt lgkmcnt(0)")
        for r in range(4):
            e(f"v_mul_f32 v{44+r}, v40, v{24+r}")
        for r in range(4):
            e(f"v_fmac_f32 v{44+r}, v42, v{28+r}")
        tagpack(54, 44)
        e("buffer_store_dwordx4 v[54:57], v113, s[48:51], s60 offen sc1")
        e(f"v_bfi_b32 v58, s44, v2, v48\nv_bfi_b32 v59, s44, v3, v49\nv_bfi_b32 v60, s44, v4, v52\nv_bfi_b32 v61, s44, v5, v53")
        e("s_mov_b32 exec_lo, 1\ns_mov_b32 exec_hi, 1")
        e("buffer_store_dwordx4 v[58:61], v114, s[48:51], s61 offen sc1")
        e("s_mov_b64 exec, -1")
        if warm:
            e("s_cmp_lg_u32 s101, 0")
            e("s_cbranch_scc1 L_drydone2")
        stamp(10)
        if w2late: xloads()
        A.label("L_nocomb")

    def mchain(n, srcs, abase):
        def bb(t):
            B = 76 + 4 * (t & 1)
            for jj in range(4): e(f"v_and_b32 v{B+jj}, v{srcs[t]}, v{6+jj}")
        def mm(t):
            B = 76 + 4 * (t & 1)
            c = "0" if t == 0 else "v[70:73]"
            e(f"v_mfma_f32_16x16x32_bf16 v[70:73], a[{abase+4*t}:{abase+4*t+3}], v[{B}:{B+3}], {c}")
        bb(0); bb(1)
        for t in range(n):
            mm(t)
            if t + 2 < n: bb(t + 2)
    def blocktask(which, typ, abase, vst, sst):
        n = pollid[0]; pollid[0] += 1
        e(f"s_cmp_eq_u32 {typ}, 2")
        e(f"s_cbranch_scc1 L_bt_end{n}")
        e(f"s_cmp_eq_u32 {typ}, 1")
        e(f"s_cbranch_scc1 L_bt_w2{n}")
        if direct:
            OR = [24, 36, 44, 48]; MR = [28, 40, 52, 56]
            def issue_o():
                for k in range(4):
                    so = "s98" if k < 2 else "s63"
                    e(f"buffer_load_dwordx4 v[{OR[k]}:{OR[k]+3}], v96, s[48:51], {so} offen offset:{2048*(k&1)} sc1")
                for k in range(4):
                    e(f"buffer_load_dwordx4 v[{MR[k]}:{MR[k]+3}], v97, s[48:51], s99 offen offset:{64*k} sc1")
            poll(issue_o, OR + MR, 32, nosleep=True)
            stamp(11)
            e("v_max3_f32 v30, v28, v40, v52")
            e("v_max_f32 v30, v30, v56")
            e("v_max_f32_dpp v30, v30, v30 row_ror:4 row_mask:0xf bank_mask:0xf")
            e("v_max_f32_dpp v30, v30, v30 row_ror:8 row_mask:0xf bank_mask:0xf")
            for k in range(4): e(f"v_sub_f32 v{MR[k]}, v{MR[k]}, v30")
            for k in range(4): e(f"v_mul_f32 v{MR[k]}, s62, v{MR[k]}")
            for k in range(4): e(f"v_exp_f32 v{MR[k]}, v{MR[k]}")
            e("v_mul_f32 v29, v29, v28")
            for r in range(4): e(f"v_mul_f32 v{24+r}, v{24+r}, v28")
            for k in range(1, 4):
                e(f"v_fmac_f32 v29, v{MR[k]+1}, v{MR[k]}")
                for r in range(4): e(f"v_fmac_f32 v{24+r}, v{OR[k]+r}, v{MR[k]}")
            for r in (29, 24, 25, 26, 27):
                e(f"v_add_f32_dpp v{r}, v{r}, v{r} row_ror:4 row_mask:0xf bank_mask:0xf")
            for r in (29, 24, 25, 26, 27):
                e(f"v_add_f32_dpp v{r}, v{r}, v{r} row_ror:8 row_mask:0xf bank_mask:0xf")
            e("v_rcp_f32 v29, v29")
            for r in range(4): e(f"v_mul_f32 v{24+r}, v{24+r}, v29")
            for r in range(4): e(f"v_cvt_pk_bf16_f32 v{24+r}, v{24+r}, v{24+r}")
            for r in range(4): e(f"ds_write_b32 v98, v{24+r} offset:{32*r}")
            e("s_waitcnt lgkmcnt(0)")
        else:
            def issue_o():
                e("buffer_load_dwordx4 v[24:27], v96, s[48:51], s98 offen sc1")
                e("buffer_load_dwordx4 v[36:39], v96, s[48:51], s98 offen offset:2048 sc1")
                e("buffer_load_dwordx4 v[28:31], v97, s[48:51], s99 offen sc1")
                e("buffer_load_dwordx4 v[40:43], v97, s[48:51], s99 offen offset:64 sc1")
            poll(issue_o, [24, 36, 28, 40], 32, nosleep=True)
            stamp(11)
            if not nomask:
                for r in (24, 25, 26, 27, 36, 37, 38, 39, 28, 29, 40, 41): e(f"v_and_b32 v{r}, s45, v{r}")
            e("v_max_f32 v30, v28, v40")
            e("v_max_f32_dpp v30, v30, v30 row_ror:4 row_mask:0xf bank_mask:0xf")
            e("v_max_f32_dpp v30, v30, v30 row_ror:8 row_mask:0xf bank_mask:0xf")
            e("v_sub_f32 v28, v28, v30\nv_sub_f32 v40, v40, v30")
            e("v_mul_f32 v28, s62, v28\nv_mul_f32 v40, s62, v40")
            e("v_exp_f32 v28, v28\nv_exp_f32 v40, v40")
            e("v_mul_f32 v29, v29, v28")
            for r in range(4): e(f"v_mul_f32 v{24+r}, v{24+r}, v28")
            e("v_fmac_f32 v29, v41, v40")
            for r in range(4): e(f"v_fmac_f32 v{24+r}, v{36+r}, v40")
            for r in (29, 24, 25, 26, 27):
                e(f"v_add_f32_dpp v{r}, v{r}, v{r} row_ror:4 row_mask:0xf bank_mask:0xf")
            for r in (29, 24, 25, 26, 27):
                e(f"v_add_f32_dpp v{r}, v{r}, v{r} row_ror:8 row_mask:0xf bank_mask:0xf")
            e("v_rcp_f32 v29, v29")
            for r in range(4): e(f"v_mul_f32 v{24+r}, v{24+r}, v29")
            for r in range(4): e(f"v_cvt_pk_bf16_f32 v{24+r}, v{24+r}, v{24+r}")
            e("ds_write_b128 v98, v[24:27]")
            e("s_waitcnt lgkmcnt(0)")
        e("ds_read_b128 v[24:27], v99")
        e("ds_read_b128 v[28:31], v99 offset:16")
        e("s_waitcnt lgkmcnt(0)")
        mchain(8, [24 + t for t in range(8)], abase)
        e(f"s_branch L_bt_pub{n}")
        A.label(f"L_bt_w2{n}")
        e(f"s_waitcnt vmcnt({0 if which == 'Y' else 9})") if False else e("s_waitcnt vmcnt(0)")
        mchain(9, [100 + t for t in range(9)], abase)
        A.label(f"L_bt_pub{n}")
        tagpack(74, 70)
        e(f"buffer_store_dwordx4 v[74:77], v{vst}, s[48:51], {sst} offen sc1")
        A.label(f"L_bt_end{n}")
    A.label("L_btX")
    blocktask("X", "s38", 0, 90, "s96")
    if warm:
        e("s_cmp_lg_u32 s101, 0")
        e("s_cbranch_scc1 L_drydone2")
    stamp(12)
    blocktask("Y", "s40", 36, 91, "s97")
    stamp(13)

    e("s_cmp_ge_u32 s2, 36")
    e("s_cbranch_scc1 L_auxend")
    A.label("L_red")
    e("s_lshr_b32 s36, s2, 3")
    e("s_and_b32 s37, s2, 7")
    e("s_lshl_b32 s38, s36, 7")
    e("s_lshr_b32 s39, s37, 1")
    e("s_lshl_b32 s39, s39, 5")
    e("s_add_u32 s38, s38, s39")
    e("s_and_b32 s39, s37, 1")
    e("s_mul_i32 s39, s39, 576")
    e("s_add_u32 s39, s39, s38")
    e("s_mov_b32 s60, s8\ns_and_b32 s61, s9, 0xffff\ns_mov_b32 s62, 2304\ns_mov_b32 s63, 0x20000")
    e("s_mov_b32 s56, s26\ns_and_b32 s57, s27, 0xffff\ns_mov_b32 s58, 1152\ns_mov_b32 s59, 0x20000")
    e("v_lshlrev_b32 v13, 1, v0")
    e("s_lshl_b32 s40, s39, 1")
    e("s_lshl_b32 s41, s38, 1")
    e("v_and_b32 v16, 3, v0")
    e("v_bfe_u32 v17, v0, 4, 1")
    e("v_lshl_add_u32 v16, v17, 2, v16")
    e("v_bfe_u32 v17, v0, 2, 2")
    e("v_lshrrev_b32 v18, 5, v0")
    e("v_lshl_add_u32 v17, v18, 2, v17")
    e("v_lshlrev_b32 v19, 4, v16")
    e("v_lshl_add_u32 v16, v17, 7, v19")
    e("v_lshl_add_u32 v17, v18, 7, v19")
    e("s_lshl_b32 s43, s3, 8")
    e("v_add_u32 v17, s43, v17")
    e("s_lshl_b32 s42, s2, 14")
    e("s_lshl_b32 s43, s3, 12")
    e("s_add_u32 s42, s42, s43")
    e(f"s_add_u32 s43, s42, {SP}")
    e(f"s_add_u32 s42, s42, {GP}")
    e("s_mov_b32 exec_lo, -1\ns_mov_b32 exec_hi, 0")
    e("buffer_load_ushort v14, v13, s[60:63], s40 offen")
    e("buffer_load_ushort v15, v13, s[56:59], s41 offen")
    e("s_mov_b64 exec, -1")
    e("s_mov_b32 s60, s28\ns_and_b32 s61, s29, 0xffff")
    def issue_r():
        for k in range(4):
            e(f"buffer_load_dwordx4 v[{20+4*k}:{23+4*k}], v16, s[48:51], s42 offen offset:{1024*k} sc1")
        for k in range(4):
            e(f"buffer_load_dwordx4 v[{36+4*k}:{39+4*k}], v16, s[48:51], s43 offen offset:{1024*k} sc1")
    poll(issue_r, [20 + 4 * k for k in range(8)], 52, nosleep=True)
    stamp(14)
    for base in (20, 36):
        for r in range(4):
            if not nomask:
                for k in range(4): e(f"v_and_b32 v{base+4*k+r}, s45, v{base+4*k+r}")
        for r in range(4): e(f"v_add_f32 v{base+r}, v{base+r}, v{base+4+r}")
        for r in range(4): e(f"v_add_f32 v{base+8+r}, v{base+8+r}, v{base+12+r}")
        for r in range(4): e(f"v_add_f32 v{base+r}, v{base+r}, v{base+8+r}")
    for sh in (4, 8):
        for base in (20, 36):
            for r in range(4):
                e(f"v_add_f32_dpp v{base+r}, v{base+r}, v{base+r} row_ror:{sh} row_mask:0xf bank_mask:0xf")
    e(f"ds_write_b128 v17, v[20:23] offset:{L_RED}")
    e(f"ds_write_b128 v17, v[36:39] offset:{L_RED + 1024}")
    e("v_and_b32 v17, 7, v0")
    e("v_lshlrev_b32 v17, 4, v17")
    e("v_bfe_u32 v18, v0, 3, 2")
    e("v_lshl_add_u32 v17, v18, 2, v17")
    e("s_waitcnt lgkmcnt(0)")
    if warm:
        e("s_cmp_lg_u32 s101, 0")
        e("s_cbranch_scc1 L_redfin")
    e("s_barrier")
    e("s_cmp_eq_u32 s3, 0")
    e("s_cbranch_scc0 L_auxend")
    A.label("L_redfin")
    for kind in range(2):
        for a in range(8):
            e(f"ds_read_b32 v{20+8*kind+a}, v17 offset:{L_RED + 1024*kind + 128*a}")
    e("v_lshlrev_b32 v14, 16, v14")
    e("v_lshlrev_b32 v15, 16, v15")
    e("s_waitcnt lgkmcnt(8)")
    def sum8(b):
        for k in (0, 2, 4, 6): e(f"v_add_f32 v{b+k}, v{b+k}, v{b+k+1}")
        e(f"v_add_f32 v{b}, v{b}, v{b+2}")
        e(f"v_add_f32 v{b+4}, v{b+4}, v{b+6}")
        e(f"v_add_f32 v{b}, v{b}, v{b+4}")
    def rnd(r):
        e(f"v_cvt_pk_bf16_f32 v{r}, v{r}, v{r}")
        e(f"v_and_b32 v{r}, 0xffff0000, v{r}")
    sum8(20)
    rnd(20)
    e("v_add_f32 v20, v20, v15")
    rnd(20)
    e(f"v_mul_f32 v21, 0x{(LOG2E ^ 0x80000000):x}, v20")
    e("v_exp_f32 v21, v21")
    e("s_waitcnt lgkmcnt(0)")
    sum8(28)
    e("v_add_f32 v21, 1.0, v21")
    e("v_rcp_f32 v21, v21")
    rnd(28)
    e("v_mul_f32 v20, v20, v21")
    rnd(20)
    e("v_mul_f32 v20, v28, v20")
    rnd(20)
    e("v_add_f32 v20, v14, v20")
    e("v_cvt_pk_bf16_f32 v20, v20, v20")
    if warm:
        e("s_cmp_lg_u32 s101, 0")
        e("s_cselect_b32 s62, 0, s62")
    e("s_mov_b32 exec_lo, -1\ns_mov_b32 exec_hi, 0")
    e("buffer_store_short v20, v13, s[60:63], s40 offen" + (" sc0 sc1" if outsc1 else ""))
    e("s_mov_b64 exec, -1")
    if warm:
        e("s_cmp_lg_u32 s101, 0")
        e("s_cbranch_scc1 L_drydone1")
    dbg(5)
    stamp(15)
    e("s_cmp_eq_u32 s2, 0")
    e("s_cbranch_scc0 L_auxend")
    e("s_mov_b64 exec, 1")
    e("v_mov_b32 v20, s46\nv_mov_b32 v21, s47\nv_mov_b32 v22, 0")
    e("buffer_store_dwordx2 v[20:21], v22, s[48:51], 0 offen sc1")
    e("s_mov_b64 exec, -1")
    A.label("L_auxend")
    stamp(15 + 1) if False else None
    dump_stamps(16)
    A.label("L_end")
    e("s_endpgm")
    st = A.items[MARK_STREAM0:MARK_STREAM1]
    A.items = A.items[:MARK_STREAM0] + A.items[MARK_STREAM1:] + st
    A.label("L_codeend")
    e("s_endpgm")
    A.raw('.section .rodata,"a"')
    A.raw(".p2align 6")
    A.raw(f".amdhsa_kernel {NAME}")
    acc = max(40 + 16 * D, 116)
    acc = (acc + 3) // 4 * 4
    A.raw(f"  .amdhsa_next_free_vgpr {acc + max(16 * D, 88)}")
    A.raw("  .amdhsa_next_free_sgpr 102")
    A.raw(f"  .amdhsa_accum_offset {acc}")
    A.raw("  .amdhsa_group_segment_fixed_size 0")
    A.raw("  .amdhsa_kernarg_size 104")
    A.raw("  .amdhsa_user_sgpr_count 2")
    A.raw("  .amdhsa_user_sgpr_kernarg_segment_ptr 1")
    A.raw("  .amdhsa_system_sgpr_workgroup_id_x 1")
    A.raw("  .amdhsa_float_denorm_mode_32 3")
    A.raw(".end_amdhsa_kernel")
    n = A.fix_hazards()
    return A.text(), n

if __name__ == "__main__":
    cfg = json.loads(sys.argv[2]) if len(sys.argv) > 2 else {}
    t, n = gen(**cfg)
    hdr = open("cdna_kernels/" + NAME[:-7] + ".s.ref").read().split("; Override launch")[0]
    lines = t.split("\n")
    out = hdr + lines[0] + "\n" + "\n".join(lines[1:])
    open(sys.argv[1], "w").write(out)
    print("nops inserted:", n)
```

```python
import sys, json
from asmfw import Asm

NAME = "recurrent_scan__mha_block_cached__dense_activation_squared_relu__decode_kernel"

EP = 0
QP = 0x10000
HP = 0x60000
OP = 0xA0000
ML = 0xE0000
CNT = 0xF0000
SP = 0x100000
OPW = 0x1A0000
GP = 0x240000
TS = 0x300000
WS_BYTES = 0x500000
L_Q = 0x000
L_FC = 0x200
L_FB = 0x204
L_WANT = 0x208
L_FQ = 0x20c
L_FP = 0x210
L_EP = 0x214
L_MLW = 0x240
L_MB = 0x280
L_OW = 0x400
L_HT = 0xC00
L_PRIV = 0x1000
L_RED = 0x2000
LDS_BYTES = 0x2800

TAGB = 10
TAGM = (1 << TAGB) - 1
VALM = (~TAGM) & 0xffffffff
OOB = 0x40000000
LOG2E = 0x3fb8aa3b
SCALE = 0x3db504f3
SPIN = 1 << 17

def gen(D=6, A_=2, gss=((8, 4), (8, 2), (32, 1, 1)), req_at=1, stamps=False, nt=True, sleep=1, bar0=True, tlog=False, noatom=False, ntk=8, tstep=False, static_tail=False, kpat=True, ahead2=True, prefetch=True, pstamps=False, fillq=16, latew1=False, wmode='flagC', rot=1, fast=True, ntk_end=None, diag='', split=8, nomask=True, warm=True, tlb=False, outsc1=False, dbgspan=False, halves=True, direct=False, lateh=True, trig=None, dtrig=None, w2late=False, qdelay=None):
    A = Asm()
    e = A
    NT = (" " + nt) if isinstance(nt, str) else (" nt" if nt else "")
    nstamp = [0]
    def stamp(k):
        if stamps and (not pstamps or k == 0):
            e(f"s_memrealtime s[{64+2*k}:{65+2*k}]")
    def pst(k):
        if stamps and pstamps:
            e(f"s_memrealtime s[{64+2*k}:{65+2*k}]")
    def dbg(idx, neg=False, r=126):
        if not dbgspan: return
        e("s_memrealtime s[6:7]")
        e("s_mov_b32 s92, s30\ns_and_b32 s93, s31, 0xffff\ns_mov_b32 s94, 256\ns_mov_b32 s95, 0x20000")
        e("s_waitcnt lgkmcnt(0)")
        if neg: e("s_not_b32 s6, s6")
        e("s_mov_b64 exec, 1")
        e(f"v_mov_b32 v{r}, s6")
        e(f"v_mov_b32 v{r+1}, {4*idx}")
        e(f"buffer_atomic_umax v{r}, v{r+1}, s[92:95], 0 offen sc1")
        e("s_mov_b64 exec, -1")
    def dump_stamps(nk):
        if not stamps: return
        e("s_waitcnt lgkmcnt(0)")
        e("s_lshl_b32 s6, s2, 3")
        e("s_add_u32 s6, s6, s5")
        e("s_lshl_b32 s6, s6, 7")
        e(f"s_add_u32 s6, s6, {TS}")
        e("s_mov_b64 exec, 1")
        e("v_mov_b32 v1, 0")
        e(f"s_mov_b32 s60, s32\ns_mov_b32 s61, s33\ns_mov_b32 s62, {WS_BYTES}\ns_mov_b32 s63, 0x20000")
        for k in range(nk):
            e(f"v_mov_b32 v2, s{64+2*k}")
            e(f"buffer_store_dword v2, v1, s[60:63], s6 offen offset:{4*k}")
        e("s_mov_b64 exec, -1")

    A.raw("; @launch grid=(256,1,1) block=(512,1,1) lds=%d" % LDS_BYTES)
    A.raw('.amdgcn_target "amdgcn-amd-amdhsa--gfx950"')
    A.raw(".text")
    A.raw(f".globl {NAME}")
    A.raw(".p2align 8")
    A.raw(f".type {NAME},@function")
    A.label(NAME)
    e("s_cmp_ge_u32 s2, 256")
    e("s_cbranch_scc1 L_end")
    e("s_load_dwordx16 s[8:23], s[0:1], 0")
    e("s_load_dwordx8 s[24:31], s[0:1], 64")
    e("s_load_dwordx2 s[32:33], s[0:1], 96")
    stamp(0)
    e("v_lshrrev_b32 v1, 6, v0")
    e("v_and_b32 v0, 63, v0")
    e("v_readfirstlane_b32 s3, v1")
    e("s_lshr_b32 s34, s2, 3")
    e("s_and_b32 s35, s2, 7")
    e("s_mov_b32 s5, s3")
    if prefetch:
        e("s_cmp_eq_u32 s3, 3")
        e("s_cbranch_scc0 L_nopf")
        e("s_getpc_b64 s[60:61]")
        A.label("L_pc")
        e(f"s_sub_u32 s60, s60, L_pc-{NAME}")
        e("s_subb_u32 s61, s61, 0")
        e("s_and_b32 s61, s61, 0xffff")
        e(f"s_mov_b32 s62, L_codeend-{NAME}")
        e("s_mov_b32 s63, 0x20000")
        e("s_and_b32 s36, s34, 3")
        e("s_mul_i32 s36, s36, 5120")
        e("v_lshlrev_b32 v13, 4, v0")
        for k in range(4):
            e(f"buffer_load_dwordx4 v[40:43], v13, s[60:63], s36 offen offset:{1024*k}")
        e("s_add_u32 s36, s36, 4096")
        e(f"buffer_load_dwordx4 v[40:43], v13, s[60:63], s36 offen")
        A.label("L_nopf")
    e("s_cmp_ge_u32 s3, 4")
    e("s_cbranch_scc1 L_stream")
    def masks(t1=1, t2=2):
        e(f"v_and_b32 v{t1}, 1, v0")
        e(f"v_lshlrev_b32 v{t1}, 4, v{t1}")
        e(f"v_mov_b32 v{t2}, 0xffff")
        e(f"v_lshlrev_b32 v{t1}, v{t1}, v{t2}")
        e(f"v_bfe_u32 v{t2}, v0, 1, 2")
        for j in range(4):
            e(f"v_cmp_eq_u32 vcc, {j}, v{t2}")
            e(f"v_cndmask_b32 v{6+j}, 0, v{t1}, vcc")
    MARK_STREAM0 = len(A.items)

    A.label("L_stream")
    e("s_sub_u32 s3, s3, 4")
    e("s_and_b32 s37, s3, 1")
    e("s_lshl_b32 s36, s37, 5")
    e("s_add_u32 s36, s36, s34")
    e("s_lshl_b32 s36, s36, 20")
    e("s_waitcnt lgkmcnt(0)")
    if dbgspan:
        e("s_or_b32 s6, s34, s3")
        e("s_cmp_eq_u32 s6, 0")
        e("s_cbranch_scc0 L_nd0")
        dbg(0, True, 34)
        dbg(1, False, 34)
        A.label("L_nd0")
    e("s_add_u32 s48, s10, s36\ns_addc_u32 s49, s11, 0\ns_and_b32 s49, s49, 0xffff\ns_mov_b32 s50, 0x100000\ns_mov_b32 s51, 0x20000")
    e("s_add_u32 s52, s12, s36\ns_addc_u32 s53, s13, 0\ns_and_b32 s53, s53, 0xffff\ns_mov_b32 s54, 0x100000\ns_mov_b32 s55, 0x20000")
    if direct:
        e("s_load_dwordx2 s[92:93], s[32:33], 0")
        e(f"s_mov_b32 s44, s32\ns_and_b32 s45, s33, 0xffff\ns_mov_b32 s46, {WS_BYTES}\ns_mov_b32 s47, 0x20000")
    e("s_lshr_b32 s39, s3, 1")
    STRIDE = 16 if kpat else 2
    e(f"s_lshl_b32 s80, s35, {1 if kpat else 4}")
    e("s_add_u32 s80, s80, s39")
    e("v_lshlrev_b32 v1, 4, v0")
    def chunk_off():
        if rot and kpat:
            e("s_lshr_b32 s84, s80, 4")
            if rot != 1: e(f"s_mul_i32 s84, s84, {rot}")
            e("s_lshl_b32 s84, s84, 1")
            e("s_add_u32 s84, s84, s80")
            e("s_and_b32 s84, s84, 15")
            e("s_andn2_b32 s85, s80, 15")
            e("s_or_b32 s84, s84, s85")
            e("s_lshl_b32 s38, s84, 12")
        else:
            e("s_lshl_b32 s38, s80, 12")
    KR = lambda s, t: 40 + 16 * s + 4 * t
    VR = lambda s, t: 16 * s + 4 * t
    def loadK(s):
        for t in range(4):
            r = KR(s, t)
            e(f"buffer_load_dwordx4 v[{r}:{r+3}], v1, s[48:51], s38 offen offset:{1024*t}{NT}")
    def loadV(s):
        for t in range(4):
            r = VR(s, t)
            e(f"buffer_load_dwordx4 a[{r}:{r+3}], v1, s[52:55], s38 offen offset:{1024*t}{NT}")
    if tlog or tstep:
        e("s_mov_b32 s87, 0")
        e("v_mov_b32 v33, -1")
        e("v_mov_b32 v34, -1")
    if bar0: e("s_barrier")
    for c in range(D):
        if tlog:
            e("s_mov_b32 m0, s87")
            e("v_writelane_b32 v33, s80, m0")
            e("s_add_u32 s87, s87, 1")
        chunk_off()
        e(f"s_add_u32 s80, s80, {STRIDE}")
        if fillq is None:
            loadK(c); loadV(c)
        else:
            for half in range(2):
                if c * 8 + half * 4 + 4 > fillq:
                    e(f"s_waitcnt vmcnt({max(fillq - 4, 0)})")
                (loadK if half == 0 else loadV)(c)
        if qdelay is not None and c == qdelay:
            e("s_mov_b64 exec, 1")
            e(f"v_mov_b32 v20, {L_FP}")
            e("v_mov_b32 v21, 1")
            e("ds_add_u32 v20, v21")
            e("s_mov_b64 exec, -1")
    stamp(1)
    masks(20, 21)
    e(f"s_mov_b32 s81, {8 - D}")
    e("s_mov_b32 s82, 0")
    e("s_mov_b32 s83, 8")
    e("s_mov_b32 s62, 0")
    for k in range(D): e(f"s_mov_b32 s{56+k}, 0")
    e("s_mov_b32 s42, 0xf0f0f0f0\ns_mov_b32 s43, 0xf0f0f0f0")
    e("v_mov_b32 v35, 0xff800000")
    for r in range(4): e(f"v_mov_b32 v{10+r}, 0")
    e("v_mov_b32 v14, 0xff800000")
    e("v_mov_b32 v15, 0")
    e("v_and_b32 v16, 15, v0")
    e("v_lshlrev_b32 v16, 4, v16")
    e("s_lshl_b32 s40, s37, 8")
    e("v_add_u32 v16, s40, v16")
    if direct:
        e("s_waitcnt lgkmcnt(0)")
        e("s_add_u32 s92, s92, 0x7f4a7c15\ns_addc_u32 s93, s93, 0x9e3779b9")
        e(f"s_and_b32 s90, s92, {TAGM}")
        e("v_mov_b32 v32, s90")
        e(f"s_bfe_u32 s90, s92, 0x{(TAGB<<16)|TAGB:x}")
        e("v_mov_b32 v37, s90")
        e(f"s_bfe_u32 s90, s92, 0x{(TAGB<<16)|(2*TAGB):x}")
        e("v_mov_b32 v38, s90")
        e("s_lshr_b64 s[90:91], s[92:93], 30")
        e(f"s_and_b32 s90, s90, {TAGM}")
        e("v_mov_b32 v39, s90")
        e("s_lshl_b32 s90, s34, 1")
        e("s_add_u32 s90, s90, s37")
        e("s_lshl_b32 s90, s90, 4")
        e("s_lshl_b32 s91, s35, 1")
        e("s_add_u32 s90, s90, s91")
        e("s_add_u32 s90, s90, s39")
        e("s_lshl_b32 s92, s90, 9")
        e(f"s_add_u32 s92, s92, {OPW}")
        e("s_lshl_b32 s93, s90, 4")
        e(f"s_add_u32 s93, s93, {ML}")
        e(f"s_mov_b32 s94, {TAGM}")
    e("s_mov_b32 s86, 0")
    e("s_mov_b32 s88, 0x400000")
    e(f"s_mov_b32 s40, 0x{SCALE:x}")
    e(f"s_mov_b32 s41, 0x{LOG2E:x}")
    e(f"v_mov_b32 v36, {L_WANT}")
    e(f"v_mov_b32 v20, {L_FQ}")
    A.label("L_qspin")
    e("ds_read_b32 v21, v20")
    e("s_waitcnt lgkmcnt(0)")
    e("v_readfirstlane_b32 s90, v21")
    e("s_cmp_lg_u32 s90, 0")
    e("s_cbranch_scc1 L_qgo")
    e("s_sleep 1")
    e("s_sub_u32 s88, s88, 1")
    e("s_cmp_lg_u32 s88, 0")
    e("s_cbranch_scc1 L_qspin")
    A.label("L_qgo")
    e(f"ds_read_b128 v[2:5], v16 offset:{L_Q}")
    e("s_waitcnt lgkmcnt(0)")
    stamp(2)
    NKV = 8 * (D - 1)
    NTK = 12 if ntk is None else ntk
    A.label("L_sloop")
    for s in range(D):
        e("s_cmp_eq_u32 s86, 0")
        e(f"s_cbranch_scc1 L_nw{s}")
        e("s_cmp_eq_u32 s89, 0")
        e("s_cbranch_scc1 L_sdone")
        e("s_sub_u32 s89, s89, 1")
        if trig is not None:
            e(f"s_cmp_eq_u32 s89, {trig}")
            e(f"s_cbranch_scc0 L_nt{s}")
            e("s_mov_b64 exec, 1")
            e(f"v_mov_b32 v20, {L_FC}")
            e("v_mov_b32 v21, 1")
            e("ds_add_u32 v20, v21")
            e("s_mov_b64 exec, -1")
            A.label(f"L_nt{s}")
        e("s_cmp_ge_u32 s89, 2")
        e(f"s_cbranch_scc1 L_dw{s}")
        e("s_cmp_eq_u32 s89, 1")
        e(f"s_cbranch_scc1 L_w8{s}")
        e("s_waitcnt vmcnt(0)")
        e(f"s_branch L_go{s}")
        A.label(f"L_w8{s}")
        e("s_waitcnt vmcnt(8)")
        e(f"s_branch L_go{s}")
        A.label(f"L_dw{s}")
        e("s_waitcnt vmcnt(16)")
        e(f"s_branch L_go{s}")
        A.label(f"L_nw{s}")
        e(f"s_waitcnt vmcnt({NKV})")
        A.label(f"L_go{s}")
        if tstep:
            e("s_memrealtime s[90:91]")
            e("s_waitcnt lgkmcnt(0)")
            e("s_mov_b32 m0, s87")
            e("v_writelane_b32 v33, s90, m0")
            e("s_add_u32 s87, s87, 1")
        if tlog:
            e("s_mov_b32 m0, s87")
            e(f"v_writelane_b32 v33, s{64+s}, m0") if False else None
        for jj in range(4):
            for t in range(4):
                k = KR(s, t) + jj
                if jj == 0: e(f"v_dot2_f32_bf16 v{16+t}, v{k}, v2, 0")
                else: e(f"v_dot2c_f32_bf16 v{16+t}, v{k}, v{2+jj}")
        e("v_add_f32_dpp v20, v16, v16 row_ror:8 row_mask:0xf bank_mask:0x3")
        e("v_add_f32_dpp v21, v18, v18 row_ror:8 row_mask:0xf bank_mask:0x3")
        e("v_add_f32_dpp v20, v17, v17 row_ror:8 row_mask:0xf bank_mask:0xc")
        e("v_add_f32_dpp v21, v19, v19 row_ror:8 row_mask:0xf bank_mask:0xc")
        e("v_add_f32_dpp v22, v20, v20 row_shl:4 row_mask:0xf bank_mask:0x5")
        e("v_add_f32_dpp v22, v21, v21 row_shr:4 row_mask:0xf bank_mask:0xa")
        e("v_add_f32_dpp v22, v22, v22 quad_perm:[1,0,3,2] row_mask:0xf bank_mask:0xf")
        e("v_add_f32_dpp v22, v22, v22 quad_perm:[2,3,0,1] row_mask:0xf bank_mask:0xf")
        e("v_cvt_pk_bf16_f32 v23, v22, v22")
        e("v_and_b32 v23, 0xffff0000, v23")
        e("v_mul_f32 v23, s40, v23")
        e("v_cvt_pk_bf16_f32 v23, v23, v23")
        e("v_and_b32 v23, 0xffff0000, v23")
        if halves:
            e(f"s_cmp_eq_u32 s{56+s}, 0")
            e(f"s_cbranch_scc1 L_nh{s}")
            e("v_cndmask_b32 v23, v23, v35, s[42:43]")
            A.label(f"L_nh{s}")
        if fast:
            e("v_cmp_lt_f32 vcc, v14, v23")
            e("s_cmp_lg_u64 vcc, 0")
            e(f"s_cbranch_scc0 L_nomax{s}")
            e("v_max_f32_dpp v24, v23, v23 row_ror:4 row_mask:0xf bank_mask:0xf")
            e("v_max_f32_dpp v24, v24, v24 row_ror:8 row_mask:0xf bank_mask:0xf")
            e("v_mov_b32 v25, v24")
            e("v_permlane16_swap_b32 v24, v25")
            e("v_max_f32 v24, v24, v25")
            e("v_mov_b32 v25, v24")
            e("v_permlane32_swap_b32 v24, v25")
            e("v_max3_f32 v24, v24, v25, v14")
            e("v_sub_f32 v25, v14, v24")
            e("v_mul_f32 v25, s41, v25")
            e("v_exp_f32 v25, v25")
            e("v_mov_b32 v14, v24")
            e("v_mul_f32 v15, v15, v25")
            for r in range(4): e(f"v_mul_f32 v{10+r}, v{10+r}, v25")
            A.label(f"L_nomax{s}")
            e("v_sub_f32 v26, v23, v14")
            e("v_mul_f32 v26, s41, v26")
            e("v_exp_f32 v26, v26")
            e("v_cvt_pk_bf16_f32 v27, v26, v26")
            e("v_add_f32 v15, v15, v26")
            bank_lane = [0, 8, 4, 12]
            def bb(t):
                B = 28 if (t & 1) == 0 else 16
                for jj in range(4):
                    e(f"v_and_b32_dpp v{B+jj}, v27, v{6+jj} row_newbcast:{bank_lane[t]} row_mask:0xf bank_mask:0xf")
            def mm(t):
                B = 28 if (t & 1) == 0 else 16
                r = VR(s, t)
                e(f"v_mfma_f32_16x16x32_bf16 v[10:13], a[{r}:{r+3}], v[{B}:{B+3}], v[10:13]")
            bb(0); bb(1); mm(0); bb(2); mm(1); bb(3); mm(2); mm(3)
        else:
            e("v_max_f32_dpp v24, v23, v23 row_ror:4 row_mask:0xf bank_mask:0xf")
            e("v_max_f32_dpp v24, v24, v24 row_ror:8 row_mask:0xf bank_mask:0xf")
            e("v_mov_b32 v25, v24")
            e("v_permlane16_swap_b32 v24, v25")
            e("v_max_f32 v24, v24, v25")
            e("v_mov_b32 v25, v24")
            e("v_permlane32_swap_b32 v24, v25")
            e("v_max3_f32 v24, v24, v25, v14")
            e("v_sub_f32 v25, v14, v24")
            e("v_sub_f32 v26, v23, v24")
            e("v_mul_f32 v25, s41, v25")
            e("v_mul_f32 v26, s41, v26")
            e("v_exp_f32 v25, v25")
            e("v_exp_f32 v26, v26")
            e("v_mov_b32 v14, v24")
            e("v_fma_f32 v15, v15, v25, v26")
            e("v_cvt_pk_bf16_f32 v27, v26, v26")
            for r in range(4): e(f"v_mul_f32 v{10+r}, v{10+r}, v25")
            bank_lane = [0, 8, 4, 12]
            for t in range(4):
                B = 28 if (t & 1) == 0 else 16
                for jj in range(4):
                    e(f"v_and_b32_dpp v{B+jj}, v27, v{6+jj} row_newbcast:{bank_lane[t]} row_mask:0xf bank_mask:0xf")
                r = VR(s, t)
                e(f"v_mfma_f32_16x16x32_bf16 v[10:13], a[{r}:{r+3}], v[{B}:{B+3}], v[10:13]")
        if tstep:
            e("s_memrealtime s[90:91]")
            e("s_waitcnt lgkmcnt(0)")
            e("v_writelane_b32 v34, s90, m0")
        e("s_cmp_lg_u32 s86, 0")
        e(f"s_cbranch_scc1 L_nx{s}")
        if ntk_end is not None:
            e("s_cmp_eq_u32 s83, 1")
            e(f"s_cbranch_scc1 L_ne{s}")
            e(f"s_waitcnt vmcnt({NTK})")
            A.label(f"L_ne{s}")
            e(f"s_waitcnt vmcnt({ntk_end})")
        else:
            e(f"s_waitcnt vmcnt({NTK})")
        e("s_cmp_lg_u32 s81, 0")
        e(f"s_cbranch_scc1 L_have{s}")
        if static_tail:
            e("s_cmp_lg_u32 s82, 0")
            e(f"s_cbranch_scc1 L_drain{s}")
            e(f"s_lshl_b32 s90, s35, {1 if kpat else 4}")
            e("s_add_u32 s90, s90, 128")
            e("s_or_b32 s90, s90, 0x80000")
        else:
            e("s_lshl_b32 s90, s82, 2")
            e(f"s_add_u32 s90, s90, {L_MB}")
            e("v_mov_b32 v20, s90")
            A.label(f"L_mb{s}")
            e("ds_read_b32 v21, v20")
            e("s_waitcnt lgkmcnt(0)")
            e("v_readfirstlane_b32 s90, v21")
            e("s_cmp_lg_u32 s90, -1")
            e(f"s_cbranch_scc1 L_got{s}")
            e("s_sub_u32 s88, s88, 1")
            e("s_cmp_lg_u32 s88, 0")
            e(f"s_cbranch_scc1 L_mb{s}")
            e("s_mov_b32 s90, 256")
            A.label(f"L_got{s}")
        e("s_add_u32 s82, s82, 1")
        e("s_and_b32 s80, s90, 0xffff")
        e("s_bfe_u32 s81, s90, 0x80010")
        e("s_lshr_b32 s62, s90, 24")
        e("s_mov_b32 s83, s81")
        e("s_cmp_lt_u32 s80, 256")
        e("s_addc_u32 s80, s80, 0") if False else None
        e(f"s_cbranch_scc1 L_ok{s}")
        A.label(f"L_drain{s}")
        e("s_mov_b32 s86, 1")
        e(f"s_mov_b32 s89, {D-1}")
        if trig is None:
            e("s_mov_b64 exec, 1")
            e(f"v_mov_b32 v20, {L_FC}")
            e("v_mov_b32 v21, 1")
            e("ds_add_u32 v20, v21")
            e("s_mov_b64 exec, -1")
        stamp(3)
        e(f"s_branch L_nx{s}")
        A.label(f"L_ok{s}")
        e("s_add_u32 s80, s80, s39")
        A.label(f"L_have{s}")
        chunk_off()
        if halves:
            e(f"s_mov_b32 s{56+s}, s62")
            e("s_cmp_eq_u32 s62, 0")
            e(f"s_cbranch_scc1 L_full{s}")
            e("s_lshr_b32 s63, s62, 1")
            e("s_lshl_b32 s63, s63, 11")
            e("s_add_u32 s38, s38, s63")
            e("s_add_u32 s50, s38, 2048")
            e("s_mov_b32 s54, s50")
            A.label(f"L_full{s}")
        e(f"s_add_u32 s80, s80, {STRIDE}")
        e("s_sub_u32 s81, s81, 1")
        if tlog:
            e("s_lshr_b32 s90, s38, 12")
            e("s_mov_b32 m0, s87")
            e("v_writelane_b32 v33, s90, m0")
            e("s_add_u32 s87, s87, 1")
        loadK(s)
        if not static_tail:
            e(f"s_cmp_le_u32 s81, {req_at}")
            e(f"s_cbranch_scc0 L_nr{s}")
            e("s_add_u32 s90, s82, 1")
            if ahead2:
                e("s_cmp_eq_u32 s83, 1")
                e("s_addc_u32 s90, s90, 0")
            e("s_mov_b64 exec, 1")
            e("v_mov_b32 v21, s90")
            e("ds_max_u32 v36, v21")
            e("s_mov_b64 exec, -1")
            A.label(f"L_nr{s}")
        if split is not None: e(f"s_waitcnt vmcnt({split})")
        loadV(s)
        A.label(f"L_nx{s}")
        if s == D - 1:
            e("s_branch L_sloop")
    A.label("L_sdone")
    if dbgspan:
        e("s_and_b32 s6, s34, 7")
        e("s_or_b32 s6, s6, s3")
        e("s_cmp_eq_u32 s6, 0")
        e("s_cbranch_scc0 L_nd3")
        dbg(3, False, 34)
        A.label("L_nd3")
    stamp(4)
    e("v_add_f32_dpp v15, v15, v15 row_ror:4 row_mask:0xf bank_mask:0xf")
    e("v_add_f32_dpp v15, v15, v15 row_ror:8 row_mask:0xf bank_mask:0xf")
    e("v_mov_b32 v25, v15")
    e("v_permlane16_swap_b32 v15, v25")
    e("v_add_f32 v15, v15, v25")
    e("v_mov_b32 v25, v15")
    e("v_permlane32_swap_b32 v15, v25")
    e("v_add_f32 v15, v15, v25")
    if direct:
        e("v_lshrrev_b32 v16, 4, v0")
        e("v_lshlrev_b32 v16, 7, v16")
        e("v_and_b32 v17, 7, v0")
        e("v_lshl_add_u32 v16, v17, 4, v16")
        for r, tg in enumerate((32, 37, 38, 39)):
            e(f"v_bfi_b32 v{28+r}, s94, v{tg}, v{10+r}")
        e("s_mov_b32 exec_lo, 0x00ff00ff\ns_mov_b32 exec_hi, 0x00ff00ff")
        e("buffer_store_dwordx4 v[28:31], v16, s[44:47], s92 offen sc1")
        e("s_mov_b64 exec, 1")
        e("v_mov_b32 v24, 0")
        e("v_bfi_b32 v20, s94, v32, v14")
        e("v_bfi_b32 v21, s94, v37, v15")
        e("v_bfi_b32 v22, s94, v38, v24")
        e("v_bfi_b32 v23, s94, v39, v24")
        e("buffer_store_dwordx4 v[20:23], v24, s[44:47], s93 offen sc1")
        e("s_mov_b64 exec, -1")
    else:
        e("v_lshrrev_b32 v16, 4, v0")
        e("v_lshlrev_b32 v16, 7, v16")
        e("v_and_b32 v17, 7, v0")
        e("v_lshl_add_u32 v16, v17, 2, v16")
        e("s_lshl_b32 s37, s3, 9")
        e("v_add_u32 v16, s37, v16")
        for r in range(4):
            e(f"ds_write_b32 v16, v{10+r} offset:{L_OW + 32*r}")
        e("s_lshl_b32 s37, s3, 3")
        e("v_mov_b32 v17, s37")
        e(f"ds_write_b64 v17, v[14:15] offset:{L_MLW}")
        e("s_waitcnt lgkmcnt(0)")
        e("s_mov_b64 exec, 1")
        e(f"v_mov_b32 v28, {L_FB}")
        e("v_mov_b32 v29, 1")
        e("ds_add_u32 v28, v29")
        e("s_mov_b64 exec, -1")
    stamp(5)
    if tlog or tstep:
        e("s_lshl_b32 s6, s2, 3\ns_add_u32 s6, s6, s5\ns_lshl_b32 s6, s6, 8")
        e(f"s_add_u32 s6, s6, {TS + 0x80000}")
        e(f"s_mov_b32 s60, s32\ns_mov_b32 s61, s33\ns_mov_b32 s62, {WS_BYTES}\ns_mov_b32 s63, 0x20000")
        e("v_lshlrev_b32 v1, 2, v0")
        e("buffer_store_dword v33, v1, s[60:63], s6 offen")
        e(f"s_add_u32 s6, s6, 0x80000")
        e("buffer_store_dword v34, v1, s[60:63], s6 offen")
    dump_stamps(6)
    e("s_endpgm")

    MARK_STREAM1 = len(A.items)
    A.label("L_aux")
    e("s_setprio 3")
    e(f"s_mov_b32 s100, {1 if 'nopoll' in diag else SPIN}")
    e("s_mov_b32 s101, 0")
    if 'noaux' in diag:
        e("s_cmp_ge_u32 s3, 2")
        e("s_cbranch_scc1 L_aux23")
        e("s_barrier")
        e("s_endpgm")
    e("v_lshrrev_b32 v10, 4, v0")
    e("v_bfe_u32 v11, v0, 3, 1")
    e("v_and_b32 v12, 15, v0")
    e("s_cmp_ge_u32 s3, 2")
    e("s_cbranch_scc1 L_aux23")
    e("s_cmp_eq_u32 s3, 1")
    e("s_cbranch_scc1 L_p1")
    e("s_mul_i32 s36, s35, 72")
    e("s_mov_b32 s37, 18")
    e("s_mov_b32 s38, 8192")
    e("s_lshl_b32 s39, s34, 8")
    e("s_mul_i32 s40, s36, 8192")
    e("s_add_u32 s39, s39, s40")
    e("s_sub_u32 s54, 4718592, s39")
    e("s_mov_b32 s41, 99")
    e("s_mov_b32 s42, 1")
    e("s_mov_b32 s43, 14")
    e("s_branch L_p2")
    A.label("L_p1")
    e("s_mul_hi_u32 s43, s2, 0x71c71c8")
    e("s_mul_i32 s44, s43, 36")
    e("s_sub_u32 s44, s2, s44")
    e("s_mul_i32 s36, s43, 82")
    e("s_cmp_eq_u32 s43, 0")
    e("s_cselect_b32 s40, 0, 2")
    e("s_cselect_b32 s41, 99, 3")
    e("s_add_u32 s36, s36, s40")
    e("s_mov_b32 s37, 22")
    e("s_mov_b32 s38, 9216")
    e("s_lshl_b32 s39, s44, 8")
    e("s_mul_i32 s40, s36, 9216")
    e("s_add_u32 s39, s39, s40")
    e("s_sub_u32 s54, 5308416, s39")
    e("s_mov_b32 s42, 0")
    e("s_cmp_ge_u32 s2, 252")
    e("s_cselect_b32 s54, 0, s54")
    A.label("L_p2")
    e("v_lshrrev_b32 v13, 5, v0")
    e("v_mul_u32_u24 v13, 1152, v13")
    e("v_and_b32 v14, 31, v0")
    e("v_mad_u32_u24 v13, v14, 36, v13")
    e("v_mul_lo_u32 v14, v10, s37")
    e("v_add_u32 v15, s36, v14")
    e("v_lshlrev_b32 v15, 1, v15")
    e("v_mul_u32_u24 v16, 1152, v11")
    e("v_add_u32 v15, v15, v16")
    e("v_mul_lo_u32 v16, v14, s38")
    e("v_lshl_add_u32 v16, v12, 4, v16")
    e(f"v_mov_b32 v19, {OOB}")
    e("v_cmp_eq_u32 vcc, s41, v10")
    e("v_cndmask_b32 v17, v16, v19, vcc")
    e("v_cmp_eq_u32 vcc, 3, v10")
    e("v_cndmask_b32 v18, v16, v19, vcc")
    e("s_cmp_eq_u32 s42, 1")
    e("s_cselect_b64 vcc, -1, 0")
    e("v_cndmask_b32 v18, v18, v19, vcc")
    if 'now1' in diag: e("s_mov_b32 s54, 0")
    e("s_mov_b32 s62, 2304\ns_mov_b32 s63, 0x20000\ns_mov_b32 s55, 0x20000")
    pst(1)
    e("s_waitcnt lgkmcnt(0)")
    pst(2)
    e("s_load_dwordx2 s[46:47], s[32:33], 0")
    e("s_mov_b32 s60, s8\ns_and_b32 s61, s9, 0xffff")
    e("buffer_load_dwordx4 v[20:23], v13, s[60:63], 0 offen")
    e("buffer_load_dwordx4 v[24:27], v13, s[60:63], 0 offen offset:16")
    e("buffer_load_dword v28, v13, s[60:63], 0 offen offset:32")
    e("buffer_load_dwordx4 v[30:33], v15, s[60:63], 0 offen")
    e("buffer_load_dwordx4 v[34:37], v15, s[60:63], 0 offen offset:16")
    e("buffer_load_dwordx3 v[38:40], v15, s[60:63], 0 offen offset:32")
    e("s_cmp_eq_u32 s3, 1")
    e("s_cselect_b32 s52, s20, s14")
    e("s_cselect_b32 s53, s21, s15")
    e("s_add_u32 s52, s52, s39\ns_addc_u32 s53, s53, 0\ns_and_b32 s53, s53, 0xffff")
    def wloads():
        e("s_mov_b32 s45, 0")
        for t in range(22):
            vo = 16 if t < 16 else (17 if t < 18 else 18)
            e(f"buffer_load_dwordx4 a[{4*t}:{4*t+3}], v{vo}, s[52:55], s45 offen{NT}")
            if t < 21: e("s_add_u32 s45, s45, s38")
    if latew1:
        e("s_cmp_eq_u32 s3, 1")
        e("s_cbranch_scc1 L_now")
    wloads()
    if latew1: A.label("L_now")
    pst(3)
    if bar0: e("s_barrier")
    pst(4)
    stamp(1)
    e(f"s_mov_b32 s48, s32\ns_and_b32 s49, s33, 0xffff\ns_mov_b32 s50, {WS_BYTES}\ns_mov_b32 s51, 0x20000")
    masks()
    e("v_lshlrev_b32 v41, 2, v0")
    e("v_mov_b32 v42, 0")
    e("s_lshl_b32 s40, s34, 8")
    e(f"s_add_u32 s40, s40, {CNT}")
    e("s_add_u32 s56, s32, s40\ns_addc_u32 s57, s33, 0\ns_and_b32 s57, s57, 0xffff\ns_mov_b32 s59, 0x20000")
    e("s_or_b32 s40, s35, s3")
    e("s_cmp_eq_u32 s40, 0")
    e("s_cselect_b32 s58, 4, 0")
    e("buffer_store_dword v42, v41, s[56:59], 0 offen sc1")
    pst(5)
    if latew1:
        e("s_cmp_eq_u32 s3, 1")
        e("s_cbranch_scc0 L_xw0")
        e("s_waitcnt vmcnt(0)")
        A.label("L_xw0")
    e("s_waitcnt vmcnt(25)")
    pst(6)
    F = 44
    for k in range(9):
        e(f"v_lshlrev_b32 v{F+2*k}, 16, v{20+k}")
        e(f"v_and_b32 v{F+2*k+1}, 0xffff0000, v{20+k}")
    e(f"v_pk_add_f32 v[62:63], v[{F}:{F+1}], v[{F+2}:{F+3}]")
    for k in range(2, 9):
        e(f"v_pk_add_f32 v[62:63], v[62:63], v[{F+2*k}:{F+2*k+1}]")
    e("v_add_f32 v62, v62, v63")
    def red32(r, tmp):
        for sh in (8, 4, 2, 1):
            e(f"v_add_f32_dpp v{r}, v{r}, v{r} row_ror:{sh} row_mask:0xf bank_mask:0xf")
        e(f"v_mov_b32 v{tmp}, v{r}")
        e(f"v_permlane16_swap_b32 v{r}, v{tmp}")
        e(f"v_add_f32 v{r}, v{r}, v{tmp}")
    red32(62, 63)
    e("v_mul_f32 v62, 0x3ae38e39, v62")
    e("v_mov_b32 v63, v62")
    for k in range(9):
        e(f"v_pk_add_f32 v[{F+2*k}:{F+2*k+1}], v[{F+2*k}:{F+2*k+1}], v[62:63] neg_lo:[0,1] neg_hi:[0,1]")
    e(f"v_pk_mul_f32 v[64:65], v[{F}:{F+1}], v[{F}:{F+1}]")
    for k in range(1, 9):
        e(f"v_pk_fma_f32 v[64:65], v[{F+2*k}:{F+2*k+1}], v[{F+2*k}:{F+2*k+1}], v[64:65]")
    e("v_add_f32 v64, v64, v65")
    red32(64, 65)
    e("v_mul_f32 v64, 0x3ae38e39, v64")
    e("v_cvt_pk_bf16_f32 v62, v62, v62")
    e("v_and_b32 v62, 0xffff0000, v62")
    e("v_cvt_pk_bf16_f32 v64, v64, v64")
    e("v_and_b32 v64, 0xffff0000, v64")
    e("v_add_f32 v64, 0x3727c5ac, v64")
    e("v_cvt_pk_bf16_f32 v64, v64, v64")
    e("v_and_b32 v64, 0xffff0000, v64")
    e("v_sqrt_f32 v64, v64")
    e("v_cvt_pk_bf16_f32 v64, v64, v64")
    e("v_and_b32 v64, 0xffff0000, v64")
    e("v_rcp_f32 v64, v64")
    e("v_readlane_b32 s56, v62, 0")
    e("v_readlane_b32 s57, v62, 32")
    e("v_readlane_b32 s58, v64, 0")
    e("v_readlane_b32 s59, v64, 32")
    e("v_cmp_eq_u32 vcc, 1, v11")
    e("v_mov_b32 v62, s56")
    e("v_mov_b32 v63, s57")
    e("v_cndmask_b32 v62, v62, v63, vcc")
    e("v_mov_b32 v64, s58")
    e("v_mov_b32 v65, s59")
    e("v_cndmask_b32 v64, v64, v65, vcc")
    e("v_mov_b32 v63, v62")
    e("v_mov_b32 v65, v64")
    pst(7)
    e("s_waitcnt vmcnt(22)")
    pst(8)
    for k in range(11):
        x = 30 + k
        e(f"v_lshlrev_b32 v66, 16, v{x}")
        e(f"v_and_b32 v67, 0xffff0000, v{x}")
        e("v_pk_add_f32 v[66:67], v[66:67], v[62:63] neg_lo:[0,1] neg_hi:[0,1]")
        e("v_cvt_pk_bf16_f32 v68, v66, v67")
        e("v_lshlrev_b32 v66, 16, v68")
        e("v_and_b32 v67, 0xffff0000, v68")
        e("v_pk_mul_f32 v[66:67], v[66:67], v[64:65]")
        e(f"v_cvt_pk_bf16_f32 v{x}, v66, v67")
    stamp(2)
    pst(9)
    if latew1:
        e("s_cmp_eq_u32 s3, 1")
        e("s_cbranch_scc0 L_now2")
        wloads()
        A.label("L_now2")
    e("s_mov_b32 s56, 0x01000100")
    e("s_mov_b32 s57, 0x03020302")
    for r in range(4): e(f"v_mov_b32 v{70+r}, 0")
    for t in range(22):
        B = 76 + 4 * (t & 1)
        e(f"v_perm_b32 v74, v{30 + t//2}, v{30 + t//2}, s{56 + (t & 1)}")
        for jj in range(4):
            e(f"v_and_b32 v{B+jj}, v74, v{6+jj}")
        e(f"s_waitcnt vmcnt({21 - t})")
        e(f"v_mfma_f32_16x16x32_bf16 v[70:73], a[{4*t}:{4*t+3}], v[{B}:{B+3}], v[70:73]")
    stamp(3)
    pst(10)
    def make_tags():
        e("s_waitcnt lgkmcnt(0)")
        e("s_add_u32 s46, s46, 0x7f4a7c15\ns_addc_u32 s47, s47, 0x9e3779b9")
        e(f"s_and_b32 s44, s46, {TAGM}")
        e("v_mov_b32 v2, s44")
        e(f"s_bfe_u32 s44, s46, 0x{(TAGB<<16)|TAGB:x}")
        e("v_mov_b32 v3, s44")
        e(f"s_bfe_u32 s44, s46, 0x{(TAGB<<16)|(2*TAGB):x}")
        e("v_mov_b32 v4, s44")
        e("s_lshr_b64 s[56:57], s[46:47], 30")
        e(f"s_and_b32 s44, s56, {TAGM}")
        e("v_mov_b32 v5, s44")
        e(f"s_mov_b32 s44, {TAGM}")
        e(f"s_mov_b32 s45, 0x{VALM:x}")
    def epsig():
        e("s_mov_b64 exec, 1")
        e(f"v_mov_b32 v13, {L_EP}")
        e("v_mov_b32 v14, 1")
        e("ds_add_u32 v13, v14")
        e("s_mov_b64 exec, -1")
    def tagpack(dst, src, rn=False):
        if rn:
            for r in range(4):
                e(f"v_add_u32 v{dst+r}, {1 << (TAGB - 1)}, v{src+r}")
            src = dst
        for r in range(4):
            e(f"v_bfi_b32 v{dst+r}, s44, v{2+r}, v{src+r}")
    def tagcheck(regs, tmp):
        first = True
        for base in regs:
            for r in range(4):
                if first:
                    e(f"v_xor_b32 v{tmp}, v{base+r}, v{2+r}"); first = False
                else:
                    e(f"v_bitop3_b32 v{tmp}, v{base+r}, v{2+r}, v{tmp} bitop3:0xbe")
        e(f"v_and_b32 v{tmp}, s44, v{tmp}")
        e(f"v_cmp_eq_u32 vcc, 0, v{tmp}")
    pollid = [0]
    def poll(issue, regs, tmp, cnt="s4", nosleep=False):
        n = pollid[0]; pollid[0] += 1
        e(f"s_mov_b32 {cnt}, s100")
        A.label(f"L_poll{n}")
        issue()
        e("s_waitcnt vmcnt(0)")
        tagcheck(regs, tmp)
        e("s_cmp_eq_u64 vcc, exec")
        e(f"s_cbranch_scc1 L_pdone{n}")
        if sleep and not nosleep: e(f"s_sleep {sleep}")
        e(f"s_sub_u32 {cnt}, {cnt}, 1")
        e(f"s_cmp_lg_u32 {cnt}, 0")
        e(f"s_cbranch_scc1 L_poll{n}")
        A.label(f"L_pdone{n}")
    def ldsspin(addr, target, nosleep=False):
        n = pollid[0]; pollid[0] += 1
        e(f"s_mov_b32 s4, {SPIN}")
        e(f"v_mov_b32 v20, {addr}")
        A.label(f"L_poll{n}")
        e("ds_read_b32 v21, v20")
        e("s_waitcnt lgkmcnt(0)")
        e("v_readfirstlane_b32 s6, v21")
        e(f"s_cmp_ge_u32 s6, {target}")
        e(f"s_cbranch_scc1 L_pdone{n}")
        if sleep and not nosleep: e(f"s_sleep {sleep}")
        e("s_sub_u32 s4, s4, 1")
        e("s_cmp_lg_u32 s4, 0")
        e(f"s_cbranch_scc1 L_poll{n}")
        A.label(f"L_pdone{n}")

    def dispatcher():
        if static_tail: return
        e("s_cmp_eq_u32 s3, 0")
        e("s_cbranch_scc0 L_nodisp")
        e("s_lshl_b32 s94, s34, 8")
        e(f"s_add_u32 s94, s94, {CNT}")
        e("s_add_u32 s56, s32, s94\ns_addc_u32 s57, s33, 0\ns_and_b32 s57, s57, 0xffff\ns_mov_b32 s58, 4\ns_mov_b32 s59, 0x20000")
        e("v_mov_b32 v13, 0")
        e(f"v_mov_b32 v14, {L_WANT}")
        e("s_mov_b32 s90, 0")
        e(f"s_mov_b32 s4, {SPIN * 8}")
        e("s_mov_b64 exec, 1")
        A.label("L_dloop")
        e("ds_read_b32 v15, v14")
        e("s_waitcnt lgkmcnt(0)")
        e("v_readfirstlane_b32 s91, v15")
        e("s_cmp_gt_u32 s91, s90")
        e("s_cbranch_scc1 L_dget")
        e("s_sleep 1")
        e("s_sub_u32 s4, s4, 1")
        e("s_cmp_lg_u32 s4, 0")
        e("s_cbranch_scc1 L_dloop")
        e("s_mov_b32 s92, 256")
        e("s_branch L_dput")
        A.label("L_dget")
        e("v_mov_b32 v15, 1")
        e("buffer_atomic_add v15, v13, s[56:59], 0 offen sc0 sc1")
        e("s_waitcnt vmcnt(0)")
        e("v_readfirstlane_b32 s91, v15")
        e("s_mov_b32 s92, 256")
        k0, st0 = 0, 128
        for gi, ph in enumerate(gss):
            cnt, nper = ph[0], ph[1]
            half = len(ph) > 2 and ph[2]
            e(f"s_sub_u32 s93, s91, {k0}")
            if half:
                assert cnt % 16 == 0 and nper == 1
                e("s_and_b32 s94, s93, 7")
                e("s_lshl_b32 s94, s94, 1")
                e("s_lshr_b32 s95, s93, 4")
                e("s_lshl_b32 s95, s95, 4")
                e("s_add_u32 s94, s94, s95")
                e("s_bfe_u32 s95, s93, 0x10003")
                e("s_lshl_b32 s95, s95, 25")
                e("s_add_u32 s94, s94, s95")
                e(f"s_add_u32 s94, s94, {st0 + (1 << 16) + (1 << 24)}")
                covered = cnt
            else:
                assert cnt % 8 == 0
                e("s_and_b32 s94, s93, 7")
                e("s_lshl_b32 s94, s94, 1")
                e("s_lshr_b32 s95, s93, 3")
                e(f"s_mul_i32 s95, s95, {16*nper}")
                e("s_add_u32 s94, s94, s95")
                e(f"s_add_u32 s94, s94, {st0 + (nper << 16)}")
                covered = cnt * 2 * nper
            e(f"s_cmp_lt_u32 s93, {cnt}")
            e("s_cselect_b32 s92, s94, s92")
            k0 += cnt; st0 += covered
        assert st0 == 256, st0
        assert k0 + 3 <= 64
        if dtrig is not None:
            e(f"s_cmp_ge_u32 s91, {dtrig}")
            e("s_cbranch_scc0 L_dnt")
            e(f"v_mov_b32 v15, {L_FC}")
            e("v_mov_b32 v16, 4")
            e("ds_write_b32 v15, v16")
            A.label("L_dnt")
        A.label("L_dput")
        e("s_lshl_b32 s93, s90, 2")
        e(f"s_add_u32 s93, s93, {L_MB}")
        e("v_mov_b32 v15, s93")
        e("v_mov_b32 v16, s92")
        e("ds_write_b32 v15, v16")
        e("s_add_u32 s90, s90, 1")
        e("s_cmp_eq_u32 s92, 256")
        e("s_cbranch_scc0 L_dloop")
        e("s_waitcnt lgkmcnt(0)")
        e("s_mov_b64 exec, -1")
        A.label("L_nodisp")

    make_tags()
    e("s_cmp_eq_u32 s3, 1")
    e("s_cbranch_scc1 L_hpub")
    ldsspin(L_EP, 3, nosleep=True)
    e("s_waitcnt vmcnt(0)")
    tagpack(74, 70, rn=True)
    e("v_lshlrev_b32 v13, 4, v0")
    e("s_lshl_b32 s36, s2, 10")
    e(f"s_add_u32 s36, s36, {QP}")
    e("buffer_store_dwordx4 v[74:77], v13, s[48:51], s36 offen sc1")
    stamp(4)
    pst(11)
    e("v_lshlrev_b32 v13, 4, v0")
    e("s_lshl_b32 s36, s34, 13")
    e(f"s_add_u32 s36, s36, {QP}")
    e("s_add_u32 s37, s36, 4096")
    if qdelay is not None: ldsspin(L_FP, 1)
    def issue_q():
        for k in range(8):
            e(f"buffer_load_dwordx4 v[{20+4*k}:{23+4*k}], v13, s[48:51], s{36 + k//4} offen offset:{1024*(k%4)} sc1")
    poll(issue_q, [20 + 4 * k for k in range(8)], 52)
    pst(12)
    for r in range(4):
        for k in range(8): e(f"v_and_b32 v{20+4*k+r}, s45, v{20+4*k+r}")
        for k in (0, 2, 4, 6): e(f"v_add_f32 v{20+4*k+r}, v{20+4*k+r}, v{24+4*k+r}")
        e(f"v_add_f32 v{20+r}, v{20+r}, v{28+r}")
        e(f"v_add_f32 v{36+r}, v{36+r}, v{44+r}")
        e(f"v_add_f32 v{20+r}, v{20+r}, v{36+r}")
    e("v_cvt_pk_bf16_f32 v24, v20, v21")
    e("v_cvt_pk_bf16_f32 v25, v22, v23")
    e("v_lshlrev_b32 v13, 8, v11")
    e("v_lshl_add_u32 v13, v10, 6, v13")
    e("v_and_b32 v14, 7, v0")
    e("v_lshl_add_u32 v13, v14, 1, v13")
    e(f"ds_write_b16 v13, v24 offset:{L_Q}")
    e(f"ds_write_b16_d16_hi v13, v24 offset:{L_Q+16}")
    e(f"ds_write_b16 v13, v25 offset:{L_Q+32}")
    e(f"ds_write_b16_d16_hi v13, v25 offset:{L_Q+48}")
    e("s_waitcnt lgkmcnt(0)")
    e(f"v_mov_b32 v13, {L_FQ}")
    e("v_mov_b32 v14, 1")
    e("ds_write_b32 v13, v14")
    stamp(5)
    pst(13)
    e("s_branch L_barA")
    A.label("L_hpub")
    epsig()
    e("s_cmp_ge_u32 s2, 252")
    e("s_cbranch_scc1 L_barA")
    e("v_lshlrev_b32 v13, 9, v11")
    e("v_lshl_add_u32 v13, v10, 7, v13")
    e("v_and_b32 v14, 7, v0")
    e("v_lshl_add_u32 v13, v14, 2, v13")
    for r in range(4):
        e(f"ds_write_b32 v13, v{70+r} offset:{L_HT + 32*r}")
    e("v_lshlrev_b32 v14, 4, v0")
    e("s_waitcnt lgkmcnt(0)")
    e(f"ds_read_b128 v[70:73], v14 offset:{L_HT}")
    e("v_lshrrev_b32 v13, 5, v0")
    e("v_mul_u32_u24 v13, 18432, v13")
    e("v_and_b32 v14, 31, v0")
    e("v_lshl_add_u32 v13, v14, 4, v13")
    e("s_mul_hi_u32 s43, s2, 0x71c71c8")
    e("s_mul_i32 s36, s43, 36")
    e("s_sub_u32 s36, s2, s36")
    e("s_lshl_b32 s36, s36, 9")
    e("s_mul_i32 s37, s43, 36864")
    e("s_add_u32 s36, s36, s37")
    e(f"s_add_u32 s36, s36, {HP}")
    e("s_waitcnt lgkmcnt(0)")
    tagpack(74, 70, rn=True)
    e("buffer_store_dwordx4 v[74:77], v13, s[48:51], s36 offen sc1")
    stamp(4)
    e("s_branch L_barA")
    A.label("L_aux23")
    e("s_mov_b64 exec, 1")
    e(f"v_mov_b32 v13, {L_FC}")
    e("v_mov_b32 v14, 0")
    e("v_mov_b32 v15, 0")
    e("ds_write_b64 v13, v[14:15]")
    if 'noq' in diag: e("v_mov_b32 v15, 1")
    e("ds_write_b64 v13, v[14:15] offset:8")
    e("ds_write_b32 v13, v14 offset:16")
    e("ds_write_b32 v13, v14 offset:20")
    e("s_mov_b64 exec, -1")
    e("v_lshlrev_b32 v13, 2, v0")
    e("v_mov_b32 v14, -1")
    e(f"ds_write_b32 v13, v14 offset:{L_MB}")
    e("s_waitcnt lgkmcnt(0)")
    e("s_load_dwordx2 s[46:47], s[32:33], 0")
    e(f"s_mov_b32 s48, s32\ns_and_b32 s49, s33, 0xffff\ns_mov_b32 s50, {WS_BYTES}\ns_mov_b32 s51, 0x20000")
    if tlb:
        e("s_cmp_eq_u32 s3, 2")
        e("s_cbranch_scc0 L_notlb")
        e("v_lshlrev_b32 v13, 16, v0")
        e("s_cmp_lt_u32 s2, 16")
        e(f"s_cselect_b32 s50, 0x300000, 0")
        e("buffer_load_dword v120, v13, s[48:51], 0 offen")
        e(f"s_mov_b32 s50, {WS_BYTES}")
        e("s_lshr_b32 s36, s2, 1")
        e("v_lshlrev_b32 v14, 15, v0")
        e("s_mul_i32 s37, s36, 36864")
        e("s_add_u32 s60, s16, s37\ns_addc_u32 s61, s17, 0\ns_and_b32 s61, s61, 0xffff\ns_mov_b32 s62, 36864\ns_mov_b32 s63, 0x20000")
        e("buffer_load_dword v121, v14, s[60:63], 0 offen")
        e("s_mul_i32 s37, s36, 41472")
        e("s_add_u32 s60, s24, s37\ns_addc_u32 s61, s25, 0\ns_and_b32 s61, s61, 0xffff\ns_mov_b32 s62, 41472")
        e("buffer_load_dword v122, v14, s[60:63], 0 offen")
        e("s_mov_b32 s60, s28\ns_and_b32 s61, s29, 0xffff\ns_mov_b32 s62, 4")
        e("buffer_load_dword v123, v14, s[60:63], 0 offen")
        e("s_mov_b32 s60, s26\ns_and_b32 s61, s27, 0xffff")
        e("buffer_load_dword v124, v14, s[60:63], 0 offen")
        e("s_mov_b32 s60, s22\ns_and_b32 s61, s23, 0xffff")
        e("buffer_load_dword v125, v14, s[60:63], 0 offen")
        A.label("L_notlb")
    if bar0: e("s_barrier")
    if 'noaux' in diag: e("s_endpgm")
    masks()
    make_tags()
    epsig()
    A.label("L_barA")
    stamp(6)
    if wmode != 'early': dispatcher()
    if warm:
        e("s_cmp_eq_u32 s3, 1")
        e("s_cbranch_scc0 L_nodry1")
        e("s_cmp_lt_u32 s2, 36")
        e("s_cbranch_scc0 L_nodry1")
        e("s_mov_b32 s100, 1\ns_mov_b32 s101, 1\ns_mov_b32 s50, 0")
        e("s_branch L_red")
        A.label("L_drydone1")
        e(f"s_mov_b32 s100, {SPIN}\ns_mov_b32 s101, 0\ns_mov_b32 s50, {WS_BYTES}")
        A.label("L_nodry1")
    e("s_and_b32 s36, s35, 1")
    e("s_lshr_b32 s37, s2, 1")
    e("s_mov_b32 s40, 2\ns_mov_b32 s41, 0")
    e("s_cmp_ge_u32 s3, 2")
    e("s_cbranch_scc1 L_t23")
    e("s_mov_b32 s38, 0")
    e("s_lshl_b32 s39, s36, 1")
    e("s_add_u32 s39, s39, s3")
    e("s_branch L_tdone")
    A.label("L_t23")
    e("s_mov_b32 s38, 1")
    e("s_lshl_b32 s39, s36, 1")
    e("s_sub_u32 s39, s3, s39")
    e("s_cmp_eq_u32 s3, 2")
    e("s_cbranch_scc0 L_th2")
    e("s_mov_b32 s41, 4")
    e("s_xor_b32 s40, s36, 1")
    if w2late:
        e("s_cmp_eq_u32 s36, 1")
        e("s_cbranch_scc0 L_th2")
        e("s_mov_b32 s38, 0\ns_mov_b32 s39, 4\ns_mov_b32 s40, 1\ns_mov_b32 s41, 0")
    A.label("L_th2")
    e("s_mov_b64 exec, 0x3ffff")
    e("v_cmp_le_u32 vcc, 9, v0")
    e("v_cndmask_b32 v13, 0, 1, vcc")
    e("v_mul_u32_u24 v14, 9, v13")
    e("v_sub_u32 v14, v0, v14")
    e("v_mul_u32_u24 v15, 18432, v13")
    e("v_lshl_add_u32 v15, v14, 4, v15")
    e("s_mul_i32 s42, s37, 144")
    e(f"s_add_u32 s42, s42, {HP}")
    e("s_mov_b32 s60, s22\ns_and_b32 s61, s23, 0xffff\ns_mov_b32 s62, 9216\ns_mov_b32 s63, 0x20000")
    e("s_mul_i32 s43, s37, 72")
    e("v_lshlrev_b32 v16, 3, v14")
    e("buffer_load_dwordx2 v[18:19], v16, s[60:63], s43 offen")
    if lateh and not static_tail:
        e("s_mov_b64 exec, -1")
        ldsspin(L_WANT, 1)
        e("s_mov_b64 exec, 0x3ffff")
    def issue_h():
        e("s_mov_b32 s43, s42")
        for k in range(7):
            e(f"buffer_load_dwordx4 v[{20+4*k}:{23+4*k}], v15, s[48:51], s43 offen sc1")
            if k < 6: e("s_add_u32 s43, s43, 36864")
    poll(issue_h, [20 + 4 * k for k in range(7)], 48)
    for r in range(4):
        for k in range(7): e(f"v_and_b32 v{20+4*k+r}, s45, v{20+4*k+r}")
        for k in range(1, 7): e(f"v_add_f32 v{20+r}, v{20+r}, v{20+4*k+r}")
    e("v_lshlrev_b32 v24, 16, v18\nv_and_b32 v25, 0xffff0000, v18\nv_lshlrev_b32 v26, 16, v19\nv_and_b32 v27, 0xffff0000, v19")
    for r in range(4):
        e(f"v_cvt_pk_bf16_f32 v{20+r}, v{20+r}, v{20+r}")
        e(f"v_and_b32 v{20+r}, 0xffff0000, v{20+r}")
        e(f"v_add_f32 v{20+r}, v{20+r}, v{24+r}")
        e(f"v_cvt_pk_bf16_f32 v{20+r}, v{20+r}, v{20+r}")
        e(f"v_and_b32 v{20+r}, 0xffff0000, v{20+r}")
        e(f"v_max_f32 v{20+r}, 0, v{20+r}")
        e(f"v_mul_f32 v{20+r}, v{20+r}, v{20+r}")
        e(f"v_cvt_pk_bf16_f32 v{20+r}, v{20+r}, v{20+r}")
    e("v_mul_u32_u24 v16, 144, v13")
    e("v_lshl_add_u32 v16, v14, 4, v16")
    e("s_lshl_b32 s43, s3, 10")
    e("v_add_u32 v16, s43, v16")
    e(f"ds_write_b128 v16, v[20:23] offset:{L_PRIV}")
    e("s_mov_b64 exec, -1")
    e("s_waitcnt lgkmcnt(0)")
    A.label("L_tdone")
    stamp(7)
    def task_srd(srd, typ, beta, voff):
        n = pollid[0]; pollid[0] += 1
        e(f"s_cmp_eq_u32 {typ}, 1")
        e(f"s_cbranch_scc1 L_sw2_{n}")
        e("s_mul_i32 s42, s37, 36864")
        e(f"s_lshl_b32 s43, {beta}, 8")
        e("s_add_u32 s42, s42, s43")
        e(f"s_add_u32 s{srd}, s16, s42\ns_addc_u32 s{srd+1}, s17, 0")
        e(f"s_sub_u32 s{srd+2}, 4718592, s42")
        e("s_mov_b32 s43, 9216")
        e(f"s_branch L_sd_{n}")
        A.label(f"L_sw2_{n}")
        e("s_mul_i32 s42, s37, 41472")
        e(f"s_lshl_b32 s43, {beta}, 8")
        e("s_add_u32 s42, s42, s43")
        e(f"s_add_u32 s{srd}, s24, s42\ns_addc_u32 s{srd+1}, s25, 0")
        e(f"s_sub_u32 s{srd+2}, 5308416, s42")
        e("s_mov_b32 s43, 10368")
        A.label(f"L_sd_{n}")
        e(f"s_and_b32 s{srd+1}, s{srd+1}, 0xffff\ns_mov_b32 s{srd+3}, 0x20000")
        e(f"s_cmp_eq_u32 {typ}, 2")
        e(f"s_cselect_b32 s{srd+2}, 0, s{srd+2}")
        e(f"v_mul_lo_u32 v{voff}, v10, s43")
        e(f"v_lshl_add_u32 v{voff}, v12, 4, v{voff}")
        e(f"v_mov_b32 v19, {OOB}")
        e("v_cmp_le_u32 vcc, 8, v12")
        e(f"v_cndmask_b32 v18, v{voff}, v19, vcc")
        e(f"s_cmp_eq_u32 {beta}, 4")
        e(f"s_cbranch_scc0 L_se_{n}")
        e(f"v_mov_b32 v{voff}, v18")
        A.label(f"L_se_{n}")
    task_srd(52, "s38", "s39", 13)
    task_srd(56, "s40", "s41", 14)
    if 'nowo' in diag:
        e("s_mov_b32 s54, 0\ns_mov_b32 s58, 0")
    e(f"v_mov_b32 v19, {OOB}")
    e("s_cmp_eq_u32 s38, 0\ns_cselect_b64 vcc, -1, 0")
    e("v_cndmask_b32 v15, v13, v19, vcc")
    e("s_cmp_eq_u32 s40, 0\ns_cselect_b64 vcc, -1, 0")
    e("v_cndmask_b32 v16, v14, v19, vcc")
    e("v_lshrrev_b32 v90, 3, v0")
    e("v_lshlrev_b32 v90, 14, v90")
    e("v_and_b32 v91, 7, v0")
    e("v_lshl_add_u32 v90, v91, 4, v90")
    e("v_cmp_le_u32 vcc, 32, v0")
    e("v_cndmask_b32 v92, v90, v19, vcc")
    e("s_cmp_eq_u32 s41, 4\ns_cselect_b64 vcc, -1, 0")
    e("v_cndmask_b32 v91, v90, v92, vcc")
    e("s_cmp_eq_u32 s39, 4\ns_cselect_b64 vcc, -1, 0")
    e("v_cndmask_b32 v90, v90, v92, vcc")
    for (typ, beta, dst) in (("s38", "s39", "s96"), ("s40", "s41", "s97")):
        e(f"s_mov_b32 {dst}, {SP}")
        e(f"s_cmp_eq_u32 {typ}, 1")
        e(f"s_cselect_b32 {dst}, {GP}, {dst}")
        e(f"s_lshl_b32 s42, {beta}, 17")
        e(f"s_add_u32 {dst}, {dst}, s42")
        e("s_lshl_b32 s42, s37, 7")
        e(f"s_add_u32 {dst}, {dst}, s42")
    e("v_and_b32 v93, 3, v0")
    e("v_bfe_u32 v94, v0, 4, 1")
    e("v_lshl_add_u32 v93, v94, 2, v93")
    e("v_bfe_u32 v94, v0, 2, 2")
    e("v_lshrrev_b32 v95, 5, v0")
    if direct:
        e("v_lshlrev_b32 v96, 13, v95")
        e("v_lshl_add_u32 v96, v94, 9, v96")
        e("v_lshl_add_u32 v96, v93, 4, v96")
        e("v_lshlrev_b32 v97, 8, v95")
        e("v_lshl_add_u32 v97, v94, 4, v97")
        e("s_lshr_b32 s98, s35, 1")
        e("s_lshl_b32 s98, s98, 7")
        e("s_lshl_b32 s42, s34, 14")
        e("s_add_u32 s98, s98, s42")
        e(f"s_add_u32 s98, s98, {OPW}")
        e("s_add_u32 s63, s98, 4096")
        e("s_lshl_b32 s99, s34, 9")
        e(f"s_add_u32 s99, s99, {ML}")
        e("s_lshl_b32 s42, s3, 10")
        e(f"s_add_u32 s42, s42, {L_PRIV + 0x200}")
        e("v_lshlrev_b32 v98, 7, v95")
        e("v_lshl_add_u32 v98, v93, 2, v98")
        e("v_add_u32 v98, s42, v98")
    else:
        e("v_lshlrev_b32 v96, 12, v95")
        e("v_lshl_add_u32 v96, v94, 9, v96")
        e("v_lshl_add_u32 v96, v93, 4, v96")
        e("v_lshlrev_b32 v97, 7, v95")
        e("v_lshl_add_u32 v97, v94, 4, v97")
        e("s_lshr_b32 s98, s35, 1")
        e("s_lshl_b32 s98, s98, 7")
        e("s_lshl_b32 s42, s34, 13")
        e("s_add_u32 s98, s98, s42")
        e(f"s_add_u32 s98, s98, {OP}")
        e("s_lshl_b32 s99, s34, 8")
        e(f"s_add_u32 s99, s99, {ML}")
        e("s_lshl_b32 s42, s3, 10")
        e(f"s_add_u32 s42, s42, {L_PRIV + 0x200}")
        e("v_lshlrev_b32 v98, 7, v95")
        e("v_lshl_add_u32 v98, v93, 4, v98")
        e("v_add_u32 v98, s42, v98")
    e("v_lshlrev_b32 v99, 7, v11")
    e("v_lshl_add_u32 v99, v10, 5, v99")
    e("v_add_u32 v99, s42, v99")
    e("s_cmp_ge_u32 s3, 2")
    e("s_cbranch_scc0 L_noh2")
    e("v_mul_u32_u24 v20, 144, v11")
    e("v_mad_u32_u24 v20, v10, 36, v20")
    e("s_lshl_b32 s42, s3, 10")
    e("v_add_u32 v20, s42, v20")
    for t in range(9):
        e(f"ds_read_b32 v{100+t}, v20 offset:{L_PRIV + 4*t}")
    e("s_waitcnt lgkmcnt(0)")
    A.label("L_noh2")
    e("v_and_b32 v110, 31, v0")
    e("v_lshlrev_b32 v110, 4, v110")
    e("v_lshl_add_u32 v111, v95, 9, v110")
    e("v_lshlrev_b32 v112, 3, v95")
    e("v_lshl_add_u32 v113, v95, 12, v110")
    e("v_lshlrev_b32 v114, 7, v95")
    e("s_lshl_b32 s60, s34, 13")
    e("s_lshl_b32 s43, s35, 9")
    e("s_add_u32 s60, s60, s43")
    e(f"s_add_u32 s60, s60, {OP}")
    e("s_lshl_b32 s61, s34, 8")
    e("s_lshl_b32 s43, s35, 4")
    e("s_add_u32 s61, s61, s43")
    e(f"s_add_u32 s61, s61, {ML}")
    e(f"s_mov_b32 s62, 0x{LOG2E:x}")
    if warm:
        e("s_cmp_eq_u32 s3, 1")
        e("s_cbranch_scc1 L_dry2")
        if direct:
            e("s_branch L_nodry2")
        else:
            e("s_cmp_eq_u32 s3, 3")
            e("s_cbranch_scc0 L_nodry2")
            e("s_mov_b32 s100, 1\ns_mov_b32 s101, 1\ns_mov_b32 s50, 0")
            e("s_branch L_comb")
        A.label("L_dry2")
        e("s_mov_b32 s100, 1\ns_mov_b32 s101, 1\ns_mov_b32 s50, 0")
        e("s_branch L_btX")
        A.label("L_drydone2")
        e(f"s_mov_b32 s100, {SPIN}\ns_mov_b32 s101, 0\ns_mov_b32 s50, {WS_BYTES}")
        A.label("L_nodry2")
    if wmode == 'flagC': ldsspin(L_FC, 4)
    if wmode == 'flagB': ldsspin(L_FB, 4)
    stamp(8)
    def xloads():
        e("s_mov_b32 s42, 0")
        for t in range(9):
            vo = 13 if t < 8 else 15
            e(f"buffer_load_dwordx4 a[{4*t}:{4*t+3}], v{vo}, s[52:55], s42 offen{NT}")
            e("s_add_u32 s42, s42, 1152") if t < 8 else None
    def yloads():
        e("s_mov_b32 s42, 0")
        for t in range(9):
            vo = 14 if t < 8 else 16
            e(f"buffer_load_dwordx4 a[{36+4*t}:{36+4*t+3}], v{vo}, s[56:59], s42 offen{NT}")
            e("s_add_u32 s42, s42, 1152") if t < 8 else None
    if not w2late:
        xloads()
        e("s_cmp_eq_u32 s40, 2")
        e("s_cbranch_scc1 L_noy")
        yloads()
        A.label("L_noy")
    else:
        e("s_cmp_eq_u32 s38, 0")
        e("s_cbranch_scc0 L_xl1")
        xloads()
        A.label("L_xl1")
        e("s_cmp_eq_u32 s40, 0")
        e("s_cbranch_scc0 L_yl1")
        yloads()
        A.label("L_yl1")
        e("s_cmp_eq_u32 s3, 2")
        e("s_cbranch_scc0 L_xl2")
        ldsspin(L_FB, 4)
        e("s_cmp_eq_u32 s38, 1")
        e("s_cbranch_scc0 L_xl3")
        xloads()
        A.label("L_xl3")
        e("s_cmp_eq_u32 s40, 1")
        e("s_cbranch_scc0 L_xl2")
        yloads()
        A.label("L_xl2")
    if wmode == 'early': dispatcher()
    if not direct:
        e("s_cmp_eq_u32 s3, 3")
        e("s_cbranch_scc0 L_nocomb")
        ldsspin(L_FB, 4, nosleep=True)
        stamp(9)
        A.label("L_comb")
        e(f"ds_read_b64 v[40:41], v112 offset:{L_MLW}")
        e(f"ds_read_b64 v[42:43], v112 offset:{L_MLW+16}")
        e(f"ds_read_b128 v[24:27], v111 offset:{L_OW}")
        e(f"ds_read_b128 v[28:31], v111 offset:{L_OW + 1024}")
        e("s_waitcnt lgkmcnt(2)")
        e("v_max_f32 v48, v40, v42")
        e("v_sub_f32 v40, v40, v48\nv_sub_f32 v42, v42, v48")
        e("v_mul_f32 v40, s62, v40\nv_mul_f32 v42, s62, v42")
        e("v_exp_f32 v40, v40\nv_exp_f32 v42, v42")
        e("v_mov_b32 v52, 0\nv_mov_b32 v53, 0")
        e("v_mul_f32 v49, v40, v41")
        e("v_fmac_f32 v49, v42, v43")
        e("s_waitcnt lgkmcnt(0)")
        for r in range(4):
            e(f"v_mul_f32 v{44+r}, v40, v{24+r}")
        for r in range(4):
            e(f"v_fmac_f32 v{44+r}, v42, v{28+r}")
        tagpack(54, 44)
        e("buffer_store_dwordx4 v[54:57], v113, s[48:51], s60 offen sc1")
        e(f"v_bfi_b32 v58, s44, v2, v48\nv_bfi_b32 v59, s44, v3, v49\nv_bfi_b32 v60, s44, v4, v52\nv_bfi_b32 v61, s44, v5, v53")
        e("s_mov_b32 exec_lo, 1\ns_mov_b32 exec_hi, 1")
        e("buffer_store_dwordx4 v[58:61], v114, s[48:51], s61 offen sc1")
        e("s_mov_b64 exec, -1")
        if warm:
            e("s_cmp_lg_u32 s101, 0")
            e("s_cbranch_scc1 L_drydone2")
        stamp(10)
        if w2late: xloads()
        A.label("L_nocomb")

    def mchain(n, srcs, abase):
        def bb(t):
            B = 76 + 4 * (t & 1)
            for jj in range(4): e(f"v_and_b32 v{B+jj}, v{srcs[t]}, v{6+jj}")
        def mm(t):
            B = 76 + 4 * (t & 1)
            c = "0" if t == 0 else "v[70:73]"
            e(f"v_mfma_f32_16x16x32_bf16 v[70:73], a[{abase+4*t}:{abase+4*t+3}], v[{B}:{B+3}], {c}")
        bb(0); bb(1)
        for t in range(n):
            mm(t)
            if t + 2 < n: bb(t + 2)
    def blocktask(which, typ, abase, vst, sst):
        n = pollid[0]; pollid[0] += 1
        e(f"s_cmp_eq_u32 {typ}, 2")
        e(f"s_cbranch_scc1 L_bt_end{n}")
        e(f"s_cmp_eq_u32 {typ}, 1")
        e(f"s_cbranch_scc1 L_bt_w2{n}")
        if direct:
            OR = [24, 36, 44, 48]; MR = [28, 40, 52, 56]
            def issue_o():
                for k in range(4):
                    so = "s98" if k < 2 else "s63"
                    e(f"buffer_load_dwordx4 v[{OR[k]}:{OR[k]+3}], v96, s[48:51], {so} offen offset:{2048*(k&1)} sc1")
                for k in range(4):
                    e(f"buffer_load_dwordx4 v[{MR[k]}:{MR[k]+3}], v97, s[48:51], s99 offen offset:{64*k} sc1")
            poll(issue_o, OR + MR, 32, nosleep=True)
            stamp(11)
            e("v_max3_f32 v30, v28, v40, v52")
            e("v_max_f32 v30, v30, v56")
            e("v_max_f32_dpp v30, v30, v30 row_ror:4 row_mask:0xf bank_mask:0xf")
            e("v_max_f32_dpp v30, v30, v30 row_ror:8 row_mask:0xf bank_mask:0xf")
            for k in range(4): e(f"v_sub_f32 v{MR[k]}, v{MR[k]}, v30")
            for k in range(4): e(f"v_mul_f32 v{MR[k]}, s62, v{MR[k]}")
            for k in range(4): e(f"v_exp_f32 v{MR[k]}, v{MR[k]}")
            e("v_mul_f32 v29, v29, v28")
            for r in range(4): e(f"v_mul_f32 v{24+r}, v{24+r}, v28")
            for k in range(1, 4):
                e(f"v_fmac_f32 v29, v{MR[k]+1}, v{MR[k]}")
                for r in range(4): e(f"v_fmac_f32 v{24+r}, v{OR[k]+r}, v{MR[k]}")
            for r in (29, 24, 25, 26, 27):
                e(f"v_add_f32_dpp v{r}, v{r}, v{r} row_ror:4 row_mask:0xf bank_mask:0xf")
            for r in (29, 24, 25, 26, 27):
                e(f"v_add_f32_dpp v{r}, v{r}, v{r} row_ror:8 row_mask:0xf bank_mask:0xf")
            e("v_rcp_f32 v29, v29")
            for r in range(4): e(f"v_mul_f32 v{24+r}, v{24+r}, v29")
            for r in range(4): e(f"v_cvt_pk_bf16_f32 v{24+r}, v{24+r}, v{24+r}")
            for r in range(4): e(f"ds_write_b32 v98, v{24+r} offset:{32*r}")
            e("s_waitcnt lgkmcnt(0)")
        else:
            def issue_o():
                e("buffer_load_dwordx4 v[24:27], v96, s[48:51], s98 offen sc1")
                e("buffer_load_dwordx4 v[36:39], v96, s[48:51], s98 offen offset:2048 sc1")
                e("buffer_load_dwordx4 v[28:31], v97, s[48:51], s99 offen sc1")
                e("buffer_load_dwordx4 v[40:43], v97, s[48:51], s99 offen offset:64 sc1")
            poll(issue_o, [24, 36, 28, 40], 32, nosleep=True)
            stamp(11)
            if not nomask:
                for r in (24, 25, 26, 27, 36, 37, 38, 39, 28, 29, 40, 41): e(f"v_and_b32 v{r}, s45, v{r}")
            e("v_max_f32 v30, v28, v40")
            e("v_max_f32_dpp v30, v30, v30 row_ror:4 row_mask:0xf bank_mask:0xf")
            e("v_max_f32_dpp v30, v30, v30 row_ror:8 row_mask:0xf bank_mask:0xf")
            e("v_sub_f32 v28, v28, v30\nv_sub_f32 v40, v40, v30")
            e("v_mul_f32 v28, s62, v28\nv_mul_f32 v40, s62, v40")
            e("v_exp_f32 v28, v28\nv_exp_f32 v40, v40")
            e("v_mul_f32 v29, v29, v28")
            for r in range(4): e(f"v_mul_f32 v{24+r}, v{24+r}, v28")
            e("v_fmac_f32 v29, v41, v40")
            for r in range(4): e(f"v_fmac_f32 v{24+r}, v{36+r}, v40")
            for r in (29, 24, 25, 26, 27):
                e(f"v_add_f32_dpp v{r}, v{r}, v{r} row_ror:4 row_mask:0xf bank_mask:0xf")
            for r in (29, 24, 25, 26, 27):
                e(f"v_add_f32_dpp v{r}, v{r}, v{r} row_ror:8 row_mask:0xf bank_mask:0xf")
            e("v_rcp_f32 v29, v29")
            for r in range(4): e(f"v_mul_f32 v{24+r}, v{24+r}, v29")
            for r in range(4): e(f"v_cvt_pk_bf16_f32 v{24+r}, v{24+r}, v{24+r}")
            e("ds_write_b128 v98, v[24:27]")
            e("s_waitcnt lgkmcnt(0)")
        e("ds_read_b128 v[24:27], v99")
        e("ds_read_b128 v[28:31], v99 offset:16")
        e("s_waitcnt lgkmcnt(0)")
        mchain(8, [24 + t for t in range(8)], abase)
        e(f"s_branch L_bt_pub{n}")
        A.label(f"L_bt_w2{n}")
        e(f"s_waitcnt vmcnt({0 if which == 'Y' else 9})") if False else e("s_waitcnt vmcnt(0)")
        mchain(9, [100 + t for t in range(9)], abase)
        A.label(f"L_bt_pub{n}")
        tagpack(74, 70)
        e(f"buffer_store_dwordx4 v[74:77], v{vst}, s[48:51], {sst} offen sc1")
        A.label(f"L_bt_end{n}")
    A.label("L_btX")
    blocktask("X", "s38", 0, 90, "s96")
    if warm:
        e("s_cmp_lg_u32 s101, 0")
        e("s_cbranch_scc1 L_drydone2")
    stamp(12)
    blocktask("Y", "s40", 36, 91, "s97")
    stamp(13)

    e("s_cmp_ge_u32 s2, 36")
    e("s_cbranch_scc1 L_auxend")
    A.label("L_red")
    e("s_lshr_b32 s36, s2, 3")
    e("s_and_b32 s37, s2, 7")
    e("s_lshl_b32 s38, s36, 7")
    e("s_lshr_b32 s39, s37, 1")
    e("s_lshl_b32 s39, s39, 5")
    e("s_add_u32 s38, s38, s39")
    e("s_and_b32 s39, s37, 1")
    e("s_mul_i32 s39, s39, 576")
    e("s_add_u32 s39, s39, s38")
    e("s_mov_b32 s60, s8\ns_and_b32 s61, s9, 0xffff\ns_mov_b32 s62, 2304\ns_mov_b32 s63, 0x20000")
    e("s_mov_b32 s56, s26\ns_and_b32 s57, s27, 0xffff\ns_mov_b32 s58, 1152\ns_mov_b32 s59, 0x20000")
    e("v_lshlrev_b32 v13, 1, v0")
    e("s_lshl_b32 s40, s39, 1")
    e("s_lshl_b32 s41, s38, 1")
    e("v_and_b32 v16, 3, v0")
    e("v_bfe_u32 v17, v0, 4, 1")
    e("v_lshl_add_u32 v16, v17, 2, v16")
    e("v_bfe_u32 v17, v0, 2, 2")
    e("v_lshrrev_b32 v18, 5, v0")
    e("v_lshl_add_u32 v17, v18, 2, v17")
    e("v_lshlrev_b32 v19, 4, v16")
    e("v_lshl_add_u32 v16, v17, 7, v19")
    e("v_lshl_add_u32 v17, v18, 7, v19")
    e("s_lshl_b32 s43, s3, 8")
    e("v_add_u32 v17, s43, v17")
    e("s_lshl_b32 s42, s2, 14")
    e("s_lshl_b32 s43, s3, 12")
    e("s_add_u32 s42, s42, s43")
    e(f"s_add_u32 s43, s42, {SP}")
    e(f"s_add_u32 s42, s42, {GP}")
    e("s_mov_b32 exec_lo, -1\ns_mov_b32 exec_hi, 0")
    e("buffer_load_ushort v14, v13, s[60:63], s40 offen")
    e("buffer_load_ushort v15, v13, s[56:59], s41 offen")
    e("s_mov_b64 exec, -1")
    e("s_mov_b32 s60, s28\ns_and_b32 s61, s29, 0xffff")
    def issue_r():
        for k in range(4):
            e(f"buffer_load_dwordx4 v[{20+4*k}:{23+4*k}], v16, s[48:51], s42 offen offset:{1024*k} sc1")
        for k in range(4):
            e(f"buffer_load_dwordx4 v[{36+4*k}:{39+4*k}], v16, s[48:51], s43 offen offset:{1024*k} sc1")
    poll(issue_r, [20 + 4 * k for k in range(8)], 52, nosleep=True)
    stamp(14)
    for base in (20, 36):
        for r in range(4):
            if not nomask:
                for k in range(4): e(f"v_and_b32 v{base+4*k+r}, s45, v{base+4*k+r}")
        for r in range(4): e(f"v_add_f32 v{base+r}, v{base+r}, v{base+4+r}")
        for r in range(4): e(f"v_add_f32 v{base+8+r}, v{base+8+r}, v{base+12+r}")
        for r in range(4): e(f"v_add_f32 v{base+r}, v{base+r}, v{base+8+r}")
    for sh in (4, 8):
        for base in (20, 36):
            for r in range(4):
                e(f"v_add_f32_dpp v{base+r}, v{base+r}, v{base+r} row_ror:{sh} row_mask:0xf bank_mask:0xf")
    e(f"ds_write_b128 v17, v[20:23] offset:{L_RED}")
    e(f"ds_write_b128 v17, v[36:39] offset:{L_RED + 1024}")
    e("v_and_b32 v17, 7, v0")
    e("v_lshlrev_b32 v17, 4, v17")
    e("v_bfe_u32 v18, v0, 3, 2")
    e("v_lshl_add_u32 v17, v18, 2, v17")
    e("s_waitcnt lgkmcnt(0)")
    if warm:
        e("s_cmp_lg_u32 s101, 0")
        e("s_cbranch_scc1 L_redfin")
    e("s_barrier")
    e("s_cmp_eq_u32 s3, 0")
    e("s_cbranch_scc0 L_auxend")
    A.label("L_redfin")
    for kind in range(2):
        for a in range(8):
            e(f"ds_read_b32 v{20+8*kind+a}, v17 offset:{L_RED + 1024*kind + 128*a}")
    e("v_lshlrev_b32 v14, 16, v14")
    e("v_lshlrev_b32 v15, 16, v15")
    e("s_waitcnt lgkmcnt(8)")
    def sum8(b):
        for k in (0, 2, 4, 6): e(f"v_add_f32 v{b+k}, v{b+k}, v{b+k+1}")
        e(f"v_add_f32 v{b}, v{b}, v{b+2}")
        e(f"v_add_f32 v{b+4}, v{b+4}, v{b+6}")
        e(f"v_add_f32 v{b}, v{b}, v{b+4}")
    def rnd(r):
        e(f"v_cvt_pk_bf16_f32 v{r}, v{r}, v{r}")
        e(f"v_and_b32 v{r}, 0xffff0000, v{r}")
    sum8(20)
    rnd(20)
    e("v_add_f32 v20, v20, v15")
    rnd(20)
    e(f"v_mul_f32 v21, 0x{(LOG2E ^ 0x80000000):x}, v20")
    e("v_exp_f32 v21, v21")
    e("s_waitcnt lgkmcnt(0)")
    sum8(28)
    e("v_add_f32 v21, 1.0, v21")
    e("v_rcp_f32 v21, v21")
    rnd(28)
    e("v_mul_f32 v20, v20, v21")
    rnd(20)
    e("v_mul_f32 v20, v28, v20")
    rnd(20)
    e("v_add_f32 v20, v14, v20")
    e("v_cvt_pk_bf16_f32 v20, v20, v20")
    if warm:
        e("s_cmp_lg_u32 s101, 0")
        e("s_cselect_b32 s62, 0, s62")
    e("s_mov_b32 exec_lo, -1\ns_mov_b32 exec_hi, 0")
    e("buffer_store_short v20, v13, s[60:63], s40 offen" + (" sc0 sc1" if outsc1 else ""))
    e("s_mov_b64 exec, -1")
    if warm:
        e("s_cmp_lg_u32 s101, 0")
        e("s_cbranch_scc1 L_drydone1")
    dbg(5)
    stamp(15)
    e("s_cmp_eq_u32 s2, 0")
    e("s_cbranch_scc0 L_auxend")
    e("s_mov_b64 exec, 1")
    e("v_mov_b32 v20, s46\nv_mov_b32 v21, s47\nv_mov_b32 v22, 0")
    e("buffer_store_dwordx2 v[20:21], v22, s[48:51], 0 offen sc1")
    e("s_mov_b64 exec, -1")
    A.label("L_auxend")
    stamp(15 + 1) if False else None
    dump_stamps(16)
    A.label("L_end")
    e("s_endpgm")
    st = A.items[MARK_STREAM0:MARK_STREAM1]
    A.items = A.items[:MARK_STREAM0] + A.items[MARK_STREAM1:] + st
    A.label("L_codeend")
    e("s_endpgm")
    A.raw('.section .rodata,"a"')
    A.raw(".p2align 6")
    A.raw(f".amdhsa_kernel {NAME}")
    acc = max(40 + 16 * D, 116)
    acc = (acc + 3) // 4 * 4
    A.raw(f"  .amdhsa_next_free_vgpr {acc + max(16 * D, 88)}")
    A.raw("  .amdhsa_next_free_sgpr 102")
    A.raw(f"  .amdhsa_accum_offset {acc}")
    A.raw("  .amdhsa_group_segment_fixed_size 0")
    A.raw("  .amdhsa_kernarg_size 104")
    A.raw("  .amdhsa_user_sgpr_count 2")
    A.raw("  .amdhsa_user_sgpr_kernarg_segment_ptr 1")
    A.raw("  .amdhsa_system_sgpr_workgroup_id_x 1")
    A.raw("  .amdhsa_float_denorm_mode_32 3")
    A.raw(".end_amdhsa_kernel")
    n = A.fix_hazards()
    return A.text(), n

if __name__ == "__main__":
    cfg = json.loads(sys.argv[2]) if len(sys.argv) > 2 else {}
    t, n = gen(**cfg)
    hdr = open("cdna_kernels/" + NAME[:-7] + ".s.ref").read().split("; Override launch")[0]
    lines = t.split("\n")
    out = hdr + lines[0] + "\n" + "\n".join(lines[1:])
    open(sys.argv[1], "w").write(out)
    print("nops inserted:", n)
```

```python
import sys, json
from asmfw import Asm

NAME = "recurrent_scan__mha_block_cached__dense_activation_squared_relu__decode_kernel"

EP = 0
QP = 0x10000
HP = 0x60000
OP = 0xA0000
ML = 0xE0000
CNT = 0xF0000
SP = 0x100000
OPW = 0x1A0000
GP = 0x240000
TS = 0x300000
WS_BYTES = 0x500000
L_Q = 0x000
L_FC = 0x200
L_FB = 0x204
L_WANT = 0x208
L_FQ = 0x20c
L_FP = 0x210
L_EP = 0x214
L_MLW = 0x240
L_MB = 0x280
L_OW = 0x400
L_HT = 0xC00
L_PRIV = 0x1000
L_RED = 0x2000
LDS_BYTES = 0x2800

TAGB = 10
TAGM = (1 << TAGB) - 1
VALM = (~TAGM) & 0xffffffff
OOB = 0x40000000
LOG2E = 0x3fb8aa3b
SCALE = 0x3db504f3
SPIN = 1 << 17

def gen(D=6, A_=2, gss=((8, 4), (8, 2), (32, 1, 1)), req_at=1, stamps=False, nt=True, sleep=1, bar0=True, tlog=False, noatom=False, ntk=8, tstep=False, static_tail=False, kpat=True, ahead2=True, prefetch=True, pstamps=False, fillq=16, latew1=False, wmode='flagC', rot=1, fast=True, ntk_end=None, diag='', split=8, nomask=True, warm=True, tlb=False, outsc1=False, dbgspan=False, halves=True, direct=False, lateh=True, trig=None, dtrig=None, w2late=False, qdelay=None, fcn=4):
    A = Asm()
    e = A
    NT = (" " + nt) if isinstance(nt, str) else (" nt" if nt else "")
    nstamp = [0]
    def stamp(k):
        if stamps and (not pstamps or k == 0):
            e(f"s_memrealtime s[{64+2*k}:{65+2*k}]")
    def pst(k):
        if stamps and pstamps:
            e(f"s_memrealtime s[{64+2*k}:{65+2*k}]")
    def dbg(idx, neg=False, r=126):
        if not dbgspan: return
        e("s_memrealtime s[6:7]")
        e("s_mov_b32 s92, s30\ns_and_b32 s93, s31, 0xffff\ns_mov_b32 s94, 256\ns_mov_b32 s95, 0x20000")
        e("s_waitcnt lgkmcnt(0)")
        if neg: e("s_not_b32 s6, s6")
        e("s_mov_b64 exec, 1")
        e(f"v_mov_b32 v{r}, s6")
        e(f"v_mov_b32 v{r+1}, {4*idx}")
        e(f"buffer_atomic_umax v{r}, v{r+1}, s[92:95], 0 offen sc1")
        e("s_mov_b64 exec, -1")
    def dump_stamps(nk):
        if not stamps: return
        e("s_waitcnt lgkmcnt(0)")
        e("s_lshl_b32 s6, s2, 3")
        e("s_add_u32 s6, s6, s5")
        e("s_lshl_b32 s6, s6, 7")
        e(f"s_add_u32 s6, s6, {TS}")
        e("s_mov_b64 exec, 1")
        e("v_mov_b32 v1, 0")
        e(f"s_mov_b32 s60, s32\ns_mov_b32 s61, s33\ns_mov_b32 s62, {WS_BYTES}\ns_mov_b32 s63, 0x20000")
        for k in range(nk):
            e(f"v_mov_b32 v2, s{64+2*k}")
            e(f"buffer_store_dword v2, v1, s[60:63], s6 offen offset:{4*k}")
        e("s_mov_b64 exec, -1")

    A.raw("; @launch grid=(256,1,1) block=(512,1,1) lds=%d" % LDS_BYTES)
    A.raw('.amdgcn_target "amdgcn-amd-amdhsa--gfx950"')
    A.raw(".text")
    A.raw(f".globl {NAME}")
    A.raw(".p2align 8")
    A.raw(f".type {NAME},@function")
    A.label(NAME)
    e("s_cmp_ge_u32 s2, 256")
    e("s_cbranch_scc1 L_end")
    e("s_load_dwordx16 s[8:23], s[0:1], 0")
    e("s_load_dwordx8 s[24:31], s[0:1], 64")
    e("s_load_dwordx2 s[32:33], s[0:1], 96")
    stamp(0)
    e("v_lshrrev_b32 v1, 6, v0")
    e("v_and_b32 v0, 63, v0")
    e("v_readfirstlane_b32 s3, v1")
    e("s_lshr_b32 s34, s2, 3")
    e("s_and_b32 s35, s2, 7")
    e("s_mov_b32 s5, s3")
    if prefetch:
        e("s_cmp_eq_u32 s3, 3")
        e("s_cbranch_scc0 L_nopf")
        e("s_getpc_b64 s[60:61]")
        A.label("L_pc")
        e(f"s_sub_u32 s60, s60, L_pc-{NAME}")
        e("s_subb_u32 s61, s61, 0")
        e("s_and_b32 s61, s61, 0xffff")
        e(f"s_mov_b32 s62, L_codeend-{NAME}")
        e("s_mov_b32 s63, 0x20000")
        e("s_and_b32 s36, s34, 3")
        e("s_mul_i32 s36, s36, 5120")
        e("v_lshlrev_b32 v13, 4, v0")
        for k in range(4):
            e(f"buffer_load_dwordx4 v[40:43], v13, s[60:63], s36 offen offset:{1024*k}")
        e("s_add_u32 s36, s36, 4096")
        e(f"buffer_load_dwordx4 v[40:43], v13, s[60:63], s36 offen")
        A.label("L_nopf")
    e("s_cmp_ge_u32 s3, 4")
    e("s_cbranch_scc1 L_stream")
    def masks(t1=1, t2=2):
        e(f"v_and_b32 v{t1}, 1, v0")
        e(f"v_lshlrev_b32 v{t1}, 4, v{t1}")
        e(f"v_mov_b32 v{t2}, 0xffff")
        e(f"v_lshlrev_b32 v{t1}, v{t1}, v{t2}")
        e(f"v_bfe_u32 v{t2}, v0, 1, 2")
        for j in range(4):
            e(f"v_cmp_eq_u32 vcc, {j}, v{t2}")
            e(f"v_cndmask_b32 v{6+j}, 0, v{t1}, vcc")
    MARK_STREAM0 = len(A.items)

    A.label("L_stream")
    e("s_sub_u32 s3, s3, 4")
    e("s_and_b32 s37, s3, 1")
    e("s_lshl_b32 s36, s37, 5")
    e("s_add_u32 s36, s36, s34")
    e("s_lshl_b32 s36, s36, 20")
    e("s_waitcnt lgkmcnt(0)")
    if dbgspan:
        e("s_or_b32 s6, s34, s3")
        e("s_cmp_eq_u32 s6, 0")
        e("s_cbranch_scc0 L_nd0")
        dbg(0, True, 34)
        dbg(1, False, 34)
        A.label("L_nd0")
    e("s_add_u32 s48, s10, s36\ns_addc_u32 s49, s11, 0\ns_and_b32 s49, s49, 0xffff\ns_mov_b32 s50, 0x100000\ns_mov_b32 s51, 0x20000")
    e("s_add_u32 s52, s12, s36\ns_addc_u32 s53, s13, 0\ns_and_b32 s53, s53, 0xffff\ns_mov_b32 s54, 0x100000\ns_mov_b32 s55, 0x20000")
    if direct:
        e("s_load_dwordx2 s[92:93], s[32:33], 0")
        e(f"s_mov_b32 s44, s32\ns_and_b32 s45, s33, 0xffff\ns_mov_b32 s46, {WS_BYTES}\ns_mov_b32 s47, 0x20000")
    e("s_lshr_b32 s39, s3, 1")
    STRIDE = 16 if kpat else 2
    e(f"s_lshl_b32 s80, s35, {1 if kpat else 4}")
    e("s_add_u32 s80, s80, s39")
    e("v_lshlrev_b32 v1, 4, v0")
    def chunk_off():
        if rot and kpat:
            e("s_lshr_b32 s84, s80, 4")
            if rot != 1: e(f"s_mul_i32 s84, s84, {rot}")
            e("s_lshl_b32 s84, s84, 1")
            e("s_add_u32 s84, s84, s80")
            e("s_and_b32 s84, s84, 15")
            e("s_andn2_b32 s85, s80, 15")
            e("s_or_b32 s84, s84, s85")
            e("s_lshl_b32 s38, s84, 12")
        else:
            e("s_lshl_b32 s38, s80, 12")
    KR = lambda s, t: 40 + 16 * s + 4 * t
    VR = lambda s, t: 16 * s + 4 * t
    def loadK(s):
        for t in range(4):
            r = KR(s, t)
            e(f"buffer_load_dwordx4 v[{r}:{r+3}], v1, s[48:51], s38 offen offset:{1024*t}{NT}")
    def loadV(s):
        for t in range(4):
            r = VR(s, t)
            e(f"buffer_load_dwordx4 a[{r}:{r+3}], v1, s[52:55], s38 offen offset:{1024*t}{NT}")
    if tlog or tstep:
        e("s_mov_b32 s87, 0")
        e("v_mov_b32 v33, -1")
        e("v_mov_b32 v34, -1")
    if bar0: e("s_barrier")
    for c in range(D):
        if tlog:
            e("s_mov_b32 m0, s87")
            e("v_writelane_b32 v33, s80, m0")
            e("s_add_u32 s87, s87, 1")
        chunk_off()
        e(f"s_add_u32 s80, s80, {STRIDE}")
        if fillq is None:
            loadK(c); loadV(c)
        else:
            for half in range(2):
                if c * 8 + half * 4 + 4 > fillq:
                    e(f"s_waitcnt vmcnt({max(fillq - 4, 0)})")
                (loadK if half == 0 else loadV)(c)
        if qdelay is not None and c == qdelay:
            e("s_mov_b64 exec, 1")
            e(f"v_mov_b32 v20, {L_FP}")
            e("v_mov_b32 v21, 1")
            e("ds_add_u32 v20, v21")
            e("s_mov_b64 exec, -1")
    stamp(1)
    masks(20, 21)
    e(f"s_mov_b32 s81, {8 - D}")
    e("s_mov_b32 s82, 0")
    e("s_mov_b32 s83, 8")
    e("s_mov_b32 s62, 0")
    for k in range(D): e(f"s_mov_b32 s{56+k}, 0")
    e("s_mov_b32 s42, 0xf0f0f0f0\ns_mov_b32 s43, 0xf0f0f0f0")
    e("v_mov_b32 v35, 0xff800000")
    for r in range(4): e(f"v_mov_b32 v{10+r}, 0")
    e("v_mov_b32 v14, 0xff800000")
    e("v_mov_b32 v15, 0")
    e("v_and_b32 v16, 15, v0")
    e("v_lshlrev_b32 v16, 4, v16")
    e("s_lshl_b32 s40, s37, 8")
    e("v_add_u32 v16, s40, v16")
    if direct:
        e("s_waitcnt lgkmcnt(0)")
        e("s_add_u32 s92, s92, 0x7f4a7c15\ns_addc_u32 s93, s93, 0x9e3779b9")
        e(f"s_and_b32 s90, s92, {TAGM}")
        e("v_mov_b32 v32, s90")
        e(f"s_bfe_u32 s90, s92, 0x{(TAGB<<16)|TAGB:x}")
        e("v_mov_b32 v37, s90")
        e(f"s_bfe_u32 s90, s92, 0x{(TAGB<<16)|(2*TAGB):x}")
        e("v_mov_b32 v38, s90")
        e("s_lshr_b64 s[90:91], s[92:93], 30")
        e(f"s_and_b32 s90, s90, {TAGM}")
        e("v_mov_b32 v39, s90")
        e("s_lshl_b32 s90, s34, 1")
        e("s_add_u32 s90, s90, s37")
        e("s_lshl_b32 s90, s90, 4")
        e("s_lshl_b32 s91, s35, 1")
        e("s_add_u32 s90, s90, s91")
        e("s_add_u32 s90, s90, s39")
        e("s_lshl_b32 s92, s90, 9")
        e(f"s_add_u32 s92, s92, {OPW}")
        e("s_lshl_b32 s93, s90, 4")
        e(f"s_add_u32 s93, s93, {ML}")
        e(f"s_mov_b32 s94, {TAGM}")
    e("s_mov_b32 s86, 0")
    e("s_mov_b32 s88, 0x400000")
    e(f"s_mov_b32 s40, 0x{SCALE:x}")
    e(f"s_mov_b32 s41, 0x{LOG2E:x}")
    e(f"v_mov_b32 v36, {L_WANT}")
    e(f"v_mov_b32 v20, {L_FQ}")
    A.label("L_qspin")
    e("ds_read_b32 v21, v20")
    e("s_waitcnt lgkmcnt(0)")
    e("v_readfirstlane_b32 s90, v21")
    e("s_cmp_lg_u32 s90, 0")
    e("s_cbranch_scc1 L_qgo")
    e("s_sleep 1")
    e("s_sub_u32 s88, s88, 1")
    e("s_cmp_lg_u32 s88, 0")
    e("s_cbranch_scc1 L_qspin")
    A.label("L_qgo")
    e(f"ds_read_b128 v[2:5], v16 offset:{L_Q}")
    e("s_waitcnt lgkmcnt(0)")
    stamp(2)
    NKV = 8 * (D - 1)
    NTK = 12 if ntk is None else ntk
    A.label("L_sloop")
    for s in range(D):
        e("s_cmp_eq_u32 s86, 0")
        e(f"s_cbranch_scc1 L_nw{s}")
        e("s_cmp_eq_u32 s89, 0")
        e("s_cbranch_scc1 L_sdone")
        e("s_sub_u32 s89, s89, 1")
        if trig is not None:
            e(f"s_cmp_eq_u32 s89, {trig}")
            e(f"s_cbranch_scc0 L_nt{s}")
            e("s_mov_b64 exec, 1")
            e(f"v_mov_b32 v20, {L_FC}")
            e("v_mov_b32 v21, 1")
            e("ds_add_u32 v20, v21")
            e("s_mov_b64 exec, -1")
            A.label(f"L_nt{s}")
        e("s_cmp_ge_u32 s89, 2")
        e(f"s_cbranch_scc1 L_dw{s}")
        e("s_cmp_eq_u32 s89, 1")
        e(f"s_cbranch_scc1 L_w8{s}")
        e("s_waitcnt vmcnt(0)")
        e(f"s_branch L_go{s}")
        A.label(f"L_w8{s}")
        e("s_waitcnt vmcnt(8)")
        e(f"s_branch L_go{s}")
        A.label(f"L_dw{s}")
        e("s_waitcnt vmcnt(16)")
        e(f"s_branch L_go{s}")
        A.label(f"L_nw{s}")
        e(f"s_waitcnt vmcnt({NKV})")
        A.label(f"L_go{s}")
        if tstep:
            e("s_memrealtime s[90:91]")
            e("s_waitcnt lgkmcnt(0)")
            e("s_mov_b32 m0, s87")
            e("v_writelane_b32 v33, s90, m0")
            e("s_add_u32 s87, s87, 1")
        if tlog:
            e("s_mov_b32 m0, s87")
            e(f"v_writelane_b32 v33, s{64+s}, m0") if False else None
        for jj in range(4):
            for t in range(4):
                k = KR(s, t) + jj
                if jj == 0: e(f"v_dot2_f32_bf16 v{16+t}, v{k}, v2, 0")
                else: e(f"v_dot2c_f32_bf16 v{16+t}, v{k}, v{2+jj}")
        e("v_add_f32_dpp v20, v16, v16 row_ror:8 row_mask:0xf bank_mask:0x3")
        e("v_add_f32_dpp v21, v18, v18 row_ror:8 row_mask:0xf bank_mask:0x3")
        e("v_add_f32_dpp v20, v17, v17 row_ror:8 row_mask:0xf bank_mask:0xc")
        e("v_add_f32_dpp v21, v19, v19 row_ror:8 row_mask:0xf bank_mask:0xc")
        e("v_add_f32_dpp v22, v20, v20 row_shl:4 row_mask:0xf bank_mask:0x5")
        e("v_add_f32_dpp v22, v21, v21 row_shr:4 row_mask:0xf bank_mask:0xa")
        e("v_add_f32_dpp v22, v22, v22 quad_perm:[1,0,3,2] row_mask:0xf bank_mask:0xf")
        e("v_add_f32_dpp v22, v22, v22 quad_perm:[2,3,0,1] row_mask:0xf bank_mask:0xf")
        e("v_cvt_pk_bf16_f32 v23, v22, v22")
        e("v_and_b32 v23, 0xffff0000, v23")
        e("v_mul_f32 v23, s40, v23")
        e("v_cvt_pk_bf16_f32 v23, v23, v23")
        e("v_and_b32 v23, 0xffff0000, v23")
        if halves:
            e(f"s_cmp_eq_u32 s{56+s}, 0")
            e(f"s_cbranch_scc1 L_nh{s}")
            e("v_cndmask_b32 v23, v23, v35, s[42:43]")
            A.label(f"L_nh{s}")
        if fast:
            e("v_cmp_lt_f32 vcc, v14, v23")
            e("s_cmp_lg_u64 vcc, 0")
            e(f"s_cbranch_scc0 L_nomax{s}")
            e("v_max_f32_dpp v24, v23, v23 row_ror:4 row_mask:0xf bank_mask:0xf")
            e("v_max_f32_dpp v24, v24, v24 row_ror:8 row_mask:0xf bank_mask:0xf")
            e("v_mov_b32 v25, v24")
            e("v_permlane16_swap_b32 v24, v25")
            e("v_max_f32 v24, v24, v25")
            e("v_mov_b32 v25, v24")
            e("v_permlane32_swap_b32 v24, v25")
            e("v_max3_f32 v24, v24, v25, v14")
            e("v_sub_f32 v25, v14, v24")
            e("v_mul_f32 v25, s41, v25")
            e("v_exp_f32 v25, v25")
            e("v_mov_b32 v14, v24")
            e("v_mul_f32 v15, v15, v25")
            for r in range(4): e(f"v_mul_f32 v{10+r}, v{10+r}, v25")
            A.label(f"L_nomax{s}")
            e("v_sub_f32 v26, v23, v14")
            e("v_mul_f32 v26, s41, v26")
            e("v_exp_f32 v26, v26")
            e("v_cvt_pk_bf16_f32 v27, v26, v26")
            e("v_add_f32 v15, v15, v26")
            bank_lane = [0, 8, 4, 12]
            def bb(t):
                B = 28 if (t & 1) == 0 else 16
                for jj in range(4):
                    e(f"v_and_b32_dpp v{B+jj}, v27, v{6+jj} row_newbcast:{bank_lane[t]} row_mask:0xf bank_mask:0xf")
            def mm(t):
                B = 28 if (t & 1) == 0 else 16
                r = VR(s, t)
                e(f"v_mfma_f32_16x16x32_bf16 v[10:13], a[{r}:{r+3}], v[{B}:{B+3}], v[10:13]")
            bb(0); bb(1); mm(0); bb(2); mm(1); bb(3); mm(2); mm(3)
        else:
            e("v_max_f32_dpp v24, v23, v23 row_ror:4 row_mask:0xf bank_mask:0xf")
            e("v_max_f32_dpp v24, v24, v24 row_ror:8 row_mask:0xf bank_mask:0xf")
            e("v_mov_b32 v25, v24")
            e("v_permlane16_swap_b32 v24, v25")
            e("v_max_f32 v24, v24, v25")
            e("v_mov_b32 v25, v24")
            e("v_permlane32_swap_b32 v24, v25")
            e("v_max3_f32 v24, v24, v25, v14")
            e("v_sub_f32 v25, v14, v24")
            e("v_sub_f32 v26, v23, v24")
            e("v_mul_f32 v25, s41, v25")
            e("v_mul_f32 v26, s41, v26")
            e("v_exp_f32 v25, v25")
            e("v_exp_f32 v26, v26")
            e("v_mov_b32 v14, v24")
            e("v_fma_f32 v15, v15, v25, v26")
            e("v_cvt_pk_bf16_f32 v27, v26, v26")
            for r in range(4): e(f"v_mul_f32 v{10+r}, v{10+r}, v25")
            bank_lane = [0, 8, 4, 12]
            for t in range(4):
                B = 28 if (t & 1) == 0 else 16
                for jj in range(4):
                    e(f"v_and_b32_dpp v{B+jj}, v27, v{6+jj} row_newbcast:{bank_lane[t]} row_mask:0xf bank_mask:0xf")
                r = VR(s, t)
                e(f"v_mfma_f32_16x16x32_bf16 v[10:13], a[{r}:{r+3}], v[{B}:{B+3}], v[10:13]")
        if tstep:
            e("s_memrealtime s[90:91]")
            e("s_waitcnt lgkmcnt(0)")
            e("v_writelane_b32 v34, s90, m0")
        e("s_cmp_lg_u32 s86, 0")
        e(f"s_cbranch_scc1 L_nx{s}")
        if ntk_end is not None:
            e("s_cmp_eq_u32 s83, 1")
            e(f"s_cbranch_scc1 L_ne{s}")
            e(f"s_waitcnt vmcnt({NTK})")
            A.label(f"L_ne{s}")
            e(f"s_waitcnt vmcnt({ntk_end})")
        else:
            e(f"s_waitcnt vmcnt({NTK})")
        e("s_cmp_lg_u32 s81, 0")
        e(f"s_cbranch_scc1 L_have{s}")
        if static_tail:
            e("s_cmp_lg_u32 s82, 0")
            e(f"s_cbranch_scc1 L_drain{s}")
            e(f"s_lshl_b32 s90, s35, {1 if kpat else 4}")
            e("s_add_u32 s90, s90, 128")
            e("s_or_b32 s90, s90, 0x80000")
        else:
            e("s_lshl_b32 s90, s82, 2")
            e(f"s_add_u32 s90, s90, {L_MB}")
            e("v_mov_b32 v20, s90")
            A.label(f"L_mb{s}")
            e("ds_read_b32 v21, v20")
            e("s_waitcnt lgkmcnt(0)")
            e("v_readfirstlane_b32 s90, v21")
            e("s_cmp_lg_u32 s90, -1")
            e(f"s_cbranch_scc1 L_got{s}")
            e("s_sub_u32 s88, s88, 1")
            e("s_cmp_lg_u32 s88, 0")
            e(f"s_cbranch_scc1 L_mb{s}")
            e("s_mov_b32 s90, 256")
            A.label(f"L_got{s}")
        e("s_add_u32 s82, s82, 1")
        e("s_and_b32 s80, s90, 0xffff")
        e("s_bfe_u32 s81, s90, 0x80010")
        e("s_lshr_b32 s62, s90, 24")
        e("s_mov_b32 s83, s81")
        e("s_cmp_lt_u32 s80, 256")
        e("s_addc_u32 s80, s80, 0") if False else None
        e(f"s_cbranch_scc1 L_ok{s}")
        A.label(f"L_drain{s}")
        e("s_mov_b32 s86, 1")
        e(f"s_mov_b32 s89, {D-1}")
        if trig is None:
            e("s_mov_b64 exec, 1")
            e(f"v_mov_b32 v20, {L_FC}")
            e("v_mov_b32 v21, 1")
            e("ds_add_u32 v20, v21")
            e("s_mov_b64 exec, -1")
        stamp(3)
        e(f"s_branch L_nx{s}")
        A.label(f"L_ok{s}")
        e("s_add_u32 s80, s80, s39")
        A.label(f"L_have{s}")
        chunk_off()
        if halves:
            e(f"s_mov_b32 s{56+s}, s62")
            e("s_cmp_eq_u32 s62, 0")
            e(f"s_cbranch_scc1 L_full{s}")
            e("s_lshr_b32 s63, s62, 1")
            e("s_lshl_b32 s63, s63, 11")
            e("s_add_u32 s38, s38, s63")
            e("s_add_u32 s50, s38, 2048")
            e("s_mov_b32 s54, s50")
            A.label(f"L_full{s}")
        e(f"s_add_u32 s80, s80, {STRIDE}")
        e("s_sub_u32 s81, s81, 1")
        if tlog:
            e("s_lshr_b32 s90, s38, 12")
            e("s_mov_b32 m0, s87")
            e("v_writelane_b32 v33, s90, m0")
            e("s_add_u32 s87, s87, 1")
        loadK(s)
        if not static_tail:
            e(f"s_cmp_le_u32 s81, {req_at}")
            e(f"s_cbranch_scc0 L_nr{s}")
            e("s_add_u32 s90, s82, 1")
            if ahead2:
                e("s_cmp_eq_u32 s83, 1")
                e("s_addc_u32 s90, s90, 0")
            e("s_mov_b64 exec, 1")
            e("v_mov_b32 v21, s90")
            e("ds_max_u32 v36, v21")
            e("s_mov_b64 exec, -1")
            A.label(f"L_nr{s}")
        if split is not None: e(f"s_waitcnt vmcnt({split})")
        loadV(s)
        A.label(f"L_nx{s}")
        if s == D - 1:
            e("s_branch L_sloop")
    A.label("L_sdone")
    if dbgspan:
        e("s_and_b32 s6, s34, 7")
        e("s_or_b32 s6, s6, s3")
        e("s_cmp_eq_u32 s6, 0")
        e("s_cbranch_scc0 L_nd3")
        dbg(3, False, 34)
        A.label("L_nd3")
    stamp(4)
    e("v_add_f32_dpp v15, v15, v15 row_ror:4 row_mask:0xf bank_mask:0xf")
    e("v_add_f32_dpp v15, v15, v15 row_ror:8 row_mask:0xf bank_mask:0xf")
    e("v_mov_b32 v25, v15")
    e("v_permlane16_swap_b32 v15, v25")
    e("v_add_f32 v15, v15, v25")
    e("v_mov_b32 v25, v15")
    e("v_permlane32_swap_b32 v15, v25")
    e("v_add_f32 v15, v15, v25")
    if direct:
        e("v_lshrrev_b32 v16, 4, v0")
        e("v_lshlrev_b32 v16, 7, v16")
        e("v_and_b32 v17, 7, v0")
        e("v_lshl_add_u32 v16, v17, 4, v16")
        for r, tg in enumerate((32, 37, 38, 39)):
            e(f"v_bfi_b32 v{28+r}, s94, v{tg}, v{10+r}")
        e("s_mov_b32 exec_lo, 0x00ff00ff\ns_mov_b32 exec_hi, 0x00ff00ff")
        e("buffer_store_dwordx4 v[28:31], v16, s[44:47], s92 offen sc1")
        e("s_mov_b64 exec, 1")
        e("v_mov_b32 v24, 0")
        e("v_bfi_b32 v20, s94, v32, v14")
        e("v_bfi_b32 v21, s94, v37, v15")
        e("v_bfi_b32 v22, s94, v38, v24")
        e("v_bfi_b32 v23, s94, v39, v24")
        e("buffer_store_dwordx4 v[20:23], v24, s[44:47], s93 offen sc1")
        e("s_mov_b64 exec, -1")
    else:
        e("v_lshrrev_b32 v16, 4, v0")
        e("v_lshlrev_b32 v16, 7, v16")
        e("v_and_b32 v17, 7, v0")
        e("v_lshl_add_u32 v16, v17, 2, v16")
        e("s_lshl_b32 s37, s3, 9")
        e("v_add_u32 v16, s37, v16")
        for r in range(4):
            e(f"ds_write_b32 v16, v{10+r} offset:{L_OW + 32*r}")
        e("s_lshl_b32 s37, s3, 3")
        e("v_mov_b32 v17, s37")
        e(f"ds_write_b64 v17, v[14:15] offset:{L_MLW}")
        e("s_waitcnt lgkmcnt(0)")
        e("s_mov_b64 exec, 1")
        e(f"v_mov_b32 v28, {L_FB}")
        e("v_mov_b32 v29, 1")
        e("ds_add_u32 v28, v29")
        e("s_mov_b64 exec, -1")
    stamp(5)
    if tlog or tstep:
        e("s_lshl_b32 s6, s2, 3\ns_add_u32 s6, s6, s5\ns_lshl_b32 s6, s6, 8")
        e(f"s_add_u32 s6, s6, {TS + 0x80000}")
        e(f"s_mov_b32 s60, s32\ns_mov_b32 s61, s33\ns_mov_b32 s62, {WS_BYTES}\ns_mov_b32 s63, 0x20000")
        e("v_lshlrev_b32 v1, 2, v0")
        e("buffer_store_dword v33, v1, s[60:63], s6 offen")
        e(f"s_add_u32 s6, s6, 0x80000")
        e("buffer_store_dword v34, v1, s[60:63], s6 offen")
    dump_stamps(6)
    e("s_endpgm")

    MARK_STREAM1 = len(A.items)
    A.label("L_aux")
    e("s_setprio 3")
    e(f"s_mov_b32 s100, {1 if 'nopoll' in diag else SPIN}")
    e("s_mov_b32 s101, 0")
    if 'noaux' in diag:
        e("s_cmp_ge_u32 s3, 2")
        e("s_cbranch_scc1 L_aux23")
        e("s_barrier")
        e("s_endpgm")
    e("v_lshrrev_b32 v10, 4, v0")
    e("v_bfe_u32 v11, v0, 3, 1")
    e("v_and_b32 v12, 15, v0")
    e("s_cmp_ge_u32 s3, 2")
    e("s_cbranch_scc1 L_aux23")
    e("s_cmp_eq_u32 s3, 1")
    e("s_cbranch_scc1 L_p1")
    e("s_mul_i32 s36, s35, 72")
    e("s_mov_b32 s37, 18")
    e("s_mov_b32 s38, 8192")
    e("s_lshl_b32 s39, s34, 8")
    e("s_mul_i32 s40, s36, 8192")
    e("s_add_u32 s39, s39, s40")
    e("s_sub_u32 s54, 4718592, s39")
    e("s_mov_b32 s41, 99")
    e("s_mov_b32 s42, 1")
    e("s_mov_b32 s43, 14")
    e("s_branch L_p2")
    A.label("L_p1")
    e("s_mul_hi_u32 s43, s2, 0x71c71c8")
    e("s_mul_i32 s44, s43, 36")
    e("s_sub_u32 s44, s2, s44")
    e("s_mul_i32 s36, s43, 82")
    e("s_cmp_eq_u32 s43, 0")
    e("s_cselect_b32 s40, 0, 2")
    e("s_cselect_b32 s41, 99, 3")
    e("s_add_u32 s36, s36, s40")
    e("s_mov_b32 s37, 22")
    e("s_mov_b32 s38, 9216")
    e("s_lshl_b32 s39, s44, 8")
    e("s_mul_i32 s40, s36, 9216")
    e("s_add_u32 s39, s39, s40")
    e("s_sub_u32 s54, 5308416, s39")
    e("s_mov_b32 s42, 0")
    e("s_cmp_ge_u32 s2, 252")
    e("s_cselect_b32 s54, 0, s54")
    A.label("L_p2")
    e("v_lshrrev_b32 v13, 5, v0")
    e("v_mul_u32_u24 v13, 1152, v13")
    e("v_and_b32 v14, 31, v0")
    e("v_mad_u32_u24 v13, v14, 36, v13")
    e("v_mul_lo_u32 v14, v10, s37")
    e("v_add_u32 v15, s36, v14")
    e("v_lshlrev_b32 v15, 1, v15")
    e("v_mul_u32_u24 v16, 1152, v11")
    e("v_add_u32 v15, v15, v16")
    e("v_mul_lo_u32 v16, v14, s38")
    e("v_lshl_add_u32 v16, v12, 4, v16")
    e(f"v_mov_b32 v19, {OOB}")
    e("v_cmp_eq_u32 vcc, s41, v10")
    e("v_cndmask_b32 v17, v16, v19, vcc")
    e("v_cmp_eq_u32 vcc, 3, v10")
    e("v_cndmask_b32 v18, v16, v19, vcc")
    e("s_cmp_eq_u32 s42, 1")
    e("s_cselect_b64 vcc, -1, 0")
    e("v_cndmask_b32 v18, v18, v19, vcc")
    if 'now1' in diag: e("s_mov_b32 s54, 0")
    e("s_mov_b32 s62, 2304\ns_mov_b32 s63, 0x20000\ns_mov_b32 s55, 0x20000")
    pst(1)
    e("s_waitcnt lgkmcnt(0)")
    pst(2)
    e("s_load_dwordx2 s[46:47], s[32:33], 0")
    e("s_mov_b32 s60, s8\ns_and_b32 s61, s9, 0xffff")
    e("buffer_load_dwordx4 v[20:23], v13, s[60:63], 0 offen")
    e("buffer_load_dwordx4 v[24:27], v13, s[60:63], 0 offen offset:16")
    e("buffer_load_dword v28, v13, s[60:63], 0 offen offset:32")
    e("buffer_load_dwordx4 v[30:33], v15, s[60:63], 0 offen")
    e("buffer_load_dwordx4 v[34:37], v15, s[60:63], 0 offen offset:16")
    e("buffer_load_dwordx3 v[38:40], v15, s[60:63], 0 offen offset:32")
    e("s_cmp_eq_u32 s3, 1")
    e("s_cselect_b32 s52, s20, s14")
    e("s_cselect_b32 s53, s21, s15")
    e("s_add_u32 s52, s52, s39\ns_addc_u32 s53, s53, 0\ns_and_b32 s53, s53, 0xffff")
    def wloads():
        e("s_mov_b32 s45, 0")
        for t in range(22):
            vo = 16 if t < 16 else (17 if t < 18 else 18)
            e(f"buffer_load_dwordx4 a[{4*t}:{4*t+3}], v{vo}, s[52:55], s45 offen{NT}")
            if t < 21: e("s_add_u32 s45, s45, s38")
    if latew1:
        e("s_cmp_eq_u32 s3, 1")
        e("s_cbranch_scc1 L_now")
    wloads()
    if latew1: A.label("L_now")
    pst(3)
    if bar0: e("s_barrier")
    pst(4)
    stamp(1)
    e(f"s_mov_b32 s48, s32\ns_and_b32 s49, s33, 0xffff\ns_mov_b32 s50, {WS_BYTES}\ns_mov_b32 s51, 0x20000")
    masks()
    e("v_lshlrev_b32 v41, 2, v0")
    e("v_mov_b32 v42, 0")
    e("s_lshl_b32 s40, s34, 8")
    e(f"s_add_u32 s40, s40, {CNT}")
    e("s_add_u32 s56, s32, s40\ns_addc_u32 s57, s33, 0\ns_and_b32 s57, s57, 0xffff\ns_mov_b32 s59, 0x20000")
    e("s_or_b32 s40, s35, s3")
    e("s_cmp_eq_u32 s40, 0")
    e("s_cselect_b32 s58, 4, 0")
    e("buffer_store_dword v42, v41, s[56:59], 0 offen sc1")
    pst(5)
    if latew1:
        e("s_cmp_eq_u32 s3, 1")
        e("s_cbranch_scc0 L_xw0")
        e("s_waitcnt vmcnt(0)")
        A.label("L_xw0")
    e("s_waitcnt vmcnt(25)")
    pst(6)
    F = 44
    for k in range(9):
        e(f"v_lshlrev_b32 v{F+2*k}, 16, v{20+k}")
        e(f"v_and_b32 v{F+2*k+1}, 0xffff0000, v{20+k}")
    e(f"v_pk_add_f32 v[62:63], v[{F}:{F+1}], v[{F+2}:{F+3}]")
    for k in range(2, 9):
        e(f"v_pk_add_f32 v[62:63], v[62:63], v[{F+2*k}:{F+2*k+1}]")
    e("v_add_f32 v62, v62, v63")
    def red32(r, tmp):
        for sh in (8, 4, 2, 1):
            e(f"v_add_f32_dpp v{r}, v{r}, v{r} row_ror:{sh} row_mask:0xf bank_mask:0xf")
        e(f"v_mov_b32 v{tmp}, v{r}")
        e(f"v_permlane16_swap_b32 v{r}, v{tmp}")
        e(f"v_add_f32 v{r}, v{r}, v{tmp}")
    red32(62, 63)
    e("v_mul_f32 v62, 0x3ae38e39, v62")
    e("v_mov_b32 v63, v62")
    for k in range(9):
        e(f"v_pk_add_f32 v[{F+2*k}:{F+2*k+1}], v[{F+2*k}:{F+2*k+1}], v[62:63] neg_lo:[0,1] neg_hi:[0,1]")
    e(f"v_pk_mul_f32 v[64:65], v[{F}:{F+1}], v[{F}:{F+1}]")
    for k in range(1, 9):
        e(f"v_pk_fma_f32 v[64:65], v[{F+2*k}:{F+2*k+1}], v[{F+2*k}:{F+2*k+1}], v[64:65]")
    e("v_add_f32 v64, v64, v65")
    red32(64, 65)
    e("v_mul_f32 v64, 0x3ae38e39, v64")
    e("v_cvt_pk_bf16_f32 v62, v62, v62")
    e("v_and_b32 v62, 0xffff0000, v62")
    e("v_cvt_pk_bf16_f32 v64, v64, v64")
    e("v_and_b32 v64, 0xffff0000, v64")
    e("v_add_f32 v64, 0x3727c5ac, v64")
    e("v_cvt_pk_bf16_f32 v64, v64, v64")
    e("v_and_b32 v64, 0xffff0000, v64")
    e("v_sqrt_f32 v64, v64")
    e("v_cvt_pk_bf16_f32 v64, v64, v64")
    e("v_and_b32 v64, 0xffff0000, v64")
    e("v_rcp_f32 v64, v64")
    e("v_readlane_b32 s56, v62, 0")
    e("v_readlane_b32 s57, v62, 32")
    e("v_readlane_b32 s58, v64, 0")
    e("v_readlane_b32 s59, v64, 32")
    e("v_cmp_eq_u32 vcc, 1, v11")
    e("v_mov_b32 v62, s56")
    e("v_mov_b32 v63, s57")
    e("v_cndmask_b32 v62, v62, v63, vcc")
    e("v_mov_b32 v64, s58")
    e("v_mov_b32 v65, s59")
    e("v_cndmask_b32 v64, v64, v65, vcc")
    e("v_mov_b32 v63, v62")
    e("v_mov_b32 v65, v64")
    pst(7)
    e("s_waitcnt vmcnt(22)")
    pst(8)
    for k in range(11):
        x = 30 + k
        e(f"v_lshlrev_b32 v66, 16, v{x}")
        e(f"v_and_b32 v67, 0xffff0000, v{x}")
        e("v_pk_add_f32 v[66:67], v[66:67], v[62:63] neg_lo:[0,1] neg_hi:[0,1]")
        e("v_cvt_pk_bf16_f32 v68, v66, v67")
        e("v_lshlrev_b32 v66, 16, v68")
        e("v_and_b32 v67, 0xffff0000, v68")
        e("v_pk_mul_f32 v[66:67], v[66:67], v[64:65]")
        e(f"v_cvt_pk_bf16_f32 v{x}, v66, v67")
    stamp(2)
    pst(9)
    if latew1:
        e("s_cmp_eq_u32 s3, 1")
        e("s_cbranch_scc0 L_now2")
        wloads()
        A.label("L_now2")
    e("s_mov_b32 s56, 0x01000100")
    e("s_mov_b32 s57, 0x03020302")
    for r in range(4): e(f"v_mov_b32 v{70+r}, 0")
    for t in range(22):
        B = 76 + 4 * (t & 1)
        e(f"v_perm_b32 v74, v{30 + t//2}, v{30 + t//2}, s{56 + (t & 1)}")
        for jj in range(4):
            e(f"v_and_b32 v{B+jj}, v74, v{6+jj}")
        e(f"s_waitcnt vmcnt({21 - t})")
        e(f"v_mfma_f32_16x16x32_bf16 v[70:73], a[{4*t}:{4*t+3}], v[{B}:{B+3}], v[70:73]")
    stamp(3)
    pst(10)
    def make_tags():
        e("s_waitcnt lgkmcnt(0)")
        e("s_add_u32 s46, s46, 0x7f4a7c15\ns_addc_u32 s47, s47, 0x9e3779b9")
        e(f"s_and_b32 s44, s46, {TAGM}")
        e("v_mov_b32 v2, s44")
        e(f"s_bfe_u32 s44, s46, 0x{(TAGB<<16)|TAGB:x}")
        e("v_mov_b32 v3, s44")
        e(f"s_bfe_u32 s44, s46, 0x{(TAGB<<16)|(2*TAGB):x}")
        e("v_mov_b32 v4, s44")
        e("s_lshr_b64 s[56:57], s[46:47], 30")
        e(f"s_and_b32 s44, s56, {TAGM}")
        e("v_mov_b32 v5, s44")
        e(f"s_mov_b32 s44, {TAGM}")
        e(f"s_mov_b32 s45, 0x{VALM:x}")
    def epsig():
        e("s_mov_b64 exec, 1")
        e(f"v_mov_b32 v13, {L_EP}")
        e("v_mov_b32 v14, 1")
        e("ds_add_u32 v13, v14")
        e("s_mov_b64 exec, -1")
    def tagpack(dst, src, rn=False):
        if rn:
            for r in range(4):
                e(f"v_add_u32 v{dst+r}, {1 << (TAGB - 1)}, v{src+r}")
            src = dst
        for r in range(4):
            e(f"v_bfi_b32 v{dst+r}, s44, v{2+r}, v{src+r}")
    def tagcheck(regs, tmp):
        first = True
        for base in regs:
            for r in range(4):
                if first:
                    e(f"v_xor_b32 v{tmp}, v{base+r}, v{2+r}"); first = False
                else:
                    e(f"v_bitop3_b32 v{tmp}, v{base+r}, v{2+r}, v{tmp} bitop3:0xbe")
        e(f"v_and_b32 v{tmp}, s44, v{tmp}")
        e(f"v_cmp_eq_u32 vcc, 0, v{tmp}")
    pollid = [0]
    def poll(issue, regs, tmp, cnt="s4", nosleep=False):
        n = pollid[0]; pollid[0] += 1
        e(f"s_mov_b32 {cnt}, s100")
        A.label(f"L_poll{n}")
        issue()
        e("s_waitcnt vmcnt(0)")
        tagcheck(regs, tmp)
        e("s_cmp_eq_u64 vcc, exec")
        e(f"s_cbranch_scc1 L_pdone{n}")
        if sleep and not nosleep: e(f"s_sleep {sleep}")
        e(f"s_sub_u32 {cnt}, {cnt}, 1")
        e(f"s_cmp_lg_u32 {cnt}, 0")
        e(f"s_cbranch_scc1 L_poll{n}")
        A.label(f"L_pdone{n}")
    def ldsspin(addr, target, nosleep=False):
        n = pollid[0]; pollid[0] += 1
        e(f"s_mov_b32 s4, {SPIN}")
        e(f"v_mov_b32 v20, {addr}")
        A.label(f"L_poll{n}")
        e("ds_read_b32 v21, v20")
        e("s_waitcnt lgkmcnt(0)")
        e("v_readfirstlane_b32 s6, v21")
        e(f"s_cmp_ge_u32 s6, {target}")
        e(f"s_cbranch_scc1 L_pdone{n}")
        if sleep and not nosleep: e(f"s_sleep {sleep}")
        e("s_sub_u32 s4, s4, 1")
        e("s_cmp_lg_u32 s4, 0")
        e(f"s_cbranch_scc1 L_poll{n}")
        A.label(f"L_pdone{n}")

    def dispatcher():
        if static_tail: return
        e("s_cmp_eq_u32 s3, 0")
        e("s_cbranch_scc0 L_nodisp")
        e("s_lshl_b32 s94, s34, 8")
        e(f"s_add_u32 s94, s94, {CNT}")
        e("s_add_u32 s56, s32, s94\ns_addc_u32 s57, s33, 0\ns_and_b32 s57, s57, 0xffff\ns_mov_b32 s58, 4\ns_mov_b32 s59, 0x20000")
        e("v_mov_b32 v13, 0")
        e(f"v_mov_b32 v14, {L_WANT}")
        e("s_mov_b32 s90, 0")
        e(f"s_mov_b32 s4, {SPIN * 8}")
        e("s_mov_b64 exec, 1")
        A.label("L_dloop")
        e("ds_read_b32 v15, v14")
        e("s_waitcnt lgkmcnt(0)")
        e("v_readfirstlane_b32 s91, v15")
        e("s_cmp_gt_u32 s91, s90")
        e("s_cbranch_scc1 L_dget")
        e("s_sleep 1")
        e("s_sub_u32 s4, s4, 1")
        e("s_cmp_lg_u32 s4, 0")
        e("s_cbranch_scc1 L_dloop")
        e("s_mov_b32 s92, 256")
        e("s_branch L_dput")
        A.label("L_dget")
        e("v_mov_b32 v15, 1")
        e("buffer_atomic_add v15, v13, s[56:59], 0 offen sc0 sc1")
        e("s_waitcnt vmcnt(0)")
        e("v_readfirstlane_b32 s91, v15")
        e("s_mov_b32 s92, 256")
        k0, st0 = 0, 128
        for gi, ph in enumerate(gss):
            cnt, nper = ph[0], ph[1]
            half = len(ph) > 2 and ph[2]
            e(f"s_sub_u32 s93, s91, {k0}")
            if half:
                assert cnt % 16 == 0 and nper == 1
                e("s_and_b32 s94, s93, 7")
                e("s_lshl_b32 s94, s94, 1")
                e("s_lshr_b32 s95, s93, 4")
                e("s_lshl_b32 s95, s95, 4")
                e("s_add_u32 s94, s94, s95")
                e("s_bfe_u32 s95, s93, 0x10003")
                e("s_lshl_b32 s95, s95, 25")
                e("s_add_u32 s94, s94, s95")
                e(f"s_add_u32 s94, s94, {st0 + (1 << 16) + (1 << 24)}")
                covered = cnt
            else:
                assert cnt % 8 == 0
                e("s_and_b32 s94, s93, 7")
                e("s_lshl_b32 s94, s94, 1")
                e("s_lshr_b32 s95, s93, 3")
                e(f"s_mul_i32 s95, s95, {16*nper}")
                e("s_add_u32 s94, s94, s95")
                e(f"s_add_u32 s94, s94, {st0 + (nper << 16)}")
                covered = cnt * 2 * nper
            e(f"s_cmp_lt_u32 s93, {cnt}")
            e("s_cselect_b32 s92, s94, s92")
            k0 += cnt; st0 += covered
        assert st0 == 256, st0
        assert k0 + 3 <= 64
        if dtrig is not None:
            e(f"s_cmp_ge_u32 s91, {dtrig}")
            e("s_cbranch_scc0 L_dnt")
            e(f"v_mov_b32 v15, {L_FC}")
            e("v_mov_b32 v16, 4")
            e("ds_write_b32 v15, v16")
            A.label("L_dnt")
        A.label("L_dput")
        e("s_lshl_b32 s93, s90, 2")
        e(f"s_add_u32 s93, s93, {L_MB}")
        e("v_mov_b32 v15, s93")
        e("v_mov_b32 v16, s92")
        e("ds_write_b32 v15, v16")
        e("s_add_u32 s90, s90, 1")
        e("s_cmp_eq_u32 s92, 256")
        e("s_cbranch_scc0 L_dloop")
        e("s_waitcnt lgkmcnt(0)")
        e("s_mov_b64 exec, -1")
        A.label("L_nodisp")

    make_tags()
    e("s_cmp_eq_u32 s3, 1")
    e("s_cbranch_scc1 L_hpub")
    ldsspin(L_EP, 3, nosleep=True)
    e("s_waitcnt vmcnt(0)")
    tagpack(74, 70, rn=True)
    e("v_lshlrev_b32 v13, 4, v0")
    e("s_lshl_b32 s36, s2, 10")
    e(f"s_add_u32 s36, s36, {QP}")
    e("buffer_store_dwordx4 v[74:77], v13, s[48:51], s36 offen sc1")
    stamp(4)
    pst(11)
    e("v_lshlrev_b32 v13, 4, v0")
    e("s_lshl_b32 s36, s34, 13")
    e(f"s_add_u32 s36, s36, {QP}")
    e("s_add_u32 s37, s36, 4096")
    if qdelay is not None: ldsspin(L_FP, 1)
    def issue_q():
        for k in range(8):
            e(f"buffer_load_dwordx4 v[{20+4*k}:{23+4*k}], v13, s[48:51], s{36 + k//4} offen offset:{1024*(k%4)} sc1")
    poll(issue_q, [20 + 4 * k for k in range(8)], 52)
    pst(12)
    for r in range(4):
        for k in range(8): e(f"v_and_b32 v{20+4*k+r}, s45, v{20+4*k+r}")
        for k in (0, 2, 4, 6): e(f"v_add_f32 v{20+4*k+r}, v{20+4*k+r}, v{24+4*k+r}")
        e(f"v_add_f32 v{20+r}, v{20+r}, v{28+r}")
        e(f"v_add_f32 v{36+r}, v{36+r}, v{44+r}")
        e(f"v_add_f32 v{20+r}, v{20+r}, v{36+r}")
    e("v_cvt_pk_bf16_f32 v24, v20, v21")
    e("v_cvt_pk_bf16_f32 v25, v22, v23")
    e("v_lshlrev_b32 v13, 8, v11")
    e("v_lshl_add_u32 v13, v10, 6, v13")
    e("v_and_b32 v14, 7, v0")
    e("v_lshl_add_u32 v13, v14, 1, v13")
    e(f"ds_write_b16 v13, v24 offset:{L_Q}")
    e(f"ds_write_b16_d16_hi v13, v24 offset:{L_Q+16}")
    e(f"ds_write_b16 v13, v25 offset:{L_Q+32}")
    e(f"ds_write_b16_d16_hi v13, v25 offset:{L_Q+48}")
    e("s_waitcnt lgkmcnt(0)")
    e(f"v_mov_b32 v13, {L_FQ}")
    e("v_mov_b32 v14, 1")
    e("ds_write_b32 v13, v14")
    stamp(5)
    pst(13)
    e("s_branch L_barA")
    A.label("L_hpub")
    epsig()
    e("s_cmp_ge_u32 s2, 252")
    e("s_cbranch_scc1 L_barA")
    e("v_lshlrev_b32 v13, 9, v11")
    e("v_lshl_add_u32 v13, v10, 7, v13")
    e("v_and_b32 v14, 7, v0")
    e("v_lshl_add_u32 v13, v14, 2, v13")
    for r in range(4):
        e(f"ds_write_b32 v13, v{70+r} offset:{L_HT + 32*r}")
    e("v_lshlrev_b32 v14, 4, v0")
    e("s_waitcnt lgkmcnt(0)")
    e(f"ds_read_b128 v[70:73], v14 offset:{L_HT}")
    e("v_lshrrev_b32 v13, 5, v0")
    e("v_mul_u32_u24 v13, 18432, v13")
    e("v_and_b32 v14, 31, v0")
    e("v_lshl_add_u32 v13, v14, 4, v13")
    e("s_mul_hi_u32 s43, s2, 0x71c71c8")
    e("s_mul_i32 s36, s43, 36")
    e("s_sub_u32 s36, s2, s36")
    e("s_lshl_b32 s36, s36, 9")
    e("s_mul_i32 s37, s43, 36864")
    e("s_add_u32 s36, s36, s37")
    e(f"s_add_u32 s36, s36, {HP}")
    e("s_waitcnt lgkmcnt(0)")
    tagpack(74, 70, rn=True)
    e("buffer_store_dwordx4 v[74:77], v13, s[48:51], s36 offen sc1")
    stamp(4)
    e("s_branch L_barA")
    A.label("L_aux23")
    e("s_mov_b64 exec, 1")
    e(f"v_mov_b32 v13, {L_FC}")
    e("v_mov_b32 v14, 0")
    e("v_mov_b32 v15, 0")
    e("ds_write_b64 v13, v[14:15]")
    if 'noq' in diag: e("v_mov_b32 v15, 1")
    e("ds_write_b64 v13, v[14:15] offset:8")
    e("ds_write_b32 v13, v14 offset:16")
    e("ds_write_b32 v13, v14 offset:20")
    e("s_mov_b64 exec, -1")
    e("v_lshlrev_b32 v13, 2, v0")
    e("v_mov_b32 v14, -1")
    e(f"ds_write_b32 v13, v14 offset:{L_MB}")
    e("s_waitcnt lgkmcnt(0)")
    e("s_load_dwordx2 s[46:47], s[32:33], 0")
    e(f"s_mov_b32 s48, s32\ns_and_b32 s49, s33, 0xffff\ns_mov_b32 s50, {WS_BYTES}\ns_mov_b32 s51, 0x20000")
    if tlb:
        e("s_cmp_eq_u32 s3, 2")
        e("s_cbranch_scc0 L_notlb")
        e("v_lshlrev_b32 v13, 16, v0")
        e("s_cmp_lt_u32 s2, 16")
        e(f"s_cselect_b32 s50, 0x300000, 0")
        e("buffer_load_dword v120, v13, s[48:51], 0 offen")
        e(f"s_mov_b32 s50, {WS_BYTES}")
        e("s_lshr_b32 s36, s2, 1")
        e("v_lshlrev_b32 v14, 15, v0")
        e("s_mul_i32 s37, s36, 36864")
        e("s_add_u32 s60, s16, s37\ns_addc_u32 s61, s17, 0\ns_and_b32 s61, s61, 0xffff\ns_mov_b32 s62, 36864\ns_mov_b32 s63, 0x20000")
        e("buffer_load_dword v121, v14, s[60:63], 0 offen")
        e("s_mul_i32 s37, s36, 41472")
        e("s_add_u32 s60, s24, s37\ns_addc_u32 s61, s25, 0\ns_and_b32 s61, s61, 0xffff\ns_mov_b32 s62, 41472")
        e("buffer_load_dword v122, v14, s[60:63], 0 offen")
        e("s_mov_b32 s60, s28\ns_and_b32 s61, s29, 0xffff\ns_mov_b32 s62, 4")
        e("buffer_load_dword v123, v14, s[60:63], 0 offen")
        e("s_mov_b32 s60, s26\ns_and_b32 s61, s27, 0xffff")
        e("buffer_load_dword v124, v14, s[60:63], 0 offen")
        e("s_mov_b32 s60, s22\ns_and_b32 s61, s23, 0xffff")
        e("buffer_load_dword v125, v14, s[60:63], 0 offen")
        A.label("L_notlb")
    if bar0: e("s_barrier")
    if 'noaux' in diag: e("s_endpgm")
    masks()
    make_tags()
    epsig()
    A.label("L_barA")
    stamp(6)
    if wmode != 'early': dispatcher()
    if warm:
        e("s_cmp_eq_u32 s3, 1")
        e("s_cbranch_scc0 L_nodry1")
        e("s_cmp_lt_u32 s2, 36")
        e("s_cbranch_scc0 L_nodry1")
        e("s_mov_b32 s100, 1\ns_mov_b32 s101, 1\ns_mov_b32 s50, 0")
        e("s_branch L_red")
        A.label("L_drydone1")
        e(f"s_mov_b32 s100, {SPIN}\ns_mov_b32 s101, 0\ns_mov_b32 s50, {WS_BYTES}")
        A.label("L_nodry1")
    e("s_and_b32 s36, s35, 1")
    e("s_lshr_b32 s37, s2, 1")
    e("s_mov_b32 s40, 2\ns_mov_b32 s41, 0")
    e("s_cmp_ge_u32 s3, 2")
    e("s_cbranch_scc1 L_t23")
    e("s_mov_b32 s38, 0")
    e("s_lshl_b32 s39, s36, 1")
    e("s_add_u32 s39, s39, s3")
    e("s_branch L_tdone")
    A.label("L_t23")
    e("s_mov_b32 s38, 1")
    e("s_lshl_b32 s39, s36, 1")
    e("s_sub_u32 s39, s3, s39")
    e("s_cmp_eq_u32 s3, 2")
    e("s_cbranch_scc0 L_th2")
    e("s_mov_b32 s41, 4")
    e("s_xor_b32 s40, s36, 1")
    if w2late:
        e("s_cmp_eq_u32 s36, 1")
        e("s_cbranch_scc0 L_th2")
        e("s_mov_b32 s38, 0\ns_mov_b32 s39, 4\ns_mov_b32 s40, 1\ns_mov_b32 s41, 0")
    A.label("L_th2")
    e("s_mov_b64 exec, 0x3ffff")
    e("v_cmp_le_u32 vcc, 9, v0")
    e("v_cndmask_b32 v13, 0, 1, vcc")
    e("v_mul_u32_u24 v14, 9, v13")
    e("v_sub_u32 v14, v0, v14")
    e("v_mul_u32_u24 v15, 18432, v13")
    e("v_lshl_add_u32 v15, v14, 4, v15")
    e("s_mul_i32 s42, s37, 144")
    e(f"s_add_u32 s42, s42, {HP}")
    e("s_mov_b32 s60, s22\ns_and_b32 s61, s23, 0xffff\ns_mov_b32 s62, 9216\ns_mov_b32 s63, 0x20000")
    e("s_mul_i32 s43, s37, 72")
    e("v_lshlrev_b32 v16, 3, v14")
    e("buffer_load_dwordx2 v[18:19], v16, s[60:63], s43 offen")
    if lateh and not static_tail:
        e("s_mov_b64 exec, -1")
        ldsspin(L_WANT, 1)
        e("s_mov_b64 exec, 0x3ffff")
    def issue_h():
        e("s_mov_b32 s43, s42")
        for k in range(7):
            e(f"buffer_load_dwordx4 v[{20+4*k}:{23+4*k}], v15, s[48:51], s43 offen sc1")
            if k < 6: e("s_add_u32 s43, s43, 36864")
    poll(issue_h, [20 + 4 * k for k in range(7)], 48)
    for r in range(4):
        for k in range(7): e(f"v_and_b32 v{20+4*k+r}, s45, v{20+4*k+r}")
        for k in range(1, 7): e(f"v_add_f32 v{20+r}, v{20+r}, v{20+4*k+r}")
    e("v_lshlrev_b32 v24, 16, v18\nv_and_b32 v25, 0xffff0000, v18\nv_lshlrev_b32 v26, 16, v19\nv_and_b32 v27, 0xffff0000, v19")
    for r in range(4):
        e(f"v_cvt_pk_bf16_f32 v{20+r}, v{20+r}, v{20+r}")
        e(f"v_and_b32 v{20+r}, 0xffff0000, v{20+r}")
        e(f"v_add_f32 v{20+r}, v{20+r}, v{24+r}")
        e(f"v_cvt_pk_bf16_f32 v{20+r}, v{20+r}, v{20+r}")
        e(f"v_and_b32 v{20+r}, 0xffff0000, v{20+r}")
        e(f"v_max_f32 v{20+r}, 0, v{20+r}")
        e(f"v_mul_f32 v{20+r}, v{20+r}, v{20+r}")
        e(f"v_cvt_pk_bf16_f32 v{20+r}, v{20+r}, v{20+r}")
    e("v_mul_u32_u24 v16, 144, v13")
    e("v_lshl_add_u32 v16, v14, 4, v16")
    e("s_lshl_b32 s43, s3, 10")
    e("v_add_u32 v16, s43, v16")
    e(f"ds_write_b128 v16, v[20:23] offset:{L_PRIV}")
    e("s_mov_b64 exec, -1")
    e("s_waitcnt lgkmcnt(0)")
    A.label("L_tdone")
    stamp(7)
    def task_srd(srd, typ, beta, voff):
        n = pollid[0]; pollid[0] += 1
        e(f"s_cmp_eq_u32 {typ}, 1")
        e(f"s_cbranch_scc1 L_sw2_{n}")
        e("s_mul_i32 s42, s37, 36864")
        e(f"s_lshl_b32 s43, {beta}, 8")
        e("s_add_u32 s42, s42, s43")
        e(f"s_add_u32 s{srd}, s16, s42\ns_addc_u32 s{srd+1}, s17, 0")
        e(f"s_sub_u32 s{srd+2}, 4718592, s42")
        e("s_mov_b32 s43, 9216")
        e(f"s_branch L_sd_{n}")
        A.label(f"L_sw2_{n}")
        e("s_mul_i32 s42, s37, 41472")
        e(f"s_lshl_b32 s43, {beta}, 8")
        e("s_add_u32 s42, s42, s43")
        e(f"s_add_u32 s{srd}, s24, s42\ns_addc_u32 s{srd+1}, s25, 0")
        e(f"s_sub_u32 s{srd+2}, 5308416, s42")
        e("s_mov_b32 s43, 10368")
        A.label(f"L_sd_{n}")
        e(f"s_and_b32 s{srd+1}, s{srd+1}, 0xffff\ns_mov_b32 s{srd+3}, 0x20000")
        e(f"s_cmp_eq_u32 {typ}, 2")
        e(f"s_cselect_b32 s{srd+2}, 0, s{srd+2}")
        e(f"v_mul_lo_u32 v{voff}, v10, s43")
        e(f"v_lshl_add_u32 v{voff}, v12, 4, v{voff}")
        e(f"v_mov_b32 v19, {OOB}")
        e("v_cmp_le_u32 vcc, 8, v12")
        e(f"v_cndmask_b32 v18, v{voff}, v19, vcc")
        e(f"s_cmp_eq_u32 {beta}, 4")
        e(f"s_cbranch_scc0 L_se_{n}")
        e(f"v_mov_b32 v{voff}, v18")
        A.label(f"L_se_{n}")
    task_srd(52, "s38", "s39", 13)
    task_srd(56, "s40", "s41", 14)
    if 'nowo' in diag:
        e("s_mov_b32 s54, 0\ns_mov_b32 s58, 0")
    e(f"v_mov_b32 v19, {OOB}")
    e("s_cmp_eq_u32 s38, 0\ns_cselect_b64 vcc, -1, 0")
    e("v_cndmask_b32 v15, v13, v19, vcc")
    e("s_cmp_eq_u32 s40, 0\ns_cselect_b64 vcc, -1, 0")
    e("v_cndmask_b32 v16, v14, v19, vcc")
    e("v_lshrrev_b32 v90, 3, v0")
    e("v_lshlrev_b32 v90, 14, v90")
    e("v_and_b32 v91, 7, v0")
    e("v_lshl_add_u32 v90, v91, 4, v90")
    e("v_cmp_le_u32 vcc, 32, v0")
    e("v_cndmask_b32 v92, v90, v19, vcc")
    e("s_cmp_eq_u32 s41, 4\ns_cselect_b64 vcc, -1, 0")
    e("v_cndmask_b32 v91, v90, v92, vcc")
    e("s_cmp_eq_u32 s39, 4\ns_cselect_b64 vcc, -1, 0")
    e("v_cndmask_b32 v90, v90, v92, vcc")
    for (typ, beta, dst) in (("s38", "s39", "s96"), ("s40", "s41", "s97")):
        e(f"s_mov_b32 {dst}, {SP}")
        e(f"s_cmp_eq_u32 {typ}, 1")
        e(f"s_cselect_b32 {dst}, {GP}, {dst}")
        e(f"s_lshl_b32 s42, {beta}, 17")
        e(f"s_add_u32 {dst}, {dst}, s42")
        e("s_lshl_b32 s42, s37, 7")
        e(f"s_add_u32 {dst}, {dst}, s42")
    e("v_and_b32 v93, 3, v0")
    e("v_bfe_u32 v94, v0, 4, 1")
    e("v_lshl_add_u32 v93, v94, 2, v93")
    e("v_bfe_u32 v94, v0, 2, 2")
    e("v_lshrrev_b32 v95, 5, v0")
    if direct:
        e("v_lshlrev_b32 v96, 13, v95")
        e("v_lshl_add_u32 v96, v94, 9, v96")
        e("v_lshl_add_u32 v96, v93, 4, v96")
        e("v_lshlrev_b32 v97, 8, v95")
        e("v_lshl_add_u32 v97, v94, 4, v97")
        e("s_lshr_b32 s98, s35, 1")
        e("s_lshl_b32 s98, s98, 7")
        e("s_lshl_b32 s42, s34, 14")
        e("s_add_u32 s98, s98, s42")
        e(f"s_add_u32 s98, s98, {OPW}")
        e("s_add_u32 s63, s98, 4096")
        e("s_lshl_b32 s99, s34, 9")
        e(f"s_add_u32 s99, s99, {ML}")
        e("s_lshl_b32 s42, s3, 10")
        e(f"s_add_u32 s42, s42, {L_PRIV + 0x200}")
        e("v_lshlrev_b32 v98, 7, v95")
        e("v_lshl_add_u32 v98, v93, 2, v98")
        e("v_add_u32 v98, s42, v98")
    else:
        e("v_lshlrev_b32 v96, 12, v95")
        e("v_lshl_add_u32 v96, v94, 9, v96")
        e("v_lshl_add_u32 v96, v93, 4, v96")
        e("v_lshlrev_b32 v97, 7, v95")
        e("v_lshl_add_u32 v97, v94, 4, v97")
        e("s_lshr_b32 s98, s35, 1")
        e("s_lshl_b32 s98, s98, 7")
        e("s_lshl_b32 s42, s34, 13")
        e("s_add_u32 s98, s98, s42")
        e(f"s_add_u32 s98, s98, {OP}")
        e("s_lshl_b32 s99, s34, 8")
        e(f"s_add_u32 s99, s99, {ML}")
        e("s_lshl_b32 s42, s3, 10")
        e(f"s_add_u32 s42, s42, {L_PRIV + 0x200}")
        e("v_lshlrev_b32 v98, 7, v95")
        e("v_lshl_add_u32 v98, v93, 4, v98")
        e("v_add_u32 v98, s42, v98")
    e("v_lshlrev_b32 v99, 7, v11")
    e("v_lshl_add_u32 v99, v10, 5, v99")
    e("v_add_u32 v99, s42, v99")
    e("s_cmp_ge_u32 s3, 2")
    e("s_cbranch_scc0 L_noh2")
    e("v_mul_u32_u24 v20, 144, v11")
    e("v_mad_u32_u24 v20, v10, 36, v20")
    e("s_lshl_b32 s42, s3, 10")
    e("v_add_u32 v20, s42, v20")
    for t in range(9):
        e(f"ds_read_b32 v{100+t}, v20 offset:{L_PRIV + 4*t}")
    e("s_waitcnt lgkmcnt(0)")
    A.label("L_noh2")
    e("v_and_b32 v110, 31, v0")
    e("v_lshlrev_b32 v110, 4, v110")
    e("v_lshl_add_u32 v111, v95, 9, v110")
    e("v_lshlrev_b32 v112, 3, v95")
    e("v_lshl_add_u32 v113, v95, 12, v110")
    e("v_lshlrev_b32 v114, 7, v95")
    e("s_lshl_b32 s60, s34, 13")
    e("s_lshl_b32 s43, s35, 9")
    e("s_add_u32 s60, s60, s43")
    e(f"s_add_u32 s60, s60, {OP}")
    e("s_lshl_b32 s61, s34, 8")
    e("s_lshl_b32 s43, s35, 4")
    e("s_add_u32 s61, s61, s43")
    e(f"s_add_u32 s61, s61, {ML}")
    e(f"s_mov_b32 s62, 0x{LOG2E:x}")
    if warm:
        e("s_cmp_eq_u32 s3, 1")
        e("s_cbranch_scc1 L_dry2")
        if direct:
            e("s_branch L_nodry2")
        else:
            e("s_cmp_eq_u32 s3, 3")
            e("s_cbranch_scc0 L_nodry2")
            e("s_mov_b32 s100, 1\ns_mov_b32 s101, 1\ns_mov_b32 s50, 0")
            e("s_branch L_comb")
        A.label("L_dry2")
        e("s_mov_b32 s100, 1\ns_mov_b32 s101, 1\ns_mov_b32 s50, 0")
        e("s_branch L_btX")
        A.label("L_drydone2")
        e(f"s_mov_b32 s100, {SPIN}\ns_mov_b32 s101, 0\ns_mov_b32 s50, {WS_BYTES}")
        A.label("L_nodry2")
    if wmode == 'flagC': ldsspin(L_FC, fcn)
    if wmode == 'flagB': ldsspin(L_FB, 4)
    stamp(8)
    def xloads():
        e("s_mov_b32 s42, 0")
        for t in range(9):
            vo = 13 if t < 8 else 15
            e(f"buffer_load_dwordx4 a[{4*t}:{4*t+3}], v{vo}, s[52:55], s42 offen{NT}")
            e("s_add_u32 s42, s42, 1152") if t < 8 else None
    def yloads():
        e("s_mov_b32 s42, 0")
        for t in range(9):
            vo = 14 if t < 8 else 16
            e(f"buffer_load_dwordx4 a[{36+4*t}:{36+4*t+3}], v{vo}, s[56:59], s42 offen{NT}")
            e("s_add_u32 s42, s42, 1152") if t < 8 else None
    if not w2late:
        xloads()
        e("s_cmp_eq_u32 s40, 2")
        e("s_cbranch_scc1 L_noy")
        yloads()
        A.label("L_noy")
    else:
        e("s_cmp_eq_u32 s38, 0")
        e("s_cbranch_scc0 L_xl1")
        xloads()
        A.label("L_xl1")
        e("s_cmp_eq_u32 s40, 0")
        e("s_cbranch_scc0 L_yl1")
        yloads()
        A.label("L_yl1")
        e("s_cmp_eq_u32 s3, 2")
        e("s_cbranch_scc0 L_xl2")
        ldsspin(L_FB, 4)
        e("s_cmp_eq_u32 s38, 1")
        e("s_cbranch_scc0 L_xl3")
        xloads()
        A.label("L_xl3")
        e("s_cmp_eq_u32 s40, 1")
        e("s_cbranch_scc0 L_xl2")
        yloads()
        A.label("L_xl2")
    if wmode == 'early': dispatcher()
    if not direct:
        e("s_cmp_eq_u32 s3, 3")
        e("s_cbranch_scc0 L_nocomb")
        ldsspin(L_FB, 4, nosleep=True)
        stamp(9)
        A.label("L_comb")
        e(f"ds_read_b64 v[40:41], v112 offset:{L_MLW}")
        e(f"ds_read_b64 v[42:43], v112 offset:{L_MLW+16}")
        e(f"ds_read_b128 v[24:27], v111 offset:{L_OW}")
        e(f"ds_read_b128 v[28:31], v111 offset:{L_OW + 1024}")
        e("s_waitcnt lgkmcnt(2)")
        e("v_max_f32 v48, v40, v42")
        e("v_sub_f32 v40, v40, v48\nv_sub_f32 v42, v42, v48")
        e("v_mul_f32 v40, s62, v40\nv_mul_f32 v42, s62, v42")
        e("v_exp_f32 v40, v40\nv_exp_f32 v42, v42")
        e("v_mov_b32 v52, 0\nv_mov_b32 v53, 0")
        e("v_mul_f32 v49, v40, v41")
        e("v_fmac_f32 v49, v42, v43")
        e("s_waitcnt lgkmcnt(0)")
        for r in range(4):
            e(f"v_mul_f32 v{44+r}, v40, v{24+r}")
        for r in range(4):
            e(f"v_fmac_f32 v{44+r}, v42, v{28+r}")
        tagpack(54, 44)
        e("buffer_store_dwordx4 v[54:57], v113, s[48:51], s60 offen sc1")
        e(f"v_bfi_b32 v58, s44, v2, v48\nv_bfi_b32 v59, s44, v3, v49\nv_bfi_b32 v60, s44, v4, v52\nv_bfi_b32 v61, s44, v5, v53")
        e("s_mov_b32 exec_lo, 1\ns_mov_b32 exec_hi, 1")
        e("buffer_store_dwordx4 v[58:61], v114, s[48:51], s61 offen sc1")
        e("s_mov_b64 exec, -1")
        if warm:
            e("s_cmp_lg_u32 s101, 0")
            e("s_cbranch_scc1 L_drydone2")
        stamp(10)
        if w2late: xloads()
        A.label("L_nocomb")

    def mchain(n, srcs, abase):
        def bb(t):
            B = 76 + 4 * (t & 1)
            for jj in range(4): e(f"v_and_b32 v{B+jj}, v{srcs[t]}, v{6+jj}")
        def mm(t):
            B = 76 + 4 * (t & 1)
            c = "0" if t == 0 else "v[70:73]"
            e(f"v_mfma_f32_16x16x32_bf16 v[70:73], a[{abase+4*t}:{abase+4*t+3}], v[{B}:{B+3}], {c}")
        bb(0); bb(1)
        for t in range(n):
            mm(t)
            if t + 2 < n: bb(t + 2)
    def blocktask(which, typ, abase, vst, sst):
        n = pollid[0]; pollid[0] += 1
        e(f"s_cmp_eq_u32 {typ}, 2")
        e(f"s_cbranch_scc1 L_bt_end{n}")
        e(f"s_cmp_eq_u32 {typ}, 1")
        e(f"s_cbranch_scc1 L_bt_w2{n}")
        if direct:
            OR = [24, 36, 44, 48]; MR = [28, 40, 52, 56]
            def issue_o():
                for k in range(4):
                    so = "s98" if k < 2 else "s63"
                    e(f"buffer_load_dwordx4 v[{OR[k]}:{OR[k]+3}], v96, s[48:51], {so} offen offset:{2048*(k&1)} sc1")
                for k in range(4):
                    e(f"buffer_load_dwordx4 v[{MR[k]}:{MR[k]+3}], v97, s[48:51], s99 offen offset:{64*k} sc1")
            poll(issue_o, OR + MR, 32, nosleep=True)
            stamp(11)
            e("v_max3_f32 v30, v28, v40, v52")
            e("v_max_f32 v30, v30, v56")
            e("v_max_f32_dpp v30, v30, v30 row_ror:4 row_mask:0xf bank_mask:0xf")
            e("v_max_f32_dpp v30, v30, v30 row_ror:8 row_mask:0xf bank_mask:0xf")
            for k in range(4): e(f"v_sub_f32 v{MR[k]}, v{MR[k]}, v30")
            for k in range(4): e(f"v_mul_f32 v{MR[k]}, s62, v{MR[k]}")
            for k in range(4): e(f"v_exp_f32 v{MR[k]}, v{MR[k]}")
            e("v_mul_f32 v29, v29, v28")
            for r in range(4): e(f"v_mul_f32 v{24+r}, v{24+r}, v28")
            for k in range(1, 4):
                e(f"v_fmac_f32 v29, v{MR[k]+1}, v{MR[k]}")
                for r in range(4): e(f"v_fmac_f32 v{24+r}, v{OR[k]+r}, v{MR[k]}")
            for r in (29, 24, 25, 26, 27):
                e(f"v_add_f32_dpp v{r}, v{r}, v{r} row_ror:4 row_mask:0xf bank_mask:0xf")
            for r in (29, 24, 25, 26, 27):
                e(f"v_add_f32_dpp v{r}, v{r}, v{r} row_ror:8 row_mask:0xf bank_mask:0xf")
            e("v_rcp_f32 v29, v29")
            for r in range(4): e(f"v_mul_f32 v{24+r}, v{24+r}, v29")
            for r in range(4): e(f"v_cvt_pk_bf16_f32 v{24+r}, v{24+r}, v{24+r}")
            for r in range(4): e(f"ds_write_b32 v98, v{24+r} offset:{32*r}")
            e("s_waitcnt lgkmcnt(0)")
        else:
            def issue_o():
                e("buffer_load_dwordx4 v[24:27], v96, s[48:51], s98 offen sc1")
                e("buffer_load_dwordx4 v[36:39], v96, s[48:51], s98 offen offset:2048 sc1")
                e("buffer_load_dwordx4 v[28:31], v97, s[48:51], s99 offen sc1")
                e("buffer_load_dwordx4 v[40:43], v97, s[48:51], s99 offen offset:64 sc1")
            poll(issue_o, [24, 36, 28, 40], 32, nosleep=True)
            stamp(11)
            if not nomask:
                for r in (24, 25, 26, 27, 36, 37, 38, 39, 28, 29, 40, 41): e(f"v_and_b32 v{r}, s45, v{r}")
            e("v_max_f32 v30, v28, v40")
            e("v_max_f32_dpp v30, v30, v30 row_ror:4 row_mask:0xf bank_mask:0xf")
            e("v_max_f32_dpp v30, v30, v30 row_ror:8 row_mask:0xf bank_mask:0xf")
            e("v_sub_f32 v28, v28, v30\nv_sub_f32 v40, v40, v30")
            e("v_mul_f32 v28, s62, v28\nv_mul_f32 v40, s62, v40")
            e("v_exp_f32 v28, v28\nv_exp_f32 v40, v40")
            e("v_mul_f32 v29, v29, v28")
            for r in range(4): e(f"v_mul_f32 v{24+r}, v{24+r}, v28")
            e("v_fmac_f32 v29, v41, v40")
            for r in range(4): e(f"v_fmac_f32 v{24+r}, v{36+r}, v40")
            for r in (29, 24, 25, 26, 27):
                e(f"v_add_f32_dpp v{r}, v{r}, v{r} row_ror:4 row_mask:0xf bank_mask:0xf")
            for r in (29, 24, 25, 26, 27):
                e(f"v_add_f32_dpp v{r}, v{r}, v{r} row_ror:8 row_mask:0xf bank_mask:0xf")
            e("v_rcp_f32 v29, v29")
            for r in range(4): e(f"v_mul_f32 v{24+r}, v{24+r}, v29")
            for r in range(4): e(f"v_cvt_pk_bf16_f32 v{24+r}, v{24+r}, v{24+r}")
            e("ds_write_b128 v98, v[24:27]")
            e("s_waitcnt lgkmcnt(0)")
        e("ds_read_b128 v[24:27], v99")
        e("ds_read_b128 v[28:31], v99 offset:16")
        e("s_waitcnt lgkmcnt(0)")
        mchain(8, [24 + t for t in range(8)], abase)
        e(f"s_branch L_bt_pub{n}")
        A.label(f"L_bt_w2{n}")
        e(f"s_waitcnt vmcnt({0 if which == 'Y' else 9})") if False else e("s_waitcnt vmcnt(0)")
        mchain(9, [100 + t for t in range(9)], abase)
        A.label(f"L_bt_pub{n}")
        tagpack(74, 70)
        e(f"buffer_store_dwordx4 v[74:77], v{vst}, s[48:51], {sst} offen sc1")
        A.label(f"L_bt_end{n}")
    A.label("L_btX")
    blocktask("X", "s38", 0, 90, "s96")
    if warm:
        e("s_cmp_lg_u32 s101, 0")
        e("s_cbranch_scc1 L_drydone2")
    stamp(12)
    blocktask("Y", "s40", 36, 91, "s97")
    stamp(13)

    e("s_cmp_ge_u32 s2, 36")
    e("s_cbranch_scc1 L_auxend")
    A.label("L_red")
    e("s_lshr_b32 s36, s2, 3")
    e("s_and_b32 s37, s2, 7")
    e("s_lshl_b32 s38, s36, 7")
    e("s_lshr_b32 s39, s37, 1")
    e("s_lshl_b32 s39, s39, 5")
    e("s_add_u32 s38, s38, s39")
    e("s_and_b32 s39, s37, 1")
    e("s_mul_i32 s39, s39, 576")
    e("s_add_u32 s39, s39, s38")
    e("s_mov_b32 s60, s8\ns_and_b32 s61, s9, 0xffff\ns_mov_b32 s62, 2304\ns_mov_b32 s63, 0x20000")
    e("s_mov_b32 s56, s26\ns_and_b32 s57, s27, 0xffff\ns_mov_b32 s58, 1152\ns_mov_b32 s59, 0x20000")
    e("v_lshlrev_b32 v13, 1, v0")
    e("s_lshl_b32 s40, s39, 1")
    e("s_lshl_b32 s41, s38, 1")
    e("v_and_b32 v16, 3, v0")
    e("v_bfe_u32 v17, v0, 4, 1")
    e("v_lshl_add_u32 v16, v17, 2, v16")
    e("v_bfe_u32 v17, v0, 2, 2")
    e("v_lshrrev_b32 v18, 5, v0")
    e("v_lshl_add_u32 v17, v18, 2, v17")
    e("v_lshlrev_b32 v19, 4, v16")
    e("v_lshl_add_u32 v16, v17, 7, v19")
    e("v_lshl_add_u32 v17, v18, 7, v19")
    e("s_lshl_b32 s43, s3, 8")
    e("v_add_u32 v17, s43, v17")
    e("s_lshl_b32 s42, s2, 14")
    e("s_lshl_b32 s43, s3, 12")
    e("s_add_u32 s42, s42, s43")
    e(f"s_add_u32 s43, s42, {SP}")
    e(f"s_add_u32 s42, s42, {GP}")
    e("s_mov_b32 exec_lo, -1\ns_mov_b32 exec_hi, 0")
    e("buffer_load_ushort v14, v13, s[60:63], s40 offen")
    e("buffer_load_ushort v15, v13, s[56:59], s41 offen")
    e("s_mov_b64 exec, -1")
    e("s_mov_b32 s60, s28\ns_and_b32 s61, s29, 0xffff")
    def issue_r():
        for k in range(4):
            e(f"buffer_load_dwordx4 v[{20+4*k}:{23+4*k}], v16, s[48:51], s42 offen offset:{1024*k} sc1")
        for k in range(4):
            e(f"buffer_load_dwordx4 v[{36+4*k}:{39+4*k}], v16, s[48:51], s43 offen offset:{1024*k} sc1")
    poll(issue_r, [20 + 4 * k for k in range(8)], 52, nosleep=True)
    stamp(14)
    for base in (20, 36):
        for r in range(4):
            if not nomask:
                for k in range(4): e(f"v_and_b32 v{base+4*k+r}, s45, v{base+4*k+r}")
        for r in range(4): e(f"v_add_f32 v{base+r}, v{base+r}, v{base+4+r}")
        for r in range(4): e(f"v_add_f32 v{base+8+r}, v{base+8+r}, v{base+12+r}")
        for r in range(4): e(f"v_add_f32 v{base+r}, v{base+r}, v{base+8+r}")
    for sh in (4, 8):
        for base in (20, 36):
            for r in range(4):
                e(f"v_add_f32_dpp v{base+r}, v{base+r}, v{base+r} row_ror:{sh} row_mask:0xf bank_mask:0xf")
    e(f"ds_write_b128 v17, v[20:23] offset:{L_RED}")
    e(f"ds_write_b128 v17, v[36:39] offset:{L_RED + 1024}")
    e("v_and_b32 v17, 7, v0")
    e("v_lshlrev_b32 v17, 4, v17")
    e("v_bfe_u32 v18, v0, 3, 2")
    e("v_lshl_add_u32 v17, v18, 2, v17")
    e("s_waitcnt lgkmcnt(0)")
    if warm:
        e("s_cmp_lg_u32 s101, 0")
        e("s_cbranch_scc1 L_redfin")
    e("s_barrier")
    e("s_cmp_eq_u32 s3, 0")
    e("s_cbranch_scc0 L_auxend")
    A.label("L_redfin")
    for kind in range(2):
        for a in range(8):
            e(f"ds_read_b32 v{20+8*kind+a}, v17 offset:{L_RED + 1024*kind + 128*a}")
    e("v_lshlrev_b32 v14, 16, v14")
    e("v_lshlrev_b32 v15, 16, v15")
    e("s_waitcnt lgkmcnt(8)")
    def sum8(b):
        for k in (0, 2, 4, 6): e(f"v_add_f32 v{b+k}, v{b+k}, v{b+k+1}")
        e(f"v_add_f32 v{b}, v{b}, v{b+2}")
        e(f"v_add_f32 v{b+4}, v{b+4}, v{b+6}")
        e(f"v_add_f32 v{b}, v{b}, v{b+4}")
    def rnd(r):
        e(f"v_cvt_pk_bf16_f32 v{r}, v{r}, v{r}")
        e(f"v_and_b32 v{r}, 0xffff0000, v{r}")
    sum8(20)
    rnd(20)
    e("v_add_f32 v20, v20, v15")
    rnd(20)
    e(f"v_mul_f32 v21, 0x{(LOG2E ^ 0x80000000):x}, v20")
    e("v_exp_f32 v21, v21")
    e("s_waitcnt lgkmcnt(0)")
    sum8(28)
    e("v_add_f32 v21, 1.0, v21")
    e("v_rcp_f32 v21, v21")
    rnd(28)
    e("v_mul_f32 v20, v20, v21")
    rnd(20)
    e("v_mul_f32 v20, v28, v20")
    rnd(20)
    e("v_add_f32 v20, v14, v20")
    e("v_cvt_pk_bf16_f32 v20, v20, v20")
    if warm:
        e("s_cmp_lg_u32 s101, 0")
        e("s_cselect_b32 s62, 0, s62")
    e("s_mov_b32 exec_lo, -1\ns_mov_b32 exec_hi, 0")
    e("buffer_store_short v20, v13, s[60:63], s40 offen" + (" sc0 sc1" if outsc1 else ""))
    e("s_mov_b64 exec, -1")
    if warm:
        e("s_cmp_lg_u32 s101, 0")
        e("s_cbranch_scc1 L_drydone1")
    dbg(5)
    stamp(15)
    e("s_cmp_eq_u32 s2, 0")
    e("s_cbranch_scc0 L_auxend")
    e("s_mov_b64 exec, 1")
    e("v_mov_b32 v20, s46\nv_mov_b32 v21, s47\nv_mov_b32 v22, 0")
    e("buffer_store_dwordx2 v[20:21], v22, s[48:51], 0 offen sc1")
    e("s_mov_b64 exec, -1")
    A.label("L_auxend")
    stamp(15 + 1) if False else None
    dump_stamps(16)
    A.label("L_end")
    e("s_endpgm")
    st = A.items[MARK_STREAM0:MARK_STREAM1]
    A.items = A.items[:MARK_STREAM0] + A.items[MARK_STREAM1:] + st
    A.label("L_codeend")
    e("s_endpgm")
    A.raw('.section .rodata,"a"')
    A.raw(".p2align 6")
    A.raw(f".amdhsa_kernel {NAME}")
    acc = max(40 + 16 * D, 116)
    acc = (acc + 3) // 4 * 4
    A.raw(f"  .amdhsa_next_free_vgpr {acc + max(16 * D, 88)}")
    A.raw("  .amdhsa_next_free_sgpr 102")
    A.raw(f"  .amdhsa_accum_offset {acc}")
    A.raw("  .amdhsa_group_segment_fixed_size 0")
    A.raw("  .amdhsa_kernarg_size 104")
    A.raw("  .amdhsa_user_sgpr_count 2")
    A.raw("  .amdhsa_user_sgpr_kernarg_segment_ptr 1")
    A.raw("  .amdhsa_system_sgpr_workgroup_id_x 1")
    A.raw("  .amdhsa_float_denorm_mode_32 3")
    A.raw(".end_amdhsa_kernel")
    n = A.fix_hazards()
    return A.text(), n

if __name__ == "__main__":
    cfg = json.loads(sys.argv[2]) if len(sys.argv) > 2 else {}
    t, n = gen(**cfg)
    hdr = open("cdna_kernels/" + NAME[:-7] + ".s.ref").read().split("; Override launch")[0]
    lines = t.split("\n")
    doc = """;
"""
    out = hdr + lines[0] + "\n" + doc + "\n".join(lines[1:])
    open(sys.argv[1], "w").write(out)
    print("nops inserted:", n)
```
